```python
import torch

def _softmax(x, axis=-1):
    return torch.softmax(x, dim=axis)
def _gelu(x):
    return torch.nn.functional.gelu(x, approximate="tanh")
def _silu(x):
    return torch.nn.functional.silu(x)
def _sigmoid(x):
    return torch.sigmoid(x)
def _layernorm(x, axis=-1, eps=1e-5):
    m = x.mean(dim=axis, keepdim=True)
    v = x.var(dim=axis, keepdim=True, unbiased=False)
    return (x - m) / torch.sqrt(v + eps)
def _scatter_add(tgt, idx, src, axis=0):
    return tgt.clone().index_add_(axis, idx, src)
def _segment_sum(src, seg, n):
    out = torch.zeros((n,) + src.shape[1:], dtype=src.dtype)
    return out.index_add_(0, seg, src)
def _pad(x, pw):
    flat = tuple(v for pair in reversed(pw) for v in pair)
    return torch.nn.functional.pad(x, flat)

kernel_name = 'gated_mix__softmax_full_mha__mha_block__prompt'

def setup_inputs():

    _w = (lambda a: (lambda t: t.to(torch.bfloat16) if t.is_floating_point() else t)(torch.as_tensor(a)))
    def _A_setup():
        B, S, D = 1, 2048, 512
        return {
            "x": _w((lambda *s: torch.randn(*s, dtype=torch.bfloat16) * 0.05)(B, S, D)),
            "wqkv": _w((lambda *s: torch.randn(*s, dtype=torch.bfloat16) * 0.8)(D, 3 * D)),
            "wo": _w((lambda *s: torch.randn(*s, dtype=torch.bfloat16) * 0.05)(D, D)),
        }
    _A_in = _A_setup()

    def _B_setup():
        B, S, D, H = 1, 2048, 512, 32
        return {
            "x": _w((lambda *s: torch.randn(*s, dtype=torch.bfloat16) * 0.05)(B, S, D)),
            "wqkv": _w((lambda *s: torch.randn(*s, dtype=torch.bfloat16) * 0.8)(D, 3 * D)),
            "wo": _w((lambda *s: torch.randn(*s, dtype=torch.bfloat16) * 0.05)(D, D)),
        }
    _B_in = _B_setup()

    return {
        "A_x": _A_in["x"],
        "A_wqkv": _A_in["wqkv"],
        "A_wo": _A_in["wo"],
        "B_x": _B_in["x"],
        "B_wqkv": _B_in["wqkv"],
        "B_wo": _B_in["wo"],
        "gate_w": _w((lambda *s: torch.randn(*s, dtype=torch.bfloat16) * 0.05)(512) * 16.0),
    }

def reference(A_x, A_wqkv, A_wo, B_x, B_wqkv, B_wo, gate_w):
    def _A_ref(x, wqkv, wo):
        B, S, D = x.shape
        H = 32; Dh = D // H
        qkv = (lambda x, *d: x.permute(*d))((x @ wqkv).reshape(B, S, 3, H, Dh), 2, 0, 3, 1, 4)
        q, k, v = qkv[0], qkv[1], qkv[2]
        scale = Dh ** -0.5
        scores = torch.einsum("bhqd,bhkd->bhqk", q, k) * scale
        p = _softmax(scores, axis=-1)
        o = torch.einsum("bhqk,bhkd->bhqd", p, v)
        return (lambda x, *d: x.permute(*d))(o, 0, 2, 1, 3).reshape(B, S, D) @ wo

    def _B_ref(x, wqkv, wo):
        B, S, D = x.shape
        H = 32
        Dh = D // H
        qkv = (lambda x, *d: x.permute(*d))((x @ wqkv).reshape(B, S, 3, H, Dh), 2, 0, 3, 1, 4)
        q, k, v = qkv[0], qkv[1], qkv[2]
        scores = torch.einsum("bhqd,bhkd->bhqk", q, k) * (Dh ** -0.5)
        p = _softmax(scores, axis=-1)
        o = torch.einsum("bhqk,bhkd->bhqd", p, v)
        return (lambda x, *d: x.permute(*d))(o, 0, 2, 1, 3).reshape(B, S, D) @ wo

    x = A_x
    g = _sigmoid((x * gate_w).sum(-1, keepdims=True))
    a = _A_ref(x, A_wqkv, A_wo)
    b = _B_ref(x, B_wqkv, B_wo)
    return g * a + (1 - g) * b
```

```python
class Asm:
    def __init__(self):
        self.lines = []
    def __call__(self, s=""):
        for l in s.split("\n"):
            l = l.rstrip()
            if l.strip():
                self.lines.append(l if (l.endswith(":") or l.startswith(".") or l.startswith(";")) else "  " + l.strip())
    def c(self, s):
        self.lines.append("  ; " + s)
    def text(self):
        return "\n".join(self.lines) + "\n"

def v(a, n=1):
    return f"v{a}" if n == 1 else f"v[{a}:{a+n-1}]"
def s(a, n=1):
    return f"s{a}" if n == 1 else f"s[{a}:{a+n-1}]"

def srd(A, dst, lo, hi, nbytes):
    A(f"s_mov_b32 s{dst}, s{lo}")
    A(f"s_mov_b32 s{dst+1}, s{hi}")
    A(f"s_mov_b32 s{dst+2}, {hex(nbytes)}")
    A(f"s_mov_b32 s{dst+3}, 0x20000")

def kernel_head(A, name):
    A(".text")
    A(f".globl {name}")
    A(".p2align 8")
    A(f".type {name},@function")
    A(f"{name}:")

def kernel_desc(name, vgpr, sgpr=102):
    acc = (vgpr + 3) // 4 * 4
    return f""".section .rodata,"a"
.p2align 6
.amdhsa_kernel {name}
  .amdhsa_next_free_vgpr {vgpr}
  .amdhsa_next_free_sgpr {sgpr}
  .amdhsa_accum_offset {acc}
  .amdhsa_group_segment_fixed_size 0
  .amdhsa_kernarg_size 80
  .amdhsa_user_sgpr_count 2
  .amdhsa_user_sgpr_kernarg_segment_ptr 1
  .amdhsa_system_sgpr_workgroup_id_x 1
  .amdhsa_float_denorm_mode_32 3
.end_amdhsa_kernel
"""
```

```python
from base import *
import math

KN = "gated_mix__softmax_full_mha__mha_block__prompt"
sX, sW, sG, sWS, sWOA, sWOB, sOUT, sDBG = 24, 28, 32, 36, 40, 44, 48, 52
sWave, sSlab, sPair, sKC = 56, 57, 58, 59
sRG = 60
sT = 62
WS_KV, WS_O, WS_Q, WS_G, WS_FLAG, WS_SIZE = 0, 8 << 20, 12 << 20, 16 << 20, 20 << 20, 24 << 20
XS, WB, GW, QX, GV = 32768, 98304, 135168, 136192, 144384
SLOT, REC, HSTR = 33280, 2080, 16640
WO = 32768
LDS_TOTAL = 163840
QSCALE = 0.25 * math.log2(math.e)
LOG2E = math.log2(math.e)
def fbits(x):
    import struct
    return hex(struct.unpack("<I", struct.pack("<f", x))[0])

class Cfg:
    lr = 2
    fused12 = False
    fused23 = False
    prio = True
    stamps = False

def prologue(A, cfg, endlabel):
    A("s_cmp_ge_u32 s2, 256")
    A(f"s_cbranch_scc1 {endlabel}")
    A("s_load_dwordx16 s[4:19], s[0:1], 0")
    A("s_load_dwordx4 s[20:23], s[0:1], 64")
    A("v_lshrrev_b32 v1, 6, v0")
    A("v_and_b32 v0, 63, v0")
    A(f"v_readfirstlane_b32 s{sWave}, v1")
    lr = cfg.lr
    A(f"s_and_b32 s{sT}, s2, {(8 >> lr) - 1}")
    A(f"s_lshl_b32 s{sT}, s{sT}, {lr}")
    A(f"s_lshr_b32 s{sT+1}, s2, 3")
    A(f"s_and_b32 s{sT+2}, s{sT+1}, {(1 << lr) - 1}")
    A(f"s_or_b32 s{sSlab}, s{sT}, s{sT+2}")
    A(f"s_and_b32 s{sT}, s2, 7")
    A(f"s_lshr_b32 s{sT}, s{sT}, {3 - lr}")
    A(f"s_lshl_b32 s{sT}, s{sT}, {5 - lr}")
    A(f"s_lshr_b32 s{sT+1}, s{sT+1}, {lr}")
    A(f"s_add_u32 s{sPair}, s{sT}, s{sT+1}")
    A(f"s_add_u32 s{sKC}, s{sPair}, s{sSlab}")
    A(f"s_and_b32 s{sKC}, s{sKC}, 7")
    A(f"s_and_b32 s{sRG}, s{sWave}, 3")
    A("s_waitcnt lgkmcnt(0)")
    srd(A, sX, 4, 5, 2048 * 512 * 2)
    A(f"s_cmp_lt_u32 s{sPair}, 16")
    A(f"s_cselect_b32 s{sW}, s6, s12")
    A(f"s_cselect_b32 s{sW+1}, s7, s13")
    A(f"s_mov_b32 s{sW+2}, {hex(512*1536*2)}")
    A(f"s_mov_b32 s{sW+3}, 0x20000")
    srd(A, sG, 16, 17, 1024)
    srd(A, sWS, 22, 23, WS_SIZE)
    srd(A, sWOA, 8, 9, 512 * 512 * 2)
    srd(A, sWOB, 14, 15, 512 * 512 * 2)
    srd(A, sOUT, 18, 19, 2048 * 512 * 2)
    srd(A, sDBG, 20, 21, 256)

vXL, vXH = [2, 3, 4, 5], [6, 7, 8, 9]
vWa, vWb, vWv = 10, 11, 12
ACC = dict(QKa0=32, QKa1=48, QKb0=64, QKb1=80, VV0=96, VV1=112)
FR = [128, 148]

def xfrag_addr(A, L, H, t):
    A(f"v_and_b32 v{t}, 31, v0")
    A(f"v_lshrrev_b32 v{t+1}, 5, v0")
    A(f"v_bfe_u32 v{t+2}, v0, 1, 3")
    A(f"v_xor_b32 v{t+2}, v{t+2}, v{t+1}")
    A(f"v_lshlrev_b32 v{t}, 7, v{t}")
    A(f"s_lshl_b32 s{sT}, s{sRG}, 13")
    A(f"v_add_u32 v{t}, s{sT}, v{t}")
    for j in range(4):
        A(f"v_xor_b32 v{t+1}, {2*j}, v{t+2}")
        A(f"v_lshl_add_u32 v{L[j]}, v{t+1}, 4, v{t}")
        A(f"v_add_u32 v{H[j]}, 0x10000, v{L[j]}")

def p1_compute(A, cfg):
    A.c("---- phase 1, compute waves: [Q|K]^T for both heads and [Va|Vb] for 64 rows")
    xfrag_addr(A, vXL, vXH, 13)
    A("v_lshrrev_b32 v13, 5, v0")
    A("v_lshlrev_b32 v13, 3, v13")
    A("v_bfe_u32 v14, v0, 2, 2")
    A("v_add_u32 v13, v13, v14")
    A("v_mul_u32_u24 v13, 192, v13")
    A("v_and_b32 v14, 3, v0")
    A("v_lshl_add_u32 v13, v14, 3, v13")
    A(f"v_add_u32 v13, {WB}, v13")
    A("v_bfe_u32 v14, v0, 4, 1")
    A("v_mul_u32_u24 v15, 96, v14")
    A(f"v_add_u32 v{vWa}, v13, v15")
    A("v_lshl_add_u32 v13, v14, 5, v13")
    A(f"v_add_u32 v{vWb}, 32, v13")
    A(f"v_add_u32 v{vWv}, 128, v13")
    def reads(c, j, F):
        slot = c % 3
        xr = vXH[j] if slot == 2 else vXL[j]
        xi = XS if slot == 1 else 0
        wi = slot * 12288 + 16 * j * 192
        return [f"ds_read_b128 {v(F,4)}, v{xr} offset:{xi}",
                f"ds_read_b64_tr_b16 {v(F+8,2)}, v{vWa} offset:{wi}",
                f"ds_read_b64_tr_b16 {v(F+10,2)}, v{vWa} offset:{wi+768}",
                f"ds_read_b128 {v(F+4,4)}, v{xr} offset:{xi+4096}",
                f"ds_read_b64_tr_b16 {v(F+12,2)}, v{vWb} offset:{wi}",
                f"ds_read_b64_tr_b16 {v(F+14,2)}, v{vWb} offset:{wi+768}",
                f"ds_read_b64_tr_b16 {v(F+16,2)}, v{vWv} offset:{wi}",
                f"ds_read_b64_tr_b16 {v(F+18,2)}, v{vWv} offset:{wi+768}"]
    def mf(F, first):
        def m(D, a, b):
            return f"v_mfma_f32_32x32x16_bf16 {v(D,16)}, {v(a,4)}, {v(b,4)}, {'0' if first else v(D,16)}"
        return [m(ACC['QKa0'], F+8, F), m(ACC['QKa1'], F+8, F+4), m(ACC['QKb0'], F+12, F),
                m(ACC['QKb1'], F+12, F+4), m(ACC['VV0'], F, F+16), m(ACC['VV1'], F+4, F+16)]
    A("s_barrier")
    for r in reads(0, 0, FR[0]): A(r)
    for n in range(32):
        c, j = divmod(n, 4)
        M = mf(FR[n & 1], n == 0)
        A("s_waitcnt lgkmcnt(0)")
        if n == 31:
            for m in M: A(m)
            break
        if j == 3: A("s_barrier")
        c2, j2 = divmod(n + 1, 4)
        R = reads(c2, j2, FR[(n + 1) & 1])
        A(M[0]); A(R[0]); A(R[1]); A(R[2])
        A(M[1]); A(R[3]); A(R[4]); A(R[5])
        A(M[2]); A(R[6]); A(R[7])
        A(M[3]); A(M[4]); A(M[5])

vQ = [8, 12]
def p1_compute_epilogue(A, cfg):
    A.c("---- phase 1 epilogue: convert, publish K/V")
    sc = " sc1" if cfg.fused12 else ""
    A(f"s_lshl_b32 s{sT}, s{sPair}, 3")
    A(f"s_add_u32 s{sT}, s{sT}, s{sSlab}")
    A(f"s_lshl_b32 s{sT}, s{sT}, 15")
    A(f"s_lshl_b32 s{sT+1}, s{sRG}, 12")
    A(f"s_add_u32 s{sT}, s{sT}, s{sT+1}")
    A(f"s_add_u32 s{sT+1}, s{sT}, 16384")
    A("v_lshlrev_b32 v2, 4, v0")
    A("v_bfe_u32 v13, v0, 4, 1")
    A("v_lshrrev_b32 v14, 5, v0")
    A("v_and_b32 v15, 15, v0")
    A("v_lshlrev_b32 v15, 4, v15")
    A("v_lshl_add_u32 v15, v14, 8, v15")
    A("v_add_u32 v15, 1024, v15")
    A("v_lshl_add_u32 v3, v13, 14, v15")
    if cfg.fused12:
        A(f"s_mul_i32 s{sT+2}, s{sRG}, {2*REC}")
        A(f"s_add_u32 s{sT+2}, s{sT+2}, {2*SLOT}")
        A(f"v_add_u32 v4, s{sT+2}, v2")
        A(f"v_mul_u32_u24 v13, {HSTR}, v13")
        A(f"v_add3_u32 v5, v13, v15, s{sT+2}")
    def cvt(dst, src):
        for i in range(4):
            A(f"v_cvt_pk_bf16_f32 v{dst+i}, v{src+2*i}, v{src+2*i+1}")
    tmp = [128, 132, 136, 140, 144, 148, 152, 156]
    k = 0
    for hd, names in ((0, ("QKa0", "QKa1")), (1, ("QKb0", "QKb1"))):
        for t in (0, 1):
            cvt(tmp[k], ACC[names[t]] + 8)
            A(f"buffer_store_dwordx4 {v(tmp[k],4)}, v2, s[{sWS}:{sWS+3}], s{sT+hd} offen offset:{t*2048}{sc}")
            if cfg.fused12:
                A(f"ds_write_b128 v4, {v(tmp[k],4)} offset:{hd*HSTR + t*REC}")
            k += 1
    for t in (0, 1):
        for a in (0, 1):
            cvt(tmp[k], ACC[f"VV{t}"] + 8 * a)
            A(f"buffer_store_dwordx4 {v(tmp[k],4)}, v3, s[{sWS}:{sWS+3}], s{sT} offen offset:{t*2048 + a*512}{sc}")
            if cfg.fused12:
                A(f"ds_write_b128 v5, {v(tmp[k],4)} offset:{t*REC + a*512}")
            k += 1
    A(f"s_mov_b32 s{sT+4}, {fbits(QSCALE)}")
    A(f"s_mov_b32 s{sT+5}, {fbits(QSCALE)}")
    for hd, names in ((0, ("QKa0", "QKa1")), (1, ("QKb0", "QKb1"))):
        for t in (0, 1):
            q = ACC[names[t]]
            for i in range(4):
                A(f"v_pk_mul_f32 {v(q+2*i,2)}, {v(q+2*i,2)}, s[{sT+4}:{sT+5}]")
            dst = vQ[t] if hd == 0 else 16 + 4 * t
            cvt(dst, q)
    if cfg.fused12:
        A(f"s_lshl_b32 s{sT+2}, s{sRG}, 11")
        A(f"s_add_u32 s{sT+2}, s{sT+2}, {QX}")
        A(f"v_add_u32 v4, s{sT+2}, v2")
        A(f"ds_write_b128 v4, v[16:19]")
        A(f"ds_write_b128 v4, v[20:23] offset:1024")
    else:
        A(f"s_lshl_b32 s{sT+2}, s2, 14")
        A(f"s_lshl_b32 s{sT+3}, s{sRG}, 11")
        A(f"s_add_u32 s{sT+2}, s{sT+2}, s{sT+3}")
        A(f"s_add_u32 s{sT+2}, s{sT+2}, {WS_Q}")
        A(f"s_add_u32 s{sT+3}, s{sT+2}, 8192")
        A(f"buffer_store_dwordx4 v[8:11], v2, s[{sWS}:{sWS+3}], s{sT+2} offen")
        A(f"buffer_store_dwordx4 v[12:15], v2, s[{sWS}:{sWS+3}], s{sT+2} offen offset:1024")
        A(f"buffer_store_dwordx4 v[16:19], v2, s[{sWS}:{sWS+3}], s{sT+3} offen")
        A(f"buffer_store_dwordx4 v[20:23], v2, s[{sWS}:{sWS+3}], s{sT+3} offen offset:1024")

def p1_loader(A, cfg):
    A.c("---- phase 1, loader waves: LDS-DMA of x / W chunks, gate logits")
    sXb, sXo, sWb_, sWo, sK2 = sT + 8, sT + 9, sT + 10, sT + 11, sT + 12
    sM = sT + 13
    A("v_lshrrev_b32 v13, 3, v0")
    A("v_lshlrev_b32 v13, 10, v13")
    A("v_and_b32 v14, 7, v0")
    A("v_lshrrev_b32 v15, 4, v0")
    A("v_xor_b32 v14, v14, v15")
    A("v_lshl_add_u32 v13, v14, 4, v13")
    A("v_xor_b32 v14, 64, v13")
    for i in range(8):
        A(f"v_add_u32 v{2+i}, {i*8192 - (i&3)*1024}, v{14 if i & 1 else 13}")
    A(f"s_lshl_b32 s{sXb}, s{sSlab}, 18")
    A(f"s_lshl_b32 s{sT}, s{sRG}, 16")
    A(f"s_add_u32 s{sXb}, s{sXb}, s{sT}")
    A(f"s_and_b32 s{sWb_}, s{sPair}, 15")
    A(f"s_lshl_b32 s{sWb_}, s{sWb_}, 6")
    A(f"s_mul_i32 s{sT}, s{sRG}, 192")
    for i in range(3):
        A(f"v_add_u32 v13, s{sT}, v0")
        if i: A(f"v_add_u32 v13, {64*i}, v13")
        A("v_mul_u32_u24 v14, 0x5556, v13")
        A("v_lshrrev_b32 v14, 18, v14")
        A("v_mul_u32_u24 v15, 12, v14")
        A("v_sub_u32 v15, v13, v15")
        A("v_lshrrev_b32 v13, 2, v15")
        A("v_and_b32 v15, 3, v15")
        A("v_and_b32 v16, 1, v13")
        A("v_lshlrev_b32 v16, 1, v16")
        A("v_xor_b32 v15, v15, v16")
        A("v_mul_u32_u24 v14, 3072, v14")
        A("v_lshl_add_u32 v14, v13, 10, v14")
        A(f"v_lshl_add_u32 v{10+i}, v15, 4, v14")
        if i: A(f"v_subrev_u32 v{10+i}, {1024*i}, v{10+i}")
    def issue(c):
        slot = c % 3
        A(f"s_add_u32 s{sK2}, s{sKC}, {c}")
        A(f"s_and_b32 s{sK2}, s{sK2}, 7")
        A(f"s_lshl_b32 s{sXo}, s{sK2}, 7")
        A(f"s_add_u32 s{sXo}, s{sXo}, s{sXb}")
        A(f"s_lshl_b32 s{sM}, s{sRG}, 13")
        A(f"s_add_u32 m0, s{sM}, {slot*XS}")
        A(f"s_mul_i32 s{sWo}, s{sK2}, 196608")
        for i in range(8):
            if i == 4:
                A(f"s_add_u32 m0, s{sM}, {slot*XS + 4096}")
                A(f"s_add_u32 s{sWo}, s{sWo}, s{sWb_}")
            A(f"buffer_load_dwordx4 v{2+i}, s[{sX}:{sX+3}], s{sXo} offen offset:{(i&3)*1024} lds")
        A(f"s_mul_i32 s{sM}, s{sRG}, 3072")
        A(f"s_add_u32 m0, s{sM}, {WB + slot*12288}")
        A("s_nop 0")
        for i in range(3):
            A(f"buffer_load_dwordx4 v{10+i}, s[{sW}:{sW+3}], s{sWo} offen offset:{i*1024} lds")
    issue(0)
    A("v_lshlrev_b32 v13, 4, v0")
    A(f"s_mov_b32 m0, {GW}")
    A("s_nop 0")
    A(f"buffer_load_dwordx4 v13, s[{sG}:{sG+3}], 0 offen lds")
    issue(1); issue(2)
    gL, gH, vG0, vG = [16, 17, 18, 19], [20, 21, 22, 23], 24, 25
    xfrag_addr(A, gL, gH, 13)
    A("v_lshrrev_b32 v13, 5, v0")
    A("v_lshlrev_b32 v13, 4, v13")
    A(f"v_add_u32 v{vG0}, {GW}, v13")
    for i in range(8): A(f"v_mov_b32 v{32+i}, 0")
    for c in range(8):
        A(f"s_waitcnt vmcnt({22 if c == 0 else (11 if c < 7 else 0)})")
        A("s_barrier")
        if 1 <= c <= 5: issue(c + 2)
        slot = c % 3
        A(f"s_add_u32 s{sK2}, s{sKC}, {c}")
        A(f"s_and_b32 s{sK2}, s{sK2}, 7")
        A(f"s_lshl_b32 s{sK2}, s{sK2}, 7")
        A(f"v_add_u32 v{vG}, s{sK2}, v{vG0}")
        for j in range(4):
            xr = gH[j] if slot == 2 else gL[j]
            xi = XS if slot == 1 else 0
            F = 40 + 12 * j
            A(f"ds_read_b128 {v(F,4)}, v{xr} offset:{xi}")
            A(f"ds_read_b128 {v(F+4,4)}, v{xr} offset:{xi+4096}")
            A(f"ds_read_b128 {v(F+8,4)}, v{vG} offset:{32*j}")
        for j in range(4):
            F = 40 + 12 * j
            A(f"s_waitcnt lgkmcnt({9-3*j})")
            for i in range(8):
                A(f"v_dot2_f32_bf16 v{32+i}, v{F+i}, v{F+8+(i&3)}, v{32+i}")
    A.c("gate factor = sigmoid(+-z)")
    A("s_nop 2")
    for t in (0, 1):
        b = 32 + 4 * t
        A(f"v_add_f32 v{b}, v{b}, v{b+1}")
        A(f"v_add_f32 v{b+2}, v{b+2}, v{b+3}")
        A(f"v_add_f32 v{b}, v{b}, v{b+2}")
        A(f"v_mov_b32 v{b+1}, v{b}")
    A(f"s_cmp_lt_u32 s{sPair}, 16")
    A(f"s_mov_b32 s{sT}, {fbits(LOG2E)}")
    A(f"s_cselect_b32 s{sT}, {fbits(-LOG2E)}, s{sT}")
    for t in (0, 1):
        b = 32 + 4 * t
        A(f"v_permlane32_swap_b32 v{b}, v{b+1}")
    for t in (0, 1):
        b = 32 + 4 * t
        A(f"v_add_f32 v{b}, v{b}, v{b+1}")
    for t in (0, 1):
        A(f"v_mul_f32 v{32+4*t}, s{sT}, v{32+4*t}")
    for t in (0, 1):
        A(f"v_exp_f32 v{32+4*t}, v{32+4*t}")
    A("s_nop 0")
    for t in (0, 1):
        A(f"v_add_f32 v{32+4*t}, 1.0, v{32+4*t}")
    for t in (0, 1):
        A(f"v_rcp_f32 v{32+4*t}, v{32+4*t}")
    A("v_and_b32 v13, 31, v0")
    A("v_lshlrev_b32 v13, 2, v13")
    A(f"s_lshl_b32 s{sT}, s{sRG}, 8")
    if cfg.fused12:
        A(f"s_add_u32 s{sT}, s{sT}, {GV}")
        A(f"v_add_u32 v13, s{sT}, v13")
        A("ds_write_b32 v13, v32")
        A("ds_write_b32 v13, v36 offset:128")
    else:
        A(f"s_lshl_b32 s{sT+1}, s2, 10")
        A(f"s_add_u32 s{sT}, s{sT}, s{sT+1}")
        A(f"s_add_u32 s{sT}, s{sT}, {WS_G}")
        A(f"buffer_store_dword v32, v13, s[{sWS}:{sWS+3}], s{sT} offen")
        A(f"buffer_store_dword v36, v13, s[{sWS}:{sWS+3}], s{sT} offen offset:128")

vKL, vV0L, vV1L, vKH, vV0H, vV1H = 2, 3, 4, 28, 29, 30
vGF = [5, 6]
vL16 = 7
vKf, vV0f, vV1f = 16, 20, 24
S_ = [32, 48]
O_ = [64, 80]
P_ = 96
sCH = sT + 8
sCO = sT + 9
sMB = sT + 10

def p2_addr(A):
    A(f"v_lshlrev_b32 v{vL16}, 4, v0")
    A(f"s_lshr_b32 s{sT}, s{sWave}, 2")
    A(f"s_mul_i32 s{sT}, s{sT}, {HSTR}")
    A(f"v_add_u32 v{vKL}, s{sT}, v{vL16}")
    A("v_lshrrev_b32 v104, 5, v0")
    A("v_and_b32 v105, 15, v0")
    A("v_lshlrev_b32 v105, 4, v105")
    A("v_lshl_add_u32 v105, v104, 8, v105")
    A("v_add_u32 v105, 1024, v105")
    A("v_add_u32 v106, 512, v105")
    A("v_and_b32 v104, 11, v0")
    A("v_cmp_eq_u32 vcc, 0, v104")
    A("v_mov_b32 v107, 2064")
    A("v_mov_b32 v108, 2048")
    A("v_cndmask_b32 v107, v107, v108, vcc")
    A("v_and_b32 v104, 16, v0")
    A("v_cmp_eq_u32 vcc, 0, v104")
    A("s_nop 1")
    A("v_cndmask_b32 v105, v107, v105, vcc")
    A("v_cndmask_b32 v106, v107, v106, vcc")
    A(f"v_add_u32 v{vV0L}, s{sT}, v105")
    A(f"v_add_u32 v{vV1L}, s{sT}, v106")
    A(f"v_add_u32 v{vKH}, {2*SLOT}, v{vKL}")
    A(f"v_add_u32 v{vV0H}, {2*SLOT}, v{vV0L}")
    A(f"v_add_u32 v{vV1H}, {2*SLOT}, v{vV1L}")
    A(f"s_lshl_b32 s{sCH}, s{sPair}, 18")
    A(f"s_lshl_b32 s{sT+1}, s{sWave}, 12")
    A(f"s_add_u32 s{sCH}, s{sCH}, s{sT+1}")
    A(f"s_mul_i32 s{sMB}, s{sWave}, {2*REC}")

def consts(A, slots):
    A("v_lshrrev_b32 v104, 4, v0")
    A(f"v_mul_u32_u24 v104, {SLOT}, v104")
    A("v_and_b32 v105, 15, v0")
    A(f"v_mul_u32_u24 v105, {REC}, v105")
    A("v_add_u32 v104, v104, v105")
    if slots[0]: A(f"v_add_u32 v104, {slots[0]*SLOT}, v104")
    for i in range(4):
        A(f"v_mov_b32 v{108+i}, 0x3f803f80")
        A(f"v_mov_b32 v{112+i}, 0")
    n = 16 * len(slots)
    A(f"s_mov_b32 exec_lo, {hex((1 << min(n,32)) - 1)}")
    A(f"s_mov_b32 exec_hi, {hex((1 << max(n-32,0)) - 1)}")
    A("ds_write_b128 v104, v[108:111] offset:2048")
    A("ds_write_b128 v104, v[112:115] offset:2064")
    A("s_mov_b64 exec, -1")

def slot_of(i): return (i + 2) % 3

def kv_dma_setup(i):
    return [f"s_add_u32 s{sCO}, s{sSlab}, {i}", f"s_and_b32 s{sCO}, s{sCO}, 7",
            f"s_lshl_b32 s{sCO}, s{sCO}, 15", f"s_add_u32 s{sCO}, s{sCO}, s{sCH}"]
def kv_dma_jobs(i, sc):
    base = slot_of(i) * SLOT
    return [[f"s_add_u32 m0, s{sMB}, {base}", "s_nop 0",
             f"buffer_load_dwordx4 v{vL16}, s[{sWS}:{sWS+3}], s{sCO} offen{sc} lds"],
            [f"buffer_load_dwordx4 v{vL16}, s[{sWS}:{sWS+3}], s{sCO} offen offset:1024{sc} lds"],
            [f"s_add_u32 m0, s{sMB}, {base + REC - 2048}", "s_nop 0",
             f"buffer_load_dwordx4 v{vL16}, s[{sWS}:{sWS+3}], s{sCO} offen offset:2048{sc} lds"],
            [f"buffer_load_dwordx4 v{vL16}, s[{sWS}:{sWS+3}], s{sCO} offen offset:3072{sc} lds"]]

def rd(kind, i, t):
    if t == 8: i, t = i + 1, 0
    sl = slot_of(i)
    hi = sl == 2
    imm = (SLOT if sl == 1 else 0) + t * REC
    if kind == 'K': return f"ds_read_b128 {v(vKf,4)}, v{vKH if hi else vKL} offset:{imm}"
    if kind == 'V0': return f"ds_read_b128 {v(vV0f,4)}, v{vV0H if hi else vV0L} offset:{imm}"
    return f"ds_read_b128 {v(vV1f,4)}, v{vV1H if hi else vV1L} offset:{imm}"

def unit(A, q, first, last, slotA, slotB, slotC, first_o):
    S, Sn = S_[q], S_[q ^ 1]
    O, Op = O_[q], O_[q ^ 1]
    e = lambda i: A(f"v_exp_f32 v{S+i}, v{S+i}")
    c = lambda i: A(f"v_cvt_pk_bf16_f32 v{P_+i}, v{S+2*i}, v{S+2*i+1}")
    M = "v_mfma_f32_32x32x16_bf16"
    e(0)
    if not first: A(f"v_cvt_pk_bf16_f32 v{P_+7}, v{Sn+14}, v{Sn+15}")
    e(1); e(2)
    if not first: A(f"{M} {v(Op,16)}, {v(vV1f,4)}, {v(P_+4,4)}, {v(Op,16)}")
    for x in slotA: A(x)
    c(0); e(3); e(4); c(1); e(5); e(6)
    if not last: A(f"{M} {v(Sn,16)}, {v(vKf,4)}, {v(vQ[q^1],4)}, 0")
    for x in slotB: A(x)
    c(2); e(7); e(8); c(3); e(9); e(10)
    A(f"{M} {v(O,16)}, {v(vV0f,4)}, {v(P_,4)}, {'0' if first_o else v(O,16)}")
    for x in slotC: A(x)
    c(4); e(11); e(12); c(5); e(13); e(14); c(6); e(15)

def p2_main(A, cfg, jobs):
    M = "v_mfma_f32_32x32x16_bf16"
    A.c("---- phase 2: attention main loop (P = exp2(S), row sums ride in the PV MFMA)")
    A(rd('K', 0, 0)); A(rd('V0', 0, 0))
    A("s_waitcnt lgkmcnt(1)")
    A(f"{M} {v(S_[0],16)}, {v(vKf,4)}, {v(vQ[0],4)}, 0")
    A("s_nop 7"); A("s_nop 3")
    for i in range(8):
        for t in range(8):
            first = (i == 0 and t == 0)
            lastt = (i == 7 and t == 7)
            sA = [rd('V1', i, t)]
            sB = ["s_waitcnt lgkmcnt(1)"] + ([] if lastt else [rd('K', i, t + 1)])
            sC = ["s_waitcnt lgkmcnt(0)" if lastt else "s_waitcnt lgkmcnt(1)"]
            unit(A, 0, first, False, sA, sB, sC, first)
            sA = ["s_waitcnt lgkmcnt(0)"]
            sB = list(jobs.get((i, t), []))
            sC = [] if lastt else [rd('V0', i, t + 1)]
            unit(A, 1, False, lastt, sA, sB, sC, first)
    A("s_nop 0")
    A(f"v_cvt_pk_bf16_f32 v{P_+7}, v{S_[1]+14}, v{S_[1]+15}")
    A("s_nop 1")
    A(f"{M} {v(O_[1],16)}, {v(vV1f,4)}, {v(P_+4,4)}, {v(O_[1],16)}")

def p2_epilogue(A, cfg):
    A.c("---- normalise (gate factor / row sum), round, publish O fragments")
    sc = " sc1" if cfg.fused23 else ""
    A(f"s_lshl_b32 s{sT}, s{sSlab}, 3")
    A(f"s_lshl_b32 s{sT+1}, s{sRG}, 1")
    A(f"s_add_u32 s{sT}, s{sT}, s{sT+1}")
    A(f"s_lshl_b32 s{sT}, s{sT}, 16")
    A(f"s_lshl_b32 s{sT+1}, s{sPair}, 1")
    A(f"s_lshr_b32 s{sT+2}, s{sWave}, 2")
    A(f"s_add_u32 s{sT+1}, s{sT+1}, s{sT+2}")
    A(f"s_lshl_b32 s{sT+1}, s{sT+1}, 10")
    A(f"s_add_u32 s{sT}, s{sT}, s{sT+1}")
    A(f"s_add_u32 s{sT}, s{sT}, {WS_O}")
    A(f"s_add_u32 s{sT+1}, s{sT}, 65536")
    for q in (0, 1):
        O = O_[q]
        if q == 1: A("s_nop 1")
        A(f"v_rcp_f32 v104, v{O+8}")
        A("s_nop 0")
        A(f"v_mul_f32 v104, v104, v{vGF[q]}")
        for i in range(8): A(f"v_mul_f32 v{O+i}, v{O+i}, v104")
        for i in range(4): A(f"v_cvt_pk_bf16_f32 v{108+4*q+i}, v{O+2*i}, v{O+2*i+1}")
        A(f"buffer_store_dwordx4 {v(108+4*q,4)}, v{vL16}, s[{sWS}:{sWS+3}], s{sT+q} offen{sc}")

sS3, sR3, sC3 = sT + 12, sT + 13, sT + 14
def p3_ids(A):
    A(f"s_and_b32 s{sS3}, s2, 7")
    A(f"s_bfe_u32 s{sR3}, s2, 0x20003")
    A(f"s_lshr_b32 s{sC3}, s2, 5")
vWoD = 31
def p3_wo_voff(A):
    A("v_lshrrev_b32 v104, 3, v0")
    A("v_lshlrev_b32 v104, 10, v104")
    A("v_and_b32 v105, 7, v0")
    A("v_bfe_u32 v106, v0, 4, 1")
    A("v_lshlrev_b32 v106, 2, v106")
    A("v_xor_b32 v105, v105, v106")
    A(f"v_lshl_add_u32 v{vWoD}, v105, 4, v104")

def p3_body(A, cfg, o_loaded=False):
    A.c("---- phase 3: out tile 64x64 = [gA*OA | gB*OB] @ [WoA ; WoB]")
    sc = " sc1" if cfg.fused23 else ""
    OF = 128
    AC = [32, 48]
    WF = [64, 72, 80, 88]
    A(f"s_lshl_b32 s{sT}, s{sS3}, 3")
    A(f"s_lshl_b32 s{sT+1}, s{sR3}, 1")
    A(f"s_add_u32 s{sT}, s{sT}, s{sT+1}")
    A(f"s_and_b32 s{sT+1}, s{sWave}, 1")
    A(f"s_add_u32 s{sT}, s{sT}, s{sT+1}")
    A(f"s_lshl_b32 s{sT}, s{sT}, 16")
    A(f"s_lshr_b32 s{sT+1}, s{sWave}, 1")
    A(f"s_lshl_b32 s{sT+2}, s{sT+1}, 14")
    A(f"s_add_u32 s{sT}, s{sT}, s{sT+2}")
    A(f"s_add_u32 s{sT}, s{sT}, {WS_O}")
    A(f"v_lshlrev_b32 v{vL16}, 4, v0")
    for hh in range(16):
        if hh and hh % 4 == 0: A(f"s_add_u32 s{sT}, s{sT}, 4096")
        A(f"buffer_load_dwordx4 {v(OF+4*hh,4)}, v{vL16}, s[{sWS}:{sWS+3}], s{sT} offen offset:{(hh%4)*1024}{sc}")
    return OF, AC, WF

def p3_addr(A):
    A("v_lshrrev_b32 v104, 5, v0")
    A("v_lshlrev_b32 v104, 2, v104")
    A("v_bfe_u32 v105, v0, 2, 2")
    A("v_add_u32 v104, v104, v105")
    A("v_lshlrev_b32 v104, 7, v104")
    A("v_bfe_u32 v105, v0, 4, 1")
    A("v_lshlrev_b32 v105, 1, v105")
    A("v_bfe_u32 v106, v0, 1, 1")
    A("v_add_u32 v105, v105, v106")
    A("v_bfe_u32 v106, v0, 3, 1")
    A("v_lshlrev_b32 v106, 2, v106")
    A("v_xor_b32 v105, v105, v106")
    A("v_lshl_add_u32 v104, v105, 4, v104")
    A("v_and_b32 v105, 1, v0")
    A("v_lshl_add_u32 v104, v105, 3, v104")
    A(f"s_lshr_b32 s{sT+4}, s{sWave}, 1")
    A(f"s_lshl_b32 s{sT+4}, s{sT+4}, 15")
    A(f"s_add_u32 s{sT+4}, s{sT+4}, {WO}")
    A(f"v_add_u32 v2, s{sT+4}, v104")
    A("v_xor_b32 v3, 64, v2")

def p3_gemm(A, cfg, OF, AC, WF, vm_after):
    M = "v_mfma_f32_32x32x16_bf16"
    def rdw(hh, F):
        return [f"ds_read_b64_tr_b16 {v(F,2)}, v2 offset:{hh*2048}", f"ds_read_b64_tr_b16 {v(F+2,2)}, v2 offset:{hh*2048+1024}",
                f"ds_read_b64_tr_b16 {v(F+4,2)}, v3 offset:{hh*2048}", f"ds_read_b64_tr_b16 {v(F+6,2)}, v3 offset:{hh*2048+1024}"]
    for x in rdw(0, WF[0]): A(x)
    for x in rdw(1, WF[1]): A(x)
    for hh in range(16):
        F = WF[hh % 4]
        A(f"s_waitcnt vmcnt({15-hh+vm_after}) lgkmcnt({4 if hh < 15 else 0})")
        A(f"{M} {v(AC[0],16)}, {v(F,4)}, {v(OF+4*hh,4)}, {'0' if hh == 0 else v(AC[0],16)}")
        R = rdw(hh + 2, WF[(hh + 2) % 4]) if hh + 2 < 16 else []
        for x in R[:2]: A(x)
        A(f"{M} {v(AC[1],16)}, {v(F+4,4)}, {v(OF+4*hh,4)}, {'0' if hh == 0 else v(AC[1],16)}")
        for x in R[2:]: A(x)

def p3_reduce(A, cfg, AC):
    PS = 272
    A("s_barrier")
    A("v_and_b32 v104, 31, v0")
    A(f"s_and_b32 s{sT}, s{sWave}, 1")
    A(f"s_lshl_b32 s{sT}, s{sT}, 5")
    A(f"s_lshr_b32 s{sT+1}, s{sWave}, 1")
    A(f"s_lshl_b32 s{sT+1}, s{sT+1}, 6")
    A(f"s_add_u32 s{sT}, s{sT}, s{sT+1}")
    A(f"v_add_u32 v104, s{sT}, v104")
    A(f"v_mul_u32_u24 v104, {PS}, v104")
    A("v_lshrrev_b32 v105, 5, v0")
    A("v_lshl_add_u32 v104, v105, 4, v104")
    A("s_nop 3")
    for ct in (0, 1):
        for rq in range(4):
            A(f"ds_write_b128 v104, {v(AC[ct]+4*rq,4)} offset:{ct*128 + rq*32}")
    A("v_lshrrev_b32 v105, 3, v0")
    A(f"s_lshl_b32 s{sT}, s{sWave}, 3")
    A(f"v_add_u32 v105, s{sT}, v105")
    A(f"v_mul_u32_u24 v106, {PS}, v105")
    A("v_and_b32 v107, 7, v0")
    A("v_lshl_add_u32 v106, v107, 5, v106")
    A(f"s_lshl_b32 s{sT}, s{sS3}, 8")
    A(f"s_lshl_b32 s{sT+1}, s{sR3}, 6")
    A(f"s_add_u32 s{sT}, s{sT}, s{sT+1}")
    A(f"s_lshl_b32 s{sT}, s{sT}, 10")
    A(f"s_lshl_b32 s{sT+1}, s{sC3}, 7")
    A(f"s_add_u32 s{sT}, s{sT}, s{sT+1}")
    A("v_lshlrev_b32 v105, 10, v105")
    A("v_lshl_add_u32 v105, v107, 4, v105")
    A("s_waitcnt lgkmcnt(0)")
    A("s_barrier")
    for kq in range(4):
        A(f"ds_read_b128 {v(64+8*kq,4)}, v106 offset:{kq*64*PS}")
        A(f"ds_read_b128 {v(68+8*kq,4)}, v106 offset:{kq*64*PS+16}")
    A("s_waitcnt lgkmcnt(4)")
    for i in range(4): A(f"v_pk_add_f32 {v(64+2*i,2)}, {v(64+2*i,2)}, {v(72+2*i,2)}")
    A("s_waitcnt lgkmcnt(0)")
    for i in range(4): A(f"v_pk_add_f32 {v(80+2*i,2)}, {v(80+2*i,2)}, {v(88+2*i,2)}")
    for i in range(4): A(f"v_pk_add_f32 {v(64+2*i,2)}, {v(64+2*i,2)}, {v(80+2*i,2)}")
    for i in range(4): A(f"v_cvt_pk_bf16_f32 v{96+i}, v{64+2*i}, v{65+2*i}")
    A(f"buffer_store_dwordx4 v[96:99], v105, s[{sOUT}:{sOUT+3}], s{sT} offen")

def k_phase1(cfg, name):
    A = Asm(); kernel_head(A, name)
    prologue(A, cfg, f"{name}_end")
    A(f"s_cmp_ge_u32 s{sWave}, 4")
    A(f"s_cbranch_scc1 {name}_ld")
    p1_compute(A, cfg)
    p1_compute_epilogue(A, cfg)
    A("s_endpgm")
    A(f"{name}_ld:")
    p1_loader(A, cfg)
    A(f"{name}_end:")
    A("s_endpgm")
    return A.text() + kernel_desc(name, 168)

def k_phase2(cfg, name):
    A = Asm(); kernel_head(A, name)
    prologue(A, cfg, f"{name}_end")
    p2_addr(A)
    for i in range(3):
        for x in kv_dma_setup(i): A(x)
        for job in kv_dma_jobs(i, ""):
            for x in job: A(x)
    A(f"s_lshl_b32 s{sT+2}, s2, 14")
    A(f"s_lshl_b32 s{sT+3}, s{sWave}, 11")
    A(f"s_add_u32 s{sT+2}, s{sT+2}, s{sT+3}")
    A(f"s_add_u32 s{sT+2}, s{sT+2}, {WS_Q}")
    A(f"buffer_load_dwordx4 v[8:11], v{vL16}, s[{sWS}:{sWS+3}], s{sT+2} offen")
    A(f"buffer_load_dwordx4 v[12:15], v{vL16}, s[{sWS}:{sWS+3}], s{sT+2} offen offset:1024")
    A("v_and_b32 v104, 31, v0")
    A("v_lshlrev_b32 v104, 2, v104")
    A(f"s_lshl_b32 s{sT}, s{sRG}, 8")
    A(f"s_lshl_b32 s{sT+1}, s2, 10")
    A(f"s_add_u32 s{sT}, s{sT}, s{sT+1}")
    A(f"s_add_u32 s{sT}, s{sT}, {WS_G}")
    A(f"buffer_load_dword v{vGF[0]}, v104, s[{sWS}:{sWS+3}], s{sT} offen")
    A(f"buffer_load_dword v{vGF[1]}, v104, s[{sWS}:{sWS+3}], s{sT} offen offset:128")
    consts(A, [0, 1, 2])
    A("s_waitcnt vmcnt(0) lgkmcnt(0)")
    A("s_barrier")
    jobs = {}
    for i in range(8):
        if cfg.prio:
            for t, pr in ((1, 2), (3, 1), (5, 0), (7, 3)):
                jobs.setdefault((i, t), []).append(f"s_setprio {pr}")
        if i < 7:
            jobs.setdefault((i, 7), []).extend(["s_waitcnt vmcnt(0)", "s_barrier"])
        if 1 <= i <= 5:
            J = kv_dma_jobs(i + 2, "")
            jobs.setdefault((i, 0), []).extend(kv_dma_setup(i + 2) + J[0])
            jobs.setdefault((i, 1), []).extend(J[1])
            jobs.setdefault((i, 2), []).extend(J[2])
            jobs.setdefault((i, 3), []).extend(J[3])
    if cfg.prio: A("s_setprio 3")
    p2_main(A, cfg, jobs)
    p2_epilogue(A, cfg)
    A(f"{name}_end:")
    A("s_endpgm")
    return A.text() + kernel_desc(name, 128)

def k_phase3(cfg, name):
    A = Asm(); kernel_head(A, name)
    prologue(A, cfg, f"{name}_end")
    p3_ids(A)
    p3_wo_voff(A)
    A(f"s_and_b32 s{sT}, s{sWave}, 3")
    A(f"s_lshl_b32 s{sT}, s{sT}, 17")
    A(f"s_lshl_b32 s{sT+1}, s{sC3}, 7")
    A(f"s_add_u32 s{sT}, s{sT}, s{sT+1}")
    A(f"s_lshl_b32 s{sT+1}, s{sWave}, 14")
    A(f"s_add_u32 s{sT+1}, s{sT+1}, {WO}")
    A(f"s_cmp_lt_u32 s{sWave}, 4")
    A(f"s_cselect_b32 s{sWOA}, s{sWOA}, s{sWOB}")
    A(f"s_cselect_b32 s{sWOA+1}, s{sWOA+1}, s{sWOB+1}")
    for u in range(16):
        A(f"s_add_u32 m0, s{sT+1}, {u*1024}")
        A(f"s_add_u32 s{sT+2}, s{sT}, {u*8192}")
        A(f"buffer_load_dwordx4 v{vWoD}, s[{sWOA}:{sWOA+3}], s{sT+2} offen lds")
    OF, AC, WF = p3_body(A, cfg)
    p3_addr(A)
    A("s_waitcnt vmcnt(16)")
    A("s_barrier")
    p3_gemm(A, cfg, OF, AC, WF, 0)
    p3_reduce(A, cfg, AC)
    A(f"{name}_end:")
    A("s_endpgm")
    return A.text() + kernel_desc(name, 192)

def build3(cfg):
    hdr = f"""; gated dual multi-head attention block, three launches
; @launch kernel=qkv_kernel grid=(256,1,1) block=(512,1,1) lds={LDS_TOTAL}
; @launch kernel=attn_kernel grid=(256,1,1) block=(512,1,1) lds={LDS_TOTAL}
; @launch kernel=proj_kernel grid=(256,1,1) block=(512,1,1) lds={LDS_TOTAL}
.amdgcn_target "amdgcn-amd-amdhsa--gfx950"
"""
    return hdr + k_phase1(cfg, "qkv_kernel") + k_phase2(cfg, "attn_kernel") + k_phase3(cfg, "proj_kernel")

if __name__ == "__main__":
    import sys
    cfg = Cfg()
    for a in sys.argv[2:]:
        k_, v_ = a.split("=")
        setattr(cfg, k_, int(v_))
    open(sys.argv[1], "w").write(build3(cfg))
```

```python
from base import *
import math, struct

KN = "gated_mix__softmax_full_mha__mha_block__prompt"
sX, sW, sG, sWS, sWOA, sWOB, sOUT, sDBG = 24, 28, 32, 36, 40, 44, 48, 52
sWave, sSlab, sPair, sKC, sRG = 56, 57, 58, 59, 60
sSpin = 61
sT = 62
sXb, sXo, sWb_, sWo, sK2, sM = 70, 71, 72, 73, 74, 75
sCH, sCO, sMB, sWoG, sWoM, sJ = 70, 71, 72, 73, 74, 75
sS3, sR3, sC3, sF = 76, 77, 78, 79
WS_KV, WS_O, WS_F1, WS_F2, WS_ST, WS_SIZE = 0, 8 << 20, 12 << 20, (12 << 20) + 16384, 22 << 20, 24 << 20
XS, WB, GW, QX, GV = 32768, 98304, 135168, 136192, 144384
SLOT, REC, HSTR = 33280, 2080, 16640
WO = 32768
LDS_TOTAL = 163840
LOG2E = math.log2(math.e)
QSCALE = 0.25 * LOG2E
SPIN_MAX = 200000
def fbits(x): return hex(struct.unpack("<I", struct.pack("<f", x))[0])
vKL, vV0L, vV1L, vKH, vV0H, vV1H, vL16, vWoD, vPA, vPoll = range(240, 250)
vGF = [250, 251]
vZ = 252

class Cfg:
    lr = 2
    prio = 1
    stamps = 0
    slow = 1
    force_slow = 0
    t_flag = 0
    t_poll = 1

def stamp(A, cfg, i):
    if cfg.stamps == 1: A(f"s_memrealtime s[{80+2*i}:{81+2*i}]")
    if cfg.stamps == 2: A(f"s_memtime s[{80+2*i}:{81+2*i}]")
def stamp_store(A, cfg, n):
    if not cfg.stamps: return
    A("s_waitcnt vmcnt(0)")
    stamp(A, cfg, n)
    A("s_waitcnt lgkmcnt(0)")
    A(f"s_lshl_b32 s{sT}, s2, 3")
    A(f"s_add_u32 s{sT}, s{sT}, s{sWave}")
    A(f"s_lshl_b32 s{sT}, s{sT}, 6")
    A(f"s_add_u32 s{sT}, s{sT}, {WS_ST}")
    A("v_mov_b32 v1, 0")
    for i in range(n + 1):
        A(f"v_mov_b32 v2, s{80+2*i}")
        A(f"buffer_store_dword v2, v1, s[{sWS}:{sWS+3}], s{sT} offen offset:{4*i}")
        A("s_nop 1")

def prologue(A, cfg):
    stamp(A, cfg, 0)
    A("s_cmp_ge_u32 s2, 256")
    A("s_cbranch_scc1 L_end")
    A("s_load_dwordx16 s[4:19], s[0:1], 0")
    A("s_load_dwordx4 s[20:23], s[0:1], 64")
    A("v_lshrrev_b32 v1, 6, v0")
    A("v_and_b32 v0, 63, v0")
    A(f"v_readfirstlane_b32 s{sWave}, v1")
    lr = cfg.lr
    A(f"s_and_b32 s{sT}, s2, {(8 >> lr) - 1}")
    A(f"s_lshl_b32 s{sT}, s{sT}, {lr}")
    A(f"s_lshr_b32 s{sT+1}, s2, 3")
    A(f"s_and_b32 s{sT+2}, s{sT+1}, {(1 << lr) - 1}")
    A(f"s_or_b32 s{sSlab}, s{sT}, s{sT+2}")
    A(f"s_and_b32 s{sT}, s2, 7")
    A(f"s_lshr_b32 s{sT}, s{sT}, {3 - lr}")
    A(f"s_lshl_b32 s{sT}, s{sT}, {5 - lr}")
    A(f"s_lshr_b32 s{sT+1}, s{sT+1}, {lr}")
    A(f"s_add_u32 s{sPair}, s{sT}, s{sT+1}")
    A(f"s_add_u32 s{sKC}, s{sPair}, s{sSlab}")
    A(f"s_and_b32 s{sKC}, s{sKC}, 7")
    A(f"s_and_b32 s{sRG}, s{sWave}, 3")
    A(f"s_cmp_ge_u32 s{sWave}, 4")
    A("s_cbranch_scc1 L_loader")

def late_srds(A):
    srd(A, sWS, 22, 23, WS_SIZE)
    srd(A, sWOA, 8, 9, 512 * 512 * 2)
    srd(A, sWOB, 14, 15, 512 * 512 * 2)
    srd(A, sOUT, 18, 19, 2048 * 512 * 2)
    srd(A, sDBG, 20, 21, 256)
    A(f"s_and_b32 s{sS3}, s2, 7")
    A(f"s_bfe_u32 s{sR3}, s2, 0x20003")
    A(f"s_lshr_b32 s{sC3}, s2, 5")

def xfrag_addr(A, L, H, t):
    A(f"v_and_b32 v{t}, 31, v0")
    A(f"v_lshrrev_b32 v{t+1}, 5, v0")
    A(f"v_bfe_u32 v{t+2}, v0, 1, 3")
    A(f"v_xor_b32 v{t+2}, v{t+2}, v{t+1}")
    A(f"v_lshlrev_b32 v{t}, 7, v{t}")
    A(f"s_lshl_b32 s{sT}, s{sRG}, 13")
    A(f"v_add_u32 v{t}, s{sT}, v{t}")
    for j in range(4):
        A(f"v_xor_b32 v{t+1}, {2*j}, v{t+2}")
        A(f"v_lshl_add_u32 v{L[j]}, v{t+1}, 4, v{t}")
        A(f"v_add_u32 v{H[j]}, 0x10000, v{L[j]}")

def p2_addr(A):
    A(f"v_lshlrev_b32 v{vL16}, 4, v0")
    A(f"s_lshr_b32 s{sT}, s{sWave}, 2")
    A(f"s_mul_i32 s{sT}, s{sT}, {HSTR}")
    A(f"v_add_u32 v{vKL}, s{sT}, v{vL16}")
    A("v_lshrrev_b32 v104, 5, v0")
    A("v_and_b32 v105, 15, v0")
    A("v_lshlrev_b32 v105, 4, v105")
    A("v_lshl_add_u32 v105, v104, 8, v105")
    A("v_add_u32 v105, 1024, v105")
    A("v_add_u32 v106, 512, v105")
    A("v_and_b32 v104, 11, v0")
    A("v_cmp_eq_u32 vcc, 0, v104")
    A("v_mov_b32 v107, 2064")
    A("v_mov_b32 v108, 2048")
    A("v_cndmask_b32 v107, v107, v108, vcc")
    A("v_and_b32 v104, 16, v0")
    A("v_cmp_eq_u32 vcc, 0, v104")
    A("s_nop 1")
    A("v_cndmask_b32 v105, v107, v105, vcc")
    A("v_cndmask_b32 v106, v107, v106, vcc")
    A(f"v_add_u32 v{vV0L}, s{sT}, v105")
    A(f"v_add_u32 v{vV1L}, s{sT}, v106")
    A(f"v_add_u32 v{vKH}, {2*SLOT}, v{vKL}")
    A(f"v_add_u32 v{vV0H}, {2*SLOT}, v{vV0L}")
    A(f"v_add_u32 v{vV1H}, {2*SLOT}, v{vV1L}")
    A("v_lshrrev_b32 v104, 3, v0")
    A("v_lshlrev_b32 v104, 10, v104")
    A("v_and_b32 v105, 7, v0")
    A(f"v_lshlrev_b32 v{vPA}, 2, v105")
    A("v_bfe_u32 v106, v0, 4, 1")
    A("v_lshlrev_b32 v106, 2, v106")
    A("v_xor_b32 v105, v105, v106")
    A(f"v_lshl_add_u32 v{vWoD}, v105, 4, v104")

def consts(A, slots):
    A("v_lshrrev_b32 v104, 4, v0")
    A(f"v_mul_u32_u24 v104, {SLOT}, v104")
    A("v_and_b32 v105, 15, v0")
    A(f"v_mul_u32_u24 v105, {REC}, v105")
    A("v_add_u32 v104, v104, v105")
    if slots[0]: A(f"v_add_u32 v104, {slots[0]*SLOT}, v104")
    for i in range(4):
        A(f"v_mov_b32 v{108+i}, 0x3f803f80")
        A(f"v_mov_b32 v{112+i}, 0")
    n = 16 * len(slots)
    A(f"s_mov_b32 exec_lo, {hex((1 << min(n,32)) - 1)}")
    A(f"s_mov_b32 exec_hi, {hex((1 << max(n-32,0)) - 1)}")
    A("ds_write_b128 v104, v[108:111] offset:2048")
    A("ds_write_b128 v104, v[112:115] offset:2064")
    A("s_mov_b64 exec, -1")

tails = []
def spin(A, name, load, reg, val):
    A("s_waitcnt vmcnt(0)")
    A(f"v_cmp_ne_u32 vcc, {val}, v{reg}")
    A("s_nop 0")
    A(f"s_cbranch_vccnz L_spin_{name}")
    A(f"L_ret_{name}:")
    T = Asm()
    T(f"L_spin_{name}:")
    T(f"s_mov_b32 s{sSpin}, {SPIN_MAX}")
    T(f"L_spinl_{name}:")
    T(load)
    T(f"s_sub_u32 s{sSpin}, s{sSpin}, 1")
    T(f"s_cbranch_scc1 L_ret_{name}")
    T("s_waitcnt vmcnt(0)")
    T(f"v_cmp_ne_u32 vcc, {val}, v{reg}")
    T("s_nop 0")
    T(f"s_cbranch_vccnz L_spinl_{name}")
    T(f"s_branch L_ret_{name}")
    tails.append(T)

vXL, vXH = [2, 3, 4, 5], [6, 7, 8, 9]
vWa, vWb, vWv = 10, 11, 12
ACC = dict(QKa0=32, QKa1=48, QKb0=64, QKb1=80, VV0=96, VV1=112)
FR = [128, 148]
vQ = [8, 12]
ZLOAD = f"buffer_load_dword v{vZ}, v{vPoll}, s[{sDBG}:{sDBG+3}], 0 offen sc1"

def p1_compute(A, cfg):
    A.c("---- phase 1, compute waves")
    A("s_waitcnt lgkmcnt(0)")
    late_srds(A)
    A.c("wave 0 clears this workgroup's hand-off words, then counts the workgroup in")
    A(f"s_cmp_lg_u32 s{sWave}, 0")
    A("s_cbranch_scc1 L_nozero")
    A(f"s_lshl_b32 s{sT}, s{sPair}, 9")
    A(f"s_lshl_b32 s{sT+1}, s{sSlab}, 2")
    A(f"s_add_u32 s{sT}, s{sT}, s{sT+1}")
    A(f"s_add_u32 s{sT}, s{sT}, {WS_F1}")
    A("v_lshlrev_b32 v2, 7, v0")
    A(f"v_add_u32 v2, s{sT}, v2")
    A(f"s_lshl_b32 s{sT}, s{sSlab}, 11")
    A(f"s_lshr_b32 s{sT+1}, s{sPair}, 3")
    A(f"s_lshl_b32 s{sT+1}, s{sT+1}, 7")
    A(f"s_add_u32 s{sT}, s{sT}, s{sT+1}")
    A(f"s_and_b32 s{sT+1}, s{sPair}, 7")
    A(f"s_lshl_b32 s{sT+1}, s{sT+1}, 3")
    A(f"s_add_u32 s{sT}, s{sT}, s{sT+1}")
    A(f"s_add_u32 s{sT}, s{sT}, {WS_F2}")
    A("v_subrev_u32 v3, 4, v0")
    A("v_lshrrev_b32 v4, 1, v3")
    A("v_and_b32 v3, 1, v3")
    A("v_lshlrev_b32 v3, 2, v3")
    A("v_lshl_add_u32 v3, v4, 9, v3")
    A(f"v_add_u32 v3, s{sT}, v3")
    A("v_cmp_gt_u32 vcc, 4, v0")
    A("v_mov_b32 v4, 0")
    A("s_nop 0")
    A("v_cndmask_b32 v2, v3, v2, vcc")
    A("s_mov_b64 exec, 0xfff")
    A(f"buffer_store_dword v4, v2, s[{sWS}:{sWS+3}], 0 offen sc1")
    A("s_mov_b64 exec, -1")
    A("L_nozero:")
    A("v_and_b32 v2, 1, v0")
    A(f"v_lshlrev_b32 v{vPoll}, 7, v2")
    A(f"v_mov_b32 v{vZ}, 1")
    p2_addr(A)
    xfrag_addr(A, vXL, vXH, 13)
    A("v_lshrrev_b32 v13, 5, v0")
    A("v_lshlrev_b32 v13, 3, v13")
    A("v_bfe_u32 v14, v0, 2, 2")
    A("v_add_u32 v13, v13, v14")
    A("v_mul_u32_u24 v13, 192, v13")
    A("v_and_b32 v14, 3, v0")
    A("v_lshl_add_u32 v13, v14, 3, v13")
    A(f"v_add_u32 v13, {WB}, v13")
    A("v_bfe_u32 v14, v0, 4, 1")
    A("v_mul_u32_u24 v15, 96, v14")
    A(f"v_add_u32 v{vWa}, v13, v15")
    A("v_lshl_add_u32 v13, v14, 5, v13")
    A(f"v_add_u32 v{vWb}, 32, v13")
    A(f"v_add_u32 v{vWv}, 128, v13")
    def reads(c, j, F):
        slot = c % 3
        xr = vXH[j] if slot == 2 else vXL[j]
        xi = XS if slot == 1 else 0
        wi = slot * 12288 + 16 * j * 192
        return [f"ds_read_b128 {v(F,4)}, v{xr} offset:{xi}",
                f"ds_read_b64_tr_b16 {v(F+8,2)}, v{vWa} offset:{wi}",
                f"ds_read_b64_tr_b16 {v(F+10,2)}, v{vWa} offset:{wi+768}",
                f"ds_read_b128 {v(F+4,4)}, v{xr} offset:{xi+4096}",
                f"ds_read_b64_tr_b16 {v(F+12,2)}, v{vWb} offset:{wi}",
                f"ds_read_b64_tr_b16 {v(F+14,2)}, v{vWb} offset:{wi+768}",
                f"ds_read_b64_tr_b16 {v(F+16,2)}, v{vWv} offset:{wi}",
                f"ds_read_b64_tr_b16 {v(F+18,2)}, v{vWv} offset:{wi+768}"]
    def mf(F, first):
        def m(D, a, b):
            return f"v_mfma_f32_32x32x16_bf16 {v(D,16)}, {v(a,4)}, {v(b,4)}, {'0' if first else v(D,16)}"
        return [m(ACC['QKa0'], F+8, F), m(ACC['QKa1'], F+8, F+4), m(ACC['QKb0'], F+12, F),
                m(ACC['QKb1'], F+12, F+4), m(ACC['VV0'], F, F+16), m(ACC['VV1'], F+4, F+16)]
    A("s_barrier")
    stamp(A, cfg, 1)
    for r in reads(0, 0, FR[0]): A(r)
    for n in range(32):
        c, j = divmod(n, 4)
        M = mf(FR[n & 1], n == 0)
        A("s_waitcnt lgkmcnt(0)")
        if n == 31:
            for m in M: A(m)
            break
        if j == 3: A("s_barrier")
        c2, j2 = divmod(n + 1, 4)
        R = reads(c2, j2, FR[(n + 1) & 1])
        A(M[0]); A(R[0]); A(R[1]); A(R[2])
        A(M[1]); A(R[3]); A(R[4]); A(R[5])
        A(M[2]); A(R[6]); A(R[7])
        A(M[3])
        if n == 2:
            A(f"s_cmp_lg_u32 s{sWave}, 0")
            A("s_cbranch_scc1 L_noz0")
            A(f"s_and_b32 s{sT}, s2, 1")
            A(f"s_lshl_b32 s{sT}, s{sT}, 7")
            A("s_mov_b64 exec, 1")
            A("s_waitcnt vmcnt(0)")
            A(f"buffer_atomic_add v{vZ}, off, s[{sDBG}:{sDBG+3}], s{sT}")
            A("s_mov_b64 exec, -1")
            A("L_noz0:")
        if n == 17:
            A(f"s_cmp_lg_u32 s{sWave}, 0")
            A("s_cbranch_scc1 L_noz1")
            A(ZLOAD)
            A("L_noz1:")
        A(M[4]); A(M[5])

def p1_compute_epilogue(A, cfg):
    A.c("---- phase 1 epilogue: round K/V, publish them (write-through) and keep them in LDS")
    A(f"s_lshl_b32 s{sT}, s{sPair}, 3")
    A(f"s_add_u32 s{sT}, s{sT}, s{sSlab}")
    A(f"s_lshl_b32 s{sT}, s{sT}, 15")
    A(f"s_lshl_b32 s{sT+1}, s{sRG}, 12")
    A(f"s_add_u32 s{sT}, s{sT}, s{sT+1}")
    A(f"s_add_u32 s{sT+1}, s{sT}, 16384")
    A("v_bfe_u32 v13, v0, 4, 1")
    A("v_lshrrev_b32 v14, 5, v0")
    A("v_and_b32 v15, 15, v0")
    A("v_lshlrev_b32 v15, 4, v15")
    A("v_lshl_add_u32 v15, v14, 8, v15")
    A("v_add_u32 v15, 1024, v15")
    A("v_lshl_add_u32 v3, v13, 14, v15")
    A(f"s_mul_i32 s{sT+2}, s{sRG}, {2*REC}")
    A(f"s_add_u32 s{sT+2}, s{sT+2}, {2*SLOT}")
    A(f"v_add_u32 v4, s{sT+2}, v{vL16}")
    A(f"v_mul_u32_u24 v13, {HSTR}, v13")
    A(f"v_add3_u32 v5, v13, v15, s{sT+2}")
    A.c("wave 0: every workgroup has cleared its hand-off words (checked before any flag is read)")
    A(f"s_cmp_lg_u32 s{sWave}, 0")
    A("s_cbranch_scc1 L_noz2")
    A(f"s_movk_i32 s{sT+3}, 128")
    spin(A, "z", ZLOAD, vZ, f"s{sT+3}")
    A("L_noz2:")
    def cvt(dst, src):
        for i in range(4):
            A(f"v_cvt_pk_bf16_f32 v{dst+i}, v{src+2*i}, v{src+2*i+1}")
    tmp = [128, 132, 136, 140, 144, 148, 152, 156]
    k = 0
    for hd, names in ((0, ("QKa0", "QKa1")), (1, ("QKb0", "QKb1"))):
        for t in (0, 1):
            cvt(tmp[k], ACC[names[t]] + 8)
            A(f"buffer_store_dwordx4 {v(tmp[k],4)}, v{vL16}, s[{sWS}:{sWS+3}], s{sT+hd} offen offset:{t*2048} sc1")
            k += 1
    for t in (0, 1):
        for a in (0, 1):
            cvt(tmp[k], ACC[f"VV{t}"] + 8 * a)
            A(f"buffer_store_dwordx4 {v(tmp[k],4)}, v3, s[{sWS}:{sWS+3}], s{sT} offen offset:{t*2048 + a*512} sc1")
            k += 1
    k = 0
    for hd in (0, 1):
        for t in (0, 1):
            A(f"ds_write_b128 v4, {v(tmp[k],4)} offset:{hd*HSTR + t*REC}"); k += 1
    for t in (0, 1):
        for a in (0, 1):
            A(f"ds_write_b128 v5, {v(tmp[k],4)} offset:{t*REC + a*512}"); k += 1
    A(f"s_mov_b32 s{sT+4}, {fbits(QSCALE)}")
    A(f"s_mov_b32 s{sT+5}, {fbits(QSCALE)}")
    A(f"s_lshl_b32 s{sT+2}, s{sRG}, 11")
    A(f"s_add_u32 s{sT+2}, s{sT+2}, {QX}")
    A(f"v_add_u32 v4, s{sT+2}, v{vL16}")
    for hd, names in ((1, ("QKb0", "QKb1")), (0, ("QKa0", "QKa1"))):
        for t in (0, 1):
            q = ACC[names[t]]
            for i in range(4):
                A(f"v_pk_mul_f32 {v(q+2*i,2)}, {v(q+2*i,2)}, s[{sT+4}:{sT+5}]")
            dst = vQ[t] if hd == 0 else 16 + 4 * t
            cvt(dst, q)
            if hd == 1: A(f"ds_write_b128 v4, {v(dst,4)} offset:{t*1024}")
    A("s_waitcnt lgkmcnt(0)")
    A("s_barrier")

def p1_loader(A, cfg):
    A.c("---- phase 1, loader waves: LDS-DMA of x / W chunks, gate logits")
    A("v_lshrrev_b32 v13, 3, v0")
    A("v_lshlrev_b32 v13, 10, v13")
    A("v_and_b32 v14, 7, v0")
    A("v_lshrrev_b32 v15, 4, v0")
    A("v_xor_b32 v14, v14, v15")
    A("v_lshl_add_u32 v13, v14, 4, v13")
    A("v_xor_b32 v14, 64, v13")
    for i in range(8):
        A(f"v_add_u32 v{2+i}, {i*8192 - (i&3)*1024}, v{14 if i & 1 else 13}")
    A(f"s_lshl_b32 s{sXb}, s{sSlab}, 18")
    A(f"s_lshl_b32 s{sT}, s{sRG}, 16")
    A(f"s_add_u32 s{sXb}, s{sXb}, s{sT}")
    def issue_x(c):
        slot = c % 3
        A(f"s_add_u32 s{sK2}, s{sKC}, {c}")
        A(f"s_and_b32 s{sK2}, s{sK2}, 7")
        A(f"s_lshl_b32 s{sXo}, s{sK2}, 7")
        A(f"s_lshl_b32 s{sM}, s{sRG}, 13")
        A(f"s_add_u32 m0, s{sM}, {slot*XS}")
        A(f"s_add_u32 s{sXo}, s{sXo}, s{sXb}")
        for i in range(8):
            if i == 4:
                A(f"s_add_u32 m0, s{sM}, {slot*XS + 4096}")
                A("s_nop 0")
            A(f"buffer_load_dwordx4 v{2+i}, s[{sX}:{sX+3}], s{sXo} offen offset:{(i&3)*1024} lds")
    def issue_w(c):
        slot = c % 3
        A(f"s_mul_i32 s{sM}, s{sRG}, 3072")
        A(f"s_mul_i32 s{sWo}, s{sK2}, 196608")
        A(f"s_add_u32 m0, s{sM}, {WB + slot*12288}")
        A(f"s_add_u32 s{sWo}, s{sWo}, s{sWb_}")
        for i in range(3):
            A(f"buffer_load_dwordx4 v{10+i}, s[{sW}:{sW+3}], s{sWo} offen offset:{i*1024} lds")
    A("s_waitcnt lgkmcnt(0)")
    srd(A, sX, 4, 5, 2048 * 512 * 2)
    issue_x(0)
    A(f"s_cmp_lt_u32 s{sPair}, 16")
    A(f"s_cselect_b32 s{sW}, s6, s12")
    A(f"s_cselect_b32 s{sW+1}, s7, s13")
    A(f"s_mov_b32 s{sW+2}, {hex(512*1536*2)}")
    A(f"s_mov_b32 s{sW+3}, 0x20000")
    A(f"s_and_b32 s{sWb_}, s{sPair}, 15")
    A(f"s_lshl_b32 s{sWb_}, s{sWb_}, 6")
    A(f"s_mul_i32 s{sT}, s{sRG}, 192")
    for i in range(3):
        A(f"v_add_u32 v13, s{sT}, v0")
        if i: A(f"v_add_u32 v13, {64*i}, v13")
        A("v_mul_u32_u24 v14, 0x5556, v13")
        A("v_lshrrev_b32 v14, 18, v14")
        A("v_mul_u32_u24 v15, 12, v14")
        A("v_sub_u32 v15, v13, v15")
        A("v_lshrrev_b32 v13, 2, v15")
        A("v_and_b32 v15, 3, v15")
        A("v_and_b32 v16, 1, v13")
        A("v_lshlrev_b32 v16, 1, v16")
        A("v_xor_b32 v15, v15, v16")
        A("v_mul_u32_u24 v14, 3072, v14")
        A("v_lshl_add_u32 v14, v13, 10, v14")
        A(f"v_lshl_add_u32 v{10+i}, v15, 4, v14")
        if i: A(f"v_subrev_u32 v{10+i}, {1024*i}, v{10+i}")
    issue_w(0)
    srd(A, sG, 16, 17, 1024)
    A("v_lshlrev_b32 v13, 4, v0")
    A(f"s_mov_b32 m0, {GW}")
    A("s_nop 0")
    A(f"buffer_load_dwordx4 v13, s[{sG}:{sG+3}], 0 offen lds")
    issue_x(1); issue_w(1)
    late_srds(A)
    p2_addr(A)
    gL, gH, vG0, vG = [16, 17, 18, 19], [20, 21, 22, 23], 24, 25
    xfrag_addr(A, gL, gH, 13)
    A("v_lshrrev_b32 v13, 5, v0")
    A("v_lshlrev_b32 v13, 4, v13")
    A(f"v_add_u32 v{vG0}, {GW}, v13")
    for i in range(8): A(f"v_mov_b32 v{32+i}, 0")
    for c in range(8):
        A(f"s_waitcnt vmcnt({11 if c < 7 else 0})")
        A("s_barrier")
        if c == 0: stamp(A, cfg, 1)
        if c <= 5:
            issue_x(c + 2); issue_w(c + 2)
        slot = c % 3
        A(f"s_add_u32 s{sK2}, s{sKC}, {c}")
        A(f"s_and_b32 s{sK2}, s{sK2}, 7")
        A(f"s_lshl_b32 s{sK2}, s{sK2}, 7")
        A(f"v_add_u32 v{vG}, s{sK2}, v{vG0}")
        for j in range(4):
            xr = gH[j] if slot == 2 else gL[j]
            xi = XS if slot == 1 else 0
            F = 40 + 12 * j
            A(f"ds_read_b128 {v(F,4)}, v{xr} offset:{xi}")
            A(f"ds_read_b128 {v(F+4,4)}, v{xr} offset:{xi+4096}")
            A(f"ds_read_b128 {v(F+8,4)}, v{vG} offset:{32*j}")
        for j in range(4):
            F = 40 + 12 * j
            A(f"s_waitcnt lgkmcnt({9-3*j})")
            for i in range(8):
                A(f"v_dot2_f32_bf16 v{32+i}, v{F+i}, v{F+8+(i&3)}, v{32+i}")
    A.c("gate factor = sigmoid(+z) for branch A, sigmoid(-z) = 1 - g for branch B")
    A("s_nop 2")
    for t in (0, 1):
        b = 32 + 4 * t
        A(f"v_add_f32 v{b}, v{b}, v{b+1}")
        A(f"v_add_f32 v{b+2}, v{b+2}, v{b+3}")
        A(f"v_add_f32 v{b}, v{b}, v{b+2}")
        A(f"v_mov_b32 v{b+1}, v{b}")
    A(f"s_cmp_lt_u32 s{sPair}, 16")
    A(f"s_mov_b32 s{sT}, {fbits(LOG2E)}")
    A(f"s_cselect_b32 s{sT}, {fbits(-LOG2E)}, s{sT}")
    for t in (0, 1): A(f"v_permlane32_swap_b32 v{32+4*t}, v{33+4*t}")
    for t in (0, 1): A(f"v_add_f32 v{32+4*t}, v{32+4*t}, v{33+4*t}")
    for t in (0, 1): A(f"v_mul_f32 v{32+4*t}, s{sT}, v{32+4*t}")
    for t in (0, 1): A(f"v_exp_f32 v{32+4*t}, v{32+4*t}")
    A("s_nop 0")
    for t in (0, 1): A(f"v_add_f32 v{32+4*t}, 1.0, v{32+4*t}")
    for t in (0, 1): A(f"v_rcp_f32 v{32+4*t}, v{32+4*t}")
    A("v_and_b32 v13, 31, v0")
    A("v_lshlrev_b32 v13, 2, v13")
    A(f"s_lshl_b32 s{sT}, s{sRG}, 8")
    A(f"s_add_u32 s{sT}, s{sT}, {GV}")
    A(f"v_add_u32 v13, s{sT}, v13")
    A("ds_write_b32 v13, v32")
    A("ds_write_b32 v13, v36 offset:128")
    consts(A, [2])
    A("s_waitcnt lgkmcnt(0)")
    A("s_barrier")
    A(f"s_lshl_b32 s{sT+2}, s{sRG}, 11")
    A(f"s_add_u32 s{sT+2}, s{sT+2}, {QX}")
    A(f"v_add_u32 v4, s{sT+2}, v{vL16}")
    A("ds_read_b128 v[8:11], v4")
    A("ds_read_b128 v[12:15], v4 offset:1024")
    consts(A, [0, 1])

vKf, vV0f, vV1f = 16, 20, 24
S_, O_, P_ = [32, 48], [64, 80], 96
M32 = "v_mfma_f32_32x32x16_bf16"
def slot_of(i): return (i + 2) % 3

def p2_setup(A, cfg):
    A("v_and_b32 v104, 31, v0")
    A("v_lshlrev_b32 v104, 2, v104")
    A(f"s_lshl_b32 s{sT}, s{sRG}, 8")
    A(f"s_add_u32 s{sT}, s{sT}, {GV}")
    A(f"v_add_u32 v104, s{sT}, v104")
    A(f"ds_read_b32 v{vGF[0]}, v104")
    A(f"ds_read_b32 v{vGF[1]}, v104 offset:128")
    A(f"s_lshl_b32 s{sCH}, s{sPair}, 18")
    A(f"s_lshl_b32 s{sT+1}, s{sWave}, 12")
    A(f"s_add_u32 s{sCH}, s{sCH}, s{sT+1}")
    A(f"s_mul_i32 s{sMB}, s{sWave}, {2*REC}")
    A(f"s_lshl_b32 s{sWoG}, s{sWave}, 13")
    A(f"s_lshl_b32 s{sT+1}, s{sC3}, 7")
    A(f"s_add_u32 s{sWoG}, s{sWoG}, s{sT+1}")
    A(f"s_lshl_b32 s{sWoM}, s{sWave}, 10")
    A(f"s_lshl_b32 s{sF}, s{sPair}, 2")
    A(f"s_add_u32 s{sF}, s{sF}, s{sRG}")
    A(f"s_lshl_b32 s{sF}, s{sF}, 7")
    A(f"s_add_u32 s{sF}, s{sF}, {WS_F1}")
    A(f"v_mov_b32 v{vZ}, 1")

def kv_setup(i):
    return [f"s_add_u32 s{sCO}, s{sSlab}, {i}", f"s_and_b32 s{sCO}, s{sCO}, 7",
            f"s_lshl_b32 s{sCO}, s{sCO}, 15", f"s_add_u32 s{sCO}, s{sCO}, s{sCH}"]
def kv_jobs(i):
    base = slot_of(i) * SLOT
    ld = lambda o: f"buffer_load_dwordx4 v{vL16}, s[{sWS}:{sWS+3}], s{sCO} offen offset:{o} sc1 lds"
    return [[f"s_add_u32 m0, s{sMB}, {base}", "s_nop 0", ld(0)], [ld(1024)],
            [f"s_add_u32 m0, s{sMB}, {base + REC - 2048}", "s_nop 0", ld(2048)], [ld(3072)]]
def wo_job(j):
    srd_ = sWOA if j < 8 else sWOB
    return [f"s_add_u32 m0, s{sWoM}, {WO + j*8192}", f"s_add_u32 s{sJ}, s{sWoG}, {(j&7)*65536}",
            f"buffer_load_dwordx4 v{vWoD}, s[{srd_}:{srd_+3}], s{sJ} offen lds"]

def rd(kind, i, t):
    if t == 8: i, t = i + 1, 0
    sl = slot_of(i); hi = sl == 2
    imm = (SLOT if sl == 1 else 0) + t * REC
    if kind == 'K': return f"ds_read_b128 {v(vKf,4)}, v{vKH if hi else vKL} offset:{imm}"
    if kind == 'V0': return f"ds_read_b128 {v(vV0f,4)}, v{vV0H if hi else vV0L} offset:{imm}"
    return f"ds_read_b128 {v(vV1f,4)}, v{vV1H if hi else vV1L} offset:{imm}"

def unit(A, q, first, last, slotA, slotB, slotC, first_o):
    S, Sn, O, Op = S_[q], S_[q ^ 1], O_[q], O_[q ^ 1]
    e = lambda i: A(f"v_exp_f32 v{S+i}, v{S+i}")
    c = lambda i: A(f"v_cvt_pk_bf16_f32 v{P_+i}, v{S+2*i}, v{S+2*i+1}")
    def run(sl):
        for x in sl:
            if callable(x): x(A)
            else: A(x)
    e(0)
    if not first: A(f"v_cvt_pk_bf16_f32 v{P_+7}, v{Sn+14}, v{Sn+15}")
    e(1); e(2)
    if not first: A(f"{M32} {v(Op,16)}, {v(vV1f,4)}, {v(P_+4,4)}, {v(Op,16)}")
    run(slotA)
    c(0); e(3); e(4); c(1); e(5); e(6)
    if not last: A(f"{M32} {v(Sn,16)}, {v(vKf,4)}, {v(vQ[q^1],4)}, 0")
    run(slotB)
    c(2); e(7); e(8); c(3); e(9); e(10)
    A(f"{M32} {v(O,16)}, {v(vV0f,4)}, {v(P_,4)}, {'0' if first_o else v(O,16)}")
    run(slotC)
    c(4); e(11); e(12); c(5); e(13); e(14); c(6); e(15)

def p2_main(A, cfg):
    A.c("---- phase 2: attention.  P = exp2(S) with no shift; the row sums ride in the PV MFMA (ones rows);")
    A.c("     they are range-checked afterwards and the true-max path redoes the wave when they are out of range")
    F1LOAD = f"buffer_load_dword v{vPoll}, v{vPA}, s[{sWS}:{sWS+3}], s{sF} offen sc1"
    jobs = {}
    def add(i, t, xs): jobs.setdefault((i, t), []).extend(xs)
    for i in range(8):
        if cfg.prio:
            for t, pr in ((1, 2), (3, 1), (5, 0), (7, 3)): add(i, t, [f"s_setprio {pr}"])
    def flag1(A):
        A("s_waitcnt vmcnt(0)")
        A(f"s_cmp_ge_u32 s{sWave}, 4")
        A("s_cbranch_scc1 L_noflag1")
        A(f"s_lshl_b32 s{sJ}, s{sSlab}, 2")
        A(f"s_add_u32 s{sJ}, s{sJ}, s{sF}")
        A("s_mov_b64 exec, 1")
        A(f"buffer_store_dword v{vZ}, off, s[{sWS}:{sWS+3}], s{sJ} sc1")
        A("s_mov_b64 exec, -1")
        A("L_noflag1:")
    add(0, cfg.t_flag, [flag1])
    add(0, cfg.t_poll, [F1LOAD])
    J1, J2 = kv_jobs(1), kv_jobs(2)
    tp = cfg.t_poll
    add(0, tp + 1, [lambda A: spin(A, "f1", F1LOAD, vPoll, 1)] + kv_setup(1) + J1[0] + J1[1])
    add(0, tp + 2, J1[2] + J1[3])
    add(0, tp + 3, kv_setup(2) + J2[0] + J2[1])
    add(0, tp + 4, J2[2] + J2[3])
    add(0, 6, ["s_waitcnt vmcnt(4)", "s_barrier"])
    for i in range(7): add(i, 7, ["s_waitcnt vmcnt(0)", "s_barrier"])
    add(7, 7, ["s_barrier"])
    for i in range(1, 6):
        J = kv_jobs(i + 2)
        add(i, 0, kv_setup(i + 2) + J[0]); add(i, 1, J[1]); add(i, 2, J[2]); add(i, 3, J[3])
    wo = {1: [9, 10], 2: [11, 12], 3: [13, 14], 4: [15]}
    for i, js in wo.items():
        for n, j in enumerate(js): add(i, 4 + n, wo_job(j))
    for n, j in enumerate([1, 2, 3]): add(6, n, wo_job(j))
    for n, j in enumerate([4, 5, 6, 7, 8]): add(7, n, wo_job(j))
    A(rd('K', 0, 0)); A(rd('V0', 0, 0))
    A("s_waitcnt lgkmcnt(1)")
    if cfg.prio: A("s_setprio 3")
    A(f"{M32} {v(S_[0],16)}, {v(vKf,4)}, {v(vQ[0],4)}, 0")
    A("s_nop 7"); A("s_nop 3")
    for i in range(8):
        for t in range(8):
            first = (i == 0 and t == 0); lastt = (i == 7 and t == 7)
            sA = [rd('V1', i, t)]
            sB = ["s_waitcnt lgkmcnt(1)"] + ([] if lastt else [rd('K', i, t + 1)])
            sC = ["s_waitcnt lgkmcnt(0)" if lastt else "s_waitcnt lgkmcnt(1)"]
            unit(A, 0, first, False, sA, sB, sC, first)
            sA = ["s_waitcnt lgkmcnt(0)"]
            sB = list(jobs.get((i, t), []))
            sC = [] if lastt else [rd('V0', i, t + 1)]
            unit(A, 1, False, lastt, sA, sB, sC, first)
        if i == 0: stamp(A, cfg, 4)
    for x in wo_job(0): A(x)
    A(f"v_cvt_pk_bf16_f32 v{P_+7}, v{S_[1]+14}, v{S_[1]+15}")
    A("s_nop 1")
    A(f"{M32} {v(O_[1],16)}, {v(vV1f,4)}, {v(P_+4,4)}, {v(O_[1],16)}")

def p2_check(A, cfg):
    if not cfg.slow: return
    A(f"s_mov_b32 s{sT+2}, {fbits(2.0**-24)}")
    A(f"s_mov_b32 s{sT+3}, {fbits(2.0**64)}")
    A(f"s_mov_b32 s{sT+4}, 0x7f800000")
    A("s_mov_b64 s[68:69], 0")
    for q in (0, 1):
        O = O_[q]
        if q == 1: A("s_nop 1")
        A(f"v_add_f32 v104, |v{O}|, |v{O+1}|")
        A(f"v_add_f32 v105, |v{O+2}|, |v{O+3}|")
        A(f"v_add_f32 v106, |v{O+4}|, |v{O+5}|")
        A(f"v_add_f32 v107, |v{O+6}|, |v{O+7}|")
        A(f"v_add_f32 v104, v104, v105")
        A(f"v_add_f32 v106, v106, v107")
        A(f"v_add_f32 v104, v104, v106")
        A(f"v_cmp_nle_f32 vcc, s{sT+2}, v{O+8}")
        A(f"s_or_b64 s[68:69], s[68:69], vcc")
        A(f"v_cmp_nge_f32 vcc, s{sT+3}, v{O+8}")
        A(f"s_or_b64 s[68:69], s[68:69], vcc")
        A(f"v_cmp_ngt_f32 vcc, s{sT+4}, v104")
        A(f"s_or_b64 s[68:69], s[68:69], vcc")
    if cfg.force_slow: A("s_mov_b64 s[68:69], -1")
    A("s_cmp_lg_u64 s[68:69], 0")
    A("s_cbranch_scc1 L_slow")
    A("L_slow_ret:")
    T = Asm()
    T("L_slow:")
    T.c("true-max (online softmax) path, wave-local, K/V fragments straight from the workspace")
    m_, al = [104, 105], 106
    T(f"s_lshl_b32 s{sT}, s{sPair}, 18")
    T(f"s_lshr_b32 s{sT+1}, s{sWave}, 2")
    T(f"s_lshl_b32 s{sT+1}, s{sT+1}, 14")
    T(f"s_add_u32 s{sT}, s{sT}, s{sT+1}")
    T("v_lshrrev_b32 v108, 5, v0")
    T("v_and_b32 v109, 15, v0")
    T("v_lshlrev_b32 v109, 4, v109")
    T("v_lshl_add_u32 v109, v108, 8, v109")
    T("v_and_b32 v108, 11, v0")
    T("v_cmp_eq_u32 vcc, 0, v108")
    T("v_mov_b32 v110, 0")
    T("v_mov_b32 v111, 0x3f803f80")
    T("v_cndmask_b32 v110, v110, v111, vcc")
    for i in range(8): T(f"v_mov_b32 v{vV0f+i}, v110")
    for q in (0, 1):
        T(f"v_mov_b32 v{m_[q]}, 0xff800000")
        for i in range(16): T(f"v_mov_b32 v{O_[q]+i}, 0")
    T(f"s_mov_b32 s{sT+2}, 0")
    T("L_slow_loop:")
    T(f"s_lshr_b32 s{sT+3}, s{sT+2}, 3")
    T(f"s_lshl_b32 s{sT+3}, s{sT+3}, 15")
    T(f"s_and_b32 s{sT+4}, s{sT+2}, 7")
    T(f"s_lshl_b32 s{sT+4}, s{sT+4}, 11")
    T(f"s_add_u32 s{sT+3}, s{sT+3}, s{sT+4}")
    T(f"s_add_u32 s{sT+3}, s{sT+3}, s{sT}")
    T(f"buffer_load_dwordx4 {v(vKf,4)}, v{vL16}, s[{sWS}:{sWS+3}], s{sT+3} offen sc1")
    T("s_mov_b32 exec_lo, 0xffff")
    T("s_mov_b32 exec_hi, 0xffff")
    T(f"buffer_load_dwordx4 {v(vV0f,4)}, v109, s[{sWS}:{sWS+3}], s{sT+3} offen offset:1024 sc1")
    T(f"buffer_load_dwordx4 {v(vV1f,4)}, v109, s[{sWS}:{sWS+3}], s{sT+3} offen offset:1536 sc1")
    T("s_mov_b64 exec, -1")
    T("s_waitcnt vmcnt(0)")
    for q in (0, 1):
        S, O, m = S_[q], O_[q], m_[q]
        T(f"{M32} {v(S,16)}, {v(vKf,4)}, {v(vQ[q],4)}, 0")
        T("s_nop 15"); T("s_nop 3")
        T(f"v_max3_f32 v107, v{S}, v{S+1}, v{m}")
        for i in range(1, 8): T(f"v_max3_f32 v107, v{S+2*i}, v{S+2*i+1}, v107")
        T("v_mov_b32 v108, v107")
        T("s_nop 1")
        T("v_permlane32_swap_b32 v107, v108")
        T("v_max_f32 v107, v107, v108")
        T(f"v_sub_f32 v{al}, v{m}, v107")
        T(f"v_exp_f32 v{al}, v{al}")
        T(f"v_mov_b32 v{m}, v107")
        for i in range(16): T(f"v_sub_f32 v{S+i}, v{S+i}, v107")
        for i in range(16): T(f"v_exp_f32 v{S+i}, v{S+i}")
        for i in range(9): T(f"v_mul_f32 v{O+i}, v{O+i}, v{al}")
        for i in range(8): T(f"v_cvt_pk_bf16_f32 v{P_+i}, v{S+2*i}, v{S+2*i+1}")
        T("s_nop 1")
        T(f"{M32} {v(O,16)}, {v(vV0f,4)}, {v(P_,4)}, {v(O,16)}")
        T(f"{M32} {v(O,16)}, {v(vV1f,4)}, {v(P_+4,4)}, {v(O,16)}")
        T("s_nop 15"); T("s_nop 3")
    T(f"s_add_u32 s{sT+2}, s{sT+2}, 1")
    T(f"s_cmp_lt_u32 s{sT+2}, 64")
    T("s_cbranch_scc1 L_slow_loop")
    T("s_branch L_slow_ret")
    tails.append(T)

def p2_epilogue(A, cfg):
    A.c("---- normalise (gate factor / row sum), round, publish O fragments")
    A(f"s_lshl_b32 s{sT}, s{sSlab}, 2")
    A(f"s_add_u32 s{sT}, s{sT}, s{sRG}")
    A(f"s_lshl_b32 s{sT+1}, s{sPair}, 1")
    A(f"s_lshr_b32 s{sT+2}, s{sWave}, 2")
    A(f"s_add_u32 s{sT+1}, s{sT+1}, s{sT+2}")
    A(f"s_lshl_b32 s{sT+2}, s{sT}, 9")
    A(f"s_lshr_b32 s{sT+3}, s{sT+1}, 4")
    A(f"s_lshl_b32 s{sT+3}, s{sT+3}, 7")
    A(f"s_add_u32 s{sT+2}, s{sT+2}, s{sT+3}")
    A(f"s_and_b32 s{sT+3}, s{sT+1}, 15")
    A(f"s_lshl_b32 s{sT+3}, s{sT+3}, 2")
    A(f"s_add_u32 s{sT+2}, s{sT+2}, s{sT+3}")
    A(f"s_add_u32 s{sT+2}, s{sT+2}, {WS_F2}")
    A(f"s_lshl_b32 s{sT}, s{sT}, 17")
    A(f"s_lshl_b32 s{sT+1}, s{sT+1}, 10")
    A(f"s_add_u32 s{sT}, s{sT}, s{sT+1}")
    A(f"s_add_u32 s{sT}, s{sT}, {WS_O}")
    A(f"s_add_u32 s{sT+1}, s{sT}, 65536")
    for q in (0, 1):
        O = O_[q]
        A(f"v_rcp_f32 v104, v{O+8}")
        A("s_nop 0")
        A(f"v_mul_f32 v104, v104, v{vGF[q]}")
        for i in range(8): A(f"v_mul_f32 v{O+i}, v{O+i}, v104")
        for i in range(4): A(f"v_cvt_pk_bf16_f32 v{108+4*q+i}, v{O+2*i}, v{O+2*i+1}")
        A(f"buffer_store_dwordx4 {v(108+4*q,4)}, v{vL16}, s[{sWS}:{sWS+3}], s{sT+q} offen sc1")
    p3_addr(A)
    A("s_waitcnt vmcnt(0)")
    A("s_mov_b64 exec, 1")
    A(f"buffer_store_dword v{vZ}, off, s[{sWS}:{sWS+3}], s{sT+2} sc1")
    A("s_mov_b64 exec, -1")
    A("s_barrier")

OF, AC, WF = 128, [32, 48], [64, 72, 80, 88]
def p3_addr(A):
    A("v_lshrrev_b32 v104, 5, v0")
    A("v_lshlrev_b32 v104, 2, v104")
    A("v_bfe_u32 v105, v0, 2, 2")
    A("v_add_u32 v104, v104, v105")
    A("v_lshlrev_b32 v104, 7, v104")
    A("v_bfe_u32 v105, v0, 4, 1")
    A("v_lshlrev_b32 v105, 1, v105")
    A("v_bfe_u32 v106, v0, 1, 1")
    A("v_add_u32 v105, v105, v106")
    A("v_bfe_u32 v106, v0, 3, 1")
    A("v_lshlrev_b32 v106, 2, v106")
    A("v_xor_b32 v105, v105, v106")
    A("v_lshl_add_u32 v104, v105, 4, v104")
    A("v_and_b32 v105, 1, v0")
    A("v_lshl_add_u32 v104, v105, 3, v104")
    A(f"s_lshr_b32 s{sT+4}, s{sWave}, 1")
    A(f"s_lshl_b32 s{sT+5}, s{sT+4}, 15")
    A(f"s_add_u32 s{sT+5}, s{sT+5}, {WO}")
    A(f"v_add_u32 v2, s{sT+5}, v104")
    A("v_xor_b32 v3, 64, v2")
    A("v_and_b32 v104, 15, v0")
    A(f"v_lshlrev_b32 v{vPA}, 2, v104")
    A(f"s_lshl_b32 s{sF}, s{sS3}, 2")
    A(f"s_add_u32 s{sF}, s{sF}, s{sR3}")
    A(f"s_lshl_b32 s{sF}, s{sF}, 2")
    A(f"s_add_u32 s{sF}, s{sF}, s{sT+4}")
    A(f"s_lshl_b32 s{sF}, s{sF}, 7")
    A(f"s_add_u32 s{sF}, s{sF}, {WS_F2}")

def p3(A, cfg):
    A.c("---- phase 3: out tile 64x64 = [gA*OA | gB*OB] @ [WoA ; WoB]")
    F2LOAD = f"buffer_load_dword v{vPoll}, v{vPA}, s[{sWS}:{sWS+3}], s{sF} offen sc1"
    A(F2LOAD)
    def rdw(hh, F):
        return [f"ds_read_b64_tr_b16 {v(F,2)}, v2 offset:{hh*2048}", f"ds_read_b64_tr_b16 {v(F+2,2)}, v2 offset:{hh*2048+1024}",
                f"ds_read_b64_tr_b16 {v(F+4,2)}, v3 offset:{hh*2048}", f"ds_read_b64_tr_b16 {v(F+6,2)}, v3 offset:{hh*2048+1024}"]
    for x in rdw(0, WF[0]): A(x)
    for x in rdw(1, WF[1]): A(x)
    A(f"s_lshl_b32 s{sT}, s{sS3}, 3")
    A(f"s_lshl_b32 s{sT+1}, s{sR3}, 1")
    A(f"s_add_u32 s{sT}, s{sT}, s{sT+1}")
    A(f"s_and_b32 s{sT+1}, s{sWave}, 1")
    A(f"s_add_u32 s{sT}, s{sT}, s{sT+1}")
    A(f"s_lshl_b32 s{sT}, s{sT}, 16")
    A(f"s_lshr_b32 s{sT+1}, s{sWave}, 1")
    A(f"s_lshl_b32 s{sT+2}, s{sT+1}, 14")
    A(f"s_add_u32 s{sT}, s{sT}, s{sT+2}")
    A(f"s_add_u32 s{sT}, s{sT}, {WS_O}")
    spin(A, "f2", F2LOAD, vPoll, 1)
    stamp(A, cfg, 7)
    for hh in range(16):
        if hh and hh % 4 == 0: A(f"s_add_u32 s{sT}, s{sT}, 4096")
        A(f"buffer_load_dwordx4 {v(OF+4*hh,4)}, v{vL16}, s[{sWS}:{sWS+3}], s{sT} offen offset:{(hh%4)*1024} sc1")
    for hh in range(16):
        F = WF[hh % 4]
        A(f"s_waitcnt vmcnt({15-hh}) lgkmcnt({4 if hh < 15 else 0})")
        A(f"{M32} {v(AC[0],16)}, {v(F,4)}, {v(OF+4*hh,4)}, {'0' if hh == 0 else v(AC[0],16)}")
        R = rdw(hh + 2, WF[(hh + 2) % 4]) if hh + 2 < 16 else []
        for x in R[:2]: A(x)
        A(f"{M32} {v(AC[1],16)}, {v(F+4,4)}, {v(OF+4*hh,4)}, {'0' if hh == 0 else v(AC[1],16)}")
        for x in R[2:]: A(x)
    stamp(A, cfg, 8)
    PS = 272
    A("s_barrier")
    A("v_and_b32 v104, 31, v0")
    A(f"s_and_b32 s{sT}, s{sWave}, 1")
    A(f"s_lshl_b32 s{sT}, s{sT}, 5")
    A(f"s_lshr_b32 s{sT+1}, s{sWave}, 1")
    A(f"s_lshl_b32 s{sT+1}, s{sT+1}, 6")
    A(f"s_add_u32 s{sT}, s{sT}, s{sT+1}")
    A(f"v_add_u32 v104, s{sT}, v104")
    A(f"v_mul_u32_u24 v104, {PS}, v104")
    A("v_lshrrev_b32 v105, 5, v0")
    A("v_lshl_add_u32 v104, v105, 4, v104")
    A("s_nop 3")
    for ct in (0, 1):
        for rq in range(4):
            A(f"ds_write_b128 v104, {v(AC[ct]+4*rq,4)} offset:{ct*128 + rq*32}")
    A("v_lshrrev_b32 v105, 3, v0")
    A(f"s_lshl_b32 s{sT}, s{sWave}, 3")
    A(f"v_add_u32 v105, s{sT}, v105")
    A(f"v_mul_u32_u24 v106, {PS}, v105")
    A("v_and_b32 v107, 7, v0")
    A("v_lshl_add_u32 v106, v107, 5, v106")
    A(f"s_lshl_b32 s{sT}, s{sS3}, 8")
    A(f"s_lshl_b32 s{sT+1}, s{sR3}, 6")
    A(f"s_add_u32 s{sT}, s{sT}, s{sT+1}")
    A(f"s_lshl_b32 s{sT}, s{sT}, 10")
    A(f"s_lshl_b32 s{sT+1}, s{sC3}, 7")
    A(f"s_add_u32 s{sT}, s{sT}, s{sT+1}")
    A("v_lshlrev_b32 v105, 10, v105")
    A("v_lshl_add_u32 v105, v107, 4, v105")
    A("s_waitcnt lgkmcnt(0)")
    A("s_barrier")
    for kq in range(4):
        A(f"ds_read_b128 {v(64+8*kq,4)}, v106 offset:{kq*64*PS}")
        A(f"ds_read_b128 {v(68+8*kq,4)}, v106 offset:{kq*64*PS+16}")
    A("s_waitcnt lgkmcnt(4)")
    for i in range(4): A(f"v_pk_add_f32 {v(64+2*i,2)}, {v(64+2*i,2)}, {v(72+2*i,2)}")
    A("s_waitcnt lgkmcnt(0)")
    for i in range(4): A(f"v_pk_add_f32 {v(80+2*i,2)}, {v(80+2*i,2)}, {v(88+2*i,2)}")
    for i in range(4): A(f"v_pk_add_f32 {v(64+2*i,2)}, {v(64+2*i,2)}, {v(80+2*i,2)}")
    for i in range(4): A(f"v_cvt_pk_bf16_f32 v{96+i}, v{64+2*i}, v{65+2*i}")
    A(f"buffer_store_dwordx4 v[96:99], v105, s[{sOUT}:{sOUT+3}], s{sT} offen")

def build(cfg):
    tails.clear()
    name = KN + "_kernel"
    A = Asm(); kernel_head(A, name)
    prologue(A, cfg)
    p1_compute(A, cfg)
    stamp(A, cfg, 2)
    p1_compute_epilogue(A, cfg)
    A("s_branch L_attn")
    A("L_loader:")
    p1_loader(A, cfg)
    stamp(A, cfg, 2)
    A("L_attn:")
    stamp(A, cfg, 3)
    p2_setup(A, cfg)
    p2_main(A, cfg)
    stamp(A, cfg, 5)
    p2_check(A, cfg)
    p2_epilogue(A, cfg)
    stamp(A, cfg, 6)
    p3(A, cfg)
    stamp_store(A, cfg, 9)
    A("L_end:")
    A("s_endpgm")
    txt = A.text() + "".join(t.text() for t in tails)
    hdr = f"""; gated dual multi-head attention block: one persistent launch, 256 workgroups (one per CU)
; @launch grid=(256,1,1) block=(512,1,1) lds={LDS_TOTAL}
.amdgcn_target "amdgcn-amd-amdhsa--gfx950"
"""
    return hdr + txt + kernel_desc(name, 256)

if __name__ == "__main__":
    import sys
    cfg = Cfg()
    for a in sys.argv[2:]:
        k_, v_ = a.split("=")
        setattr(cfg, k_, int(v_))
    open(sys.argv[1], "w").write(build(cfg))
```

```python
from base import *
import math, struct

KN = "gated_mix__softmax_full_mha__mha_block__prompt"
sX, sW, sG, sWS, sWOA, sWOB, sOUT, sDBG = 24, 28, 32, 36, 40, 44, 48, 52
sWave, sSlab, sPair, sKC, sRG = 56, 57, 58, 59, 60
sSpin = 61
sT = 62
sXb, sXo, sWb_, sWo, sK2, sM = 70, 71, 72, 73, 74, 75
sCH, sCO, sMB, sWoG, sWoM, sJ = 70, 71, 72, 73, 74, 75
sS3, sR3, sC3, sF = 76, 77, 78, 79
WS_KV, WS_O, WS_F1, WS_F2, WS_ST, WS_SIZE = 0, 8 << 20, 12 << 20, (12 << 20) + 16384, 22 << 20, 24 << 20
XS, WB, GW, QX, GV = 32768, 98304, 135168, 136192, 144384
SLOT, REC, HSTR = 33280, 2080, 16640
WO = 32768
LDS_TOTAL = 163840
LOG2E = math.log2(math.e)
QSCALE = 0.25 * LOG2E
SPIN_MAX = 200000
def fbits(x): return hex(struct.unpack("<I", struct.pack("<f", x))[0])
vKL, vV0L, vV1L, vKH, vV0H, vV1H, vL16, vWoD, vPA, vPoll = range(240, 250)
vGF = [250, 251]
vZ = 252

class Cfg:
    lr = 2
    prio = 1
    stamps = 0
    slow = 1
    force_slow = 0
    t_flag = 0
    t_poll = 1

def stamp(A, cfg, i):
    if cfg.stamps in (1, 3): A(f"s_memrealtime s[{80+2*i}:{81+2*i}]")
    if cfg.stamps == 2: A(f"s_memtime s[{80+2*i}:{81+2*i}]")
def stamp_store(A, cfg, n):
    if not cfg.stamps: return
    A("s_waitcnt vmcnt(0)")
    stamp(A, cfg, n)
    A("s_waitcnt lgkmcnt(0)")
    if cfg.stamps == 3:
        A("s_mov_b64 exec, 1")
        A(f"s_not_b32 s{sT}, s80")
        A(f"v_mov_b32 v2, s{sT}")
        A(f"buffer_atomic_umax v2, off, s[{sDBG}:{sDBG+3}], 0 offset:8")
        for i in range(n + 1):
            A(f"v_mov_b32 v{3+i}, s{80+2*i}")
            A(f"buffer_atomic_umax v{3+i}, off, s[{sDBG}:{sDBG+3}], 0 offset:{12+4*i}")
        return
    A(f"s_lshl_b32 s{sT}, s2, 3")
    A(f"s_add_u32 s{sT}, s{sT}, s{sWave}")
    A(f"s_lshl_b32 s{sT}, s{sT}, 6")
    A(f"s_add_u32 s{sT}, s{sT}, {WS_ST}")
    A("v_mov_b32 v1, 0")
    for i in range(n + 1):
        A(f"v_mov_b32 v2, s{80+2*i}")
        A(f"buffer_store_dword v2, v1, s[{sWS}:{sWS+3}], s{sT} offen offset:{4*i}")
        A("s_nop 1")

def prologue(A, cfg):
    stamp(A, cfg, 0)
    A("s_cmp_ge_u32 s2, 256")
    A("s_cbranch_scc1 L_end")
    A("s_load_dwordx16 s[4:19], s[0:1], 0")
    A("s_load_dwordx4 s[20:23], s[0:1], 64")
    A("v_lshrrev_b32 v1, 6, v0")
    A("v_and_b32 v0, 63, v0")
    A(f"v_readfirstlane_b32 s{sWave}, v1")
    lr = cfg.lr
    A(f"s_and_b32 s{sT}, s2, {(8 >> lr) - 1}")
    A(f"s_lshl_b32 s{sT}, s{sT}, {lr}")
    A(f"s_lshr_b32 s{sT+1}, s2, 3")
    A(f"s_and_b32 s{sT+2}, s{sT+1}, {(1 << lr) - 1}")
    A(f"s_or_b32 s{sSlab}, s{sT}, s{sT+2}")
    A(f"s_and_b32 s{sT}, s2, 7")
    A(f"s_lshr_b32 s{sT}, s{sT}, {3 - lr}")
    A(f"s_lshl_b32 s{sT}, s{sT}, {5 - lr}")
    A(f"s_lshr_b32 s{sT+1}, s{sT+1}, {lr}")
    A(f"s_add_u32 s{sPair}, s{sT}, s{sT+1}")
    A(f"s_add_u32 s{sKC}, s{sPair}, s{sSlab}")
    A(f"s_and_b32 s{sKC}, s{sKC}, 7")
    A(f"s_and_b32 s{sRG}, s{sWave}, 3")
    A(f"s_cmp_ge_u32 s{sWave}, 4")
    A("s_cbranch_scc1 L_loader")

def late_srds(A):
    srd(A, sWS, 22, 23, WS_SIZE)
    srd(A, sWOA, 8, 9, 512 * 512 * 2)
    srd(A, sWOB, 14, 15, 512 * 512 * 2)
    srd(A, sOUT, 18, 19, 2048 * 512 * 2)
    srd(A, sDBG, 20, 21, 256)
    A(f"s_and_b32 s{sS3}, s2, 7")
    A(f"s_bfe_u32 s{sR3}, s2, 0x20003")
    A(f"s_lshr_b32 s{sC3}, s2, 5")

def xfrag_addr(A, L, H, t):
    A(f"v_and_b32 v{t}, 31, v0")
    A(f"v_lshrrev_b32 v{t+1}, 5, v0")
    A(f"v_bfe_u32 v{t+2}, v0, 1, 3")
    A(f"v_xor_b32 v{t+2}, v{t+2}, v{t+1}")
    A(f"v_lshlrev_b32 v{t}, 7, v{t}")
    A(f"s_lshl_b32 s{sT}, s{sRG}, 13")
    A(f"v_add_u32 v{t}, s{sT}, v{t}")
    for j in range(4):
        A(f"v_xor_b32 v{t+1}, {2*j}, v{t+2}")
        A(f"v_lshl_add_u32 v{L[j]}, v{t+1}, 4, v{t}")
        A(f"v_add_u32 v{H[j]}, 0x10000, v{L[j]}")

def p2_addr(A):
    A(f"v_lshlrev_b32 v{vL16}, 4, v0")
    A(f"s_lshr_b32 s{sT}, s{sWave}, 2")
    A(f"s_mul_i32 s{sT}, s{sT}, {HSTR}")
    A(f"v_add_u32 v{vKL}, s{sT}, v{vL16}")
    A("v_lshrrev_b32 v104, 5, v0")
    A("v_and_b32 v105, 15, v0")
    A("v_lshlrev_b32 v105, 4, v105")
    A("v_lshl_add_u32 v105, v104, 8, v105")
    A("v_add_u32 v105, 1024, v105")
    A("v_add_u32 v106, 512, v105")
    A("v_and_b32 v104, 11, v0")
    A("v_cmp_eq_u32 vcc, 0, v104")
    A("v_mov_b32 v107, 2064")
    A("v_mov_b32 v108, 2048")
    A("v_cndmask_b32 v107, v107, v108, vcc")
    A("v_and_b32 v104, 16, v0")
    A("v_cmp_eq_u32 vcc, 0, v104")
    A("s_nop 1")
    A("v_cndmask_b32 v105, v107, v105, vcc")
    A("v_cndmask_b32 v106, v107, v106, vcc")
    A(f"v_add_u32 v{vV0L}, s{sT}, v105")
    A(f"v_add_u32 v{vV1L}, s{sT}, v106")
    A(f"v_add_u32 v{vKH}, {2*SLOT}, v{vKL}")
    A(f"v_add_u32 v{vV0H}, {2*SLOT}, v{vV0L}")
    A(f"v_add_u32 v{vV1H}, {2*SLOT}, v{vV1L}")
    A("v_lshrrev_b32 v104, 3, v0")
    A("v_lshlrev_b32 v104, 10, v104")
    A("v_and_b32 v105, 7, v0")
    A(f"v_lshlrev_b32 v{vPA}, 2, v105")
    A("v_bfe_u32 v106, v0, 4, 1")
    A("v_lshlrev_b32 v106, 2, v106")
    A("v_xor_b32 v105, v105, v106")
    A(f"v_lshl_add_u32 v{vWoD}, v105, 4, v104")

def consts(A, slots):
    A("v_lshrrev_b32 v104, 4, v0")
    A(f"v_mul_u32_u24 v104, {SLOT}, v104")
    A("v_and_b32 v105, 15, v0")
    A(f"v_mul_u32_u24 v105, {REC}, v105")
    A("v_add_u32 v104, v104, v105")
    if slots[0]: A(f"v_add_u32 v104, {slots[0]*SLOT}, v104")
    for i in range(4):
        A(f"v_mov_b32 v{108+i}, 0x3f803f80")
        A(f"v_mov_b32 v{112+i}, 0")
    n = 16 * len(slots)
    A(f"s_mov_b32 exec_lo, {hex((1 << min(n,32)) - 1)}")
    A(f"s_mov_b32 exec_hi, {hex((1 << max(n-32,0)) - 1)}")
    A("ds_write_b128 v104, v[108:111] offset:2048")
    A("ds_write_b128 v104, v[112:115] offset:2064")
    A("s_mov_b64 exec, -1")

tails = []
def spin(A, name, load, reg, val, cmp="ne"):
    A("s_waitcnt vmcnt(0)")
    A(f"v_cmp_{cmp}_u32 vcc, {val}, v{reg}")
    A("s_nop 0")
    A(f"s_cbranch_vccnz L_spin_{name}")
    A(f"L_ret_{name}:")
    T = Asm()
    T(f"L_spin_{name}:")
    T(f"s_mov_b32 s{sSpin}, {SPIN_MAX}")
    T(f"L_spinl_{name}:")
    T(load)
    T(f"s_sub_u32 s{sSpin}, s{sSpin}, 1")
    T(f"s_cbranch_scc1 L_ret_{name}")
    T("s_waitcnt vmcnt(0)")
    T(f"v_cmp_{cmp}_u32 vcc, {val}, v{reg}")
    T("s_nop 0")
    T(f"s_cbranch_vccnz L_spinl_{name}")
    T(f"s_branch L_ret_{name}")
    tails.append(T)

vXL, vXH = [2, 3, 4, 5], [6, 7, 8, 9]
vWa, vWb, vWv = 10, 11, 12
ACC = dict(QKa0=32, QKa1=48, QKb0=64, QKb1=80, VV0=96, VV1=112)
FR = [128, 148]
vQ = [8, 12]
ZLOAD = f"buffer_load_dword v{vZ}, v{vPoll}, s[{sDBG}:{sDBG+3}], 0 offen sc1"

def p1_compute(A, cfg):
    A.c("---- phase 1, compute waves")
    A("s_waitcnt lgkmcnt(0)")
    late_srds(A)
    A.c("wave 0 clears this workgroup's hand-off words, then counts the workgroup in")
    A(f"s_cmp_lg_u32 s{sWave}, 0")
    A("s_cbranch_scc1 L_nozero")
    A(f"s_lshl_b32 s{sT}, s{sPair}, 9")
    A(f"s_lshl_b32 s{sT+1}, s{sSlab}, 2")
    A(f"s_add_u32 s{sT}, s{sT}, s{sT+1}")
    A(f"s_add_u32 s{sT}, s{sT}, {WS_F1}")
    A("v_lshlrev_b32 v2, 7, v0")
    A(f"v_add_u32 v2, s{sT}, v2")
    A(f"s_lshl_b32 s{sT}, s{sSlab}, 11")
    A(f"s_lshr_b32 s{sT+1}, s{sPair}, 3")
    A(f"s_lshl_b32 s{sT+1}, s{sT+1}, 7")
    A(f"s_add_u32 s{sT}, s{sT}, s{sT+1}")
    A(f"s_and_b32 s{sT+1}, s{sPair}, 7")
    A(f"s_lshl_b32 s{sT+1}, s{sT+1}, 3")
    A(f"s_add_u32 s{sT}, s{sT}, s{sT+1}")
    A(f"s_add_u32 s{sT}, s{sT}, {WS_F2}")
    A("v_subrev_u32 v3, 4, v0")
    A("v_lshrrev_b32 v4, 1, v3")
    A("v_and_b32 v3, 1, v3")
    A("v_lshlrev_b32 v3, 2, v3")
    A("v_lshl_add_u32 v3, v4, 9, v3")
    A(f"v_add_u32 v3, s{sT}, v3")
    A("v_cmp_gt_u32 vcc, 4, v0")
    A("v_mov_b32 v4, 0")
    A("s_nop 0")
    A("v_cndmask_b32 v2, v3, v2, vcc")
    A("s_mov_b64 exec, 0xfff")
    A(f"buffer_store_dword v4, v2, s[{sWS}:{sWS+3}], 0 offen sc1")
    A("s_mov_b64 exec, -1")
    A("L_nozero:")
    A("v_and_b32 v2, 1, v0")
    A(f"v_lshlrev_b32 v{vPoll}, 7, v2")
    A(f"v_mov_b32 v{vZ}, 1")
    p2_addr(A)
    xfrag_addr(A, vXL, vXH, 13)
    A("v_lshrrev_b32 v13, 5, v0")
    A("v_lshlrev_b32 v13, 3, v13")
    A("v_bfe_u32 v14, v0, 2, 2")
    A("v_add_u32 v13, v13, v14")
    A("v_mul_u32_u24 v13, 192, v13")
    A("v_and_b32 v14, 3, v0")
    A("v_lshl_add_u32 v13, v14, 3, v13")
    A(f"v_add_u32 v13, {WB}, v13")
    A("v_bfe_u32 v14, v0, 4, 1")
    A("v_mul_u32_u24 v15, 96, v14")
    A(f"v_add_u32 v{vWa}, v13, v15")
    A("v_lshl_add_u32 v13, v14, 5, v13")
    A(f"v_add_u32 v{vWb}, 32, v13")
    A(f"v_add_u32 v{vWv}, 128, v13")
    def reads(c, j, F):
        slot = c % 3
        xr = vXH[j] if slot == 2 else vXL[j]
        xi = XS if slot == 1 else 0
        wi = slot * 12288 + 16 * j * 192
        return [f"ds_read_b128 {v(F,4)}, v{xr} offset:{xi}",
                f"ds_read_b64_tr_b16 {v(F+8,2)}, v{vWa} offset:{wi}",
                f"ds_read_b64_tr_b16 {v(F+10,2)}, v{vWa} offset:{wi+768}",
                f"ds_read_b128 {v(F+4,4)}, v{xr} offset:{xi+4096}",
                f"ds_read_b64_tr_b16 {v(F+12,2)}, v{vWb} offset:{wi}",
                f"ds_read_b64_tr_b16 {v(F+14,2)}, v{vWb} offset:{wi+768}",
                f"ds_read_b64_tr_b16 {v(F+16,2)}, v{vWv} offset:{wi}",
                f"ds_read_b64_tr_b16 {v(F+18,2)}, v{vWv} offset:{wi+768}"]
    def mf(F, first):
        def m(D, a, b):
            return f"v_mfma_f32_32x32x16_bf16 {v(D,16)}, {v(a,4)}, {v(b,4)}, {'0' if first else v(D,16)}"
        return [m(ACC['QKa0'], F+8, F), m(ACC['QKa1'], F+8, F+4), m(ACC['QKb0'], F+12, F),
                m(ACC['QKb1'], F+12, F+4), m(ACC['VV0'], F, F+16), m(ACC['VV1'], F+4, F+16)]
    A("s_barrier")
    stamp(A, cfg, 1)
    for r in reads(0, 0, FR[0]): A(r)
    for n in range(32):
        c, j = divmod(n, 4)
        M = mf(FR[n & 1], n == 0)
        A("s_waitcnt lgkmcnt(0)")
        if n == 31:
            for m in M: A(m)
            break
        if j == 3: A("s_barrier")
        c2, j2 = divmod(n + 1, 4)
        R = reads(c2, j2, FR[(n + 1) & 1])
        A(M[0]); A(R[0]); A(R[1]); A(R[2])
        A(M[1]); A(R[3]); A(R[4]); A(R[5])
        A(M[2]); A(R[6]); A(R[7])
        A(M[3])
        if n == 2:
            A(f"s_cmp_lg_u32 s{sWave}, 0")
            A("s_cbranch_scc1 L_noz0")
            A(f"s_and_b32 s{sT}, s2, 1")
            A(f"s_lshl_b32 s{sT}, s{sT}, 7")
            A("s_mov_b64 exec, 1")
            A("s_waitcnt vmcnt(0)")
            A(f"buffer_atomic_add v{vZ}, off, s[{sDBG}:{sDBG+3}], s{sT}")
            A("s_mov_b64 exec, -1")
            A("L_noz0:")
        if n == 17:
            A(f"s_cmp_lg_u32 s{sWave}, 0")
            A("s_cbranch_scc1 L_noz1")
            A(ZLOAD)
            A("L_noz1:")
        A(M[4]); A(M[5])

def p1_compute_epilogue(A, cfg):
    A.c("---- phase 1 epilogue: round K/V, publish them (write-through) and keep them in LDS")
    A(f"s_lshl_b32 s{sT}, s{sPair}, 3")
    A(f"s_add_u32 s{sT}, s{sT}, s{sSlab}")
    A(f"s_lshl_b32 s{sT}, s{sT}, 15")
    A(f"s_lshl_b32 s{sT+1}, s{sRG}, 12")
    A(f"s_add_u32 s{sT}, s{sT}, s{sT+1}")
    A(f"s_add_u32 s{sT+1}, s{sT}, 16384")
    A("v_bfe_u32 v13, v0, 4, 1")
    A("v_lshrrev_b32 v14, 5, v0")
    A("v_and_b32 v15, 15, v0")
    A("v_lshlrev_b32 v15, 4, v15")
    A("v_lshl_add_u32 v15, v14, 8, v15")
    A("v_add_u32 v15, 1024, v15")
    A("v_lshl_add_u32 v3, v13, 14, v15")
    A(f"s_mul_i32 s{sT+2}, s{sRG}, {2*REC}")
    A(f"s_add_u32 s{sT+2}, s{sT+2}, {2*SLOT}")
    A(f"v_add_u32 v4, s{sT+2}, v{vL16}")
    A(f"v_mul_u32_u24 v13, {HSTR}, v13")
    A(f"v_add3_u32 v5, v13, v15, s{sT+2}")
    A.c("wave 0: every workgroup has cleared its hand-off words (checked before any flag is read)")
    A(f"s_cmp_lg_u32 s{sWave}, 0")
    A("s_cbranch_scc1 L_noz2")
    A(f"s_movk_i32 s{sT+3}, 128")
    spin(A, "z", ZLOAD, vZ, f"s{sT+3}", "gt")
    A("L_noz2:")
    def cvt(dst, src):
        for i in range(4):
            A(f"v_cvt_pk_bf16_f32 v{dst+i}, v{src+2*i}, v{src+2*i+1}")
    tmp = [128, 132, 136, 140, 144, 148, 152, 156]
    k = 0
    for hd, names in ((0, ("QKa0", "QKa1")), (1, ("QKb0", "QKb1"))):
        for t in (0, 1):
            cvt(tmp[k], ACC[names[t]] + 8)
            A(f"buffer_store_dwordx4 {v(tmp[k],4)}, v{vL16}, s[{sWS}:{sWS+3}], s{sT+hd} offen offset:{t*2048} sc1")
            k += 1
    for t in (0, 1):
        for a in (0, 1):
            cvt(tmp[k], ACC[f"VV{t}"] + 8 * a)
            A(f"buffer_store_dwordx4 {v(tmp[k],4)}, v3, s[{sWS}:{sWS+3}], s{sT} offen offset:{t*2048 + a*512} sc1")
            k += 1
    k = 0
    for hd in (0, 1):
        for t in (0, 1):
            A(f"ds_write_b128 v4, {v(tmp[k],4)} offset:{hd*HSTR + t*REC}"); k += 1
    for t in (0, 1):
        for a in (0, 1):
            A(f"ds_write_b128 v5, {v(tmp[k],4)} offset:{t*REC + a*512}"); k += 1
    A(f"s_mov_b32 s{sT+4}, {fbits(QSCALE)}")
    A(f"s_mov_b32 s{sT+5}, {fbits(QSCALE)}")
    A(f"s_lshl_b32 s{sT+2}, s{sRG}, 11")
    A(f"s_add_u32 s{sT+2}, s{sT+2}, {QX}")
    A(f"v_add_u32 v4, s{sT+2}, v{vL16}")
    for hd, names in ((1, ("QKb0", "QKb1")), (0, ("QKa0", "QKa1"))):
        for t in (0, 1):
            q = ACC[names[t]]
            for i in range(4):
                A(f"v_pk_mul_f32 {v(q+2*i,2)}, {v(q+2*i,2)}, s[{sT+4}:{sT+5}]")
            dst = vQ[t] if hd == 0 else 16 + 4 * t
            cvt(dst, q)
            if hd == 1: A(f"ds_write_b128 v4, {v(dst,4)} offset:{t*1024}")
    A("s_waitcnt lgkmcnt(0)")
    A("s_barrier")

def p1_loader(A, cfg):
    A.c("---- phase 1, loader waves: LDS-DMA of x / W chunks, gate logits")
    A("v_lshrrev_b32 v13, 3, v0")
    A("v_lshlrev_b32 v13, 10, v13")
    A("v_and_b32 v14, 7, v0")
    A("v_lshrrev_b32 v15, 4, v0")
    A("v_xor_b32 v14, v14, v15")
    A("v_lshl_add_u32 v13, v14, 4, v13")
    A("v_xor_b32 v14, 64, v13")
    for i in range(8):
        A(f"v_add_u32 v{2+i}, {i*8192 - (i&3)*1024}, v{14 if i & 1 else 13}")
    A(f"s_lshl_b32 s{sXb}, s{sSlab}, 18")
    A(f"s_lshl_b32 s{sT}, s{sRG}, 16")
    A(f"s_add_u32 s{sXb}, s{sXb}, s{sT}")
    def issue_x(c):
        slot = c % 3
        A(f"s_add_u32 s{sK2}, s{sKC}, {c}")
        A(f"s_and_b32 s{sK2}, s{sK2}, 7")
        A(f"s_lshl_b32 s{sXo}, s{sK2}, 7")
        A(f"s_lshl_b32 s{sM}, s{sRG}, 13")
        A(f"s_add_u32 m0, s{sM}, {slot*XS}")
        A(f"s_add_u32 s{sXo}, s{sXo}, s{sXb}")
        for i in range(8):
            if i == 4:
                A(f"s_add_u32 m0, s{sM}, {slot*XS + 4096}")
                A("s_nop 0")
            A(f"buffer_load_dwordx4 v{2+i}, s[{sX}:{sX+3}], s{sXo} offen offset:{(i&3)*1024} lds")
    def issue_w(c):
        slot = c % 3
        A(f"s_mul_i32 s{sM}, s{sRG}, 3072")
        A(f"s_mul_i32 s{sWo}, s{sK2}, 196608")
        A(f"s_add_u32 m0, s{sM}, {WB + slot*12288}")
        A(f"s_add_u32 s{sWo}, s{sWo}, s{sWb_}")
        for i in range(3):
            A(f"buffer_load_dwordx4 v{10+i}, s[{sW}:{sW+3}], s{sWo} offen offset:{i*1024} lds")
    A("s_waitcnt lgkmcnt(0)")
    srd(A, sX, 4, 5, 2048 * 512 * 2)
    issue_x(0)
    A(f"s_cmp_lt_u32 s{sPair}, 16")
    A(f"s_cselect_b32 s{sW}, s6, s12")
    A(f"s_cselect_b32 s{sW+1}, s7, s13")
    A(f"s_mov_b32 s{sW+2}, {hex(512*1536*2)}")
    A(f"s_mov_b32 s{sW+3}, 0x20000")
    A(f"s_and_b32 s{sWb_}, s{sPair}, 15")
    A(f"s_lshl_b32 s{sWb_}, s{sWb_}, 6")
    A(f"s_mul_i32 s{sT}, s{sRG}, 192")
    for i in range(3):
        A(f"v_add_u32 v13, s{sT}, v0")
        if i: A(f"v_add_u32 v13, {64*i}, v13")
        A("v_mul_u32_u24 v14, 0x5556, v13")
        A("v_lshrrev_b32 v14, 18, v14")
        A("v_mul_u32_u24 v15, 12, v14")
        A("v_sub_u32 v15, v13, v15")
        A("v_lshrrev_b32 v13, 2, v15")
        A("v_and_b32 v15, 3, v15")
        A("v_and_b32 v16, 1, v13")
        A("v_lshlrev_b32 v16, 1, v16")
        A("v_xor_b32 v15, v15, v16")
        A("v_mul_u32_u24 v14, 3072, v14")
        A("v_lshl_add_u32 v14, v13, 10, v14")
        A(f"v_lshl_add_u32 v{10+i}, v15, 4, v14")
        if i: A(f"v_subrev_u32 v{10+i}, {1024*i}, v{10+i}")
    issue_w(0)
    srd(A, sG, 16, 17, 1024)
    A("v_lshlrev_b32 v13, 4, v0")
    A(f"s_mov_b32 m0, {GW}")
    A("s_nop 0")
    A(f"buffer_load_dwordx4 v13, s[{sG}:{sG+3}], 0 offen lds")
    issue_x(1); issue_w(1)
    late_srds(A)
    p2_addr(A)
    gL, gH, vG0, vG = [16, 17, 18, 19], [20, 21, 22, 23], 24, 25
    xfrag_addr(A, gL, gH, 13)
    A("v_lshrrev_b32 v13, 5, v0")
    A("v_lshlrev_b32 v13, 4, v13")
    A(f"v_add_u32 v{vG0}, {GW}, v13")
    for i in range(8): A(f"v_mov_b32 v{32+i}, 0")
    for c in range(8):
        A(f"s_waitcnt vmcnt({11 if c < 7 else 0})")
        A("s_barrier")
        if c == 0: stamp(A, cfg, 1)
        if c <= 5:
            issue_x(c + 2); issue_w(c + 2)
        slot = c % 3
        A(f"s_add_u32 s{sK2}, s{sKC}, {c}")
        A(f"s_and_b32 s{sK2}, s{sK2}, 7")
        A(f"s_lshl_b32 s{sK2}, s{sK2}, 7")
        A(f"v_add_u32 v{vG}, s{sK2}, v{vG0}")
        for j in range(4):
            xr = gH[j] if slot == 2 else gL[j]
            xi = XS if slot == 1 else 0
            F = 40 + 12 * j
            A(f"ds_read_b128 {v(F,4)}, v{xr} offset:{xi}")
            A(f"ds_read_b128 {v(F+4,4)}, v{xr} offset:{xi+4096}")
            A(f"ds_read_b128 {v(F+8,4)}, v{vG} offset:{32*j}")
        for j in range(4):
            F = 40 + 12 * j
            A(f"s_waitcnt lgkmcnt({9-3*j})")
            for i in range(8):
                A(f"v_dot2_f32_bf16 v{32+i}, v{F+i}, v{F+8+(i&3)}, v{32+i}")
    A.c("gate factor = sigmoid(+z) for branch A, sigmoid(-z) = 1 - g for branch B")
    A("s_nop 2")
    for t in (0, 1):
        b = 32 + 4 * t
        A(f"v_add_f32 v{b}, v{b}, v{b+1}")
        A(f"v_add_f32 v{b+2}, v{b+2}, v{b+3}")
        A(f"v_add_f32 v{b}, v{b}, v{b+2}")
        A(f"v_mov_b32 v{b+1}, v{b}")
    A(f"s_cmp_lt_u32 s{sPair}, 16")
    A(f"s_mov_b32 s{sT}, {fbits(LOG2E)}")
    A(f"s_cselect_b32 s{sT}, {fbits(-LOG2E)}, s{sT}")
    for t in (0, 1): A(f"v_permlane32_swap_b32 v{32+4*t}, v{33+4*t}")
    for t in (0, 1): A(f"v_add_f32 v{32+4*t}, v{32+4*t}, v{33+4*t}")
    for t in (0, 1): A(f"v_mul_f32 v{32+4*t}, s{sT}, v{32+4*t}")
    for t in (0, 1): A(f"v_exp_f32 v{32+4*t}, v{32+4*t}")
    A("s_nop 0")
    for t in (0, 1): A(f"v_add_f32 v{32+4*t}, 1.0, v{32+4*t}")
    for t in (0, 1): A(f"v_rcp_f32 v{32+4*t}, v{32+4*t}")
    A("v_and_b32 v13, 31, v0")
    A("v_lshlrev_b32 v13, 2, v13")
    A(f"s_lshl_b32 s{sT}, s{sRG}, 8")
    A(f"s_add_u32 s{sT}, s{sT}, {GV}")
    A(f"v_add_u32 v13, s{sT}, v13")
    A("ds_write_b32 v13, v32")
    A("ds_write_b32 v13, v36 offset:128")
    consts(A, [2])
    A("s_waitcnt lgkmcnt(0)")
    A("s_barrier")
    A(f"s_lshl_b32 s{sT+2}, s{sRG}, 11")
    A(f"s_add_u32 s{sT+2}, s{sT+2}, {QX}")
    A(f"v_add_u32 v4, s{sT+2}, v{vL16}")
    A("ds_read_b128 v[8:11], v4")
    A("ds_read_b128 v[12:15], v4 offset:1024")
    consts(A, [0, 1])

vKf, vV0f, vV1f = 16, 20, 24
S_, O_, P_ = [32, 48], [64, 80], 96
M32 = "v_mfma_f32_32x32x16_bf16"
def slot_of(i): return (i + 2) % 3

def p2_setup(A, cfg):
    A("v_and_b32 v104, 31, v0")
    A("v_lshlrev_b32 v104, 2, v104")
    A(f"s_lshl_b32 s{sT}, s{sRG}, 8")
    A(f"s_add_u32 s{sT}, s{sT}, {GV}")
    A(f"v_add_u32 v104, s{sT}, v104")
    A(f"ds_read_b32 v{vGF[0]}, v104")
    A(f"ds_read_b32 v{vGF[1]}, v104 offset:128")
    A(f"s_lshl_b32 s{sCH}, s{sPair}, 18")
    A(f"s_lshl_b32 s{sT+1}, s{sWave}, 12")
    A(f"s_add_u32 s{sCH}, s{sCH}, s{sT+1}")
    A(f"s_mul_i32 s{sMB}, s{sWave}, {2*REC}")
    A(f"s_lshl_b32 s{sWoG}, s{sWave}, 13")
    A(f"s_lshl_b32 s{sT+1}, s{sC3}, 7")
    A(f"s_add_u32 s{sWoG}, s{sWoG}, s{sT+1}")
    A(f"s_lshl_b32 s{sWoM}, s{sWave}, 10")
    A(f"s_lshl_b32 s{sF}, s{sPair}, 2")
    A(f"s_add_u32 s{sF}, s{sF}, s{sRG}")
    A(f"s_lshl_b32 s{sF}, s{sF}, 7")
    A(f"s_add_u32 s{sF}, s{sF}, {WS_F1}")
    A(f"v_mov_b32 v{vZ}, 1")

def kv_setup(i):
    return [f"s_add_u32 s{sCO}, s{sSlab}, {i}", f"s_and_b32 s{sCO}, s{sCO}, 7",
            f"s_lshl_b32 s{sCO}, s{sCO}, 15", f"s_add_u32 s{sCO}, s{sCO}, s{sCH}"]
def kv_jobs(i):
    base = slot_of(i) * SLOT
    ld = lambda o: f"buffer_load_dwordx4 v{vL16}, s[{sWS}:{sWS+3}], s{sCO} offen offset:{o} sc1 lds"
    return [[f"s_add_u32 m0, s{sMB}, {base}", "s_nop 0", ld(0)], [ld(1024)],
            [f"s_add_u32 m0, s{sMB}, {base + REC - 2048}", "s_nop 0", ld(2048)], [ld(3072)]]
def wo_job(j):
    srd_ = sWOA if j < 8 else sWOB
    return [f"s_add_u32 m0, s{sWoM}, {WO + j*8192}", f"s_add_u32 s{sJ}, s{sWoG}, {(j&7)*65536}",
            f"buffer_load_dwordx4 v{vWoD}, s[{srd_}:{srd_+3}], s{sJ} offen lds"]

def rd(kind, i, t):
    if t == 8: i, t = i + 1, 0
    sl = slot_of(i); hi = sl == 2
    imm = (SLOT if sl == 1 else 0) + t * REC
    if kind == 'K': return f"ds_read_b128 {v(vKf,4)}, v{vKH if hi else vKL} offset:{imm}"
    if kind == 'V0': return f"ds_read_b128 {v(vV0f,4)}, v{vV0H if hi else vV0L} offset:{imm}"
    return f"ds_read_b128 {v(vV1f,4)}, v{vV1H if hi else vV1L} offset:{imm}"

def unit(A, q, first, last, slotA, slotB, slotC, first_o):
    S, Sn, O, Op = S_[q], S_[q ^ 1], O_[q], O_[q ^ 1]
    e = lambda i: A(f"v_exp_f32 v{S+i}, v{S+i}")
    c = lambda i: A(f"v_cvt_pk_bf16_f32 v{P_+i}, v{S+2*i}, v{S+2*i+1}")
    def run(sl):
        for x in sl:
            if callable(x): x(A)
            else: A(x)
    e(0)
    if not first: A(f"v_cvt_pk_bf16_f32 v{P_+7}, v{Sn+14}, v{Sn+15}")
    e(1); e(2)
    if not first: A(f"{M32} {v(Op,16)}, {v(vV1f,4)}, {v(P_+4,4)}, {v(Op,16)}")
    run(slotA)
    c(0); e(3); e(4); c(1); e(5); e(6)
    if not last: A(f"{M32} {v(Sn,16)}, {v(vKf,4)}, {v(vQ[q^1],4)}, 0")
    run(slotB)
    c(2); e(7); e(8); c(3); e(9); e(10)
    A(f"{M32} {v(O,16)}, {v(vV0f,4)}, {v(P_,4)}, {'0' if first_o else v(O,16)}")
    run(slotC)
    c(4); e(11); e(12); c(5); e(13); e(14); c(6); e(15)

def p2_main(A, cfg):
    A.c("---- phase 2: attention.  P = exp2(S) with no shift; the row sums ride in the PV MFMA (ones rows);")
    A.c("     they are range-checked afterwards and the true-max path redoes the wave when they are out of range")
    F1LOAD = f"buffer_load_dword v{vPoll}, v{vPA}, s[{sWS}:{sWS+3}], s{sF} offen sc1"
    jobs = {}
    def add(i, t, xs): jobs.setdefault((i, t), []).extend(xs)
    for i in range(8):
        if cfg.prio:
            for t, pr in ((1, 2), (3, 1), (5, 0), (7, 3)): add(i, t, [f"s_setprio {pr}"])
    def flag1(A):
        A("s_waitcnt vmcnt(0)")
        A(f"s_cmp_ge_u32 s{sWave}, 4")
        A("s_cbranch_scc1 L_noflag1")
        A(f"s_lshl_b32 s{sJ}, s{sSlab}, 2")
        A(f"s_add_u32 s{sJ}, s{sJ}, s{sF}")
        A("s_mov_b64 exec, 1")
        A(f"buffer_store_dword v{vZ}, off, s[{sWS}:{sWS+3}], s{sJ} sc1")
        A("s_mov_b64 exec, -1")
        A("L_noflag1:")
    add(0, cfg.t_flag, [flag1])
    add(0, cfg.t_poll, [F1LOAD])
    J1, J2 = kv_jobs(1), kv_jobs(2)
    tp = cfg.t_poll
    add(0, tp + 1, [lambda A: spin(A, "f1", F1LOAD, vPoll, 1)] + kv_setup(1) + J1[0] + J1[1])
    add(0, tp + 2, J1[2] + J1[3])
    add(0, tp + 3, kv_setup(2) + J2[0] + J2[1])
    add(0, tp + 4, J2[2] + J2[3])
    add(0, 6, ["s_waitcnt vmcnt(4)", "s_barrier"])
    for i in range(7): add(i, 7, ["s_waitcnt vmcnt(0)", "s_barrier"])
    add(7, 7, ["s_barrier"])
    for i in range(1, 6):
        J = kv_jobs(i + 2)
        add(i, 0, kv_setup(i + 2) + J[0]); add(i, 1, J[1]); add(i, 2, J[2]); add(i, 3, J[3])
    wo = {1: [9, 10], 2: [11, 12], 3: [13, 14], 4: [15]}
    for i, js in wo.items():
        for n, j in enumerate(js): add(i, 4 + n, wo_job(j))
    for n, j in enumerate([1, 2, 3]): add(6, n, wo_job(j))
    for n, j in enumerate([4, 5, 6, 7, 8]): add(7, n, wo_job(j))
    A(rd('K', 0, 0)); A(rd('V0', 0, 0))
    A("s_waitcnt lgkmcnt(1)")
    if cfg.prio: A("s_setprio 3")
    A(f"{M32} {v(S_[0],16)}, {v(vKf,4)}, {v(vQ[0],4)}, 0")
    A("s_nop 7"); A("s_nop 3")
    for i in range(8):
        for t in range(8):
            first = (i == 0 and t == 0); lastt = (i == 7 and t == 7)
            sA = [rd('V1', i, t)]
            sB = ["s_waitcnt lgkmcnt(1)"] + ([] if lastt else [rd('K', i, t + 1)])
            sC = ["s_waitcnt lgkmcnt(0)" if lastt else "s_waitcnt lgkmcnt(1)"]
            unit(A, 0, first, False, sA, sB, sC, first)
            sA = ["s_waitcnt lgkmcnt(0)"]
            sB = list(jobs.get((i, t), []))
            sC = [] if lastt else [rd('V0', i, t + 1)]
            unit(A, 1, False, lastt, sA, sB, sC, first)
        if i == 0: stamp(A, cfg, 4)
    for x in wo_job(0): A(x)
    A(f"v_cvt_pk_bf16_f32 v{P_+7}, v{S_[1]+14}, v{S_[1]+15}")
    A("s_nop 1")
    A(f"{M32} {v(O_[1],16)}, {v(vV1f,4)}, {v(P_+4,4)}, {v(O_[1],16)}")

def p2_check(A, cfg):
    if not cfg.slow: return
    A(f"s_mov_b32 s{sT+2}, {fbits(2.0**-24)}")
    A(f"s_mov_b32 s{sT+3}, {fbits(2.0**64)}")
    A(f"s_mov_b32 s{sT+4}, 0x7f800000")
    A("s_mov_b64 s[68:69], 0")
    for q in (0, 1):
        O = O_[q]
        if q == 1: A("s_nop 1")
        A(f"v_add_f32 v104, |v{O}|, |v{O+1}|")
        A(f"v_add_f32 v105, |v{O+2}|, |v{O+3}|")
        A(f"v_add_f32 v106, |v{O+4}|, |v{O+5}|")
        A(f"v_add_f32 v107, |v{O+6}|, |v{O+7}|")
        A(f"v_add_f32 v104, v104, v105")
        A(f"v_add_f32 v106, v106, v107")
        A(f"v_add_f32 v104, v104, v106")
        A(f"v_cmp_nle_f32 vcc, s{sT+2}, v{O+8}")
        A(f"s_or_b64 s[68:69], s[68:69], vcc")
        A(f"v_cmp_nge_f32 vcc, s{sT+3}, v{O+8}")
        A(f"s_or_b64 s[68:69], s[68:69], vcc")
        A(f"v_cmp_ngt_f32 vcc, s{sT+4}, v104")
        A(f"s_or_b64 s[68:69], s[68:69], vcc")
    if cfg.force_slow: A("s_mov_b64 s[68:69], -1")
    A("s_cmp_lg_u64 s[68:69], 0")
    A("s_cbranch_scc1 L_slow")
    A("L_slow_ret:")
    T = Asm()
    T("L_slow:")
    T.c("true-max (online softmax) path, wave-local, K/V fragments straight from the workspace")
    m_, al = [104, 105], 106
    T(f"s_lshl_b32 s{sT}, s{sPair}, 18")
    T(f"s_lshr_b32 s{sT+1}, s{sWave}, 2")
    T(f"s_lshl_b32 s{sT+1}, s{sT+1}, 14")
    T(f"s_add_u32 s{sT}, s{sT}, s{sT+1}")
    T("v_lshrrev_b32 v108, 5, v0")
    T("v_and_b32 v109, 15, v0")
    T("v_lshlrev_b32 v109, 4, v109")
    T("v_lshl_add_u32 v109, v108, 8, v109")
    T("v_and_b32 v108, 11, v0")
    T("v_cmp_eq_u32 vcc, 0, v108")
    T("v_mov_b32 v110, 0")
    T("v_mov_b32 v111, 0x3f803f80")
    T("v_cndmask_b32 v110, v110, v111, vcc")
    for i in range(8): T(f"v_mov_b32 v{vV0f+i}, v110")
    for q in (0, 1):
        T(f"v_mov_b32 v{m_[q]}, 0xff800000")
        for i in range(16): T(f"v_mov_b32 v{O_[q]+i}, 0")
    T(f"s_mov_b32 s{sT+2}, 0")
    T("L_slow_loop:")
    T(f"s_lshr_b32 s{sT+3}, s{sT+2}, 3")
    T(f"s_lshl_b32 s{sT+3}, s{sT+3}, 15")
    T(f"s_and_b32 s{sT+4}, s{sT+2}, 7")
    T(f"s_lshl_b32 s{sT+4}, s{sT+4}, 11")
    T(f"s_add_u32 s{sT+3}, s{sT+3}, s{sT+4}")
    T(f"s_add_u32 s{sT+3}, s{sT+3}, s{sT}")
    T(f"buffer_load_dwordx4 {v(vKf,4)}, v{vL16}, s[{sWS}:{sWS+3}], s{sT+3} offen sc1")
    T("s_mov_b32 exec_lo, 0xffff")
    T("s_mov_b32 exec_hi, 0xffff")
    T(f"buffer_load_dwordx4 {v(vV0f,4)}, v109, s[{sWS}:{sWS+3}], s{sT+3} offen offset:1024 sc1")
    T(f"buffer_load_dwordx4 {v(vV1f,4)}, v109, s[{sWS}:{sWS+3}], s{sT+3} offen offset:1536 sc1")
    T("s_mov_b64 exec, -1")
    T("s_waitcnt vmcnt(0)")
    for q in (0, 1):
        S, O, m = S_[q], O_[q], m_[q]
        T(f"{M32} {v(S,16)}, {v(vKf,4)}, {v(vQ[q],4)}, 0")
        T("s_nop 15"); T("s_nop 3")
        T(f"v_max3_f32 v107, v{S}, v{S+1}, v{m}")
        for i in range(1, 8): T(f"v_max3_f32 v107, v{S+2*i}, v{S+2*i+1}, v107")
        T("v_mov_b32 v108, v107")
        T("s_nop 1")
        T("v_permlane32_swap_b32 v107, v108")
        T("v_max_f32 v107, v107, v108")
        T(f"v_sub_f32 v{al}, v{m}, v107")
        T(f"v_exp_f32 v{al}, v{al}")
        T(f"v_mov_b32 v{m}, v107")
        for i in range(16): T(f"v_sub_f32 v{S+i}, v{S+i}, v107")
        for i in range(16): T(f"v_exp_f32 v{S+i}, v{S+i}")
        for i in range(9): T(f"v_mul_f32 v{O+i}, v{O+i}, v{al}")
        for i in range(8): T(f"v_cvt_pk_bf16_f32 v{P_+i}, v{S+2*i}, v{S+2*i+1}")
        T("s_nop 1")
        T(f"{M32} {v(O,16)}, {v(vV0f,4)}, {v(P_,4)}, {v(O,16)}")
        T(f"{M32} {v(O,16)}, {v(vV1f,4)}, {v(P_+4,4)}, {v(O,16)}")
        T("s_nop 15"); T("s_nop 3")
    T(f"s_add_u32 s{sT+2}, s{sT+2}, 1")
    T(f"s_cmp_lt_u32 s{sT+2}, 64")
    T("s_cbranch_scc1 L_slow_loop")
    T("s_branch L_slow_ret")
    tails.append(T)

def p2_epilogue(A, cfg):
    A.c("---- normalise (gate factor / row sum), round, publish O fragments")
    A(f"s_lshl_b32 s{sT}, s{sSlab}, 2")
    A(f"s_add_u32 s{sT}, s{sT}, s{sRG}")
    A(f"s_lshl_b32 s{sT+1}, s{sPair}, 1")
    A(f"s_lshr_b32 s{sT+2}, s{sWave}, 2")
    A(f"s_add_u32 s{sT+1}, s{sT+1}, s{sT+2}")
    A(f"s_lshl_b32 s{sT+2}, s{sT}, 9")
    A(f"s_lshr_b32 s{sT+3}, s{sT+1}, 4")
    A(f"s_lshl_b32 s{sT+3}, s{sT+3}, 7")
    A(f"s_add_u32 s{sT+2}, s{sT+2}, s{sT+3}")
    A(f"s_and_b32 s{sT+3}, s{sT+1}, 15")
    A(f"s_lshl_b32 s{sT+3}, s{sT+3}, 2")
    A(f"s_add_u32 s{sT+2}, s{sT+2}, s{sT+3}")
    A(f"s_add_u32 s{sT+2}, s{sT+2}, {WS_F2}")
    A(f"s_lshl_b32 s{sT}, s{sT}, 17")
    A(f"s_lshl_b32 s{sT+1}, s{sT+1}, 10")
    A(f"s_add_u32 s{sT}, s{sT}, s{sT+1}")
    A(f"s_add_u32 s{sT}, s{sT}, {WS_O}")
    A(f"s_add_u32 s{sT+1}, s{sT}, 65536")
    for q in (0, 1):
        O = O_[q]
        A(f"v_rcp_f32 v104, v{O+8}")
        A("s_nop 0")
        A(f"v_mul_f32 v104, v104, v{vGF[q]}")
        for i in range(8): A(f"v_mul_f32 v{O+i}, v{O+i}, v104")
        for i in range(4): A(f"v_cvt_pk_bf16_f32 v{108+4*q+i}, v{O+2*i}, v{O+2*i+1}")
        A(f"buffer_store_dwordx4 {v(108+4*q,4)}, v{vL16}, s[{sWS}:{sWS+3}], s{sT+q} offen sc1")
    p3_addr(A)
    A("s_waitcnt vmcnt(0)")
    A("s_mov_b64 exec, 1")
    A(f"buffer_store_dword v{vZ}, off, s[{sWS}:{sWS+3}], s{sT+2} sc1")
    A("s_mov_b64 exec, -1")
    A("s_barrier")

OF, AC, WF = 128, [32, 48], [64, 72, 80, 88]
def p3_addr(A):
    A("v_lshrrev_b32 v104, 5, v0")
    A("v_lshlrev_b32 v104, 2, v104")
    A("v_bfe_u32 v105, v0, 2, 2")
    A("v_add_u32 v104, v104, v105")
    A("v_lshlrev_b32 v104, 7, v104")
    A("v_bfe_u32 v105, v0, 4, 1")
    A("v_lshlrev_b32 v105, 1, v105")
    A("v_bfe_u32 v106, v0, 1, 1")
    A("v_add_u32 v105, v105, v106")
    A("v_bfe_u32 v106, v0, 3, 1")
    A("v_lshlrev_b32 v106, 2, v106")
    A("v_xor_b32 v105, v105, v106")
    A("v_lshl_add_u32 v104, v105, 4, v104")
    A("v_and_b32 v105, 1, v0")
    A("v_lshl_add_u32 v104, v105, 3, v104")
    A(f"s_lshr_b32 s{sT+4}, s{sWave}, 1")
    A(f"s_lshl_b32 s{sT+5}, s{sT+4}, 15")
    A(f"s_add_u32 s{sT+5}, s{sT+5}, {WO}")
    A(f"v_add_u32 v2, s{sT+5}, v104")
    A("v_xor_b32 v3, 64, v2")
    A("v_and_b32 v104, 15, v0")
    A(f"v_lshlrev_b32 v{vPA}, 2, v104")
    A(f"s_lshl_b32 s{sF}, s{sS3}, 2")
    A(f"s_add_u32 s{sF}, s{sF}, s{sR3}")
    A(f"s_lshl_b32 s{sF}, s{sF}, 2")
    A(f"s_add_u32 s{sF}, s{sF}, s{sT+4}")
    A(f"s_lshl_b32 s{sF}, s{sF}, 7")
    A(f"s_add_u32 s{sF}, s{sF}, {WS_F2}")

def p3(A, cfg):
    A.c("---- phase 3: out tile 64x64 = [gA*OA | gB*OB] @ [WoA ; WoB]")
    F2LOAD = f"buffer_load_dword v{vPoll}, v{vPA}, s[{sWS}:{sWS+3}], s{sF} offen sc1"
    A(F2LOAD)
    def rdw(hh, F):
        return [f"ds_read_b64_tr_b16 {v(F,2)}, v2 offset:{hh*2048}", f"ds_read_b64_tr_b16 {v(F+2,2)}, v2 offset:{hh*2048+1024}",
                f"ds_read_b64_tr_b16 {v(F+4,2)}, v3 offset:{hh*2048}", f"ds_read_b64_tr_b16 {v(F+6,2)}, v3 offset:{hh*2048+1024}"]
    for x in rdw(0, WF[0]): A(x)
    for x in rdw(1, WF[1]): A(x)
    A(f"s_lshl_b32 s{sT}, s{sS3}, 3")
    A(f"s_lshl_b32 s{sT+1}, s{sR3}, 1")
    A(f"s_add_u32 s{sT}, s{sT}, s{sT+1}")
    A(f"s_and_b32 s{sT+1}, s{sWave}, 1")
    A(f"s_add_u32 s{sT}, s{sT}, s{sT+1}")
    A(f"s_lshl_b32 s{sT}, s{sT}, 16")
    A(f"s_lshr_b32 s{sT+1}, s{sWave}, 1")
    A(f"s_lshl_b32 s{sT+2}, s{sT+1}, 14")
    A(f"s_add_u32 s{sT}, s{sT}, s{sT+2}")
    A(f"s_add_u32 s{sT}, s{sT}, {WS_O}")
    spin(A, "f2", F2LOAD, vPoll, 1)
    stamp(A, cfg, 7)
    for hh in range(16):
        if hh and hh % 4 == 0: A(f"s_add_u32 s{sT}, s{sT}, 4096")
        A(f"buffer_load_dwordx4 {v(OF+4*hh,4)}, v{vL16}, s[{sWS}:{sWS+3}], s{sT} offen offset:{(hh%4)*1024} sc1")
    for hh in range(16):
        F = WF[hh % 4]
        A(f"s_waitcnt vmcnt({15-hh}) lgkmcnt({4 if hh < 15 else 0})")
        A(f"{M32} {v(AC[0],16)}, {v(F,4)}, {v(OF+4*hh,4)}, {'0' if hh == 0 else v(AC[0],16)}")
        R = rdw(hh + 2, WF[(hh + 2) % 4]) if hh + 2 < 16 else []
        for x in R[:2]: A(x)
        A(f"{M32} {v(AC[1],16)}, {v(F+4,4)}, {v(OF+4*hh,4)}, {'0' if hh == 0 else v(AC[1],16)}")
        for x in R[2:]: A(x)
    stamp(A, cfg, 8)
    PS = 272
    A("s_barrier")
    A("v_and_b32 v104, 31, v0")
    A(f"s_and_b32 s{sT}, s{sWave}, 1")
    A(f"s_lshl_b32 s{sT}, s{sT}, 5")
    A(f"s_lshr_b32 s{sT+1}, s{sWave}, 1")
    A(f"s_lshl_b32 s{sT+1}, s{sT+1}, 6")
    A(f"s_add_u32 s{sT}, s{sT}, s{sT+1}")
    A(f"v_add_u32 v104, s{sT}, v104")
    A(f"v_mul_u32_u24 v104, {PS}, v104")
    A("v_lshrrev_b32 v105, 5, v0")
    A("v_lshl_add_u32 v104, v105, 4, v104")
    A("s_nop 3")
    for ct in (0, 1):
        for rq in range(4):
            A(f"ds_write_b128 v104, {v(AC[ct]+4*rq,4)} offset:{ct*128 + rq*32}")
    A("v_lshrrev_b32 v105, 3, v0")
    A(f"s_lshl_b32 s{sT}, s{sWave}, 3")
    A(f"v_add_u32 v105, s{sT}, v105")
    A(f"v_mul_u32_u24 v106, {PS}, v105")
    A("v_and_b32 v107, 7, v0")
    A("v_lshl_add_u32 v106, v107, 5, v106")
    A(f"s_lshl_b32 s{sT}, s{sS3}, 8")
    A(f"s_lshl_b32 s{sT+1}, s{sR3}, 6")
    A(f"s_add_u32 s{sT}, s{sT}, s{sT+1}")
    A(f"s_lshl_b32 s{sT}, s{sT}, 10")
    A(f"s_lshl_b32 s{sT+1}, s{sC3}, 7")
    A(f"s_add_u32 s{sT}, s{sT}, s{sT+1}")
    A("v_lshlrev_b32 v105, 10, v105")
    A("v_lshl_add_u32 v105, v107, 4, v105")
    A("s_waitcnt lgkmcnt(0)")
    A("s_barrier")
    for kq in range(4):
        A(f"ds_read_b128 {v(64+8*kq,4)}, v106 offset:{kq*64*PS}")
        A(f"ds_read_b128 {v(68+8*kq,4)}, v106 offset:{kq*64*PS+16}")
    A("s_waitcnt lgkmcnt(4)")
    for i in range(4): A(f"v_pk_add_f32 {v(64+2*i,2)}, {v(64+2*i,2)}, {v(72+2*i,2)}")
    A("s_waitcnt lgkmcnt(0)")
    for i in range(4): A(f"v_pk_add_f32 {v(80+2*i,2)}, {v(80+2*i,2)}, {v(88+2*i,2)}")
    for i in range(4): A(f"v_pk_add_f32 {v(64+2*i,2)}, {v(64+2*i,2)}, {v(80+2*i,2)}")
    for i in range(4): A(f"v_cvt_pk_bf16_f32 v{96+i}, v{64+2*i}, v{65+2*i}")
    A(f"buffer_store_dwordx4 v[96:99], v105, s[{sOUT}:{sOUT+3}], s{sT} offen")

def build(cfg):
    tails.clear()
    name = KN + "_kernel"
    A = Asm(); kernel_head(A, name)
    prologue(A, cfg)
    p1_compute(A, cfg)
    stamp(A, cfg, 2)
    p1_compute_epilogue(A, cfg)
    A("s_branch L_attn")
    A("L_loader:")
    p1_loader(A, cfg)
    stamp(A, cfg, 2)
    A("L_attn:")
    stamp(A, cfg, 3)
    p2_setup(A, cfg)
    p2_main(A, cfg)
    stamp(A, cfg, 5)
    p2_check(A, cfg)
    p2_epilogue(A, cfg)
    stamp(A, cfg, 6)
    p3(A, cfg)
    stamp_store(A, cfg, 9)
    A("L_end:")
    A("s_endpgm")
    txt = A.text() + "".join(t.text() for t in tails)
    hdr = f"""; gated dual multi-head attention block: one persistent launch, 256 workgroups (one per CU)
; @launch grid=(256,1,1) block=(512,1,1) lds={LDS_TOTAL}
.amdgcn_target "amdgcn-amd-amdhsa--gfx950"
"""
    return hdr + txt + kernel_desc(name, 256)

if __name__ == "__main__":
    import sys
    cfg = Cfg()
    for a in sys.argv[2:]:
        k_, v_ = a.split("=")
        setattr(cfg, k_, int(v_))
    open(sys.argv[1], "w").write(build(cfg))
```

```python
from base import *
import math, struct

KN = "gated_mix__softmax_full_mha__mha_block__prompt"
sX, sW, sG, sWS, sWOA, sWOB, sOUT, sDBG = 24, 28, 32, 36, 40, 44, 48, 52
sWave, sSlab, sPair, sKC, sRG = 56, 57, 58, 59, 60
sSpin = 61
sT = 62
sXb, sXo, sWb_, sWo, sK2, sM = 70, 71, 72, 73, 74, 75
sCH, sCO, sMB, sWoG, sWoM, sJ = 70, 71, 72, 73, 74, 75
sS3, sR3, sC3, sF = 76, 77, 78, 79
WS_KV, WS_O, WS_F1, WS_F2, WS_ST, WS_SIZE = 0, 8 << 20, 12 << 20, (12 << 20) + 16384, 22 << 20, 24 << 20
WS_G = (12 << 20) + 32768
XS, WB, GW, QX, GV = 32768, 98304, 135168, 69632, 77824
XB = {0: 32768, 1: 0, 2: 65536}
SLOT, REC, HSTR = 33280, 2080, 16640
SA, SB, SC = 0, 33280, 130560
WO = 0
LDS_TOTAL = 163840
LOG2E = math.log2(math.e)
QSCALE = 0.25 * LOG2E
SPIN_MAX = 200000
def fbits(x): return hex(struct.unpack("<I", struct.pack("<f", x))[0])
vKL, vV0L, vV1L, vKH, vV0H, vV1H, vL16, vWoD, vPA, vPoll = range(240, 250)
vGF = [250, 251]
vZ = 252
vZA, vZ2 = 254, 255
sOst, sOld, sOut, sGc = 4, 5, 6, 7

class Cfg:
    lr = 2
    prio = 1
    stamps = 0
    slow = 1
    force_slow = 0
    t_poll = 1
    dotmode = 4
    p1pipe = 0
    n_z = 21
    rot = 4
    tailbar = 1
    prog = 32
    bulk = 0
    early = 5
    la = 4
    outsc = 0
    rsleep = 0
    ethr = 32
    spindepth = 0
    sspread = 1
    spinsleep = 0
    wpf2 = 0
    epi2 = 1
    wfirst = 0
    l2pf = 0
    pfoff = 0
    epist = 0
    t16 = 0
    wpf = 0

def stamp(A, cfg, i):
    if cfg.stamps in (1, 3): A(f"s_memrealtime s[{80+2*i}:{81+2*i}]")
    if cfg.stamps == 2: A(f"s_memtime s[{80+2*i}:{81+2*i}]")
def lstamp(A, cfg, i):
    if cfg.stamps == 4:
        A("s_memrealtime s[80:81]")
        A("s_waitcnt lgkmcnt(0)")
        A(f"v_writelane_b32 v31, s80, {i}")
def stamp_store(A, cfg, n):
    if not cfg.stamps: return
    if cfg.stamps == 4:
        A("s_waitcnt vmcnt(0)")
        lstamp(A, cfg, 40)
        A(f"s_lshl_b32 s{sT}, s2, 3")
        A(f"s_add_u32 s{sT}, s{sT}, s{sWave}")
        A(f"s_lshl_b32 s{sT}, s{sT}, 8")
        A(f"s_add_u32 s{sT}, s{sT}, {WS_ST}")
        A("v_lshlrev_b32 v1, 2, v0")
        A(f"buffer_store_dword v31, v1, s[{sWS}:{sWS+3}], s{sT} offen")
        return
    A("s_waitcnt vmcnt(0)")
    stamp(A, cfg, n)
    A("s_waitcnt lgkmcnt(0)")
    if cfg.stamps == 3:
        A("s_mov_b64 exec, 1")
        A(f"s_not_b32 s{sT}, s80")
        A(f"v_mov_b32 v2, s{sT}")
        A(f"buffer_atomic_umax v2, off, s[{sDBG}:{sDBG+3}], 0 offset:8")
        for i in range(n + 1):
            A(f"v_mov_b32 v{3+i}, s{80+2*i}")
            A(f"buffer_atomic_umax v{3+i}, off, s[{sDBG}:{sDBG+3}], 0 offset:{12+4*i}")
        return
    A(f"s_lshl_b32 s{sT}, s2, 3")
    A(f"s_add_u32 s{sT}, s{sT}, s{sWave}")
    A(f"s_lshl_b32 s{sT}, s{sT}, 6")
    A(f"s_add_u32 s{sT}, s{sT}, {WS_ST}")
    A("v_mov_b32 v1, 0")
    for i in range(n + 1):
        A(f"v_mov_b32 v2, s{80+2*i}")
        A(f"buffer_store_dword v2, v1, s[{sWS}:{sWS+3}], s{sT} offen offset:{4*i}")
        A("s_nop 1")

def prologue(A, cfg):
    stamp(A, cfg, 0)
    if cfg.stamps == 4: A("v_mov_b32 v31, 0")
    lstamp(A, cfg, 0)
    A("s_cmp_ge_u32 s2, 256")
    A("s_cbranch_scc1 L_end")
    A("s_load_dwordx16 s[4:19], s[0:1], 0")
    A("s_load_dwordx4 s[20:23], s[0:1], 64")
    A("v_lshrrev_b32 v1, 6, v0")
    A("v_and_b32 v0, 63, v0")
    A(f"v_readfirstlane_b32 s{sWave}, v1")
    lr = cfg.lr
    A(f"s_and_b32 s{sT}, s2, {(8 >> lr) - 1}")
    A(f"s_lshl_b32 s{sT}, s{sT}, {lr}")
    A(f"s_lshr_b32 s{sT+1}, s2, 3")
    A(f"s_and_b32 s{sT+2}, s{sT+1}, {(1 << lr) - 1}")
    A(f"s_or_b32 s{sSlab}, s{sT}, s{sT+2}")
    A(f"s_and_b32 s{sT}, s2, 7")
    A(f"s_lshr_b32 s{sT}, s{sT}, {3 - lr}")
    A(f"s_lshl_b32 s{sT}, s{sT}, {5 - lr}")
    A(f"s_lshr_b32 s{sT+1}, s{sT+1}, {lr}")
    A(f"s_add_u32 s{sPair}, s{sT}, s{sT+1}")
    if cfg.rot == 0:
        A(f"s_add_u32 s{sKC}, s{sPair}, s{sSlab}")
    elif cfg.rot == 1:
        A(f"s_lshl_b32 s{sKC}, s{sSlab}, 1")
        A(f"s_add_u32 s{sKC}, s{sKC}, s{sPair}")
    elif cfg.rot == 2:
        A(f"s_and_b32 s{sKC}, s2, 6")
        A(f"s_and_b32 s{sT}, s2, 1")
        A(f"s_lshl_b32 s{sT}, s{sT}, 2")
        A(f"s_add_u32 s{sKC}, s{sKC}, s{sT}")
    elif cfg.rot == 3:
        A(f"s_mov_b32 s{sKC}, 0")
    elif cfg.rot == 4:
        A(f"s_and_b32 s{sKC}, s2, 6")
        A(f"s_add_u32 s{sT}, s{sPair}, s{sSlab}")
        A(f"s_and_b32 s{sT}, s{sT}, 1")
        A(f"s_lshl_b32 s{sT}, s{sT}, 2")
        A(f"s_add_u32 s{sKC}, s{sKC}, s{sT}")
    A(f"s_and_b32 s{sKC}, s{sKC}, 7")
    A(f"s_and_b32 s{sRG}, s{sWave}, 3")
    A(f"s_cmp_ge_u32 s{sWave}, 4")
    A("s_cbranch_scc1 L_loader")

def late_srds(A):
    srd(A, sWS, 22, 23, WS_SIZE)
    srd(A, sWOA, 8, 9, 512 * 512 * 2)
    srd(A, sWOB, 14, 15, 512 * 512 * 2)
    srd(A, sOUT, 18, 19, 2048 * 512 * 2)
    srd(A, sDBG, 20, 21, 256)
    A(f"s_and_b32 s{sS3}, s2, 7")
    A(f"s_bfe_u32 s{sR3}, s2, 0x20003")
    A(f"s_lshr_b32 s{sC3}, s2, 5")
    A(f"s_lshl_b32 s{sF}, s{sPair}, 2")
    A(f"s_add_u32 s{sF}, s{sF}, s{sRG}")
    A(f"s_lshl_b32 s{sF}, s{sF}, 7")
    A(f"s_add_u32 s{sF}, s{sF}, {WS_F1}")
    A.c("scalars of the tail (s4..s7: their pointers are dead by now)")
    A(f"s_lshl_b32 s{sT}, s{sSlab}, 2")
    A(f"s_add_u32 s{sT}, s{sT}, s{sRG}")
    A(f"s_lshl_b32 s{sT}, s{sT}, 17")
    A(f"s_lshl_b32 s{sT+1}, s{sPair}, 1")
    A(f"s_lshr_b32 s{sT+2}, s{sWave}, 2")
    A(f"s_add_u32 s{sT+1}, s{sT+1}, s{sT+2}")
    A(f"s_lshl_b32 s{sT+1}, s{sT+1}, 10")
    A(f"s_add_u32 s{sT}, s{sT}, s{sT+1}")
    A(f"s_add_u32 s{sOst}, s{sT}, {WS_O}")
    A(f"s_lshl_b32 s{sT}, s{sS3}, 3")
    A(f"s_lshl_b32 s{sT+1}, s{sR3}, 1")
    A(f"s_add_u32 s{sT}, s{sT}, s{sT+1}")
    A(f"s_and_b32 s{sT+1}, s{sWave}, 1")
    A(f"s_add_u32 s{sT}, s{sT}, s{sT+1}")
    A(f"s_lshl_b32 s{sT}, s{sT}, 16")
    A(f"s_lshr_b32 s{sT+1}, s{sWave}, 1")
    A(f"s_lshl_b32 s{sT+1}, s{sT+1}, 14")
    A(f"s_add_u32 s{sT}, s{sT}, s{sT+1}")
    A(f"s_add_u32 s{sOld}, s{sT}, {WS_O}")
    A(f"s_lshl_b32 s{sT}, s{sS3}, 8")
    A(f"s_lshl_b32 s{sT+1}, s{sR3}, 6")
    A(f"s_add_u32 s{sT}, s{sT}, s{sT+1}")
    A(f"s_lshl_b32 s{sT}, s{sT}, 10")
    A(f"s_lshl_b32 s{sT+1}, s{sC3}, 7")
    A(f"s_add_u32 s{sOut}, s{sT}, s{sT+1}")
    A(f"s_lshr_b32 s{sGc}, s{sPair}, 4")
    A(f"s_mul_i32 s{sGc}, s{sGc}, 0x3f800000")

def xfrag_addr(A, L, H, t):
    A(f"v_and_b32 v{t}, 31, v0")
    A(f"v_lshrrev_b32 v{t+1}, 5, v0")
    A(f"v_bfe_u32 v{t+2}, v0, 1, 3")
    A(f"v_xor_b32 v{t+2}, v{t+2}, v{t+1}")
    A(f"v_lshlrev_b32 v{t}, 7, v{t}")
    A(f"s_lshl_b32 s{sT}, s{sRG}, 13")
    A(f"v_add_u32 v{t}, s{sT}, v{t}")
    for j in range(4):
        A(f"v_xor_b32 v{t+1}, {2*j}, v{t+2}")
        A(f"v_lshl_add_u32 v{L[j]}, v{t+1}, 4, v{t}")
        A(f"v_add_u32 v{H[j]}, 0x10000, v{L[j]}")

def p2_addr(A):
    A(f"v_lshlrev_b32 v{vL16}, 4, v0")
    A(f"s_lshr_b32 s{sT}, s{sWave}, 2")
    A(f"s_mul_i32 s{sT}, s{sT}, {HSTR}")
    A(f"v_add_u32 v{vKL}, s{sT}, v{vL16}")
    A("v_lshrrev_b32 v104, 5, v0")
    A("v_and_b32 v105, 15, v0")
    A("v_lshlrev_b32 v105, 4, v105")
    A("v_lshl_add_u32 v105, v104, 8, v105")
    A("v_add_u32 v105, 1024, v105")
    A("v_add_u32 v106, 512, v105")
    A("v_and_b32 v104, 11, v0")
    A("v_cmp_eq_u32 vcc, 0, v104")
    A("v_mov_b32 v107, 2064")
    A("v_mov_b32 v108, 2048")
    A("v_cndmask_b32 v107, v107, v108, vcc")
    A("v_and_b32 v104, 16, v0")
    A("v_cmp_eq_u32 vcc, 0, v104")
    A("s_nop 1")
    A("v_cndmask_b32 v105, v107, v105, vcc")
    A("v_cndmask_b32 v106, v107, v106, vcc")
    A(f"v_add_u32 v{vV0L}, s{sT}, v105")
    A(f"v_add_u32 v{vV1L}, s{sT}, v106")
    A(f"v_add_u32 v{vKH}, {SC}, v{vKL}")
    A(f"v_add_u32 v{vV0H}, {SC}, v{vV0L}")
    A(f"v_add_u32 v{vV1H}, {SC}, v{vV1L}")
    A("v_lshrrev_b32 v104, 3, v0")
    A("v_lshlrev_b32 v104, 10, v104")
    A("v_and_b32 v105, 7, v0")
    A(f"v_lshlrev_b32 v{vPA}, 2, v105")
    A("v_bfe_u32 v106, v0, 4, 1")
    A("v_lshlrev_b32 v106, 2, v106")
    A("v_xor_b32 v105, v105, v106")
    A(f"v_lshl_add_u32 v{vWoD}, v105, 4, v104")

def consts(A, slots):
    A("v_lshrrev_b32 v104, 4, v0")
    A(f"v_mul_u32_u24 v104, {slots[-1] - slots[0]}, v104")
    A("v_and_b32 v105, 15, v0")
    A(f"v_mul_u32_u24 v105, {REC}, v105")
    A("v_add_u32 v104, v104, v105")
    if slots[0]: A(f"v_add_u32 v104, {slots[0]}, v104")
    for i in range(4):
        A(f"v_mov_b32 v{108+i}, 0x3f803f80")
        A(f"v_mov_b32 v{112+i}, 0")
    n = 16 * len(slots)
    A(f"s_mov_b32 exec_lo, {hex((1 << min(n,32)) - 1)}")
    A(f"s_mov_b32 exec_hi, {hex((1 << max(n-32,0)) - 1)}")
    A("ds_write_b128 v104, v[108:111] offset:2048")
    A("ds_write_b128 v104, v[112:115] offset:2064")
    A("s_mov_b64 exec, -1")

tails = []
def spin(A, name, load, reg, val, cmp="ne", sleep=0, depth=0):
    A("s_waitcnt vmcnt(0)")
    A(f"v_cmp_{cmp}_u32 vcc, {val}, v{reg}")
    A("s_nop 0")
    A(f"s_cbranch_vccnz L_spin_{name}")
    A(f"L_ret_{name}:")
    T = Asm()
    T(f"L_spin_{name}:")
    T(f"s_mov_b32 s{sSpin}, {SPIN_MAX}")
    for _ in range(depth):
        T(load)
        if sleep: T(f"s_sleep {sleep}")
    T(f"L_spinl_{name}:")
    if sleep: T(f"s_sleep {sleep}")
    T(load)
    T(f"s_sub_u32 s{sSpin}, s{sSpin}, 1")
    T(f"s_cbranch_scc1 L_ret_{name}")
    T(f"s_waitcnt vmcnt({depth})")
    T(f"v_cmp_{cmp}_u32 vcc, {val}, v{reg}")
    T("s_nop 0")
    T(f"s_cbranch_vccnz L_spinl_{name}")
    T(f"s_branch L_ret_{name}")
    tails.append(T)

vXL, vXH = [2, 3, 4, 5], [6, 7, 8, 9]
vWa, vWb, vWv = 10, 11, 12
ACC = dict(QKa0=32, QKa1=48, QKb0=64, QKb1=80, VV0=96, VV1=112)
FR = [128, 148]
vQ = [8, 12]
F1LOAD = f"buffer_load_dword v{vPoll}, v{vPA}, s[{sWS}:{sWS+3}], s{sF} offen sc1"
SAMPLE = f"buffer_load_dword v28, v5, s[{sWS}:{sWS+3}], s{sOld} offen sc1"
ZLOAD = f"buffer_load_dword v{vZ}, v{vPoll}, s[{sDBG}:{sDBG+3}], 0 offen sc1"

def l2_prefetch(A, cfg):
    assert cfg.lr == 2
    A(f"s_cmp_lt_u32 s{sPair}, 16")
    A(f"s_cselect_b32 s{sW}, s6, s12")
    A(f"s_cselect_b32 s{sW+1}, s7, s13")
    A(f"s_mov_b32 s{sW+2}, {hex(512*1536*2)}")
    A(f"s_mov_b32 s{sW+3}, 0x20000")
    A(f"s_lshl_b32 s{sT}, s{sWave}, 1")
    A(f"s_add_u32 s{sT}, s{sT}, s{sKC}")
    A(f"s_add_u32 s{sT}, s{sT}, {cfg.pfoff}")
    A("v_lshrrev_b32 v46, 5, v0")
    A(f"v_add_u32 v46, s{sT}, v46")
    A("v_and_b32 v46, 7, v46")
    A("v_and_b32 v47, 31, v0")
    A(f"s_lshr_b32 s{sT+1}, s2, 3")
    A(f"s_and_b32 s{sT+2}, s2, 1")
    A(f"s_lshl_b32 s{sT+2}, s{sT+2}, 20")
    A(f"s_lshl_b32 s{sT+3}, s{sT+1}, 15")
    A(f"s_add_u32 s{sT+2}, s{sT+2}, s{sT+3}")
    A("v_lshlrev_b32 v48, 10, v47")
    A("v_lshl_add_u32 v48, v46, 7, v48")
    A(f"buffer_load_dword v200, v48, s[{sX}:{sX+3}], s{sT+2} offen")
    A(f"s_mul_i32 s{sT+1}, s{sT+1}, 24")
    A("v_min_u32 v47, 23, v47")
    A(f"v_add_u32 v47, s{sT+1}, v47")
    A("v_mul_u32_u24 v48, 0x5556, v47")
    A("v_lshrrev_b32 v48, 18, v48")
    A("v_mul_u32_u24 v49, 12, v48")
    A("v_sub_u32 v49, v47, v49")
    A("v_lshl_add_u32 v48, v46, 6, v48")
    A("v_mul_u32_u24 v48, 3072, v48")
    A("v_lshrrev_b32 v47, 2, v49")
    A("v_lshl_add_u32 v48, v47, 10, v48")
    A("v_and_b32 v49, 3, v49")
    A("v_lshl_add_u32 v48, v49, 7, v48")
    A(f"s_and_b32 s{sT+1}, s{sPair}, 8")
    A(f"s_lshl_b32 s{sT+1}, s{sT+1}, 6")
    A(f"buffer_load_dword v201, v48, s[{sW}:{sW+3}], s{sT+1} offen")

def w_prefetch(A, cfg):
    assert cfg.lr == 2
    A(f"s_cmp_lt_u32 s{sPair}, 16")
    A(f"s_cselect_b32 s{sW}, s6, s12")
    A(f"s_cselect_b32 s{sW+1}, s7, s13")
    A(f"s_mov_b32 s{sW+2}, {hex(512*1536*2)}")
    A(f"s_mov_b32 s{sW+3}, 0x20000")
    A(f"s_and_b32 s{sT+1}, s{sPair}, 14")
    A(f"s_lshl_b32 s{sT+1}, s{sT+1}, 6")
    if cfg.wpf2 < 10:
        A(f"s_add_u32 s{sT+3}, s{sW}, s{sT+1}")
        A(f"s_bfe_u32 s{sT+3}, s{sT+3}, 0x30007")
    A(f"s_and_b32 s{sT}, s{sSlab}, 3")
    A(f"s_lshl_b32 s{sT}, s{sT}, 1")
    A(f"s_and_b32 s{sT+2}, s{sPair}, 1")
    A(f"s_add_u32 s{sT}, s{sT}, s{sT+2}")
    A(f"s_add_u32 s{sT}, s{sT}, s{sKC}")
    A(f"s_and_b32 s{sT}, s{sT}, 7")
    A(f"s_mul_i32 s{sT}, s{sT}, 196608")
    A(f"s_add_u32 s{sT}, s{sT}, s{sT+1}")
    A(f"s_mul_i32 s{sT+2}, s{sRG}, 49152")
    A(f"s_add_u32 s{sT}, s{sT}, s{sT+2}")
    A("v_min_u32 v46, 47, v0")
    A("v_lshlrev_b32 v46, 10, v46")
    if cfg.wpf2 < 10:
        A(f"s_cmp_eq_u32 s{sT+3}, 3")
        A("s_cselect_b64 exec, -1, 0")
    A(f"buffer_load_dword v200, v46, s[{sW}:{sW+3}], s{sT} offen")
    A("s_mov_b64 exec, -1")

def p1_compute(A, cfg):
    A.c("---- phase 1, compute waves")
    A("s_waitcnt lgkmcnt(0)")
    A.c("gate g = sigmoid(x . gate_w) of rows 8*wg + 2*wave, +1 (every workgroup covers 8 of the 2048 rows)")
    srd(A, sX, 4, 5, 2048 * 512 * 2)
    srd(A, sG, 16, 17, 1024)
    A(f"s_lshl_b32 s{sT+6}, s2, 2")
    A(f"s_add_u32 s{sT+6}, s{sT+6}, s{sWave}")
    A(f"s_lshl_b32 s{sT+7}, s{sT+6}, 11")
    A("v_lshlrev_b32 v13, 4, v0")
    A(f"buffer_load_dwordx4 v[32:35], v13, s[{sX}:{sX+3}], s{sT+7} offen")
    A(f"buffer_load_dwordx4 v[36:39], v13, s[{sX}:{sX+3}], s{sT+7} offen offset:1024")
    A(f"buffer_load_dwordx4 v[40:43], v13, s[{sG}:{sG+3}], 0 offen")
    if cfg.wpf:
        A.c("pull this workgroup's 1/256 share of both weight matrices towards the chip")
        A(f"s_cmp_lt_u32 s2, 128")
        A(f"s_cselect_b32 s{sW}, s6, s12")
        A(f"s_cselect_b32 s{sW+1}, s7, s13")
        A(f"s_mov_b32 s{sW+2}, {hex(512*1536*2)}")
        A(f"s_mov_b32 s{sW+3}, 0x20000")
        A(f"s_and_b32 s{sT}, s{sT+6}, 511")
        A(f"s_mul_i32 s{sT}, s{sT}, 3072")
        for i in range(3):
            A(f"buffer_load_dwordx4 v[{48+4*i}:{51+4*i}], v13, s[{sW}:{sW+3}], s{sT} offen offset:{1024*i}")
    if cfg.wpf2 % 10 == 1: w_prefetch(A, cfg)
    late_srds(A)
    A.c("wave 0 clears this workgroup's hand-off words, then counts the workgroup in")
    A(f"s_cmp_lg_u32 s{sWave}, 0")
    A("s_cbranch_scc1 L_nozero")
    A(f"s_lshl_b32 s{sT}, s{sPair}, 9")
    A(f"s_lshl_b32 s{sT+1}, s{sSlab}, 2")
    A(f"s_add_u32 s{sT}, s{sT}, s{sT+1}")
    A(f"s_add_u32 s{sT}, s{sT}, {WS_F1}")
    A("v_lshlrev_b32 v2, 7, v0")
    A(f"v_add_u32 v2, s{sT}, v2")
    A("v_mov_b32 v4, 0")
    A("s_mov_b64 exec, 0xf")
    A(f"buffer_store_dword v4, v2, s[{sWS}:{sWS+3}], 0 offen sc1")
    A("s_mov_b64 exec, -1")
    A("L_nozero:")
    A("v_and_b32 v2, 1, v0")
    A(f"v_lshlrev_b32 v{vPoll}, 7, v2")
    A(f"v_mov_b32 v{vZ}, 1")
    p2_addr(A)
    xfrag_addr(A, vXL, vXH, 13)
    A("v_lshrrev_b32 v13, 5, v0")
    A("v_lshlrev_b32 v13, 3, v13")
    A("v_bfe_u32 v14, v0, 2, 2")
    A("v_add_u32 v13, v13, v14")
    A("v_lshlrev_b32 v13, 6, v13")
    A("v_and_b32 v14, 3, v0")
    A("v_lshl_add_u32 v13, v14, 3, v13")
    A(f"v_add_u32 v13, {WB}, v13")
    A("v_bfe_u32 v14, v0, 4, 1")
    A("v_mul_u32_u24 v15, 1056, v14")
    A(f"v_add_u32 v{vWa}, v13, v15")
    A("v_mul_u32_u24 v15, 992, v14")
    A(f"v_add3_u32 v{vWb}, v13, v15, 32")
    A("v_lshl_add_u32 v13, v14, 5, v13")
    A(f"v_add_u32 v{vWv}, 2048, v13")
    def reads(c, j, F):
        slot = c % 3
        xr = vXH[j] if slot == 2 else vXL[j]
        xi = XS if slot == 0 else 0
        wi = slot * 12288 + j * 3072
        return [f"ds_read_b128 {v(F,4)}, v{xr} offset:{xi}",
                f"ds_read_b64_tr_b16 {v(F+8,2)}, v{vWa} offset:{wi}",
                f"ds_read_b64_tr_b16 {v(F+10,2)}, v{vWa} offset:{wi+256}",
                f"ds_read_b128 {v(F+4,4)}, v{xr} offset:{xi+4096}",
                f"ds_read_b64_tr_b16 {v(F+12,2)}, v{vWb} offset:{wi}",
                f"ds_read_b64_tr_b16 {v(F+14,2)}, v{vWb} offset:{wi+256}",
                f"ds_read_b64_tr_b16 {v(F+16,2)}, v{vWv} offset:{wi}",
                f"ds_read_b64_tr_b16 {v(F+18,2)}, v{vWv} offset:{wi+256}"]
    def mf(F, first):
        def m(D, a, b):
            if cfg.t16:
                q = 4 * (F != FR[0])
                return (f"v_mfma_f32_16x16x32_bf16 {v(D+q,4)}, {v(a,4)}, {v(b,4)}, {'0' if first else v(D+q,4)}\n"
                        f"v_mfma_f32_16x16x32_bf16 {v(D+8+q,4)}, {v(a,4)}, {v(b,4)}, {'0' if first else v(D+8+q,4)}")
            return f"v_mfma_f32_32x32x16_bf16 {v(D,16)}, {v(a,4)}, {v(b,4)}, {'0' if first else v(D,16)}"
        return [m(ACC['QKa0'], F+8, F), m(ACC['QKa1'], F+8, F+4), m(ACC['QKb0'], F+12, F),
                m(ACC['QKb1'], F+12, F+4), m(ACC['VV0'], F, F+16), m(ACC['VV1'], F+4, F+16)]
    A(f"s_lshl_b32 s{sT+6}, s{sT+6}, 3")
    A(f"s_add_u32 s{sT+6}, s{sT+6}, {WS_G}")
    A("v_lshrrev_b32 v13, 5, v0")
    A("v_lshlrev_b32 v13, 2, v13")
    A("v_mov_b32 v44, 0")
    A("v_mov_b32 v45, 0")
    if cfg.l2pf == 1: l2_prefetch(A, cfg)
    A(f"s_waitcnt vmcnt({(3 if cfg.wpf else (2 if cfg.l2pf == 1 else (1 if cfg.wpf2 % 10 == 1 else 0)))})")
    if cfg.l2pf == 2: l2_prefetch(A, cfg)
    if cfg.wpf2 % 10 == 2: w_prefetch(A, cfg)
    for i in range(4):
        A(f"v_dot2_f32_bf16 v44, v{32+i}, v{40+i}, v44")
        A(f"v_dot2_f32_bf16 v45, v{36+i}, v{40+i}, v45")
    A("s_nop 2")
    A("v_permlane32_swap_b32 v44, v45")
    A("v_add_f32 v44, v44, v45")
    A("v_mov_b32 v45, v44")
    A("s_nop 1")
    A("v_permlane16_swap_b32 v44, v45")
    A("v_add_f32 v44, v44, v45")
    for ctl in ("quad_perm:[1,0,3,2]", "quad_perm:[2,3,0,1]", "row_half_mirror", "row_mirror"):
        A("s_nop 1")
        A(f"v_add_f32_dpp v44, v44, v44 {ctl} row_mask:0xf bank_mask:0xf")
    A(f"v_mul_f32 v44, {fbits(-LOG2E)}, v44")
    A("v_exp_f32 v44, v44")
    A("s_nop 0")
    A("v_add_f32 v44, 1.0, v44")
    A("v_rcp_f32 v44, v44")
    A("s_mov_b32 exec_lo, 1")
    A("s_mov_b32 exec_hi, 1")
    A(f"buffer_store_dword v44, v13, s[{sWS}:{sWS+3}], s{sT+6} offen sc1")
    A("s_mov_b64 exec, -1")
    if cfg.wpf: A("s_waitcnt vmcnt(1)")
    A("s_barrier")
    stamp(A, cfg, 1)
    for r in reads(0, 0, FR[0]): A(r)
    def wave0_block(n):
        if n == 8:
            A(f"s_cmp_lg_u32 s{sWave}, 0")
            A("s_cbranch_scc1 L_noz0")
            A(f"s_and_b32 s{sT}, s2, 1")
            A(f"s_lshl_b32 s{sT}, s{sT}, 7")
            A("s_mov_b64 exec, 1")
            A(f"buffer_atomic_add v{vZ}, off, s[{sDBG}:{sDBG+3}], s{sT}")
            A("s_mov_b64 exec, -1")
            A("L_noz0:")
        if n == cfg.n_z:
            A(f"s_cmp_lg_u32 s{sWave}, 0")
            A("s_cbranch_scc1 L_noz1")
            A(ZLOAD)
            A("L_noz1:")
    if cfg.p1pipe == 0:
        for n in range(32):
            c, j = divmod(n, 4)
            M = mf(FR[n & 1], n == 0)
            A("s_waitcnt lgkmcnt(0)" if n != 7 else "s_waitcnt vmcnt(0) lgkmcnt(0)")
            if n == 31:
                for m in M: A(m)
                break
            if j == 3: A("s_barrier")
            c2, j2 = divmod(n + 1, 4)
            R = reads(c2, j2, FR[(n + 1) & 1])
            A(M[0]); A(R[0]); A(R[1]); A(R[2])
            A(M[1]); A(R[3]); A(R[4]); A(R[5])
            A(M[2]); A(R[6]); A(R[7])
            A(M[3])
            wave0_block(n)
            A(M[4]); A(M[5])
    else:
        for n in range(32):
            c, j = divmod(n, 4)
            M = mf(FR[n & 1], n == 0)
            last = n == 31
            c2, j2 = divmod(n + 1, 4)
            R = [""] * 8 if last else reads(c2, j2, FR[(n + 1) & 1])
            k = 0 if last else 3
            A("s_waitcnt lgkmcnt(5)")
            A(M[0])
            A("s_waitcnt lgkmcnt(4)")
            A(M[1])
            if n == 7: A("s_waitcnt vmcnt(0)")
            if j == 3 and not last: A("s_barrier")
            for x in R[0:3]: A(x)
            A(f"s_waitcnt lgkmcnt({2 + k})")
            A(M[2])
            for x in R[3:6]: A(x)
            A(M[3])
            wave0_block(n)
            A(f"s_waitcnt lgkmcnt({2*k})")
            if j == 3 and not last: A("s_barrier")
            A(M[4])
            for x in R[6:8]: A(x)
            A(M[5])

def p1_compute_epilogue(A, cfg):
    A.c("---- phase 1 epilogue: round K/V, publish them (write-through) and keep them in LDS")
    A(f"s_lshl_b32 s{sT}, s{sPair}, 3")
    A(f"s_add_u32 s{sT}, s{sT}, s{sSlab}")
    A(f"s_lshl_b32 s{sT}, s{sT}, 15")
    A(f"s_lshl_b32 s{sT+1}, s{sRG}, 12")
    A(f"s_add_u32 s{sT}, s{sT}, s{sT+1}")
    A(f"s_add_u32 s{sT+1}, s{sT}, 16384")
    A("v_bfe_u32 v13, v0, 4, 1")
    A("v_lshrrev_b32 v14, 5, v0")
    A("v_and_b32 v15, 15, v0")
    A("v_lshlrev_b32 v15, 4, v15")
    A("v_lshl_add_u32 v15, v14, 8, v15")
    A("v_add_u32 v15, 1024, v15")
    A("v_lshl_add_u32 v3, v13, 14, v15")
    A(f"s_mul_i32 s{sT+2}, s{sRG}, {2*REC}")
    A(f"s_add_u32 s{sT+2}, s{sT+2}, {SB}")
    A(f"v_add_u32 v4, s{sT+2}, v{vL16}")
    A(f"v_mul_u32_u24 v13, {HSTR}, v13")
    A(f"v_add3_u32 v5, v13, v15, s{sT+2}")
    A.c("wave 0: every workgroup has cleared its hand-off words (checked before any flag is read)")
    A(f"s_cmp_lg_u32 s{sWave}, 0")
    A("s_cbranch_scc1 L_noz2")
    A(f"s_movk_i32 s{sT+3}, 128")
    spin(A, "z", ZLOAD, vZ, f"s{sT+3}", "gt")
    A("L_noz2:")
    def cvt(dst, src):
        for i in range(4):
            A(f"v_cvt_pk_bf16_f32 v{dst+i}, v{src+2*i}, v{src+2*i+1}")
    if cfg.epi2:
        tmp = [128, 132, 136, 140, 144, 148, 152, 156]
        A(f"s_mov_b32 s{sT+4}, {fbits(QSCALE)}")
        A(f"s_mov_b32 s{sT+5}, {fbits(QSCALE)}")
        A(f"s_lshl_b32 s{sT+6}, s{sRG}, 11")
        A(f"s_add_u32 s{sT+6}, s{sT+6}, {QX}")
        A(f"v_add_u32 v6, s{sT+6}, v{vL16}")
        items = []
        for hd, names in ((0, ("QKa0", "QKa1")), (1, ("QKb0", "QKb1"))):
            for t in (0, 1):
                items.append((ACC[names[t]] + 8, f"v{vL16}, s[{sWS}:{sWS+3}], s{sT+hd} offen offset:{t*2048}", "v4", hd*HSTR + t*REC))
        for t in (0, 1):
            for a in (0, 1):
                items.append((ACC[f"VV{t}"] + 8 * a, f"v3, s[{sWS}:{sWS+3}], s{sT} offen offset:{t*2048 + a*512}", "v5", t*REC + a*512))
        qs = [("QKb0", 16, 0), ("QKb1", 20, 1024), ("QKa0", vQ[0], None), ("QKa1", vQ[1], None)]
        for k, (src, gaddr, laddr, loff) in enumerate(items):
            cvt(tmp[k], src)
            A(f"buffer_store_dwordx4 {v(tmp[k],4)}, {gaddr} sc1")
            A(f"ds_write_b128 {laddr}, {v(tmp[k],4)} offset:{loff}")
            nm, dst, qoff = qs[k >> 1]
            q = ACC[nm]
            if k & 1 == 0:
                for i in range(4): A(f"v_pk_mul_f32 {v(q+2*i,2)}, {v(q+2*i,2)}, s[{sT+4}:{sT+5}]")
            else:
                cvt(dst, q)
                if qoff is not None: A(f"ds_write_b128 v6, {v(dst,4)} offset:{qoff}")
    else:
        tmp = [128, 132, 136, 140, 144, 148, 152, 156]
        if cfg.epist: stamp(A, cfg, 3)
        k = 0
        for hd, names in ((0, ("QKa0", "QKa1")), (1, ("QKb0", "QKb1"))):
            for t in (0, 1):
                cvt(tmp[k], ACC[names[t]] + 8)
                A(f"buffer_store_dwordx4 {v(tmp[k],4)}, v{vL16}, s[{sWS}:{sWS+3}], s{sT+hd} offen offset:{t*2048} sc1")
                k += 1
        if cfg.epist: stamp(A, cfg, 4)
        for t in (0, 1):
            for a in (0, 1):
                cvt(tmp[k], ACC[f"VV{t}"] + 8 * a)
                A(f"buffer_store_dwordx4 {v(tmp[k],4)}, v3, s[{sWS}:{sWS+3}], s{sT} offen offset:{t*2048 + a*512} sc1")
                k += 1
        if cfg.epist: stamp(A, cfg, 5)
        k = 0
        for hd in (0, 1):
            for t in (0, 1):
                A(f"ds_write_b128 v4, {v(tmp[k],4)} offset:{hd*HSTR + t*REC}"); k += 1
        for t in (0, 1):
            for a in (0, 1):
                A(f"ds_write_b128 v5, {v(tmp[k],4)} offset:{t*REC + a*512}"); k += 1
        if cfg.epist: stamp(A, cfg, 6)
        A(f"s_mov_b32 s{sT+4}, {fbits(QSCALE)}")
        A(f"s_mov_b32 s{sT+5}, {fbits(QSCALE)}")
        A(f"s_lshl_b32 s{sT+2}, s{sRG}, 11")
        A(f"s_add_u32 s{sT+2}, s{sT+2}, {QX}")
        A(f"v_add_u32 v4, s{sT+2}, v{vL16}")
        for hd, names in ((1, ("QKb0", "QKb1")), (0, ("QKa0", "QKa1"))):
            for t in (0, 1):
                q = ACC[names[t]]
                for i in range(4):
                    A(f"v_pk_mul_f32 {v(q+2*i,2)}, {v(q+2*i,2)}, s[{sT+4}:{sT+5}]")
                dst = vQ[t] if hd == 0 else 16 + 4 * t
                cvt(dst, q)
                if hd == 1: A(f"ds_write_b128 v4, {v(dst,4)} offset:{t*1024}")
    if cfg.epist: stamp(A, cfg, 7)
    A("s_waitcnt lgkmcnt(0)")
    if cfg.epist: stamp(A, cfg, 8)
    A("s_barrier")
    if cfg.epist:
        stamp(A, cfg, 9)
        A("s_waitcnt vmcnt(0)")
        stamp_store(A, cfg, 10)
        A("s_endpgm")
    A.c("K/V stores acknowledged -> raise this wave's flag")
    A(f"v_mov_b32 v{vZ}, 1")
    A(f"s_lshl_b32 s{sJ}, s{sSlab}, 2")
    A(f"s_add_u32 s{sJ}, s{sJ}, s{sF}")
    lstamp(A, cfg, 46)
    A("s_waitcnt vmcnt(0)")
    A("s_mov_b64 exec, 1")
    A(f"buffer_store_dword v{vZ}, off, s[{sWS}:{sWS+3}], s{sJ} sc1")
    A("s_mov_b64 exec, -1")
    lstamp(A, cfg, 47)

def p1_loader(A, cfg):
    A.c("---- phase 1, loader waves: LDS-DMA of x / W chunks, gate logits")
    A("v_lshrrev_b32 v13, 3, v0")
    A("v_lshlrev_b32 v13, 10, v13")
    A("v_and_b32 v14, 7, v0")
    A("v_lshrrev_b32 v15, 4, v0")
    A("v_xor_b32 v14, v14, v15")
    A("v_lshl_add_u32 v13, v14, 4, v13")
    A("v_xor_b32 v14, 64, v13")
    for i in range(8):
        A(f"v_add_u32 v{2+i}, {i*8192 - (i&3)*1024}, v{14 if i & 1 else 13}")
    A(f"s_lshl_b32 s{sXb}, s{sSlab}, 18")
    A(f"s_lshl_b32 s{sT}, s{sRG}, 16")
    A(f"s_add_u32 s{sXb}, s{sXb}, s{sT}")
    def issue_x(c):
        slot = c % 3
        A(f"s_add_u32 s{sK2}, s{sKC}, {c}")
        A(f"s_and_b32 s{sK2}, s{sK2}, 7")
        A(f"s_lshl_b32 s{sXo}, s{sK2}, 7")
        A(f"s_lshl_b32 s{sM}, s{sRG}, 13")
        A(f"s_add_u32 m0, s{sM}, {XB[slot]}")
        A(f"s_add_u32 s{sXo}, s{sXo}, s{sXb}")
        for i in range(8):
            if i == 4:
                A(f"s_add_u32 m0, s{sM}, {XB[slot] + 4096}")
                A("s_nop 0")
            A(f"buffer_load_dwordx4 v{2+i}, s[{sX}:{sX+3}], s{sXo} offen offset:{(i&3)*1024} lds")
    def issue_w(c):
        slot = c % 3
        A(f"s_mul_i32 s{sM}, s{sRG}, 3072")
        A(f"s_mul_i32 s{sWo}, s{sK2}, 196608")
        A(f"s_add_u32 m0, s{sM}, {WB + slot*12288}")
        A(f"s_add_u32 s{sWo}, s{sWo}, s{sWb_}")
        for i in range(3):
            A(f"buffer_load_dwordx4 v{11 if i == 1 else 10}, s[{sW}:{sW+3}], s{sWo} offen offset:{i*1024} lds")
    def issue(c):
        if cfg.wfirst:
            A(f"s_add_u32 s{sK2}, s{sKC}, {c}")
            A(f"s_and_b32 s{sK2}, s{sK2}, 7")
            issue_w(c); issue_x(c)
        else:
            issue_x(c); issue_w(c)
    A("s_waitcnt lgkmcnt(0)")
    srd(A, sX, 4, 5, 2048 * 512 * 2)
    lstamp(A, cfg, 1)
    issue_x(0)
    lstamp(A, cfg, 2)
    A(f"s_cmp_lt_u32 s{sPair}, 16")
    A(f"s_cselect_b32 s{sW}, s6, s12")
    A(f"s_cselect_b32 s{sW+1}, s7, s13")
    A(f"s_mov_b32 s{sW+2}, {hex(512*1536*2)}")
    A(f"s_mov_b32 s{sW+3}, 0x20000")
    A(f"s_and_b32 s{sWb_}, s{sPair}, 15")
    A(f"s_lshl_b32 s{sWb_}, s{sWb_}, 6")
    A(f"s_mul_i32 s{sT}, s{sRG}, 49152")
    A(f"s_add_u32 s{sWb_}, s{sWb_}, s{sT}")
    A("v_lshrrev_b32 v13, 2, v0")
    A("v_mul_u32_u24 v13, 3072, v13")
    A("v_and_b32 v14, 3, v0")
    A("v_lshl_add_u32 v10, v14, 4, v13")
    A("v_xor_b32 v11, 32, v10")
    issue_w(0)
    issue(1)
    lstamp(A, cfg, 3)
    late_srds(A)
    p2_addr(A)
    for c in range(8):
        lstamp(A, cfg, 4 + 3*c)
        A(f"s_waitcnt vmcnt({11 if c < 7 else 0})")
        lstamp(A, cfg, 5 + 3*c)
        A("s_barrier")
        lstamp(A, cfg, 6 + 3*c)
        if c == 0: stamp(A, cfg, 1)
        if cfg.p1pipe and c >= 1: A("s_barrier")
        if c <= 5:
            issue(c + 2)
    consts(A, [SB])
    A("s_waitcnt lgkmcnt(0)")
    A(f"s_lshl_b32 s{sT+2}, s{sRG}, 11")
    A(f"s_add_u32 s{sT+2}, s{sT+2}, {QX}")
    A(f"v_add_u32 v4, s{sT+2}, v{vL16}")
    A("s_barrier")
    if cfg.epist: A("s_endpgm")
    A(F1LOAD)
    A("ds_read_b128 v[8:11], v4")
    A("ds_read_b128 v[12:15], v4 offset:1024")
    consts(A, [SA, SC])

vKf, vV0f, vV1f = 16, 20, 24
S_, O_, P_ = [32, 48], [64, 80], 96
M32 = "v_mfma_f32_32x32x16_bf16"
def slot_base(i): return (SB, SC, SA)[i % 3]

def p2_setup(A, cfg):
    A("v_and_b32 v104, 31, v0")
    A("v_lshlrev_b32 v104, 2, v104")
    A(f"s_lshl_b32 s{sT}, s{sSlab}, 10")
    A(f"s_lshl_b32 s{sT+1}, s{sRG}, 8")
    A(f"s_add_u32 s{sT}, s{sT}, s{sT+1}")
    A(f"s_add_u32 s{sT}, s{sT}, {WS_G}")
    A(f"buffer_load_dword v{vGF[0]}, v104, s[{sWS}:{sWS+3}], s{sT} offen sc1")
    A(f"buffer_load_dword v{vGF[1]}, v104, s[{sWS}:{sWS+3}], s{sT} offen offset:128 sc1")
    A(f"s_lshl_b32 s{sCH}, s{sPair}, 18")
    A(f"s_lshl_b32 s{sT+1}, s{sWave}, 12")
    A(f"s_add_u32 s{sCH}, s{sCH}, s{sT+1}")
    A(f"s_mul_i32 s{sMB}, s{sWave}, {2*REC}")
    A(f"s_lshl_b32 s{sWoG}, s{sWave}, 13")
    A(f"s_lshl_b32 s{sT+1}, s{sC3}, 7")
    A(f"s_add_u32 s{sWoG}, s{sWoG}, s{sT+1}")
    A(f"s_lshl_b32 s{sWoM}, s{sWave}, 10")
    for i in range(4): A(f"v_mov_b32 v{116+i}, -1")
    A("v_and_b32 v104, 1, v0")
    A(f"v_lshlrev_b32 v{vZA}, 7, v104")
    A(f"v_mov_b32 v{vZ2}, 128")
    A(f"v_mov_b32 v{vZ}, 1")

def kv_setup(i):
    return [f"s_add_u32 s{sCO}, s{sSlab}, {i}", f"s_and_b32 s{sCO}, s{sCO}, 7",
            f"s_lshl_b32 s{sCO}, s{sCO}, 15", f"s_add_u32 s{sCO}, s{sCO}, s{sCH}"]
def kv_jobs(i, other=False):
    base = slot_base(i) - (HSTR if other else 0)
    ld = lambda o: f"buffer_load_dwordx4 v{vL16}, s[{sWS}:{sWS+3}], s{sCO} offen offset:{o} sc1 lds"
    return [[f"s_add_u32 m0, s{sMB}, {base}", "s_nop 0", ld(0)], [ld(1024)],
            [f"s_add_u32 m0, s{sMB}, {base + REC - 2048}", "s_nop 0", ld(2048)], [ld(3072)]]
def wo_job(j):
    srd_ = sWOA if j < 8 else sWOB
    return [f"s_add_u32 m0, s{sWoM}, {WO + j*8192}", f"s_add_u32 s{sJ}, s{sWoG}, {(j&7)*65536}",
            f"buffer_load_dwordx4 v{vWoD}, s[{srd_}:{srd_+3}], s{sJ} offen lds"]

def rd(kind, i, t):
    if t == 8: i, t = i + 1, 0
    hi = slot_base(i) == SC
    imm = (0 if hi else slot_base(i)) + t * REC
    if kind == 'K': return f"ds_read_b128 {v(vKf,4)}, v{vKH if hi else vKL} offset:{imm}"
    if kind == 'V0': return f"ds_read_b128 {v(vV0f,4)}, v{vV0H if hi else vV0L} offset:{imm}"
    return f"ds_read_b128 {v(vV1f,4)}, v{vV1H if hi else vV1L} offset:{imm}"

def unit(A, q, first, last, slotA, slotB, slotC, first_o):
    S, Sn, O, Op = S_[q], S_[q ^ 1], O_[q], O_[q ^ 1]
    e = lambda i: A(f"v_exp_f32 v{S+i}, v{S+i}")
    c = lambda i: A(f"v_cvt_pk_bf16_f32 v{P_+i}, v{S+2*i}, v{S+2*i+1}")
    def run(sl):
        for x in sl:
            if callable(x): x(A)
            else: A(x)
    e(0)
    if not first: A(f"v_cvt_pk_bf16_f32 v{P_+7}, v{Sn+14}, v{Sn+15}")
    e(1); e(2)
    if not first: A(f"{M32} {v(Op,16)}, {v(vV1f,4)}, {v(P_+4,4)}, {v(Op,16)}")
    run(slotA)
    c(0); e(3); e(4); c(1); e(5); e(6)
    if not last: A(f"{M32} {v(Sn,16)}, {v(vKf,4)}, {v(vQ[q^1],4)}, 0")
    run(slotB)
    c(2); e(7); e(8); c(3); e(9); e(10)
    A(f"{M32} {v(O,16)}, {v(vV0f,4)}, {v(P_,4)}, {'0' if first_o else v(O,16)}")
    run(slotC)
    c(4); e(11); e(12); c(5); e(13); e(14); c(6); e(15)

def p2_main(A, cfg):
    A.c("---- phase 2: attention.  P = exp2(S) with no shift; the row sums ride in the PV MFMA (ones rows);")
    A.c("     they are range-checked afterwards and the true-max path redoes the wave when they are out of range")
    jobs = {}
    def add(i, t, xs): jobs.setdefault((i, t), []).extend(xs)
    for i in range(8):
        if cfg.prio:
            for t, pr in ((1, 2), (3, 1), (5, 0), (7, 3)): add(i, t, [f"s_setprio {pr}"])
    def first_chunks(i, nm):
        def f(A):
            A(f"s_cmp_lt_u32 s{sWave}, 4")
            A(f"s_cbranch_scc1 L_skip_{nm}")
            if i == 1:
                lstamp(A, cfg, 48)
                spin(A, "f1", F1LOAD, vPoll, 1)
                lstamp(A, cfg, 49)
            for x in kv_setup(i): A(x)
            for job in kv_jobs(i):
                for x in job: A(x)
            A(f"s_sub_u32 s{sCO}, s{sCO}, 16384")
            for job in kv_jobs(i, True):
                for x in job: A(x)
            A(f"L_skip_{nm}:")
        return f
    add(0, cfg.t_poll, [first_chunks(1, "c1")])
    add(0, cfg.t_poll + 2, [first_chunks(2, "c2")])
    add(0, 6, [lambda A: lstamp(A, cfg, 50), "s_waitcnt vmcnt(8)", lambda A: lstamp(A, cfg, 51), "s_barrier", lambda A: lstamp(A, cfg, 52)])
    for i in range(8): add(i, 7, ["s_waitcnt vmcnt(0)", "s_barrier"])
    for i in range(1, 6):
        J = kv_jobs(i + 2)
        add(i, 0, kv_setup(i + 2) + J[0]); add(i, 1, J[1]); add(i, 2, J[2]); add(i, 3, J[3])
    wo = {1: [9, 10], 2: [11, 12], 3: [13, 14]}
    for i, js in wo.items():
        for n, j in enumerate(js): add(i, 4 + n, wo_job(j))
    Z2LOAD = f"buffer_load_dword v{vZ2}, v{vZA}, s[{sDBG}:{sDBG+3}], 0 offen offset:4 sc1"
    add(1, 6, [f"buffer_store_dwordx4 v[116:119], v{vL16}, s[{sWS}:{sWS+3}], s{sOst} offen sc1", f"s_add_u32 s{sJ}, s{sOst}, 65536",
               f"buffer_store_dwordx4 v[116:119], v{vL16}, s[{sWS}:{sWS+3}], s{sJ} offen sc1"])
    def setwait(i, n):
        k = jobs[(i, 7)].index("s_waitcnt vmcnt(0)")
        if n is None: del jobs[(i, 7)][k]
        else: jobs[(i, 7)][k] = f"s_waitcnt vmcnt({n})"
    setwait(1, 4); setwait(2, 2); setwait(3, 2); setwait(6, None)
    if cfg.tailbar:
        jobs[(7, 7)].remove("s_waitcnt vmcnt(0)"); jobs[(7, 7)].remove("s_barrier")
    jobs[(3, 0)][0:0] = [f"s_cmp_lg_u32 s{sWave}, 0", "s_cbranch_scc1 L_noz2c", f"s_and_b32 s{sJ}, s2, 1", f"s_lshl_b32 s{sJ}, s{sJ}, 7",
               "s_mov_b64 exec, 1", f"buffer_atomic_add v{vZ}, off, s[{sDBG}:{sDBG+3}], s{sJ} offset:4", "s_mov_b64 exec, -1", "L_noz2c:"]
    jobs[(5, 0)][0:0] = [f"s_cmp_eq_u32 s{sWave}, 0", "s_cselect_b32 exec_lo, 3, 0", "s_mov_b32 exec_hi, 0", Z2LOAD, "s_mov_b64 exec, -1"]
    jobs[(5, 7)][-1:-1] = [f"s_movk_i32 s{sJ}, 128", lambda A: spin(A, "z2", Z2LOAD, vZ2, f"s{sJ}", "gt")]
    for n, j in enumerate([0, 1, 2, 3]): add(6, n, wo_job(j))
    for n, j in enumerate([4, 5, 6, 7, 8, 15]): add(7, n, wo_job(j))
    A(rd('K', 0, 0)); A(rd('V0', 0, 0))
    A("s_waitcnt lgkmcnt(1)")
    if cfg.prio: A("s_setprio 3")
    A(f"{M32} {v(S_[0],16)}, {v(vKf,4)}, {v(vQ[0],4)}, 0")
    A("s_nop 7"); A("s_nop 3")
    for i in range(8):
        for t in range(8):
            first = (i == 0 and t == 0); lastt = (i == 7 and t == 7)
            sA = [rd('V1', i, t)]
            sB = ["s_waitcnt lgkmcnt(1)"] + ([] if lastt else [rd('K', i, t + 1)])
            sC = ["s_waitcnt lgkmcnt(0)" if lastt else "s_waitcnt lgkmcnt(1)"]
            unit(A, 0, first, False, sA, sB, sC, first)
            sA = ["s_waitcnt lgkmcnt(0)"]
            sB = list(jobs.get((i, t), []))
            sC = [] if lastt else [rd('V0', i, t + 1)]
            unit(A, 1, False, lastt, sA, sB, sC, first)
        if i == 0: stamp(A, cfg, 4)
        if i < 7: lstamp(A, cfg, 29 + i)
    A("s_nop 0")
    A(f"v_cvt_pk_bf16_f32 v{P_+7}, v{S_[1]+14}, v{S_[1]+15}")
    A("s_nop 1")
    A(f"{M32} {v(O_[1],16)}, {v(vV1f,4)}, {v(P_+4,4)}, {v(O_[1],16)}")

def p2_check(A, cfg):
    if not cfg.slow: return
    A(f"s_mov_b32 s{sT+2}, {fbits(2.0**-24)}")
    A(f"s_mov_b32 s{sT+3}, {fbits(2.0**64)}")
    A(f"s_mov_b32 s{sT+4}, 0x7f800000")
    A("s_mov_b64 s[68:69], 0")
    for q in (0, 1):
        O = O_[q]
        if q == 1: A("s_nop 1")
        A(f"v_add_f32 v104, |v{O}|, |v{O+1}|")
        A(f"v_add_f32 v105, |v{O+2}|, |v{O+3}|")
        A(f"v_add_f32 v106, |v{O+4}|, |v{O+5}|")
        A(f"v_add_f32 v107, |v{O+6}|, |v{O+7}|")
        A(f"v_add_f32 v104, v104, v105")
        A(f"v_add_f32 v106, v106, v107")
        A(f"v_add_f32 v104, v104, v106")
        A(f"v_cmp_nle_f32 vcc, s{sT+2}, v{O+8}")
        A(f"s_or_b64 s[68:69], s[68:69], vcc")
        A(f"v_cmp_nge_f32 vcc, s{sT+3}, v{O+8}")
        A(f"s_or_b64 s[68:69], s[68:69], vcc")
        A(f"v_cmp_ngt_f32 vcc, s{sT+4}, v104")
        A(f"s_or_b64 s[68:69], s[68:69], vcc")
    if cfg.force_slow: A("s_mov_b64 s[68:69], -1")
    A("s_cmp_lg_u64 s[68:69], 0")
    A("s_cbranch_scc1 L_slow")
    A("L_slow_ret:")
    T = Asm()
    T("L_slow:")
    T.c("true-max (online softmax) path, wave-local, K/V fragments straight from the workspace")
    m_, al = [104, 105], 106
    T(f"s_lshl_b32 s{sT}, s{sPair}, 18")
    T(f"s_lshr_b32 s{sT+1}, s{sWave}, 2")
    T(f"s_lshl_b32 s{sT+1}, s{sT+1}, 14")
    T(f"s_add_u32 s{sT}, s{sT}, s{sT+1}")
    T("v_lshrrev_b32 v108, 5, v0")
    T("v_and_b32 v109, 15, v0")
    T("v_lshlrev_b32 v109, 4, v109")
    T("v_lshl_add_u32 v109, v108, 8, v109")
    T("v_and_b32 v108, 11, v0")
    T("v_cmp_eq_u32 vcc, 0, v108")
    T("v_mov_b32 v110, 0")
    T("v_mov_b32 v111, 0x3f803f80")
    T("v_cndmask_b32 v110, v110, v111, vcc")
    for i in range(8): T(f"v_mov_b32 v{vV0f+i}, v110")
    for q in (0, 1):
        T(f"v_mov_b32 v{m_[q]}, 0xff800000")
        for i in range(16): T(f"v_mov_b32 v{O_[q]+i}, 0")
    T(f"s_mov_b32 s{sT+2}, 0")
    T("L_slow_loop:")
    T(f"s_lshr_b32 s{sT+3}, s{sT+2}, 3")
    T(f"s_lshl_b32 s{sT+3}, s{sT+3}, 15")
    T(f"s_and_b32 s{sT+4}, s{sT+2}, 7")
    T(f"s_lshl_b32 s{sT+4}, s{sT+4}, 11")
    T(f"s_add_u32 s{sT+3}, s{sT+3}, s{sT+4}")
    T(f"s_add_u32 s{sT+3}, s{sT+3}, s{sT}")
    T(f"buffer_load_dwordx4 {v(vKf,4)}, v{vL16}, s[{sWS}:{sWS+3}], s{sT+3} offen sc1")
    T("s_mov_b32 exec_lo, 0xffff")
    T("s_mov_b32 exec_hi, 0xffff")
    T(f"buffer_load_dwordx4 {v(vV0f,4)}, v109, s[{sWS}:{sWS+3}], s{sT+3} offen offset:1024 sc1")
    T(f"buffer_load_dwordx4 {v(vV1f,4)}, v109, s[{sWS}:{sWS+3}], s{sT+3} offen offset:1536 sc1")
    T("s_mov_b64 exec, -1")
    T("s_waitcnt vmcnt(0)")
    for q in (0, 1):
        S, O, m = S_[q], O_[q], m_[q]
        T(f"{M32} {v(S,16)}, {v(vKf,4)}, {v(vQ[q],4)}, 0")
        T("s_nop 15"); T("s_nop 3")
        T(f"v_max3_f32 v107, v{S}, v{S+1}, v{m}")
        for i in range(1, 8): T(f"v_max3_f32 v107, v{S+2*i}, v{S+2*i+1}, v107")
        T("v_mov_b32 v108, v107")
        T("s_nop 1")
        T("v_permlane32_swap_b32 v107, v108")
        T("v_max_f32 v107, v107, v108")
        T(f"v_sub_f32 v{al}, v{m}, v107")
        T(f"v_exp_f32 v{al}, v{al}")
        T(f"v_mov_b32 v{m}, v107")
        for i in range(16): T(f"v_sub_f32 v{S+i}, v{S+i}, v107")
        for i in range(16): T(f"v_exp_f32 v{S+i}, v{S+i}")
        for i in range(9): T(f"v_mul_f32 v{O+i}, v{O+i}, v{al}")
        for i in range(8): T(f"v_cvt_pk_bf16_f32 v{P_+i}, v{S+2*i}, v{S+2*i+1}")
        T("s_nop 1")
        T(f"{M32} {v(O,16)}, {v(vV0f,4)}, {v(P_,4)}, {v(O,16)}")
        T(f"{M32} {v(O,16)}, {v(vV1f,4)}, {v(P_+4,4)}, {v(O,16)}")
        T("s_nop 15"); T("s_nop 3")
    T(f"s_add_u32 s{sT+2}, s{sT+2}, 1")
    T(f"s_cmp_lt_u32 s{sT+2}, 64")
    T("s_cbranch_scc1 L_slow_loop")
    T("s_branch L_slow_ret")
    tails.append(T)

def p2_epilogue(A, cfg):
    A.c("---- normalise (gate factor / row sum), round, publish O fragments (the data is its own ready flag:")
    A.c("     the slots were filled with 0xffffffff earlier in this launch and no published word has that value)")
    A(f"s_add_u32 s{sJ}, s{sOst}, 65536")
    A(f"s_mov_b32 s{sT}, 0xfffffffe")
    for q in (0, 1): A(f"v_sub_f32 v{vGF[q]}, s{sGc}, v{vGF[q]}")
    for q in (0, 1): A(f"v_rcp_f32 v{104+2*q}, v{O_[q]+8}")
    for q in (0, 1):
        O = O_[q]
        A(f"v_mul_f32 v{104+2*q}, v{104+2*q}, |v{vGF[q]}|")
        A(f"v_mov_b32 v{105+2*q}, v{104+2*q}")
        for i in range(4): A(f"v_pk_mul_f32 {v(O+2*i,2)}, {v(O+2*i,2)}, {v(104+2*q,2)}")
        for i in range(4): A(f"v_cvt_pk_bf16_f32 v{108+4*q+i}, v{O+2*i}, v{O+2*i+1}")
        for i in range(4): A(f"v_min_u32 v{108+4*q+i}, s{sT}, v{108+4*q+i}")
        A(f"buffer_store_dwordx4 {v(108+4*q,4)}, v{vL16}, s[{sWS}:{sWS+3}], s{sOst if q == 0 else sJ} offen sc1")
    lstamp(A, cfg, 44)

OF, AC, WFR = 128, [32, 48], [64, 72, 80, 88]
PS = 272
def p3(A, cfg):
    A.c("---- phase 3: out tile 64x64 = [gA*OA | gB*OB] @ [WoA ; WoB]")
    LA = cfg.la
    ld = lambda hh: f"buffer_load_dwordx4 {v(OF+4*hh,4)}, v4, s[{sWS}:{sWS+3}], s{8+hh//4} offen offset:{(hh%4)*1024} sc1"
    def rdw(hh):
        F = WFR[hh % 4]
        return [f"ds_read_b64_tr_b16 {v(F,2)}, v2 offset:{hh*2048}", f"ds_read_b64_tr_b16 {v(F+2,2)}, v2 offset:{hh*2048+1024}",
                f"ds_read_b64_tr_b16 {v(F+4,2)}, v3 offset:{hh*2048}", f"ds_read_b64_tr_b16 {v(F+6,2)}, v3 offset:{hh*2048+1024}"]
    def addr():
        A("v_lshrrev_b32 v16, 5, v0")
        A("v_lshlrev_b32 v16, 2, v16")
        A("v_bfe_u32 v17, v0, 2, 2")
        A("v_add_u32 v16, v16, v17")
        A("v_lshlrev_b32 v16, 7, v16")
        A("v_bfe_u32 v17, v0, 4, 1")
        A("v_lshlrev_b32 v17, 1, v17")
        A("v_bfe_u32 v18, v0, 1, 1")
        A("v_add_u32 v17, v17, v18")
        A("v_bfe_u32 v18, v0, 3, 1")
        A("v_lshlrev_b32 v18, 2, v18")
        A("v_xor_b32 v17, v17, v18")
        A("v_lshl_add_u32 v16, v17, 4, v16")
        A("v_and_b32 v17, 1, v0")
        A("v_lshl_add_u32 v16, v17, 3, v16")
        A(f"s_lshr_b32 s{sT+4}, s{sWave}, 1")
        A(f"s_lshl_b32 s{sT+5}, s{sT+4}, 15")
        A(f"s_add_u32 s{sT+5}, s{sT+5}, {WO}")
        A(f"v_add_u32 v2, s{sT+5}, v16")
        A("v_xor_b32 v3, 64, v2")
        A("v_and_b32 v16, 31, v0")
        A(f"s_and_b32 s{sT}, s{sWave}, 1")
        A(f"s_lshl_b32 s{sT}, s{sT}, 5")
        A(f"s_lshl_b32 s{sT+1}, s{sT+4}, 6")
        A(f"s_add_u32 s{sT}, s{sT}, s{sT+1}")
        A(f"v_add_u32 v16, s{sT}, v16")
        A(f"v_mul_u32_u24 v16, {PS}, v16")
        A("v_lshrrev_b32 v17, 5, v0")
        A("v_lshl_add_u32 v6, v17, 4, v16")
        A("v_lshrrev_b32 v16, 3, v0")
        A(f"s_lshl_b32 s{sT}, s{sWave}, 3")
        A(f"v_add_u32 v16, s{sT}, v16")
        A(f"v_mul_u32_u24 v7, {PS}, v16")
        A("v_and_b32 v17, 7, v0")
        A("v_lshl_add_u32 v7, v17, 5, v7")
        A("v_lshlrev_b32 v16, 10, v16")
        A("v_lshl_add_u32 v8, v17, 4, v16")
    for i in range(4): A(f"s_add_u32 s{8+i}, s{sOld}, {4096*i}")
    A(f"s_mov_b32 s{sSpin}, {SPIN_MAX}")
    A(f"v_mov_b32 v4, v{vL16}")
    for hh in range(LA): A(ld(hh))
    addr()
    lstamp(A, cfg, 55)
    A(f"s_waitcnt vmcnt({2 + LA})")
    A("s_barrier")
    lstamp(A, cfg, 56)
    for x in rdw(0) + rdw(1): A(x)
    A.c("a fragment that still holds fill words is fetched again (with the ones behind it)")
    for hh in range(16):
        F = WFR[hh % 4]; o = OF + 4 * hh
        A(f"L_ostep{hh}:")
        A(f"s_waitcnt vmcnt({min(LA - 1, 15 - hh)})")
        A(f"v_max3_u32 v10, v{o}, v{o+1}, v{o+2}")
        A(f"v_max_u32 v10, v10, v{o+3}")
        A("v_cmp_eq_u32 vcc, -1, v10")
        A(f"s_waitcnt lgkmcnt({4 if hh < 15 else 0})")
        A(f"s_cbranch_vccnz L_oretry{hh}")
        A(f"L_ogo{hh}:")
        A(f"{M32} {v(AC[0],16)}, {v(F,4)}, {v(o,4)}, {'0' if hh == 0 else v(AC[0],16)}")
        if hh + LA < 16: A(ld(hh + LA))
        R = rdw(hh + 2) if hh + 2 < 16 else []
        for x in R[:2]: A(x)
        A(f"{M32} {v(AC[1],16)}, {v(F+4,4)}, {v(o,4)}, {'0' if hh == 0 else v(AC[1],16)}")
        for x in R[2:]: A(x)
        T = Asm()
        T(f"L_oretry{hh}:")
        T(f"s_sub_u32 s{sSpin}, s{sSpin}, 1")
        T(f"s_cmp_gt_i32 s{sSpin}, 0")
        T(f"s_cbranch_scc0 L_ogo{hh}")
        T("s_waitcnt vmcnt(0)")
        if cfg.rsleep: T(f"s_sleep {cfg.rsleep}")
        for h2 in range(hh, min(16, hh + LA)): T(ld(h2))
        T(f"s_branch L_ostep{hh}")
        tails.append(T)
    stamp(A, cfg, 8)
    lstamp(A, cfg, 41)
    if cfg.stamps == 4:
        A(f"s_sub_u32 s80, {SPIN_MAX + 1000}, s{sSpin}")
        A("v_writelane_b32 v31, s80, 53")
    A("s_barrier")
    A("s_nop 7")
    A("s_nop 1")
    for rq in range(4):
        A(f"ds_write_b128 v6, {v(AC[0]+4*rq,4)} offset:{rq*32}")
    for rq in range(4):
        A(f"ds_write_b128 v6, {v(AC[1]+4*rq,4)} offset:{128 + rq*32}")
    A("s_waitcnt lgkmcnt(0)")
    lstamp(A, cfg, 42)
    A("s_barrier")
    lstamp(A, cfg, 43)
    for kq in range(4):
        A(f"ds_read_b128 {v(64+8*kq,4)}, v7 offset:{kq*64*PS}")
        A(f"ds_read_b128 {v(68+8*kq,4)}, v7 offset:{kq*64*PS+16}")
    A("s_waitcnt lgkmcnt(4)")
    for i in range(4): A(f"v_pk_add_f32 {v(64+2*i,2)}, {v(64+2*i,2)}, {v(72+2*i,2)}")
    A("s_waitcnt lgkmcnt(0)")
    for i in range(4): A(f"v_pk_add_f32 {v(80+2*i,2)}, {v(80+2*i,2)}, {v(88+2*i,2)}")
    for i in range(4): A(f"v_pk_add_f32 {v(64+2*i,2)}, {v(64+2*i,2)}, {v(80+2*i,2)}")
    for i in range(4): A(f"v_cvt_pk_bf16_f32 v{96+i}, v{64+2*i}, v{65+2*i}")
    A(f"buffer_store_dwordx4 v[96:99], v8, s[{sOUT}:{sOUT+3}], s{sOut} offen" + ["", " sc1", " nt", " sc0 sc1", " sc1 nt"][cfg.outsc])

def build(cfg):
    tails.clear()
    name = KN + "_kernel"
    A = Asm(); kernel_head(A, name)
    prologue(A, cfg)
    p1_compute(A, cfg)
    stamp(A, cfg, 2)
    lstamp(A, cfg, 27)
    p1_compute_epilogue(A, cfg)
    A("s_branch L_attn")
    A("L_loader:")
    p1_loader(A, cfg)
    stamp(A, cfg, 2)
    A("L_attn:")
    stamp(A, cfg, 3)
    lstamp(A, cfg, 28)
    p2_setup(A, cfg)
    p2_main(A, cfg)
    stamp(A, cfg, 5)
    lstamp(A, cfg, 37)
    p2_check(A, cfg)
    p2_epilogue(A, cfg)
    stamp(A, cfg, 6)
    p3(A, cfg)
    stamp_store(A, cfg, 9)
    A("L_end:")
    A("s_endpgm")
    txt = A.text() + "".join(t.text() for t in tails)
    hdr = f"""; gated dual multi-head attention block: one persistent launch, 256 workgroups (one per CU)
; @launch grid=(256,1,1) block=(512,1,1) lds={LDS_TOTAL}
.amdgcn_target "amdgcn-amd-amdhsa--gfx950"
"""
    return hdr + txt + kernel_desc(name, 256)

if __name__ == "__main__":
    import sys
    cfg = Cfg()
    for a in sys.argv[2:]:
        k_, v_ = a.split("=")
        setattr(cfg, k_, int(v_))
    open(sys.argv[1], "w").write(build(cfg))
```

```python
from base import *
import math, struct

KN = "gated_mix__softmax_full_mha__mha_block__prompt"
sX, sW, sG, sWS, sWOA, sWOB, sOUT, sDBG = 24, 28, 32, 36, 40, 44, 48, 52
sWave, sSlab, sPair, sKC, sRG = 56, 57, 58, 59, 60
sSpin = 61
sT = 62
sXb, sXo, sWb_, sWo, sK2, sM = 70, 71, 72, 73, 74, 75
sCH, sCO, sMB, sWoG, sWoM, sJ = 70, 71, 72, 73, 74, 75
sS3, sR3, sC3, sF = 76, 77, 78, 79
WS_KV, WS_O, WS_F1, WS_F2, WS_ST, WS_SIZE = 0, 8 << 20, 12 << 20, (12 << 20) + 16384, 22 << 20, 24 << 20
WS_G = (12 << 20) + 32768
XS, WB, GW, QX, GV = 32768, 98304, 135168, 69632, 77824
XB = {0: 32768, 1: 0, 2: 65536}
SLOT, REC, HSTR = 33280, 2080, 16640
SA, SB, SC = 0, 33280, 130560
WO = 0
LDS_TOTAL = 163840
LOG2E = math.log2(math.e)
QSCALE = 0.25 * LOG2E
SPIN_MAX = 200000
def fbits(x): return hex(struct.unpack("<I", struct.pack("<f", x))[0])
vKL, vV0L, vV1L, vKH, vV0H, vV1H, vL16, vWoD, vPA, vPoll = range(240, 250)
vGF = [250, 251]
vZ = 252
vZA, vZ2 = 254, 255
vGA, vFill, sGo = 253, 232, 3
sOst, sOld, sOut, sGc = 4, 5, 6, 7

class Cfg:
    lr = 2
    prio = 0x5AE
    p1prio = 1
    prio0 = 0x37B
    stamps = 0
    slow = 1
    force_slow = 0
    t_poll = 1
    dotmode = 4
    p1pipe = 0
    n_z = 21
    rot = 4
    tailbar = 1
    prog = 32
    bulk = 0
    early = 5
    la = 4
    order = 0
    align = 0
    shift = 0
    outsc = 3
    rsleep = 0
    ethr = 32
    spindepth = 0
    sspread = 1
    spinsleep = 0
    wpf2 = 0
    epi2 = 1
    wfirst = 0
    l2pf = 0
    pfoff = 0
    epist = 0
    t16 = 0
    wpf = 0

def stamp(A, cfg, i):
    if cfg.stamps in (1, 3): A(f"s_memrealtime s[{80+2*i}:{81+2*i}]")
    if cfg.stamps == 2: A(f"s_memtime s[{80+2*i}:{81+2*i}]")
def lstamp(A, cfg, i):
    if cfg.stamps == 4:
        A("s_memrealtime s[80:81]")
        A("s_waitcnt lgkmcnt(0)")
        A(f"v_writelane_b32 v31, s80, {i}")
def stamp_store(A, cfg, n):
    if not cfg.stamps: return
    if cfg.stamps == 4:
        A("s_waitcnt vmcnt(0)")
        lstamp(A, cfg, 40)
        A(f"s_lshl_b32 s{sT}, s2, 3")
        A(f"s_add_u32 s{sT}, s{sT}, s{sWave}")
        A(f"s_lshl_b32 s{sT}, s{sT}, 8")
        A(f"s_add_u32 s{sT}, s{sT}, {WS_ST}")
        A("v_lshlrev_b32 v1, 2, v0")
        A(f"buffer_store_dword v31, v1, s[{sWS}:{sWS+3}], s{sT} offen")
        return
    A("s_waitcnt vmcnt(0)")
    stamp(A, cfg, n)
    A("s_waitcnt lgkmcnt(0)")
    if cfg.stamps == 3:
        A("s_mov_b64 exec, 1")
        A(f"s_not_b32 s{sT}, s80")
        A(f"v_mov_b32 v2, s{sT}")
        A(f"buffer_atomic_umax v2, off, s[{sDBG}:{sDBG+3}], 0 offset:8")
        for i in range(n + 1):
            A(f"v_mov_b32 v{3+i}, s{80+2*i}")
            A(f"buffer_atomic_umax v{3+i}, off, s[{sDBG}:{sDBG+3}], 0 offset:{12+4*i}")
        return
    A(f"s_lshl_b32 s{sT}, s2, 3")
    A(f"s_add_u32 s{sT}, s{sT}, s{sWave}")
    A(f"s_lshl_b32 s{sT}, s{sT}, 6")
    A(f"s_add_u32 s{sT}, s{sT}, {WS_ST}")
    A("v_mov_b32 v1, 0")
    for i in range(n + 1):
        A(f"v_mov_b32 v2, s{80+2*i}")
        A(f"buffer_store_dword v2, v1, s[{sWS}:{sWS+3}], s{sT} offen offset:{4*i}")
        A("s_nop 1")

def prologue(A, cfg):
    stamp(A, cfg, 0)
    if cfg.stamps == 4: A("v_mov_b32 v31, 0")
    lstamp(A, cfg, 0)
    A("s_cmp_ge_u32 s2, 256")
    A("s_cbranch_scc1 L_end")
    A("s_load_dwordx16 s[4:19], s[0:1], 0")
    A("s_load_dwordx4 s[20:23], s[0:1], 64")
    A("v_lshrrev_b32 v1, 6, v0")
    A("v_and_b32 v0, 63, v0")
    A(f"v_readfirstlane_b32 s{sWave}, v1")
    lr = cfg.lr
    A(f"s_and_b32 s{sT}, s2, {(8 >> lr) - 1}")
    A(f"s_lshl_b32 s{sT}, s{sT}, {lr}")
    A(f"s_lshr_b32 s{sT+1}, s2, 3")
    A(f"s_and_b32 s{sT+2}, s{sT+1}, {(1 << lr) - 1}")
    A(f"s_or_b32 s{sSlab}, s{sT}, s{sT+2}")
    A(f"s_and_b32 s{sT}, s2, 7")
    A(f"s_lshr_b32 s{sT}, s{sT}, {3 - lr}")
    A(f"s_lshl_b32 s{sT}, s{sT}, {5 - lr}")
    A(f"s_lshr_b32 s{sT+1}, s{sT+1}, {lr}")
    A(f"s_add_u32 s{sPair}, s{sT}, s{sT+1}")
    if cfg.rot == 0:
        A(f"s_add_u32 s{sKC}, s{sPair}, s{sSlab}")
    elif cfg.rot == 1:
        A(f"s_lshl_b32 s{sKC}, s{sSlab}, 1")
        A(f"s_add_u32 s{sKC}, s{sKC}, s{sPair}")
    elif cfg.rot == 2:
        A(f"s_and_b32 s{sKC}, s2, 6")
        A(f"s_and_b32 s{sT}, s2, 1")
        A(f"s_lshl_b32 s{sT}, s{sT}, 2")
        A(f"s_add_u32 s{sKC}, s{sKC}, s{sT}")
    elif cfg.rot == 3:
        A(f"s_mov_b32 s{sKC}, 0")
    elif cfg.rot == 4:
        A(f"s_and_b32 s{sKC}, s2, 6")
        A(f"s_add_u32 s{sT}, s{sPair}, s{sSlab}")
        A(f"s_and_b32 s{sT}, s{sT}, 1")
        A(f"s_lshl_b32 s{sT}, s{sT}, 2")
        A(f"s_add_u32 s{sKC}, s{sKC}, s{sT}")
    A(f"s_and_b32 s{sKC}, s{sKC}, 7")
    A(f"s_and_b32 s{sRG}, s{sWave}, 3")
    A(f"s_cmp_ge_u32 s{sWave}, 4")
    A("s_cbranch_scc1 L_loader")

def late_srds(A):
    srd(A, sWS, 22, 23, WS_SIZE)
    srd(A, sWOA, 8, 9, 512 * 512 * 2)
    srd(A, sWOB, 14, 15, 512 * 512 * 2)
    srd(A, sOUT, 18, 19, 2048 * 512 * 2)
    srd(A, sDBG, 20, 21, 256)
    A(f"s_and_b32 s{sS3}, s2, 7")
    A(f"s_bfe_u32 s{sR3}, s2, 0x20003")
    A(f"s_lshr_b32 s{sC3}, s2, 5")
    A(f"s_lshl_b32 s{sF}, s{sPair}, 2")
    A(f"s_add_u32 s{sF}, s{sF}, s{sRG}")
    A(f"s_lshl_b32 s{sF}, s{sF}, 7")
    A(f"s_add_u32 s{sF}, s{sF}, {WS_F1}")
    A.c("scalars of the tail (s4..s7: their pointers are dead by now)")
    A(f"s_lshl_b32 s{sT}, s{sSlab}, 2")
    A(f"s_add_u32 s{sT}, s{sT}, s{sRG}")
    A(f"s_lshl_b32 s{sT}, s{sT}, 17")
    A(f"s_lshl_b32 s{sT+1}, s{sPair}, 1")
    A(f"s_lshr_b32 s{sT+2}, s{sWave}, 2")
    A(f"s_add_u32 s{sT+1}, s{sT+1}, s{sT+2}")
    A(f"s_lshl_b32 s{sT+1}, s{sT+1}, 10")
    A(f"s_add_u32 s{sT}, s{sT}, s{sT+1}")
    A(f"s_add_u32 s{sOst}, s{sT}, {WS_O}")
    A(f"s_lshl_b32 s{sT}, s{sS3}, 3")
    A(f"s_lshl_b32 s{sT+1}, s{sR3}, 1")
    A(f"s_add_u32 s{sT}, s{sT}, s{sT+1}")
    A(f"s_and_b32 s{sT+1}, s{sWave}, 1")
    A(f"s_add_u32 s{sT}, s{sT}, s{sT+1}")
    A(f"s_lshl_b32 s{sT}, s{sT}, 16")
    A(f"s_lshr_b32 s{sT+1}, s{sWave}, 1")
    A(f"s_lshl_b32 s{sT+1}, s{sT+1}, 14")
    A(f"s_add_u32 s{sT}, s{sT}, s{sT+1}")
    A(f"s_add_u32 s{sOld}, s{sT}, {WS_O}")
    A(f"s_lshl_b32 s{sT}, s{sS3}, 8")
    A(f"s_lshl_b32 s{sT+1}, s{sR3}, 6")
    A(f"s_add_u32 s{sT}, s{sT}, s{sT+1}")
    A(f"s_lshl_b32 s{sT}, s{sT}, 10")
    A(f"s_lshl_b32 s{sT+1}, s{sC3}, 7")
    A(f"s_add_u32 s{sOut}, s{sT}, s{sT+1}")
    A(f"s_lshr_b32 s{sGc}, s{sPair}, 4")
    A(f"s_mul_i32 s{sGc}, s{sGc}, 0x3f800000")

def xfrag_addr(A, L, H, t):
    A(f"v_and_b32 v{t}, 31, v0")
    A(f"v_lshrrev_b32 v{t+1}, 5, v0")
    A(f"v_bfe_u32 v{t+2}, v0, 1, 3")
    A(f"v_xor_b32 v{t+2}, v{t+2}, v{t+1}")
    A(f"v_lshlrev_b32 v{t}, 7, v{t}")
    A(f"s_lshl_b32 s{sT}, s{sRG}, 13")
    A(f"v_add_u32 v{t}, s{sT}, v{t}")
    for j in range(4):
        A(f"v_xor_b32 v{t+1}, {2*j}, v{t+2}")
        A(f"v_lshl_add_u32 v{L[j]}, v{t+1}, 4, v{t}")
        A(f"v_add_u32 v{H[j]}, 0x10000, v{L[j]}")

def p2_addr(A):
    A(f"v_lshlrev_b32 v{vL16}, 4, v0")
    A(f"s_lshr_b32 s{sT}, s{sWave}, 2")
    A(f"s_mul_i32 s{sT}, s{sT}, {HSTR}")
    A(f"v_add_u32 v{vKL}, s{sT}, v{vL16}")
    A("v_lshrrev_b32 v104, 5, v0")
    A("v_and_b32 v105, 15, v0")
    A("v_lshlrev_b32 v105, 4, v105")
    A("v_lshl_add_u32 v105, v104, 8, v105")
    A("v_add_u32 v105, 1024, v105")
    A("v_add_u32 v106, 512, v105")
    A("v_and_b32 v104, 11, v0")
    A("v_cmp_eq_u32 vcc, 0, v104")
    A("v_mov_b32 v107, 2064")
    A("v_mov_b32 v108, 2048")
    A("v_cndmask_b32 v107, v107, v108, vcc")
    A("v_and_b32 v104, 16, v0")
    A("v_cmp_eq_u32 vcc, 0, v104")
    A("s_nop 1")
    A("v_cndmask_b32 v105, v107, v105, vcc")
    A("v_cndmask_b32 v106, v107, v106, vcc")
    A(f"v_add_u32 v{vV0L}, s{sT}, v105")
    A(f"v_add_u32 v{vV1L}, s{sT}, v106")
    A(f"v_add_u32 v{vKH}, {SC}, v{vKL}")
    A(f"v_add_u32 v{vV0H}, {SC}, v{vV0L}")
    A(f"v_add_u32 v{vV1H}, {SC}, v{vV1L}")
    A("v_lshrrev_b32 v104, 3, v0")
    A("v_lshlrev_b32 v104, 10, v104")
    A("v_and_b32 v105, 7, v0")
    A(f"v_lshlrev_b32 v{vPA}, 2, v105")
    A("v_bfe_u32 v106, v0, 4, 1")
    A("v_lshlrev_b32 v106, 2, v106")
    A("v_xor_b32 v105, v105, v106")
    A(f"v_lshl_add_u32 v{vWoD}, v105, 4, v104")

def consts(A, slots):
    A("v_lshrrev_b32 v104, 4, v0")
    A(f"v_mul_u32_u24 v104, {slots[-1] - slots[0]}, v104")
    A("v_and_b32 v105, 15, v0")
    A(f"v_mul_u32_u24 v105, {REC}, v105")
    A("v_add_u32 v104, v104, v105")
    if slots[0]: A(f"v_add_u32 v104, {slots[0]}, v104")
    for i in range(4):
        A(f"v_mov_b32 v{108+i}, 0x3f803f80")
        A(f"v_mov_b32 v{112+i}, 0")
    n = 16 * len(slots)
    A(f"s_mov_b32 exec_lo, {hex((1 << min(n,32)) - 1)}")
    A(f"s_mov_b32 exec_hi, {hex((1 << max(n-32,0)) - 1)}")
    A("ds_write_b128 v104, v[108:111] offset:2048")
    A("ds_write_b128 v104, v[112:115] offset:2064")
    A("s_mov_b64 exec, -1")

tails = []
def spin(A, name, load, reg, val, cmp="ne", sleep=0, depth=0):
    A("s_waitcnt vmcnt(0)")
    A(f"v_cmp_{cmp}_u32 vcc, {val}, v{reg}")
    A("s_nop 0")
    A(f"s_cbranch_vccnz L_spin_{name}")
    A(f"L_ret_{name}:")
    T = Asm()
    T(f"L_spin_{name}:")
    T(f"s_mov_b32 s{sSpin}, {SPIN_MAX}")
    for _ in range(depth):
        T(load)
        if sleep: T(f"s_sleep {sleep}")
    T(f"L_spinl_{name}:")
    if sleep: T(f"s_sleep {sleep}")
    T(load)
    T(f"s_sub_u32 s{sSpin}, s{sSpin}, 1")
    T(f"s_cbranch_scc1 L_ret_{name}")
    T(f"s_waitcnt vmcnt({depth})")
    T(f"v_cmp_{cmp}_u32 vcc, {val}, v{reg}")
    T("s_nop 0")
    T(f"s_cbranch_vccnz L_spinl_{name}")
    T(f"s_branch L_ret_{name}")
    tails.append(T)

vXL, vXH = [2, 3, 4, 5], [6, 7, 8, 9]
vWa, vWb, vWv = 10, 11, 12
ACC = dict(QKa0=32, QKa1=48, QKb0=64, QKb1=80, VV0=96, VV1=112)
FR = [128, 148]
vQ = [8, 12]
F1LOAD = f"buffer_load_dword v{vPoll}, v{vPA}, s[{sWS}:{sWS+3}], s{sF} offen sc1"
SAMPLE = f"buffer_load_dword v28, v5, s[{sWS}:{sWS+3}], s{sOld} offen sc1"
ZLOAD = f"buffer_load_dword v{vZ}, v{vPoll}, s[{sDBG}:{sDBG+3}], 0 offen sc1"

def l2_prefetch(A, cfg):
    assert cfg.lr == 2
    A(f"s_cmp_lt_u32 s{sPair}, 16")
    A(f"s_cselect_b32 s{sW}, s6, s12")
    A(f"s_cselect_b32 s{sW+1}, s7, s13")
    A(f"s_mov_b32 s{sW+2}, {hex(512*1536*2)}")
    A(f"s_mov_b32 s{sW+3}, 0x20000")
    A(f"s_lshl_b32 s{sT}, s{sWave}, 1")
    A(f"s_add_u32 s{sT}, s{sT}, s{sKC}")
    A(f"s_add_u32 s{sT}, s{sT}, {cfg.pfoff}")
    A("v_lshrrev_b32 v46, 5, v0")
    A(f"v_add_u32 v46, s{sT}, v46")
    A("v_and_b32 v46, 7, v46")
    A("v_and_b32 v47, 31, v0")
    A(f"s_lshr_b32 s{sT+1}, s2, 3")
    A(f"s_and_b32 s{sT+2}, s2, 1")
    A(f"s_lshl_b32 s{sT+2}, s{sT+2}, 20")
    A(f"s_lshl_b32 s{sT+3}, s{sT+1}, 15")
    A(f"s_add_u32 s{sT+2}, s{sT+2}, s{sT+3}")
    A("v_lshlrev_b32 v48, 10, v47")
    A("v_lshl_add_u32 v48, v46, 7, v48")
    A(f"buffer_load_dword v200, v48, s[{sX}:{sX+3}], s{sT+2} offen")
    A(f"s_mul_i32 s{sT+1}, s{sT+1}, 24")
    A("v_min_u32 v47, 23, v47")
    A(f"v_add_u32 v47, s{sT+1}, v47")
    A("v_mul_u32_u24 v48, 0x5556, v47")
    A("v_lshrrev_b32 v48, 18, v48")
    A("v_mul_u32_u24 v49, 12, v48")
    A("v_sub_u32 v49, v47, v49")
    A("v_lshl_add_u32 v48, v46, 6, v48")
    A("v_mul_u32_u24 v48, 3072, v48")
    A("v_lshrrev_b32 v47, 2, v49")
    A("v_lshl_add_u32 v48, v47, 10, v48")
    A("v_and_b32 v49, 3, v49")
    A("v_lshl_add_u32 v48, v49, 7, v48")
    A(f"s_and_b32 s{sT+1}, s{sPair}, 8")
    A(f"s_lshl_b32 s{sT+1}, s{sT+1}, 6")
    A(f"buffer_load_dword v201, v48, s[{sW}:{sW+3}], s{sT+1} offen")

def w_prefetch(A, cfg):
    assert cfg.lr == 2
    A(f"s_cmp_lt_u32 s{sPair}, 16")
    A(f"s_cselect_b32 s{sW}, s6, s12")
    A(f"s_cselect_b32 s{sW+1}, s7, s13")
    A(f"s_mov_b32 s{sW+2}, {hex(512*1536*2)}")
    A(f"s_mov_b32 s{sW+3}, 0x20000")
    A(f"s_and_b32 s{sT+1}, s{sPair}, 14")
    A(f"s_lshl_b32 s{sT+1}, s{sT+1}, 6")
    if cfg.wpf2 < 10:
        A(f"s_add_u32 s{sT+3}, s{sW}, s{sT+1}")
        A(f"s_bfe_u32 s{sT+3}, s{sT+3}, 0x30007")
    A(f"s_and_b32 s{sT}, s{sSlab}, 3")
    A(f"s_lshl_b32 s{sT}, s{sT}, 1")
    A(f"s_and_b32 s{sT+2}, s{sPair}, 1")
    A(f"s_add_u32 s{sT}, s{sT}, s{sT+2}")
    A(f"s_add_u32 s{sT}, s{sT}, s{sKC}")
    A(f"s_and_b32 s{sT}, s{sT}, 7")
    A(f"s_mul_i32 s{sT}, s{sT}, 196608")
    A(f"s_add_u32 s{sT}, s{sT}, s{sT+1}")
    A(f"s_mul_i32 s{sT+2}, s{sRG}, 49152")
    A(f"s_add_u32 s{sT}, s{sT}, s{sT+2}")
    A("v_min_u32 v46, 47, v0")
    A("v_lshlrev_b32 v46, 10, v46")
    if cfg.wpf2 < 10:
        A(f"s_cmp_eq_u32 s{sT+3}, 3")
        A("s_cselect_b64 exec, -1, 0")
    A(f"buffer_load_dword v200, v46, s[{sW}:{sW+3}], s{sT} offen")
    A("s_mov_b64 exec, -1")

def p1_compute(A, cfg):
    A.c("---- phase 1, compute waves")
    if cfg.p1prio == 1: A("s_setprio 1")
    A("s_waitcnt lgkmcnt(0)")
    A.c("gate g = sigmoid(x . gate_w) of rows 8*wg + 2*wave, +1 (every workgroup covers 8 of the 2048 rows)")
    srd(A, sX, 4, 5, 2048 * 512 * 2)
    srd(A, sG, 16, 17, 1024)
    A(f"s_lshl_b32 s{sT+6}, s2, 2")
    A(f"s_add_u32 s{sT+6}, s{sT+6}, s{sWave}")
    A(f"s_lshl_b32 s{sT+7}, s{sT+6}, 11")
    A("v_lshlrev_b32 v13, 4, v0")
    A(f"buffer_load_dwordx4 v[32:35], v13, s[{sX}:{sX+3}], s{sT+7} offen")
    A(f"buffer_load_dwordx4 v[36:39], v13, s[{sX}:{sX+3}], s{sT+7} offen offset:1024")
    A(f"buffer_load_dwordx4 v[40:43], v13, s[{sG}:{sG+3}], 0 offen")
    if cfg.wpf:
        A.c("pull this workgroup's 1/256 share of both weight matrices towards the chip")
        A(f"s_cmp_lt_u32 s2, 128")
        A(f"s_cselect_b32 s{sW}, s6, s12")
        A(f"s_cselect_b32 s{sW+1}, s7, s13")
        A(f"s_mov_b32 s{sW+2}, {hex(512*1536*2)}")
        A(f"s_mov_b32 s{sW+3}, 0x20000")
        A(f"s_and_b32 s{sT}, s{sT+6}, 511")
        A(f"s_mul_i32 s{sT}, s{sT}, 3072")
        for i in range(3):
            A(f"buffer_load_dwordx4 v[{48+4*i}:{51+4*i}], v13, s[{sW}:{sW+3}], s{sT} offen offset:{1024*i}")
    if cfg.wpf2 % 10 == 1: w_prefetch(A, cfg)
    late_srds(A)
    A.c("wave 0 clears this workgroup's hand-off words, then counts the workgroup in")
    A(f"s_cmp_lg_u32 s{sWave}, 0")
    A("s_cbranch_scc1 L_nozero")
    A(f"s_lshl_b32 s{sT}, s{sPair}, 9")
    A(f"s_lshl_b32 s{sT+1}, s{sSlab}, 2")
    A(f"s_add_u32 s{sT}, s{sT}, s{sT+1}")
    A(f"s_add_u32 s{sT}, s{sT}, {WS_F1}")
    A("v_lshlrev_b32 v2, 7, v0")
    A(f"v_add_u32 v2, s{sT}, v2")
    A("v_mov_b32 v4, 0")
    A("s_mov_b64 exec, 0xf")
    A(f"buffer_store_dword v4, v2, s[{sWS}:{sWS+3}], 0 offen sc1")
    A("s_mov_b64 exec, -1")
    A("L_nozero:")
    p2_pre(A, False); p2_pre(A, True)
    A("v_and_b32 v2, 1, v0")
    A(f"v_lshlrev_b32 v{vPoll}, 7, v2")
    A(f"v_mov_b32 v{vZ}, 1")
    p2_addr(A)
    xfrag_addr(A, vXL, vXH, 13)
    A("v_lshrrev_b32 v13, 5, v0")
    A("v_lshlrev_b32 v13, 3, v13")
    A("v_bfe_u32 v14, v0, 2, 2")
    A("v_add_u32 v13, v13, v14")
    A("v_lshlrev_b32 v13, 6, v13")
    A("v_and_b32 v14, 3, v0")
    A("v_lshl_add_u32 v13, v14, 3, v13")
    A(f"v_add_u32 v13, {WB}, v13")
    A("v_bfe_u32 v14, v0, 4, 1")
    A("v_mul_u32_u24 v15, 1056, v14")
    A(f"v_add_u32 v{vWa}, v13, v15")
    A("v_mul_u32_u24 v15, 992, v14")
    A(f"v_add3_u32 v{vWb}, v13, v15, 32")
    A("v_lshl_add_u32 v13, v14, 5, v13")
    A(f"v_add_u32 v{vWv}, 2048, v13")
    def reads(c, j, F):
        slot = c % 3
        xr = vXH[j] if slot == 2 else vXL[j]
        xi = XS if slot == 0 else 0
        wi = slot * 12288 + j * 3072
        return [f"ds_read_b128 {v(F,4)}, v{xr} offset:{xi}",
                f"ds_read_b64_tr_b16 {v(F+8,2)}, v{vWa} offset:{wi}",
                f"ds_read_b64_tr_b16 {v(F+10,2)}, v{vWa} offset:{wi+256}",
                f"ds_read_b128 {v(F+4,4)}, v{xr} offset:{xi+4096}",
                f"ds_read_b64_tr_b16 {v(F+12,2)}, v{vWb} offset:{wi}",
                f"ds_read_b64_tr_b16 {v(F+14,2)}, v{vWb} offset:{wi+256}",
                f"ds_read_b64_tr_b16 {v(F+16,2)}, v{vWv} offset:{wi}",
                f"ds_read_b64_tr_b16 {v(F+18,2)}, v{vWv} offset:{wi+256}"]
    def mf(F, first):
        def m(D, a, b):
            if cfg.t16:
                q = 4 * (F != FR[0])
                return (f"v_mfma_f32_16x16x32_bf16 {v(D+q,4)}, {v(a,4)}, {v(b,4)}, {'0' if first else v(D+q,4)}\n"
                        f"v_mfma_f32_16x16x32_bf16 {v(D+8+q,4)}, {v(a,4)}, {v(b,4)}, {'0' if first else v(D+8+q,4)}")
            return f"v_mfma_f32_32x32x16_bf16 {v(D,16)}, {v(a,4)}, {v(b,4)}, {'0' if first else v(D,16)}"
        return [m(ACC['QKa0'], F+8, F), m(ACC['QKa1'], F+8, F+4), m(ACC['QKb0'], F+12, F),
                m(ACC['QKb1'], F+12, F+4), m(ACC['VV0'], F, F+16), m(ACC['VV1'], F+4, F+16)]
    A(f"s_lshl_b32 s{sT+6}, s{sT+6}, 3")
    A(f"s_add_u32 s{sT+6}, s{sT+6}, {WS_G}")
    A("v_lshrrev_b32 v13, 5, v0")
    A("v_lshlrev_b32 v13, 2, v13")
    A("v_mov_b32 v44, 0")
    A("v_mov_b32 v45, 0")
    if cfg.l2pf == 1: l2_prefetch(A, cfg)
    A(f"s_waitcnt vmcnt({(3 if cfg.wpf else (2 if cfg.l2pf == 1 else (1 if cfg.wpf2 % 10 == 1 else 0)))})")
    if cfg.l2pf == 2: l2_prefetch(A, cfg)
    if cfg.wpf2 % 10 == 2: w_prefetch(A, cfg)
    for i in range(4):
        A(f"v_dot2_f32_bf16 v44, v{32+i}, v{40+i}, v44")
        A(f"v_dot2_f32_bf16 v45, v{36+i}, v{40+i}, v45")
    A("s_nop 2")
    A("v_permlane32_swap_b32 v44, v45")
    A("v_add_f32 v44, v44, v45")
    A("v_mov_b32 v45, v44")
    A("s_nop 1")
    A("v_permlane16_swap_b32 v44, v45")
    A("v_add_f32 v44, v44, v45")
    for ctl in ("quad_perm:[1,0,3,2]", "quad_perm:[2,3,0,1]", "row_half_mirror", "row_mirror"):
        A("s_nop 1")
        A(f"v_add_f32_dpp v44, v44, v44 {ctl} row_mask:0xf bank_mask:0xf")
    A(f"v_mul_f32 v44, {fbits(-LOG2E)}, v44")
    A("v_exp_f32 v44, v44")
    A("s_nop 0")
    A("v_add_f32 v44, 1.0, v44")
    A("v_rcp_f32 v44, v44")
    A("s_mov_b32 exec_lo, 1")
    A("s_mov_b32 exec_hi, 1")
    A(f"buffer_store_dword v44, v13, s[{sWS}:{sWS+3}], s{sT+6} offen sc1")
    A("s_mov_b64 exec, -1")
    if cfg.wpf: A("s_waitcnt vmcnt(1)")
    A("s_barrier")
    stamp(A, cfg, 1)
    for r in reads(0, 0, FR[0]): A(r)
    def wave0_block(n):
        if n == 8:
            A(f"s_cmp_lg_u32 s{sWave}, 0")
            A("s_cbranch_scc1 L_noz0")
            A(f"s_and_b32 s{sT}, s2, 1")
            A(f"s_lshl_b32 s{sT}, s{sT}, 7")
            A("s_mov_b64 exec, 1")
            A(f"buffer_atomic_add v{vZ}, off, s[{sDBG}:{sDBG+3}], s{sT}")
            A("s_mov_b64 exec, -1")
            A("L_noz0:")
        if n == cfg.n_z:
            A(f"s_cmp_lg_u32 s{sWave}, 0")
            A("s_cbranch_scc1 L_noz1")
            A(ZLOAD)
            A("L_noz1:")
    if cfg.p1pipe == 0:
        for n in range(32):
            c, j = divmod(n, 4)
            M = mf(FR[n & 1], n == 0)
            A("s_waitcnt lgkmcnt(0)" if n != 7 else "s_waitcnt vmcnt(0) lgkmcnt(0)")
            if n == 31:
                for m in M: A(m)
                break
            if j == 3: A("s_barrier")
            c2, j2 = divmod(n + 1, 4)
            R = reads(c2, j2, FR[(n + 1) & 1])
            A(M[0]); A(R[0]); A(R[1]); A(R[2])
            A(M[1]); A(R[3]); A(R[4]); A(R[5])
            A(M[2]); A(R[6]); A(R[7])
            A(M[3])
            wave0_block(n)
            A(M[4]); A(M[5])
    else:
        for n in range(32):
            c, j = divmod(n, 4)
            M = mf(FR[n & 1], n == 0)
            last = n == 31
            c2, j2 = divmod(n + 1, 4)
            R = [""] * 8 if last else reads(c2, j2, FR[(n + 1) & 1])
            k = 0 if last else 3
            A("s_waitcnt lgkmcnt(5)")
            A(M[0])
            A("s_waitcnt lgkmcnt(4)")
            A(M[1])
            if n == 7: A("s_waitcnt vmcnt(0)")
            if j == 3 and not last: A("s_barrier")
            for x in R[0:3]: A(x)
            A(f"s_waitcnt lgkmcnt({2 + k})")
            A(M[2])
            for x in R[3:6]: A(x)
            A(M[3])
            wave0_block(n)
            A(f"s_waitcnt lgkmcnt({2*k})")
            if j == 3 and not last: A("s_barrier")
            A(M[4])
            for x in R[6:8]: A(x)
            A(M[5])

def p1_compute_epilogue(A, cfg):
    A.c("---- phase 1 epilogue: round K/V, publish them (write-through) and keep them in LDS")
    A(f"s_lshl_b32 s{sT}, s{sPair}, 3")
    A(f"s_add_u32 s{sT}, s{sT}, s{sSlab}")
    A(f"s_lshl_b32 s{sT}, s{sT}, 15")
    A(f"s_lshl_b32 s{sT+1}, s{sRG}, 12")
    A(f"s_add_u32 s{sT}, s{sT}, s{sT+1}")
    A(f"s_add_u32 s{sT+1}, s{sT}, 16384")
    A("v_bfe_u32 v13, v0, 4, 1")
    A("v_lshrrev_b32 v14, 5, v0")
    A("v_and_b32 v15, 15, v0")
    A("v_lshlrev_b32 v15, 4, v15")
    A("v_lshl_add_u32 v15, v14, 8, v15")
    A("v_add_u32 v15, 1024, v15")
    A("v_lshl_add_u32 v3, v13, 14, v15")
    A(f"s_mul_i32 s{sT+2}, s{sRG}, {2*REC}")
    A(f"s_add_u32 s{sT+2}, s{sT+2}, {SB}")
    A(f"v_add_u32 v4, s{sT+2}, v{vL16}")
    A(f"v_mul_u32_u24 v13, {HSTR}, v13")
    A(f"v_add3_u32 v5, v13, v15, s{sT+2}")
    A.c("wave 0: every workgroup has cleared its hand-off words (checked before any flag is read)")
    A(f"s_cmp_lg_u32 s{sWave}, 0")
    A("s_cbranch_scc1 L_noz2")
    A(f"s_movk_i32 s{sT+3}, 128")
    spin(A, "z", ZLOAD, vZ, f"s{sT+3}", "gt")
    A("L_noz2:")
    def cvt(dst, src):
        for i in range(4):
            A(f"v_cvt_pk_bf16_f32 v{dst+i}, v{src+2*i}, v{src+2*i+1}")
    if cfg.epi2:
        tmp = [128, 132, 136, 140, 144, 148, 152, 156]
        A(f"s_mov_b32 s{sT+4}, {fbits(QSCALE)}")
        A(f"s_mov_b32 s{sT+5}, {fbits(QSCALE)}")
        A(f"s_lshl_b32 s{sT+6}, s{sRG}, 11")
        A(f"s_add_u32 s{sT+6}, s{sT+6}, {QX}")
        A(f"v_add_u32 v6, s{sT+6}, v{vL16}")
        items = []
        for hd, names in ((0, ("QKa0", "QKa1")), (1, ("QKb0", "QKb1"))):
            for t in (0, 1):
                items.append((ACC[names[t]] + 8, f"v{vL16}, s[{sWS}:{sWS+3}], s{sT+hd} offen offset:{t*2048}", "v4", hd*HSTR + t*REC))
        for t in (0, 1):
            for a in (0, 1):
                items.append((ACC[f"VV{t}"] + 8 * a, f"v3, s[{sWS}:{sWS+3}], s{sT} offen offset:{t*2048 + a*512}", "v5", t*REC + a*512))
        qs = [("QKb0", 16, 0), ("QKb1", 20, 1024), ("QKa0", vQ[0], None), ("QKa1", vQ[1], None)]
        for k, (src, gaddr, laddr, loff) in enumerate(items):
            cvt(tmp[k], src)
            A(f"buffer_store_dwordx4 {v(tmp[k],4)}, {gaddr} sc1")
            A(f"ds_write_b128 {laddr}, {v(tmp[k],4)} offset:{loff}")
            nm, dst, qoff = qs[k >> 1]
            q = ACC[nm]
            if k & 1 == 0:
                for i in range(4): A(f"v_pk_mul_f32 {v(q+2*i,2)}, {v(q+2*i,2)}, s[{sT+4}:{sT+5}]")
            else:
                cvt(dst, q)
                if qoff is not None: A(f"ds_write_b128 v6, {v(dst,4)} offset:{qoff}")
    else:
        tmp = [128, 132, 136, 140, 144, 148, 152, 156]
        if cfg.epist: stamp(A, cfg, 3)
        k = 0
        for hd, names in ((0, ("QKa0", "QKa1")), (1, ("QKb0", "QKb1"))):
            for t in (0, 1):
                cvt(tmp[k], ACC[names[t]] + 8)
                A(f"buffer_store_dwordx4 {v(tmp[k],4)}, v{vL16}, s[{sWS}:{sWS+3}], s{sT+hd} offen offset:{t*2048} sc1")
                k += 1
        if cfg.epist: stamp(A, cfg, 4)
        for t in (0, 1):
            for a in (0, 1):
                cvt(tmp[k], ACC[f"VV{t}"] + 8 * a)
                A(f"buffer_store_dwordx4 {v(tmp[k],4)}, v3, s[{sWS}:{sWS+3}], s{sT} offen offset:{t*2048 + a*512} sc1")
                k += 1
        if cfg.epist: stamp(A, cfg, 5)
        k = 0
        for hd in (0, 1):
            for t in (0, 1):
                A(f"ds_write_b128 v4, {v(tmp[k],4)} offset:{hd*HSTR + t*REC}"); k += 1
        for t in (0, 1):
            for a in (0, 1):
                A(f"ds_write_b128 v5, {v(tmp[k],4)} offset:{t*REC + a*512}"); k += 1
        if cfg.epist: stamp(A, cfg, 6)
        A(f"s_mov_b32 s{sT+4}, {fbits(QSCALE)}")
        A(f"s_mov_b32 s{sT+5}, {fbits(QSCALE)}")
        A(f"s_lshl_b32 s{sT+2}, s{sRG}, 11")
        A(f"s_add_u32 s{sT+2}, s{sT+2}, {QX}")
        A(f"v_add_u32 v4, s{sT+2}, v{vL16}")
        for hd, names in ((1, ("QKb0", "QKb1")), (0, ("QKa0", "QKa1"))):
            for t in (0, 1):
                q = ACC[names[t]]
                for i in range(4):
                    A(f"v_pk_mul_f32 {v(q+2*i,2)}, {v(q+2*i,2)}, s[{sT+4}:{sT+5}]")
                dst = vQ[t] if hd == 0 else 16 + 4 * t
                cvt(dst, q)
                if hd == 1: A(f"ds_write_b128 v4, {v(dst,4)} offset:{t*1024}")
    if cfg.epist: stamp(A, cfg, 7)
    A("s_waitcnt lgkmcnt(0)")
    if cfg.epist: stamp(A, cfg, 8)
    A("s_barrier")
    if cfg.epist:
        stamp(A, cfg, 9)
        A("s_waitcnt vmcnt(0)")
        stamp_store(A, cfg, 10)
        A("s_endpgm")
    A.c("K/V stores acknowledged -> raise this wave's flag")
    A(f"v_mov_b32 v{vZ}, 1")
    A(f"s_lshl_b32 s{sJ}, s{sSlab}, 2")
    A(f"s_add_u32 s{sJ}, s{sJ}, s{sF}")
    lstamp(A, cfg, 46)
    A("s_waitcnt vmcnt(0)")
    A("s_mov_b64 exec, 1")
    A(f"buffer_store_dword v{vZ}, off, s[{sWS}:{sWS+3}], s{sJ} sc1")
    A("s_mov_b64 exec, -1")
    lstamp(A, cfg, 47)

def p1_loader(A, cfg):
    A.c("---- phase 1, loader waves: LDS-DMA of x / W chunks")
    if cfg.p1prio == 2: A("s_setprio 1")
    A("v_lshrrev_b32 v13, 3, v0")
    A("v_lshlrev_b32 v13, 10, v13")
    A("v_and_b32 v14, 7, v0")
    A("v_lshrrev_b32 v15, 4, v0")
    A("v_xor_b32 v14, v14, v15")
    A("v_lshl_add_u32 v13, v14, 4, v13")
    A("v_xor_b32 v14, 64, v13")
    for i in range(8):
        A(f"v_add_u32 v{2+i}, {i*8192 - (i&3)*1024}, v{14 if i & 1 else 13}")
    A(f"s_lshl_b32 s{sXb}, s{sSlab}, 18")
    A(f"s_lshl_b32 s{sT}, s{sRG}, 16")
    A(f"s_add_u32 s{sXb}, s{sXb}, s{sT}")
    def issue_x(c):
        slot = c % 3
        A(f"s_add_u32 s{sK2}, s{sKC}, {c}")
        A(f"s_and_b32 s{sK2}, s{sK2}, 7")
        A(f"s_lshl_b32 s{sXo}, s{sK2}, 7")
        A(f"s_lshl_b32 s{sM}, s{sRG}, 13")
        A(f"s_add_u32 m0, s{sM}, {XB[slot]}")
        A(f"s_add_u32 s{sXo}, s{sXo}, s{sXb}")
        for i in range(8):
            if i == 4:
                A(f"s_add_u32 m0, s{sM}, {XB[slot] + 4096}")
                A("s_nop 0")
            A(f"buffer_load_dwordx4 v{2+i}, s[{sX}:{sX+3}], s{sXo} offen offset:{(i&3)*1024} lds")
    def issue_w(c):
        slot = c % 3
        A(f"s_mul_i32 s{sM}, s{sRG}, 3072")
        A(f"s_mul_i32 s{sWo}, s{sK2}, 196608")
        A(f"s_add_u32 m0, s{sM}, {WB + slot*12288}")
        A(f"s_add_u32 s{sWo}, s{sWo}, s{sWb_}")
        for i in range(3):
            A(f"buffer_load_dwordx4 v{11 if i == 1 else 10}, s[{sW}:{sW+3}], s{sWo} offen offset:{i*1024} lds")
    def issue(c):
        if cfg.wfirst:
            A(f"s_add_u32 s{sK2}, s{sKC}, {c}")
            A(f"s_and_b32 s{sK2}, s{sK2}, 7")
            issue_w(c); issue_x(c)
        else:
            issue_x(c); issue_w(c)
    A("s_waitcnt lgkmcnt(0)")
    srd(A, sX, 4, 5, 2048 * 512 * 2)
    lstamp(A, cfg, 1)
    issue_x(0)
    lstamp(A, cfg, 2)
    A(f"s_cmp_lt_u32 s{sPair}, 16")
    A(f"s_cselect_b32 s{sW}, s6, s12")
    A(f"s_cselect_b32 s{sW+1}, s7, s13")
    A(f"s_mov_b32 s{sW+2}, {hex(512*1536*2)}")
    A(f"s_mov_b32 s{sW+3}, 0x20000")
    A(f"s_and_b32 s{sWb_}, s{sPair}, 15")
    A(f"s_lshl_b32 s{sWb_}, s{sWb_}, 6")
    A(f"s_mul_i32 s{sT}, s{sRG}, 49152")
    A(f"s_add_u32 s{sWb_}, s{sWb_}, s{sT}")
    A("v_lshrrev_b32 v13, 2, v0")
    A("v_mul_u32_u24 v13, 3072, v13")
    A("v_and_b32 v14, 3, v0")
    A("v_lshl_add_u32 v10, v14, 4, v13")
    A("v_xor_b32 v11, 32, v10")
    issue_w(0)
    issue(1)
    lstamp(A, cfg, 3)
    late_srds(A)
    p2_addr(A)
    p2_pre(A, False)
    A(f"v_mov_b32 v{vZ}, 1")
    for c in range(8):
        lstamp(A, cfg, 4 + 3*c)
        A(f"s_waitcnt vmcnt({11 if c < 7 else 0})")
        lstamp(A, cfg, 5 + 3*c)
        A("s_barrier")
        lstamp(A, cfg, 6 + 3*c)
        if c == 0: stamp(A, cfg, 1)
        if cfg.p1pipe and c >= 1: A("s_barrier")
        if c <= 5:
            issue(c + 2)
    p2_pre(A, True)
    consts(A, [SB, SC])
    A(f"v_add_u32 v104, {(SA - SB) % (1 << 32)}, v104")
    A("s_waitcnt lgkmcnt(0)")
    A(f"s_lshl_b32 s{sT+2}, s{sRG}, 11")
    A(f"s_add_u32 s{sT+2}, s{sT+2}, {QX}")
    A(f"v_add_u32 v4, s{sT+2}, v{vL16}")
    A("s_barrier")
    if cfg.epist: A("s_endpgm")
    A(F1LOAD)
    A("ds_read_b128 v[8:11], v4")
    A("ds_read_b128 v[12:15], v4 offset:1024")
    A("s_mov_b64 exec, 0xffff")
    A("ds_write_b128 v104, v[108:111] offset:2048")
    A("ds_write_b128 v104, v[112:115] offset:2064")
    A("s_mov_b64 exec, -1")

vKf, vV0f, vV1f = 16, 20, 24
S_, O_, P_ = [32, 48], [64, 80], 96
M32 = "v_mfma_f32_32x32x16_bf16"
def slot_base(i): return (SB, SC, SA)[i % 3]

def p2_setup(A, cfg):
    A(f"buffer_load_dword v{vGF[0]}, v{vGA}, s[{sWS}:{sWS+3}], s{sGo} offen sc1")
    A(f"buffer_load_dword v{vGF[1]}, v{vGA}, s[{sWS}:{sWS+3}], s{sGo} offen offset:128 sc1")

def p2_pre(A, own_temps):
    if not own_temps:
        A(f"v_and_b32 v{vGA}, 31, v0")
        A(f"v_lshlrev_b32 v{vGA}, 2, v{vGA}")
        A(f"s_lshl_b32 s{sGo}, s{sSlab}, 10")
        A(f"s_lshl_b32 s{sT+1}, s{sRG}, 8")
        A(f"s_add_u32 s{sGo}, s{sGo}, s{sT+1}")
        A(f"s_add_u32 s{sGo}, s{sGo}, {WS_G}")
        for i in range(4): A(f"v_mov_b32 v{vFill+i}, -1")
        A(f"v_and_b32 v{vZA}, 1, v0")
        A(f"v_lshlrev_b32 v{vZA}, 7, v{vZA}")
        A(f"v_mov_b32 v{vZ2}, 128")
        return
    A(f"s_lshl_b32 s{sCH}, s{sPair}, 18")
    A(f"s_lshl_b32 s{sT+1}, s{sWave}, 12")
    A(f"s_add_u32 s{sCH}, s{sCH}, s{sT+1}")
    A(f"s_mul_i32 s{sMB}, s{sWave}, {2*REC}")
    A(f"s_lshl_b32 s{sWoG}, s{sWave}, 13")
    A(f"s_lshl_b32 s{sT+1}, s{sC3}, 7")
    A(f"s_add_u32 s{sWoG}, s{sWoG}, s{sT+1}")
    A(f"s_lshl_b32 s{sWoM}, s{sWave}, 10")

def kv_setup(i):
    return [f"s_add_u32 s{sCO}, s{sSlab}, {i}", f"s_and_b32 s{sCO}, s{sCO}, 7",
            f"s_lshl_b32 s{sCO}, s{sCO}, 15", f"s_add_u32 s{sCO}, s{sCO}, s{sCH}"]
def kv_jobs(i, other=False):
    base = slot_base(i) - (HSTR if other else 0)
    ld = lambda o: f"buffer_load_dwordx4 v{vL16}, s[{sWS}:{sWS+3}], s{sCO} offen offset:{o} sc1 lds"
    return [[f"s_add_u32 m0, s{sMB}, {base}", "s_nop 0", ld(0)], [ld(1024)],
            [f"s_add_u32 m0, s{sMB}, {base + REC - 2048}", "s_nop 0", ld(2048)], [ld(3072)]]
def wo_job(j):
    srd_ = sWOA if j < 8 else sWOB
    return [f"s_add_u32 m0, s{sWoM}, {WO + j*8192}", f"s_add_u32 s{sJ}, s{sWoG}, {(j&7)*65536}",
            f"buffer_load_dwordx4 v{vWoD}, s[{srd_}:{srd_+3}], s{sJ} offen lds"]

def rd(kind, i, t):
    if t == 8: i, t = i + 1, 0
    hi = slot_base(i) == SC
    imm = (0 if hi else slot_base(i)) + t * REC
    if kind == 'K': return f"ds_read_b128 {v(vKf,4)}, v{vKH if hi else vKL} offset:{imm}"
    if kind == 'V0': return f"ds_read_b128 {v(vV0f,4)}, v{vV0H if hi else vV0L} offset:{imm}"
    return f"ds_read_b128 {v(vV1f,4)}, v{vV1H if hi else vV1L} offset:{imm}"

def unit(A, q, first, last, slotA, slotB, slotC, first_o, order=0):
    S, Sn, O, Op = S_[q], S_[q ^ 1], O_[q], O_[q ^ 1]
    e = lambda i: A(f"v_exp_f32 v{S+i}, v{S+i}")
    c = lambda i: A(f"v_cvt_pk_bf16_f32 v{P_+i}, v{S+2*i}, v{S+2*i+1}")
    def run(sl):
        for x in sl:
            if callable(x): x(A)
            else: A(x)
    e(0)
    if not first: A(f"v_cvt_pk_bf16_f32 v{P_+7}, v{Sn+14}, v{Sn+15}")
    e(1); e(2)
    if not first: A(f"{M32} {v(Op,16)}, {v(vV1f,4)}, {v(P_+4,4)}, {v(Op,16)}")
    run(slotA)
    qk = lambda: None if last else A(f"{M32} {v(Sn,16)}, {v(vKf,4)}, {v(vQ[q^1],4)}, 0")
    pv = lambda: A(f"{M32} {v(O,16)}, {v(vV0f,4)}, {v(P_,4)}, {'0' if first_o else v(O,16)}")
    if order == 0:
        c(0); e(3); e(4); c(1); e(5); e(6)
        qk(); run(slotB)
        c(2); e(7); e(8); c(3); e(9); e(10)
        pv(); run(slotC)
        c(4); e(11); e(12); c(5); e(13); e(14); c(6); e(15)
    elif order == 1:
        c(0); e(3); e(4); c(1); e(5); e(6); c(2); e(7)
        qk(); run(slotB)
        e(8); c(3); e(9); e(10); c(4); e(11); e(12)
        pv(); run(slotC)
        c(5); e(13); e(14); c(6); e(15)
    elif order == 2:
        c(0); e(3); e(4)
        qk(); run(slotB)
        c(1); e(5); e(6); c(2); e(7); e(8); c(3); e(9); e(10)
        pv(); run(slotC)
        c(4); e(11); e(12); c(5); e(13); e(14); c(6); e(15)

def p2_main(A, cfg):
    A.c("---- phase 2: attention.  P = exp2(S) with no shift; the row sums ride in the PV MFMA (ones rows);")
    A.c("     they are range-checked afterwards and the true-max path redoes the wave when they are out of range")
    jobs = {}; jobs0 = {}
    def add(i, t, xs): jobs.setdefault((i, t), []).extend(xs)
    for i in range(8):
        if cfg.prio == 1:
            for t, pr in ((1, 2), (3, 1), (5, 0), (7, 3)): add(i, t, [f"s_setprio {pr}"])
        if cfg.prio == 2:
            for t, pr in ((0, 2), (2, 1), (5, 0), (7, 3)): add(i, t, [f"s_setprio {pr}"])
        if cfg.prio == 3:
            for t, pr in ((2, 2), (4, 1), (6, 0), (7, 3)): add(i, t, [f"s_setprio {pr}"])
        if cfg.prio >= 100:
            pp = cfg.prio0 if i == 0 else cfg.prio
            drops = [(pp >> 8) & 15, (pp >> 4) & 15, pp & 15]
            for u, pr in zip(drops, (2, 1, 0)):
                if u & 1: add(i, u >> 1, [f"s_setprio {pr}"])
                else: jobs0.setdefault((i, u >> 1), []).append(f"s_setprio {pr}")
            add(i, 7, ["s_setprio 3"])
    def first_chunks(i, nm):
        def f(A):
            A(f"s_cmp_lt_u32 s{sWave}, 4")
            A(f"s_cbranch_scc1 L_skip_{nm}")
            if i == 1:
                lstamp(A, cfg, 48)
                spin(A, "f1", F1LOAD, vPoll, 1)
                lstamp(A, cfg, 49)
            for x in kv_setup(i): A(x)
            for job in kv_jobs(i):
                for x in job: A(x)
            A(f"s_sub_u32 s{sCO}, s{sCO}, 16384")
            for job in kv_jobs(i, True):
                for x in job: A(x)
            A(f"L_skip_{nm}:")
        return f
    add(0, cfg.t_poll, [first_chunks(1, "c1")])
    add(0, cfg.t_poll + 2, [first_chunks(2, "c2")])
    add(0, 6, [lambda A: lstamp(A, cfg, 50), "s_waitcnt vmcnt(8)", lambda A: lstamp(A, cfg, 51), "s_barrier", lambda A: lstamp(A, cfg, 52)])
    for i in range(8): add(i, 7, ["s_waitcnt vmcnt(0)", "s_barrier"])
    for i in range(1, 6):
        J = kv_jobs(i + 2)
        add(i, 0, kv_setup(i + 2) + J[0]); add(i, 1, J[1]); add(i, 2, J[2]); add(i, 3, J[3])
    wo = {1: [9, 10], 2: [11, 12], 3: [13, 14]}
    for i, js in wo.items():
        for n, j in enumerate(js): add(i, 4 + n, wo_job(j))
    Z2LOAD = f"buffer_load_dword v{vZ2}, v{vZA}, s[{sDBG}:{sDBG+3}], 0 offen offset:4 sc1"
    add(1, 6, [f"buffer_store_dwordx4 v[{vFill}:{vFill+3}], v{vL16}, s[{sWS}:{sWS+3}], s{sOst} offen sc1", f"s_add_u32 s{sJ}, s{sOst}, 65536",
               f"buffer_store_dwordx4 v[{vFill}:{vFill+3}], v{vL16}, s[{sWS}:{sWS+3}], s{sJ} offen sc1"])
    def setwait(i, n):
        k = jobs[(i, 7)].index("s_waitcnt vmcnt(0)")
        if n is None: del jobs[(i, 7)][k]
        else: jobs[(i, 7)][k] = f"s_waitcnt vmcnt({n})"
    setwait(1, 4); setwait(2, 2); setwait(3, 2); setwait(6, None)
    if cfg.tailbar:
        jobs[(7, 7)].remove("s_waitcnt vmcnt(0)"); jobs[(7, 7)].remove("s_barrier")
    jobs[(3, 0)][0:0] = [f"s_cmp_lg_u32 s{sWave}, 0", "s_cbranch_scc1 L_noz2c", f"s_and_b32 s{sJ}, s2, 1", f"s_lshl_b32 s{sJ}, s{sJ}, 7",
               "s_mov_b64 exec, 1", f"buffer_atomic_add v{vZ}, off, s[{sDBG}:{sDBG+3}], s{sJ} offset:4", "s_mov_b64 exec, -1", "L_noz2c:"]
    jobs[(5, 0)][0:0] = [f"s_cmp_eq_u32 s{sWave}, 0", "s_cselect_b32 exec_lo, 3, 0", "s_mov_b32 exec_hi, 0", Z2LOAD, "s_mov_b64 exec, -1"]
    jobs[(5, 7)][-1:-1] = [f"s_movk_i32 s{sJ}, 128", lambda A: spin(A, "z2", Z2LOAD, vZ2, f"s{sJ}", "gt")]
    for n, j in enumerate([0, 1, 2, 3]): add(6, n, wo_job(j))
    for n, j in enumerate([4, 5, 6, 7, 8, 15]): add(7, n, wo_job(j))
    if cfg.align: A(f".p2align {cfg.align}, 0xbf800000" if False else f".p2alignl {cfg.align}, 0xbf800000")
    for _ in range(cfg.shift): A("s_nop 0")
    A(rd('K', 0, 0)); A(rd('V0', 0, 0))
    A("s_waitcnt lgkmcnt(1)")
    if cfg.prio: A("s_setprio 3")
    A(f"{M32} {v(S_[0],16)}, {v(vKf,4)}, {v(vQ[0],4)}, 0")
    A("s_nop 7"); A("s_nop 3")
    for i in range(8):
        for t in range(8):
            first = (i == 0 and t == 0); lastt = (i == 7 and t == 7)
            sA = [rd('V1', i, t)]
            sB = ["s_waitcnt lgkmcnt(1)"] + jobs0.get((i, t), []) + ([] if lastt else [rd('K', i, t + 1)])
            sC = ["s_waitcnt lgkmcnt(0)" if lastt else "s_waitcnt lgkmcnt(1)"]
            unit(A, 0, first, False, sA, sB, sC, first, cfg.order)
            sA = ["s_waitcnt lgkmcnt(0)"]
            sB = list(jobs.get((i, t), []))
            sC = [] if lastt else [rd('V0', i, t + 1)]
            unit(A, 1, False, lastt, sA, sB, sC, first, cfg.order)
        if i == 0: stamp(A, cfg, 4)
        if i < 7: lstamp(A, cfg, 29 + i)
    A("s_nop 0")
    A(f"v_cvt_pk_bf16_f32 v{P_+7}, v{S_[1]+14}, v{S_[1]+15}")
    A("s_nop 1")
    A(f"{M32} {v(O_[1],16)}, {v(vV1f,4)}, {v(P_+4,4)}, {v(O_[1],16)}")

def p2_check(A, cfg):
    if not cfg.slow: return
    A(f"s_mov_b32 s{sT+2}, {fbits(2.0**-24)}")
    A(f"s_mov_b32 s{sT+3}, {fbits(2.0**64)}")
    A(f"s_mov_b32 s{sT+4}, 0x7f800000")
    A("s_mov_b64 s[68:69], 0")
    for q in (0, 1):
        O = O_[q]
        if q == 1: A("s_nop 1")
        A(f"v_add_f32 v104, |v{O}|, |v{O+1}|")
        A(f"v_add_f32 v105, |v{O+2}|, |v{O+3}|")
        A(f"v_add_f32 v106, |v{O+4}|, |v{O+5}|")
        A(f"v_add_f32 v107, |v{O+6}|, |v{O+7}|")
        A(f"v_add_f32 v104, v104, v105")
        A(f"v_add_f32 v106, v106, v107")
        A(f"v_add_f32 v104, v104, v106")
        A(f"v_cmp_nle_f32 vcc, s{sT+2}, v{O+8}")
        A(f"s_or_b64 s[68:69], s[68:69], vcc")
        A(f"v_cmp_nge_f32 vcc, s{sT+3}, v{O+8}")
        A(f"s_or_b64 s[68:69], s[68:69], vcc")
        A(f"v_cmp_ngt_f32 vcc, s{sT+4}, v104")
        A(f"s_or_b64 s[68:69], s[68:69], vcc")
    if cfg.force_slow: A("s_mov_b64 s[68:69], -1")
    A("s_cmp_lg_u64 s[68:69], 0")
    A("s_cbranch_scc1 L_slow")
    A("L_slow_ret:")
    T = Asm()
    T("L_slow:")
    T.c("true-max (online softmax) path, wave-local, K/V fragments straight from the workspace")
    m_, al = [104, 105], 106
    T(f"s_lshl_b32 s{sT}, s{sPair}, 18")
    T(f"s_lshr_b32 s{sT+1}, s{sWave}, 2")
    T(f"s_lshl_b32 s{sT+1}, s{sT+1}, 14")
    T(f"s_add_u32 s{sT}, s{sT}, s{sT+1}")
    T("v_lshrrev_b32 v108, 5, v0")
    T("v_and_b32 v109, 15, v0")
    T("v_lshlrev_b32 v109, 4, v109")
    T("v_lshl_add_u32 v109, v108, 8, v109")
    T("v_and_b32 v108, 11, v0")
    T("v_cmp_eq_u32 vcc, 0, v108")
    T("v_mov_b32 v110, 0")
    T("v_mov_b32 v111, 0x3f803f80")
    T("v_cndmask_b32 v110, v110, v111, vcc")
    for i in range(8): T(f"v_mov_b32 v{vV0f+i}, v110")
    for q in (0, 1):
        T(f"v_mov_b32 v{m_[q]}, 0xff800000")
        for i in range(16): T(f"v_mov_b32 v{O_[q]+i}, 0")
    T(f"s_mov_b32 s{sT+2}, 0")
    T("L_slow_loop:")
    T(f"s_lshr_b32 s{sT+3}, s{sT+2}, 3")
    T(f"s_lshl_b32 s{sT+3}, s{sT+3}, 15")
    T(f"s_and_b32 s{sT+4}, s{sT+2}, 7")
    T(f"s_lshl_b32 s{sT+4}, s{sT+4}, 11")
    T(f"s_add_u32 s{sT+3}, s{sT+3}, s{sT+4}")
    T(f"s_add_u32 s{sT+3}, s{sT+3}, s{sT}")
    T(f"buffer_load_dwordx4 {v(vKf,4)}, v{vL16}, s[{sWS}:{sWS+3}], s{sT+3} offen sc1")
    T("s_mov_b32 exec_lo, 0xffff")
    T("s_mov_b32 exec_hi, 0xffff")
    T(f"buffer_load_dwordx4 {v(vV0f,4)}, v109, s[{sWS}:{sWS+3}], s{sT+3} offen offset:1024 sc1")
    T(f"buffer_load_dwordx4 {v(vV1f,4)}, v109, s[{sWS}:{sWS+3}], s{sT+3} offen offset:1536 sc1")
    T("s_mov_b64 exec, -1")
    T("s_waitcnt vmcnt(0)")
    for q in (0, 1):
        S, O, m = S_[q], O_[q], m_[q]
        T(f"{M32} {v(S,16)}, {v(vKf,4)}, {v(vQ[q],4)}, 0")
        T("s_nop 15"); T("s_nop 3")
        T(f"v_max3_f32 v107, v{S}, v{S+1}, v{m}")
        for i in range(1, 8): T(f"v_max3_f32 v107, v{S+2*i}, v{S+2*i+1}, v107")
        T("v_mov_b32 v108, v107")
        T("s_nop 1")
        T("v_permlane32_swap_b32 v107, v108")
        T("v_max_f32 v107, v107, v108")
        T(f"v_sub_f32 v{al}, v{m}, v107")
        T(f"v_exp_f32 v{al}, v{al}")
        T(f"v_mov_b32 v{m}, v107")
        for i in range(16): T(f"v_sub_f32 v{S+i}, v{S+i}, v107")
        for i in range(16): T(f"v_exp_f32 v{S+i}, v{S+i}")
        for i in range(9): T(f"v_mul_f32 v{O+i}, v{O+i}, v{al}")
        for i in range(8): T(f"v_cvt_pk_bf16_f32 v{P_+i}, v{S+2*i}, v{S+2*i+1}")
        T("s_nop 1")
        T(f"{M32} {v(O,16)}, {v(vV0f,4)}, {v(P_,4)}, {v(O,16)}")
        T(f"{M32} {v(O,16)}, {v(vV1f,4)}, {v(P_+4,4)}, {v(O,16)}")
        T("s_nop 15"); T("s_nop 3")
    T(f"s_add_u32 s{sT+2}, s{sT+2}, 1")
    T(f"s_cmp_lt_u32 s{sT+2}, 64")
    T("s_cbranch_scc1 L_slow_loop")
    T("s_branch L_slow_ret")
    tails.append(T)

def p2_epilogue(A, cfg):
    A.c("---- normalise (gate factor / row sum), round, publish O fragments (the data is its own ready flag:")
    A.c("     the slots were filled with 0xffffffff earlier in this launch and no published word has that value)")
    A(f"s_add_u32 s{sJ}, s{sOst}, 65536")
    A(f"s_mov_b32 s{sT}, 0xfffffffe")
    for q in (0, 1): A(f"v_sub_f32 v{vGF[q]}, s{sGc}, v{vGF[q]}")
    for q in (0, 1): A(f"v_rcp_f32 v{104+2*q}, v{O_[q]+8}")
    for q in (0, 1):
        O = O_[q]
        A(f"v_mul_f32 v{104+2*q}, v{104+2*q}, |v{vGF[q]}|")
        A(f"v_mov_b32 v{105+2*q}, v{104+2*q}")
        for i in range(4): A(f"v_pk_mul_f32 {v(O+2*i,2)}, {v(O+2*i,2)}, {v(104+2*q,2)}")
        for i in range(4): A(f"v_cvt_pk_bf16_f32 v{108+4*q+i}, v{O+2*i}, v{O+2*i+1}")
        for i in range(4): A(f"v_min_u32 v{108+4*q+i}, s{sT}, v{108+4*q+i}")
        A(f"buffer_store_dwordx4 {v(108+4*q,4)}, v{vL16}, s[{sWS}:{sWS+3}], s{sOst if q == 0 else sJ} offen sc1")
    lstamp(A, cfg, 44)

OF, AC, WFR = 128, [32, 48], [64, 72, 80, 88]
PS = 272
def p3(A, cfg):
    A.c("---- phase 3: out tile 64x64 = [gA*OA | gB*OB] @ [WoA ; WoB]")
    LA = cfg.la
    ld = lambda hh: f"buffer_load_dwordx4 {v(OF+4*hh,4)}, v4, s[{sWS}:{sWS+3}], s{8+hh//4} offen offset:{(hh%4)*1024} sc1"
    def rdw(hh):
        F = WFR[hh % 4]
        return [f"ds_read_b64_tr_b16 {v(F,2)}, v2 offset:{hh*2048}", f"ds_read_b64_tr_b16 {v(F+2,2)}, v2 offset:{hh*2048+1024}",
                f"ds_read_b64_tr_b16 {v(F+4,2)}, v3 offset:{hh*2048}", f"ds_read_b64_tr_b16 {v(F+6,2)}, v3 offset:{hh*2048+1024}"]
    def addr():
        A("v_lshrrev_b32 v16, 5, v0")
        A("v_lshlrev_b32 v16, 2, v16")
        A("v_bfe_u32 v17, v0, 2, 2")
        A("v_add_u32 v16, v16, v17")
        A("v_lshlrev_b32 v16, 7, v16")
        A("v_bfe_u32 v17, v0, 4, 1")
        A("v_lshlrev_b32 v17, 1, v17")
        A("v_bfe_u32 v18, v0, 1, 1")
        A("v_add_u32 v17, v17, v18")
        A("v_bfe_u32 v18, v0, 3, 1")
        A("v_lshlrev_b32 v18, 2, v18")
        A("v_xor_b32 v17, v17, v18")
        A("v_lshl_add_u32 v16, v17, 4, v16")
        A("v_and_b32 v17, 1, v0")
        A("v_lshl_add_u32 v16, v17, 3, v16")
        A(f"s_lshr_b32 s{sT+4}, s{sWave}, 1")
        A(f"s_lshl_b32 s{sT+5}, s{sT+4}, 15")
        A(f"s_add_u32 s{sT+5}, s{sT+5}, {WO}")
        A(f"v_add_u32 v2, s{sT+5}, v16")
        A("v_xor_b32 v3, 64, v2")
        A("v_and_b32 v16, 31, v0")
        A(f"s_and_b32 s{sT}, s{sWave}, 1")
        A(f"s_lshl_b32 s{sT}, s{sT}, 5")
        A(f"s_lshl_b32 s{sT+1}, s{sT+4}, 6")
        A(f"s_add_u32 s{sT}, s{sT}, s{sT+1}")
        A(f"v_add_u32 v16, s{sT}, v16")
        A(f"v_mul_u32_u24 v16, {PS}, v16")
        A("v_lshrrev_b32 v17, 5, v0")
        A("v_lshl_add_u32 v6, v17, 4, v16")
        A("v_lshrrev_b32 v16, 3, v0")
        A(f"s_lshl_b32 s{sT}, s{sWave}, 3")
        A(f"v_add_u32 v16, s{sT}, v16")
        A(f"v_mul_u32_u24 v7, {PS}, v16")
        A("v_and_b32 v17, 7, v0")
        A("v_lshl_add_u32 v7, v17, 5, v7")
        A("v_lshlrev_b32 v16, 10, v16")
        A("v_lshl_add_u32 v8, v17, 4, v16")
    for i in range(4): A(f"s_add_u32 s{8+i}, s{sOld}, {4096*i}")
    A(f"s_mov_b32 s{sSpin}, {SPIN_MAX}")
    A(f"v_mov_b32 v4, v{vL16}")
    for hh in range(LA): A(ld(hh))
    addr()
    lstamp(A, cfg, 55)
    A(f"s_waitcnt vmcnt({2 + LA})")
    A("s_barrier")
    lstamp(A, cfg, 56)
    for x in rdw(0) + rdw(1): A(x)
    A.c("a fragment that still holds fill words is fetched again (with the ones behind it)")
    for hh in range(16):
        F = WFR[hh % 4]; o = OF + 4 * hh
        A(f"L_ostep{hh}:")
        A(f"s_waitcnt vmcnt({min(LA - 1, 15 - hh)})")
        A(f"v_max3_u32 v10, v{o}, v{o+1}, v{o+2}")
        A(f"v_max_u32 v10, v10, v{o+3}")
        A("v_cmp_eq_u32 vcc, -1, v10")
        A(f"s_waitcnt lgkmcnt({4 if hh < 15 else 0})")
        A(f"s_cbranch_vccnz L_oretry{hh}")
        A(f"L_ogo{hh}:")
        A(f"{M32} {v(AC[0],16)}, {v(F,4)}, {v(o,4)}, {'0' if hh == 0 else v(AC[0],16)}")
        if hh + LA < 16: A(ld(hh + LA))
        R = rdw(hh + 2) if hh + 2 < 16 else []
        for x in R[:2]: A(x)
        A(f"{M32} {v(AC[1],16)}, {v(F+4,4)}, {v(o,4)}, {'0' if hh == 0 else v(AC[1],16)}")
        for x in R[2:]: A(x)
        T = Asm()
        T(f"L_oretry{hh}:")
        T(f"s_sub_u32 s{sSpin}, s{sSpin}, 1")
        T(f"s_cmp_gt_i32 s{sSpin}, 0")
        T(f"s_cbranch_scc0 L_ogo{hh}")
        T("s_waitcnt vmcnt(0)")
        if cfg.rsleep: T(f"s_sleep {cfg.rsleep}")
        for h2 in range(hh, min(16, hh + LA)): T(ld(h2))
        T(f"s_branch L_ostep{hh}")
        tails.append(T)
    stamp(A, cfg, 8)
    lstamp(A, cfg, 41)
    if cfg.stamps == 4:
        A(f"s_sub_u32 s80, {SPIN_MAX + 1000}, s{sSpin}")
        A("v_writelane_b32 v31, s80, 53")
    A("s_barrier")
    A("s_nop 7")
    A("s_nop 1")
    for rq in range(4):
        A(f"ds_write_b128 v6, {v(AC[0]+4*rq,4)} offset:{rq*32}")
    for rq in range(4):
        A(f"ds_write_b128 v6, {v(AC[1]+4*rq,4)} offset:{128 + rq*32}")
    A("s_waitcnt lgkmcnt(0)")
    lstamp(A, cfg, 42)
    A("s_barrier")
    lstamp(A, cfg, 43)
    for kq in range(4):
        A(f"ds_read_b128 {v(64+8*kq,4)}, v7 offset:{kq*64*PS}")
        A(f"ds_read_b128 {v(68+8*kq,4)}, v7 offset:{kq*64*PS+16}")
    A("s_waitcnt lgkmcnt(4)")
    for i in range(4): A(f"v_pk_add_f32 {v(64+2*i,2)}, {v(64+2*i,2)}, {v(72+2*i,2)}")
    A("s_waitcnt lgkmcnt(0)")
    for i in range(4): A(f"v_pk_add_f32 {v(80+2*i,2)}, {v(80+2*i,2)}, {v(88+2*i,2)}")
    for i in range(4): A(f"v_pk_add_f32 {v(64+2*i,2)}, {v(64+2*i,2)}, {v(80+2*i,2)}")
    for i in range(4): A(f"v_cvt_pk_bf16_f32 v{96+i}, v{64+2*i}, v{65+2*i}")
    A(f"buffer_store_dwordx4 v[96:99], v8, s[{sOUT}:{sOUT+3}], s{sOut} offen" + ["", " sc1", " nt", " sc0 sc1", " sc1 nt"][cfg.outsc])

def build(cfg):
    tails.clear()
    name = KN + "_kernel"
    A = Asm(); kernel_head(A, name)
    prologue(A, cfg)
    p1_compute(A, cfg)
    stamp(A, cfg, 2)
    lstamp(A, cfg, 27)
    p1_compute_epilogue(A, cfg)
    A("s_branch L_attn")
    A("L_loader:")
    p1_loader(A, cfg)
    stamp(A, cfg, 2)
    A("L_attn:")
    stamp(A, cfg, 3)
    lstamp(A, cfg, 28)
    p2_setup(A, cfg)
    p2_main(A, cfg)
    stamp(A, cfg, 5)
    lstamp(A, cfg, 37)
    p2_check(A, cfg)
    p2_epilogue(A, cfg)
    stamp(A, cfg, 6)
    p3(A, cfg)
    stamp_store(A, cfg, 9)
    A("L_end:")
    A("s_endpgm")
    txt = A.text() + "".join(t.text() for t in tails)
    hdr = f"""; gated dual multi-head attention block: one persistent launch, 256 workgroups (one per CU)
; @launch grid=(256,1,1) block=(512,1,1) lds={LDS_TOTAL}
.amdgcn_target "amdgcn-amd-amdhsa--gfx950"
"""
    return hdr + txt + kernel_desc(name, 256)

if __name__ == "__main__":
    import sys
    cfg = Cfg()
    for a in sys.argv[2:]:
        k_, v_ = a.split("=")
        setattr(cfg, k_, int(v_))
    open(sys.argv[1], "w").write(build(cfg))
```

```python
from base import *
import math, struct

KN = "gated_mix__softmax_full_mha__mha_block__prompt"
sX, sW, sG, sWS, sWOA, sWOB, sOUT, sDBG = 24, 28, 32, 36, 40, 44, 48, 52
sWave, sSlab, sPair, sKC, sRG = 56, 57, 58, 59, 60
sSpin = 61
sT = 62
sXb, sXo, sWb_, sWo, sK2, sM = 70, 71, 72, 73, 74, 75
sCH, sCO, sMB, sWoG, sWoM, sJ = 70, 71, 72, 73, 74, 75
sS3, sR3, sC3, sF = 76, 77, 78, 79
WS_KV, WS_O, WS_F1, WS_F2, WS_ST, WS_SIZE = 0, 8 << 20, 12 << 20, (12 << 20) + 16384, 22 << 20, 24 << 20
WS_G = (12 << 20) + 32768
XS, WB, GW, QX, GV = 32768, 98304, 135168, 69632, 77824
XB = {0: 32768, 1: 0, 2: 65536}
SLOT, REC, HSTR = 33280, 2080, 16640
SA, SB, SC = 0, 33280, 130560
WO = 0
LDS_TOTAL = 163840
LOG2E = math.log2(math.e)
QSCALE = 0.25 * LOG2E
SPIN_MAX = 200000
def fbits(x): return hex(struct.unpack("<I", struct.pack("<f", x))[0])
vKL, vV0L, vV1L, vKH, vV0H, vV1H, vL16, vWoD, vPA, vPoll = range(240, 250)
vGF = [250, 251]
vZ = 252
vZA, vZ2 = 254, 255
vGA, vFill, sGo = 253, 232, 3
sOst, sOld, sOut, sGc = 4, 5, 6, 7

class Cfg:
    lr = 2
    prio = 0x5AE
    p1prio = 1
    prio0 = 0x37B
    stamps = 0
    slow = 1
    force_slow = 0
    t_poll = 1
    dotmode = 4
    p1pipe = 0
    n_z = 21
    rot = 15
    tailbar = 1
    prog = 32
    bulk = 0
    early = 5
    la = 4
    xswap = 1
    nocheck = 0
    late1 = 0
    c2c = 0
    spf = 0
    spfe = 1
    spfw = 0
    p1x = 0
    dbl = 0
    order = 0
    align = 0
    shift = 0
    outsc = 3
    rsleep = 0
    ethr = 32
    spindepth = 0
    sspread = 1
    spinsleep = 0
    wpf2 = 0
    epi2 = 1
    wfirst = 0
    l2pf = 0
    pfoff = 0
    epist = 0
    t16 = 0
    wpf = 0

def stamp(A, cfg, i):
    if cfg.stamps in (1, 3): A(f"s_memrealtime s[{80+2*i}:{81+2*i}]")
    if cfg.stamps == 2: A(f"s_memtime s[{80+2*i}:{81+2*i}]")
def lstamp(A, cfg, i):
    if cfg.stamps == 4:
        A("s_memrealtime s[80:81]")
        A("s_waitcnt lgkmcnt(0)")
        A(f"v_writelane_b32 v31, s80, {i}")
def stamp_store(A, cfg, n):
    if not cfg.stamps: return
    if cfg.stamps == 4:
        A("s_waitcnt vmcnt(0)")
        lstamp(A, cfg, 40)
        A(f"s_lshl_b32 s{sT}, s2, 3")
        A(f"s_add_u32 s{sT}, s{sT}, s{sWave}")
        A(f"s_lshl_b32 s{sT}, s{sT}, 8")
        A(f"s_add_u32 s{sT}, s{sT}, {WS_ST}")
        A("v_lshlrev_b32 v1, 2, v0")
        A(f"buffer_store_dword v31, v1, s[{sWS}:{sWS+3}], s{sT} offen")
        return
    A("s_waitcnt vmcnt(0)")
    stamp(A, cfg, n)
    A("s_waitcnt lgkmcnt(0)")
    if cfg.stamps == 3:
        A("s_mov_b64 exec, 1")
        A(f"s_not_b32 s{sT}, s80")
        A(f"v_mov_b32 v2, s{sT}")
        A(f"buffer_atomic_umax v2, off, s[{sDBG}:{sDBG+3}], 0 offset:8")
        for i in range(n + 1):
            A(f"v_mov_b32 v{3+i}, s{80+2*i}")
            A(f"buffer_atomic_umax v{3+i}, off, s[{sDBG}:{sDBG+3}], 0 offset:{12+4*i}")
        return
    A(f"s_lshl_b32 s{sT}, s2, 3")
    A(f"s_add_u32 s{sT}, s{sT}, s{sWave}")
    A(f"s_lshl_b32 s{sT}, s{sT}, 6")
    A(f"s_add_u32 s{sT}, s{sT}, {WS_ST}")
    A("v_mov_b32 v1, 0")
    for i in range(n + 1):
        A(f"v_mov_b32 v2, s{80+2*i}")
        A(f"buffer_store_dword v2, v1, s[{sWS}:{sWS+3}], s{sT} offen offset:{4*i}")
        A("s_nop 1")

def prologue(A, cfg):
    if cfg.dbl: A("s_memrealtime s[80:81]")
    stamp(A, cfg, 0)
    if cfg.stamps == 4: A("v_mov_b32 v31, 0")
    lstamp(A, cfg, 0)
    A("s_cmp_ge_u32 s2, 256")
    A("s_cbranch_scc1 L_end")
    A("s_load_dwordx16 s[4:19], s[0:1], 0")
    A("s_load_dwordx4 s[20:23], s[0:1], 64")
    A("v_lshrrev_b32 v1, 6, v0")
    A("v_and_b32 v0, 63, v0")
    A(f"v_readfirstlane_b32 s{sWave}, v1")
    lr = cfg.lr
    A(f"s_and_b32 s{sT}, s2, {(8 >> lr) - 1}")
    A(f"s_lshl_b32 s{sT}, s{sT}, {lr}")
    A(f"s_lshr_b32 s{sT+1}, s2, 3")
    A(f"s_and_b32 s{sT+2}, s{sT+1}, {(1 << lr) - 1}")
    A(f"s_or_b32 s{sSlab}, s{sT}, s{sT+2}")
    A(f"s_and_b32 s{sT}, s2, 7")
    A(f"s_lshr_b32 s{sT}, s{sT}, {3 - lr}")
    A(f"s_lshl_b32 s{sT}, s{sT}, {5 - lr}")
    A(f"s_lshr_b32 s{sT+1}, s{sT+1}, {lr}")
    A(f"s_add_u32 s{sPair}, s{sT}, s{sT+1}")
    if cfg.rot == 0:
        A(f"s_add_u32 s{sKC}, s{sPair}, s{sSlab}")
    elif cfg.rot == 1:
        A(f"s_lshl_b32 s{sKC}, s{sSlab}, 1")
        A(f"s_add_u32 s{sKC}, s{sKC}, s{sPair}")
    elif cfg.rot == 2:
        A(f"s_and_b32 s{sKC}, s2, 6")
        A(f"s_and_b32 s{sT}, s2, 1")
        A(f"s_lshl_b32 s{sT}, s{sT}, 2")
        A(f"s_add_u32 s{sKC}, s{sKC}, s{sT}")
    elif cfg.rot == 3:
        A(f"s_mov_b32 s{sKC}, 0")
    elif cfg.rot == 4:
        A(f"s_and_b32 s{sKC}, s2, 6")
        A(f"s_add_u32 s{sT}, s{sPair}, s{sSlab}")
        A(f"s_and_b32 s{sT}, s{sT}, 1")
        A(f"s_lshl_b32 s{sT}, s{sT}, 2")
        A(f"s_add_u32 s{sKC}, s{sKC}, s{sT}")
    elif cfg.rot == 5:
        A(f"s_add_u32 s{sT}, s{sPair}, s{sSlab}")
        A(f"s_and_b32 s{sT}, s{sT}, 3")
        A(f"s_lshl_b32 s{sT}, s{sT}, 1")
        A(f"s_and_b32 s{sKC}, s2, 1")
        A(f"s_add_u32 s{sKC}, s{sKC}, s{sT}")
    elif cfg.rot == 6:
        A(f"s_bfe_u32 s{sKC}, s2, 0x20001")
        A(f"s_add_u32 s{sT}, s{sPair}, s{sSlab}")
        A(f"s_and_b32 s{sT}, s{sT}, 1")
        A(f"s_lshl_b32 s{sT}, s{sT}, 2")
        A(f"s_add_u32 s{sKC}, s{sKC}, s{sT}")
    elif cfg.rot == 7:
        A(f"s_add_u32 s{sT}, s{sPair}, s{sSlab}")
        A(f"s_and_b32 s{sT}, s{sT}, 1")
        A(f"s_lshl_b32 s{sKC}, s{sT}, 2")
    elif cfg.rot == 8:
        A(f"s_and_b32 s{sKC}, s2, 6")
        A(f"s_add_u32 s{sT}, s{sPair}, s{sSlab}")
        A(f"s_and_b32 s{sT}, s{sT}, 1")
        A(f"s_lshl_b32 s{sT}, s{sT}, 1")
        A(f"s_add_u32 s{sKC}, s{sKC}, s{sT}")
    elif cfg.rot == 9:
        A(f"s_and_b32 s{sKC}, s2, 3")
        A(f"s_add_u32 s{sT}, s{sPair}, s{sSlab}")
        A(f"s_and_b32 s{sT}, s{sT}, 1")
        A(f"s_lshl_b32 s{sT}, s{sT}, 2")
        A(f"s_add_u32 s{sKC}, s{sKC}, s{sT}")
    elif cfg.rot in (16, 17, 18):
        pass
    elif cfg.rot in (10, 11, 13, 14, 15):
        if cfg.rot in (10, 11): A(f"s_add_u32 s{sT}, s{sPair}, s{sSlab}")
        elif cfg.rot == 13: A(f"s_mov_b32 s{sT}, s{sSlab}")
        elif cfg.rot == 14: A(f"s_mov_b32 s{sT}, s{sPair}")
        elif cfg.rot == 15:
            A(f"s_lshr_b32 s{sT}, s{sPair}, 1")
            A(f"s_add_u32 s{sT}, s{sT}, s{sSlab}")
        A(f"s_and_b32 s{sT}, s{sT}, 3")
        A(f"s_lshl_b32 s{sT}, s{sT}, 1")
        if cfg.rot == 10: A(f"s_bfe_u32 s{sKC}, s2, 0x10001")
        elif cfg.rot == 11: A(f"s_mov_b32 s{sKC}, 0")
        else: A(f"s_and_b32 s{sKC}, s2, 1")
        A(f"s_add_u32 s{sKC}, s{sKC}, s{sT}")
    if cfg.rot not in (16, 17, 18): A(f"s_and_b32 s{sKC}, s{sKC}, 7")
    A(f"s_and_b32 s{sRG}, s{sWave}, 3")
    A(f"s_cmp_ge_u32 s{sWave}, 4")
    A("s_cbranch_scc1 L_loader")

XSWAP = [0]
def late_srds(A):
    srd(A, sWS, 22, 23, WS_SIZE)
    srd(A, sWOA, 8, 9, 512 * 512 * 2)
    srd(A, sWOB, 14, 15, 512 * 512 * 2)
    srd(A, sOUT, 18, 19, 2048 * 512 * 2)
    srd(A, sDBG, 20, 21, 256)
    if XSWAP[0]:
        A.c("output slab: one this XCD group does not produce itself (speed only)")
        A(f"s_bfe_u32 s{sS3}, s2, 0x20001")
        A(f"s_andn2_b32 s{sR3}, 1, s2")
        A(f"s_lshl_b32 s{sR3}, s{sR3}, 2")
        A(f"s_add_u32 s{sS3}, s{sS3}, s{sR3}")
    else:
        A(f"s_and_b32 s{sS3}, s2, 7")
    A(f"s_bfe_u32 s{sR3}, s2, 0x20003")
    A(f"s_lshr_b32 s{sC3}, s2, 5")
    A(f"s_lshl_b32 s{sF}, s{sPair}, 2")
    A(f"s_add_u32 s{sF}, s{sF}, s{sRG}")
    A(f"s_lshl_b32 s{sF}, s{sF}, 7")
    A(f"s_add_u32 s{sF}, s{sF}, {WS_F1}")
    A.c("scalars of the tail (s4..s7: their pointers are dead by now)")
    A(f"s_lshl_b32 s{sT}, s{sSlab}, 2")
    A(f"s_add_u32 s{sT}, s{sT}, s{sRG}")
    A(f"s_lshl_b32 s{sT}, s{sT}, 17")
    A(f"s_lshl_b32 s{sT+1}, s{sPair}, 1")
    A(f"s_lshr_b32 s{sT+2}, s{sWave}, 2")
    A(f"s_add_u32 s{sT+1}, s{sT+1}, s{sT+2}")
    A(f"s_lshl_b32 s{sT+1}, s{sT+1}, 10")
    A(f"s_add_u32 s{sT}, s{sT}, s{sT+1}")
    A(f"s_add_u32 s{sOst}, s{sT}, {WS_O}")
    A(f"s_lshl_b32 s{sT}, s{sS3}, 3")
    A(f"s_lshl_b32 s{sT+1}, s{sR3}, 1")
    A(f"s_add_u32 s{sT}, s{sT}, s{sT+1}")
    A(f"s_and_b32 s{sT+1}, s{sWave}, 1")
    A(f"s_add_u32 s{sT}, s{sT}, s{sT+1}")
    A(f"s_lshl_b32 s{sT}, s{sT}, 16")
    A(f"s_lshr_b32 s{sT+1}, s{sWave}, 1")
    A(f"s_lshl_b32 s{sT+1}, s{sT+1}, 14")
    A(f"s_add_u32 s{sT}, s{sT}, s{sT+1}")
    A(f"s_add_u32 s{sOld}, s{sT}, {WS_O}")
    A(f"s_lshl_b32 s{sT}, s{sS3}, 8")
    A(f"s_lshl_b32 s{sT+1}, s{sR3}, 6")
    A(f"s_add_u32 s{sT}, s{sT}, s{sT+1}")
    A(f"s_lshl_b32 s{sT}, s{sT}, 10")
    A(f"s_lshl_b32 s{sT+1}, s{sC3}, 7")
    A(f"s_add_u32 s{sOut}, s{sT}, s{sT+1}")
    A(f"s_lshr_b32 s{sGc}, s{sPair}, 4")
    A(f"s_mul_i32 s{sGc}, s{sGc}, 0x3f800000")

def xfrag_addr(A, L, H, t):
    A(f"v_and_b32 v{t}, 31, v0")
    A(f"v_lshrrev_b32 v{t+1}, 5, v0")
    A(f"v_bfe_u32 v{t+2}, v0, 1, 3")
    A(f"v_xor_b32 v{t+2}, v{t+2}, v{t+1}")
    A(f"v_lshlrev_b32 v{t}, 7, v{t}")
    A(f"s_lshl_b32 s{sT}, s{sRG}, 13")
    A(f"v_add_u32 v{t}, s{sT}, v{t}")
    for j in range(4):
        A(f"v_xor_b32 v{t+1}, {2*j}, v{t+2}")
        A(f"v_lshl_add_u32 v{L[j]}, v{t+1}, 4, v{t}")
        A(f"v_add_u32 v{H[j]}, 0x10000, v{L[j]}")

def p2_addr(A):
    A(f"v_lshlrev_b32 v{vL16}, 4, v0")
    A(f"s_lshr_b32 s{sT}, s{sWave}, 2")
    A(f"s_mul_i32 s{sT}, s{sT}, {HSTR}")
    A(f"v_add_u32 v{vKL}, s{sT}, v{vL16}")
    A("v_lshrrev_b32 v104, 5, v0")
    A("v_and_b32 v105, 15, v0")
    A("v_lshlrev_b32 v105, 4, v105")
    A("v_lshl_add_u32 v105, v104, 8, v105")
    A("v_add_u32 v105, 1024, v105")
    A("v_add_u32 v106, 512, v105")
    A("v_and_b32 v104, 11, v0")
    A("v_cmp_eq_u32 vcc, 0, v104")
    A("v_mov_b32 v107, 2064")
    A("v_mov_b32 v108, 2048")
    A("v_cndmask_b32 v107, v107, v108, vcc")
    A("v_and_b32 v104, 16, v0")
    A("v_cmp_eq_u32 vcc, 0, v104")
    A("s_nop 1")
    A("v_cndmask_b32 v105, v107, v105, vcc")
    A("v_cndmask_b32 v106, v107, v106, vcc")
    A(f"v_add_u32 v{vV0L}, s{sT}, v105")
    A(f"v_add_u32 v{vV1L}, s{sT}, v106")
    A(f"v_add_u32 v{vKH}, {SC}, v{vKL}")
    A(f"v_add_u32 v{vV0H}, {SC}, v{vV0L}")
    A(f"v_add_u32 v{vV1H}, {SC}, v{vV1L}")
    A("v_lshrrev_b32 v104, 3, v0")
    A("v_lshlrev_b32 v104, 10, v104")
    A("v_and_b32 v105, 7, v0")
    A(f"v_lshlrev_b32 v{vPA}, 2, v105")
    A("v_bfe_u32 v106, v0, 4, 1")
    A("v_lshlrev_b32 v106, 2, v106")
    A("v_xor_b32 v105, v105, v106")
    A(f"v_lshl_add_u32 v{vWoD}, v105, 4, v104")

def consts(A, slots):
    A("v_lshrrev_b32 v104, 4, v0")
    A(f"v_mul_u32_u24 v104, {slots[-1] - slots[0]}, v104")
    A("v_and_b32 v105, 15, v0")
    A(f"v_mul_u32_u24 v105, {REC}, v105")
    A("v_add_u32 v104, v104, v105")
    if slots[0]: A(f"v_add_u32 v104, {slots[0]}, v104")
    for i in range(4):
        A(f"v_mov_b32 v{108+i}, 0x3f803f80")
        A(f"v_mov_b32 v{112+i}, 0")
    n = 16 * len(slots)
    A(f"s_mov_b32 exec_lo, {hex((1 << min(n,32)) - 1)}")
    A(f"s_mov_b32 exec_hi, {hex((1 << max(n-32,0)) - 1)}")
    A("ds_write_b128 v104, v[108:111] offset:2048")
    A("ds_write_b128 v104, v[112:115] offset:2064")
    A("s_mov_b64 exec, -1")

tails = []
def spin(A, name, load, reg, val, cmp="ne", sleep=0, depth=0):
    A("s_waitcnt vmcnt(0)")
    A(f"v_cmp_{cmp}_u32 vcc, {val}, v{reg}")
    A("s_nop 0")
    A(f"s_cbranch_vccnz L_spin_{name}")
    A(f"L_ret_{name}:")
    T = Asm()
    T(f"L_spin_{name}:")
    T(f"s_mov_b32 s{sSpin}, {SPIN_MAX}")
    for _ in range(depth):
        T(load)
        if sleep: T(f"s_sleep {sleep}")
    T(f"L_spinl_{name}:")
    if sleep: T(f"s_sleep {sleep}")
    T(load)
    T(f"s_sub_u32 s{sSpin}, s{sSpin}, 1")
    T(f"s_cbranch_scc1 L_ret_{name}")
    T(f"s_waitcnt vmcnt({depth})")
    T(f"v_cmp_{cmp}_u32 vcc, {val}, v{reg}")
    T("s_nop 0")
    T(f"s_cbranch_vccnz L_spinl_{name}")
    T(f"s_branch L_ret_{name}")
    tails.append(T)

vXL, vXH = [2, 3, 4, 5], [6, 7, 8, 9]
vWa, vWb, vWv = 10, 11, 12
ACC = dict(QKa0=32, QKa1=48, QKb0=64, QKb1=80, VV0=96, VV1=112)
FR = [128, 148]
vQ = [8, 12]
F1LOAD = f"buffer_load_dword v{vPoll}, v{vPA}, s[{sWS}:{sWS+3}], s{sF} offen sc1"
SAMPLE = f"buffer_load_dword v28, v5, s[{sWS}:{sWS+3}], s{sOld} offen sc1"
ZLOAD = f"buffer_load_dword v{vZ}, v{vPoll}, s[{sDBG}:{sDBG+3}], 0 offen sc1"

def l2_prefetch(A, cfg):
    assert cfg.lr == 2
    A(f"s_cmp_lt_u32 s{sPair}, 16")
    A(f"s_cselect_b32 s{sW}, s6, s12")
    A(f"s_cselect_b32 s{sW+1}, s7, s13")
    A(f"s_mov_b32 s{sW+2}, {hex(512*1536*2)}")
    A(f"s_mov_b32 s{sW+3}, 0x20000")
    A(f"s_lshl_b32 s{sT}, s{sWave}, 1")
    A(f"s_add_u32 s{sT}, s{sT}, s{sKC}")
    A(f"s_add_u32 s{sT}, s{sT}, {cfg.pfoff}")
    A("v_lshrrev_b32 v46, 5, v0")
    A(f"v_add_u32 v46, s{sT}, v46")
    A("v_and_b32 v46, 7, v46")
    A("v_and_b32 v47, 31, v0")
    A(f"s_lshr_b32 s{sT+1}, s2, 3")
    A(f"s_and_b32 s{sT+2}, s2, 1")
    A(f"s_lshl_b32 s{sT+2}, s{sT+2}, 20")
    A(f"s_lshl_b32 s{sT+3}, s{sT+1}, 15")
    A(f"s_add_u32 s{sT+2}, s{sT+2}, s{sT+3}")
    A("v_lshlrev_b32 v48, 10, v47")
    A("v_lshl_add_u32 v48, v46, 7, v48")
    A(f"buffer_load_dword v200, v48, s[{sX}:{sX+3}], s{sT+2} offen")
    A(f"s_mul_i32 s{sT+1}, s{sT+1}, 24")
    A("v_min_u32 v47, 23, v47")
    A(f"v_add_u32 v47, s{sT+1}, v47")
    A("v_mul_u32_u24 v48, 0x5556, v47")
    A("v_lshrrev_b32 v48, 18, v48")
    A("v_mul_u32_u24 v49, 12, v48")
    A("v_sub_u32 v49, v47, v49")
    A("v_lshl_add_u32 v48, v46, 6, v48")
    A("v_mul_u32_u24 v48, 3072, v48")
    A("v_lshrrev_b32 v47, 2, v49")
    A("v_lshl_add_u32 v48, v47, 10, v48")
    A("v_and_b32 v49, 3, v49")
    A("v_lshl_add_u32 v48, v49, 7, v48")
    A(f"s_and_b32 s{sT+1}, s{sPair}, 8")
    A(f"s_lshl_b32 s{sT+1}, s{sT+1}, 6")
    A(f"buffer_load_dword v201, v48, s[{sW}:{sW+3}], s{sT+1} offen")

def w_prefetch(A, cfg):
    assert cfg.lr == 2
    A(f"s_cmp_lt_u32 s{sPair}, 16")
    A(f"s_cselect_b32 s{sW}, s6, s12")
    A(f"s_cselect_b32 s{sW+1}, s7, s13")
    A(f"s_mov_b32 s{sW+2}, {hex(512*1536*2)}")
    A(f"s_mov_b32 s{sW+3}, 0x20000")
    A(f"s_and_b32 s{sT+1}, s{sPair}, 14")
    A(f"s_lshl_b32 s{sT+1}, s{sT+1}, 6")
    if cfg.wpf2 < 10:
        A(f"s_add_u32 s{sT+3}, s{sW}, s{sT+1}")
        A(f"s_bfe_u32 s{sT+3}, s{sT+3}, 0x30007")
    A(f"s_and_b32 s{sT}, s{sSlab}, 3")
    A(f"s_lshl_b32 s{sT}, s{sT}, 1")
    A(f"s_and_b32 s{sT+2}, s{sPair}, 1")
    A(f"s_add_u32 s{sT}, s{sT}, s{sT+2}")
    A(f"s_add_u32 s{sT}, s{sT}, s{sKC}")
    A(f"s_and_b32 s{sT}, s{sT}, 7")
    A(f"s_mul_i32 s{sT}, s{sT}, 196608")
    A(f"s_add_u32 s{sT}, s{sT}, s{sT+1}")
    A(f"s_mul_i32 s{sT+2}, s{sRG}, 49152")
    A(f"s_add_u32 s{sT}, s{sT}, s{sT+2}")
    A("v_min_u32 v46, 47, v0")
    A("v_lshlrev_b32 v46, 10, v46")
    if cfg.wpf2 < 10:
        A(f"s_cmp_eq_u32 s{sT+3}, 3")
        A("s_cselect_b64 exec, -1, 0")
    A(f"buffer_load_dword v200, v46, s[{sW}:{sW+3}], s{sT} offen")
    A("s_mov_b64 exec, -1")

def p1_compute(A, cfg):
    A.c("---- phase 1, compute waves")
    if cfg.p1prio == 1: A("s_setprio 1")
    A("s_waitcnt lgkmcnt(0)")
    A.c("gate g = sigmoid(x . gate_w) of rows 8*wg + 2*wave, +1 (every workgroup covers 8 of the 2048 rows)")
    srd(A, sX, 4, 5, 2048 * 512 * 2)
    srd(A, sG, 16, 17, 1024)
    A(f"s_lshl_b32 s{sT+6}, s2, 2")
    A(f"s_add_u32 s{sT+6}, s{sT+6}, s{sWave}")
    A(f"s_lshl_b32 s{sT+7}, s{sT+6}, 11")
    A("v_lshlrev_b32 v13, 4, v0")
    A(f"buffer_load_dwordx4 v[32:35], v13, s[{sX}:{sX+3}], s{sT+7} offen")
    A(f"buffer_load_dwordx4 v[36:39], v13, s[{sX}:{sX+3}], s{sT+7} offen offset:1024")
    A(f"buffer_load_dwordx4 v[40:43], v13, s[{sG}:{sG+3}], 0 offen")
    if cfg.wpf:
        A.c("pull this workgroup's 1/256 share of both weight matrices towards the chip")
        A(f"s_cmp_lt_u32 s2, 128")
        A(f"s_cselect_b32 s{sW}, s6, s12")
        A(f"s_cselect_b32 s{sW+1}, s7, s13")
        A(f"s_mov_b32 s{sW+2}, {hex(512*1536*2)}")
        A(f"s_mov_b32 s{sW+3}, 0x20000")
        A(f"s_and_b32 s{sT}, s{sT+6}, 511")
        A(f"s_mul_i32 s{sT}, s{sT}, 3072")
        for i in range(3):
            A(f"buffer_load_dwordx4 v[{48+4*i}:{51+4*i}], v13, s[{sW}:{sW+3}], s{sT} offen offset:{1024*i}")
    if cfg.wpf2 % 10 == 1: w_prefetch(A, cfg)
    if cfg.c2c:
        A.c("the otherwise idle compute waves fetch chunk 2")
        A(f"s_cmp_lt_u32 s{sPair}, 16")
        A(f"s_cselect_b32 s{sW}, s6, s12")
        A(f"s_cselect_b32 s{sW+1}, s7, s13")
        A(f"s_mov_b32 s{sW+2}, {hex(512*1536*2)}")
        A(f"s_mov_b32 s{sW+3}, 0x20000")
        A("v_lshrrev_b32 v48, 3, v0")
        A("v_lshlrev_b32 v48, 10, v48")
        A("v_and_b32 v49, 7, v0")
        A("v_lshrrev_b32 v50, 4, v0")
        A("v_xor_b32 v49, v49, v50")
        A("v_lshl_add_u32 v48, v49, 4, v48")
        A("v_xor_b32 v49, 64, v48")
        A(f"s_add_u32 s{sK2}, s{sKC}, 2")
        A(f"s_and_b32 s{sK2}, s{sK2}, 7")
        A(f"s_lshl_b32 s{sXo}, s{sK2}, 7")
        A(f"s_lshl_b32 s{sT}, s{sSlab}, 18")
        A(f"s_add_u32 s{sXo}, s{sXo}, s{sT}")
        A(f"s_lshl_b32 s{sT}, s{sRG}, 16")
        A(f"s_add_u32 s{sXo}, s{sXo}, s{sT}")
        A(f"s_lshl_b32 s{sM}, s{sRG}, 13")
        for i in range(8):
            A(f"s_add_u32 m0, s{sM}, {XB[2] + i*1024}")
            A(f"s_add_u32 s{sT}, s{sXo}, {i*8192}")
            A(f"buffer_load_dwordx4 v{49 if i & 1 else 48}, s[{sX}:{sX+3}], s{sT} offen lds")
        A("v_lshrrev_b32 v50, 2, v0")
        A("v_mul_u32_u24 v50, 3072, v50")
        A("v_and_b32 v51, 3, v0")
        A("v_lshl_add_u32 v50, v51, 4, v50")
        A("v_xor_b32 v51, 32, v50")
        A(f"s_and_b32 s{sT}, s{sPair}, 15")
        A(f"s_lshl_b32 s{sT}, s{sT}, 6")
        A(f"s_mul_i32 s{sT+1}, s{sRG}, 49152")
        A(f"s_add_u32 s{sT}, s{sT}, s{sT+1}")
        A(f"s_mul_i32 s{sT+1}, s{sK2}, 196608")
        A(f"s_mul_i32 s{sM}, s{sRG}, 3072")
        A(f"s_add_u32 m0, s{sM}, {WB + 2*12288}")
        A(f"s_add_u32 s{sT}, s{sT}, s{sT+1}")
        for i in range(3):
            A(f"buffer_load_dwordx4 v{51 if i == 1 else 50}, s[{sW}:{sW+3}], s{sT} offen offset:{i*1024} lds")
    late_srds(A)
    A.c("wave 0 clears this workgroup's hand-off words, then counts the workgroup in")
    A(f"s_cmp_lg_u32 s{sWave}, 0")
    A("s_cbranch_scc1 L_nozero")
    A(f"s_lshl_b32 s{sT}, s{sPair}, 9")
    A(f"s_lshl_b32 s{sT+1}, s{sSlab}, 2")
    A(f"s_add_u32 s{sT}, s{sT}, s{sT+1}")
    A(f"s_add_u32 s{sT}, s{sT}, {WS_F1}")
    A("v_lshlrev_b32 v2, 7, v0")
    A(f"v_add_u32 v2, s{sT}, v2")
    A("v_mov_b32 v4, 0")
    A("s_mov_b64 exec, 0xf")
    A(f"buffer_store_dword v4, v2, s[{sWS}:{sWS+3}], 0 offen sc1")
    A("s_mov_b64 exec, -1")
    A("L_nozero:")
    p2_pre(A, False); p2_pre(A, True)
    A("v_and_b32 v2, 1, v0")
    A(f"v_lshlrev_b32 v{vPoll}, 7, v2")
    A(f"v_mov_b32 v{vZ}, 1")
    p2_addr(A)
    xfrag_addr(A, vXL, vXH, 13)
    A("v_lshrrev_b32 v13, 5, v0")
    A("v_lshlrev_b32 v13, 3, v13")
    A("v_bfe_u32 v14, v0, 2, 2")
    A("v_add_u32 v13, v13, v14")
    A("v_lshlrev_b32 v13, 6, v13")
    A("v_and_b32 v14, 3, v0")
    A("v_lshl_add_u32 v13, v14, 3, v13")
    A(f"v_add_u32 v13, {WB}, v13")
    A("v_bfe_u32 v14, v0, 4, 1")
    A("v_mul_u32_u24 v15, 1056, v14")
    A(f"v_add_u32 v{vWa}, v13, v15")
    A("v_mul_u32_u24 v15, 992, v14")
    A(f"v_add3_u32 v{vWb}, v13, v15, 32")
    A("v_lshl_add_u32 v13, v14, 5, v13")
    A(f"v_add_u32 v{vWv}, 2048, v13")
    def reads(c, j, F):
        if cfg.p1x & 8 and (c, j) != (0, 0): return ["s_nop 0"] * 8
        slot = c % 3
        xr = vXH[j] if slot == 2 else vXL[j]
        xi = XS if slot == 0 else 0
        wi = slot * 12288 + j * 3072
        return [f"ds_read_b128 {v(F,4)}, v{xr} offset:{xi}",
                f"ds_read_b64_tr_b16 {v(F+8,2)}, v{vWa} offset:{wi}",
                f"ds_read_b64_tr_b16 {v(F+10,2)}, v{vWa} offset:{wi+256}",
                f"ds_read_b128 {v(F+4,4)}, v{xr} offset:{xi+4096}",
                f"ds_read_b64_tr_b16 {v(F+12,2)}, v{vWb} offset:{wi}",
                f"ds_read_b64_tr_b16 {v(F+14,2)}, v{vWb} offset:{wi+256}",
                f"ds_read_b64_tr_b16 {v(F+16,2)}, v{vWv} offset:{wi}",
                f"ds_read_b64_tr_b16 {v(F+18,2)}, v{vWv} offset:{wi+256}"]
    def mf(F, first):
        def m(D, a, b):
            if cfg.p1x & 1 and not first: return "s_nop 1"
            if cfg.t16:
                q = 4 * (F != FR[0])
                return (f"v_mfma_f32_16x16x32_bf16 {v(D+q,4)}, {v(a,4)}, {v(b,4)}, {'0' if first else v(D+q,4)}\n"
                        f"v_mfma_f32_16x16x32_bf16 {v(D+8+q,4)}, {v(a,4)}, {v(b,4)}, {'0' if first else v(D+8+q,4)}")
            return f"v_mfma_f32_32x32x16_bf16 {v(D,16)}, {v(a,4)}, {v(b,4)}, {'0' if first else v(D,16)}"
        return [m(ACC['QKa0'], F+8, F), m(ACC['QKa1'], F+8, F+4), m(ACC['QKb0'], F+12, F),
                m(ACC['QKb1'], F+12, F+4), m(ACC['VV0'], F, F+16), m(ACC['VV1'], F+4, F+16)]
    A(f"s_lshl_b32 s{sT+6}, s{sT+6}, 3")
    A(f"s_add_u32 s{sT+6}, s{sT+6}, {WS_G}")
    A("v_lshrrev_b32 v13, 5, v0")
    A("v_lshlrev_b32 v13, 2, v13")
    A("v_mov_b32 v44, 0")
    A("v_mov_b32 v45, 0")
    if cfg.l2pf == 1: l2_prefetch(A, cfg)
    A(f"s_waitcnt vmcnt({(3 if cfg.wpf else (2 if cfg.l2pf == 1 else (1 if cfg.wpf2 % 10 == 1 else (11 if cfg.c2c else 0))))})")
    if cfg.l2pf == 2: l2_prefetch(A, cfg)
    if cfg.wpf2 % 10 == 2: w_prefetch(A, cfg)
    for i in range(4):
        A(f"v_dot2_f32_bf16 v44, v{32+i}, v{40+i}, v44")
        A(f"v_dot2_f32_bf16 v45, v{36+i}, v{40+i}, v45")
    A("s_nop 2")
    A("v_permlane32_swap_b32 v44, v45")
    A("v_add_f32 v44, v44, v45")
    A("v_mov_b32 v45, v44")
    A("s_nop 1")
    A("v_permlane16_swap_b32 v44, v45")
    A("v_add_f32 v44, v44, v45")
    for ctl in ("quad_perm:[1,0,3,2]", "quad_perm:[2,3,0,1]", "row_half_mirror", "row_mirror"):
        A("s_nop 1")
        A(f"v_add_f32_dpp v44, v44, v44 {ctl} row_mask:0xf bank_mask:0xf")
    A(f"v_mul_f32 v44, {fbits(-LOG2E)}, v44")
    A("v_exp_f32 v44, v44")
    A("s_nop 0")
    A("v_add_f32 v44, 1.0, v44")
    A("v_rcp_f32 v44, v44")
    A("s_mov_b32 exec_lo, 1")
    A("s_mov_b32 exec_hi, 1")
    A(f"buffer_store_dword v44, v13, s[{sWS}:{sWS+3}], s{sT+6} offen sc1")
    A("s_mov_b64 exec, -1")
    if cfg.wpf: A("s_waitcnt vmcnt(1)")
    A("s_barrier")
    stamp(A, cfg, 1)
    for r in reads(0, 0, FR[0]): A(r)
    def wave0_block(n):
        if n == 8:
            A(f"s_cmp_lg_u32 s{sWave}, 0")
            A("s_cbranch_scc1 L_noz0")
            A(f"s_and_b32 s{sT}, s2, 1")
            A(f"s_lshl_b32 s{sT}, s{sT}, 7")
            A("s_mov_b64 exec, 1")
            A(f"buffer_atomic_add v{vZ}, off, s[{sDBG}:{sDBG+3}], s{sT}")
            A("s_mov_b64 exec, -1")
            A("L_noz0:")
        if n == cfg.n_z:
            A(f"s_cmp_lg_u32 s{sWave}, 0")
            A("s_cbranch_scc1 L_noz1")
            A(ZLOAD)
            A("L_noz1:")
    if cfg.p1pipe == 0:
        for n in range(32):
            c, j = divmod(n, 4)
            M = mf(FR[n & 1], n == 0)
            A("s_waitcnt lgkmcnt(0)" if n != 7 else "s_waitcnt vmcnt(0) lgkmcnt(0)")
            if n == 31:
                for m in M: A(m)
                break
            if j == 3: A("s_barrier")
            c2, j2 = divmod(n + 1, 4)
            R = reads(c2, j2, FR[(n + 1) & 1])
            A(M[0]); A(R[0]); A(R[1]); A(R[2])
            A(M[1]); A(R[3]); A(R[4]); A(R[5])
            A(M[2]); A(R[6]); A(R[7])
            A(M[3])
            wave0_block(n)
            A(M[4]); A(M[5])
    else:
        for n in range(32):
            c, j = divmod(n, 4)
            M = mf(FR[n & 1], n == 0)
            last = n == 31
            c2, j2 = divmod(n + 1, 4)
            R = [""] * 8 if last else reads(c2, j2, FR[(n + 1) & 1])
            k = 0 if last else 3
            A("s_waitcnt lgkmcnt(5)")
            A(M[0])
            A("s_waitcnt lgkmcnt(4)")
            A(M[1])
            if n == 7: A("s_waitcnt vmcnt(0)")
            if j == 3 and not last: A("s_barrier")
            for x in R[0:3]: A(x)
            A(f"s_waitcnt lgkmcnt({2 + k})")
            A(M[2])
            for x in R[3:6]: A(x)
            A(M[3])
            wave0_block(n)
            A(f"s_waitcnt lgkmcnt({2*k})")
            if j == 3 and not last: A("s_barrier")
            A(M[4])
            for x in R[6:8]: A(x)
            A(M[5])

def p1_compute_epilogue(A, cfg):
    A.c("---- phase 1 epilogue: round K/V, publish them (write-through) and keep them in LDS")
    A(f"s_lshl_b32 s{sT}, s{sPair}, 3")
    A(f"s_add_u32 s{sT}, s{sT}, s{sSlab}")
    A(f"s_lshl_b32 s{sT}, s{sT}, 15")
    A(f"s_lshl_b32 s{sT+1}, s{sRG}, 12")
    A(f"s_add_u32 s{sT}, s{sT}, s{sT+1}")
    A(f"s_add_u32 s{sT+1}, s{sT}, 16384")
    A("v_bfe_u32 v13, v0, 4, 1")
    A("v_lshrrev_b32 v14, 5, v0")
    A("v_and_b32 v15, 15, v0")
    A("v_lshlrev_b32 v15, 4, v15")
    A("v_lshl_add_u32 v15, v14, 8, v15")
    A("v_add_u32 v15, 1024, v15")
    A("v_lshl_add_u32 v3, v13, 14, v15")
    A(f"s_mul_i32 s{sT+2}, s{sRG}, {2*REC}")
    A(f"s_add_u32 s{sT+2}, s{sT+2}, {SB}")
    A(f"v_add_u32 v4, s{sT+2}, v{vL16}")
    A(f"v_mul_u32_u24 v13, {HSTR}, v13")
    A(f"v_add3_u32 v5, v13, v15, s{sT+2}")
    A.c("wave 0: every workgroup has cleared its hand-off words (checked before any flag is read)")
    A(f"s_cmp_lg_u32 s{sWave}, 0")
    A("s_cbranch_scc1 L_noz2")
    A(f"s_movk_i32 s{sT+3}, 128")
    spin(A, "z", ZLOAD, vZ, f"s{sT+3}", "gt")
    A("L_noz2:")
    def cvt(dst, src):
        for i in range(4):
            A(f"v_cvt_pk_bf16_f32 v{dst+i}, v{src+2*i}, v{src+2*i+1}")
    if cfg.epi2:
        tmp = [128, 132, 136, 140, 144, 148, 152, 156]
        A(f"s_mov_b32 s{sT+4}, {fbits(QSCALE)}")
        A(f"s_mov_b32 s{sT+5}, {fbits(QSCALE)}")
        A(f"s_lshl_b32 s{sT+6}, s{sRG}, 11")
        A(f"s_add_u32 s{sT+6}, s{sT+6}, {QX}")
        A(f"v_add_u32 v6, s{sT+6}, v{vL16}")
        items = []
        for hd, names in ((0, ("QKa0", "QKa1")), (1, ("QKb0", "QKb1"))):
            for t in (0, 1):
                items.append((ACC[names[t]] + 8, f"v{vL16}, s[{sWS}:{sWS+3}], s{sT+hd} offen offset:{t*2048}", "v4", hd*HSTR + t*REC))
        for t in (0, 1):
            for a in (0, 1):
                items.append((ACC[f"VV{t}"] + 8 * a, f"v3, s[{sWS}:{sWS+3}], s{sT} offen offset:{t*2048 + a*512}", "v5", t*REC + a*512))
        qs = [("QKb0", 16, 0), ("QKb1", 20, 1024), ("QKa0", vQ[0], None), ("QKa1", vQ[1], None)]
        for k, (src, gaddr, laddr, loff) in enumerate(items):
            cvt(tmp[k], src)
            A(f"buffer_store_dwordx4 {v(tmp[k],4)}, {gaddr} sc1")
            A(f"ds_write_b128 {laddr}, {v(tmp[k],4)} offset:{loff}")
            nm, dst, qoff = qs[k >> 1]
            q = ACC[nm]
            if k & 1 == 0:
                for i in range(4): A(f"v_pk_mul_f32 {v(q+2*i,2)}, {v(q+2*i,2)}, s[{sT+4}:{sT+5}]")
            else:
                cvt(dst, q)
                if qoff is not None: A(f"ds_write_b128 v6, {v(dst,4)} offset:{qoff}")
    else:
        tmp = [128, 132, 136, 140, 144, 148, 152, 156]
        if cfg.epist: stamp(A, cfg, 3)
        k = 0
        for hd, names in ((0, ("QKa0", "QKa1")), (1, ("QKb0", "QKb1"))):
            for t in (0, 1):
                cvt(tmp[k], ACC[names[t]] + 8)
                A(f"buffer_store_dwordx4 {v(tmp[k],4)}, v{vL16}, s[{sWS}:{sWS+3}], s{sT+hd} offen offset:{t*2048} sc1")
                k += 1
        if cfg.epist: stamp(A, cfg, 4)
        for t in (0, 1):
            for a in (0, 1):
                cvt(tmp[k], ACC[f"VV{t}"] + 8 * a)
                A(f"buffer_store_dwordx4 {v(tmp[k],4)}, v3, s[{sWS}:{sWS+3}], s{sT} offen offset:{t*2048 + a*512} sc1")
                k += 1
        if cfg.epist: stamp(A, cfg, 5)
        k = 0
        for hd in (0, 1):
            for t in (0, 1):
                A(f"ds_write_b128 v4, {v(tmp[k],4)} offset:{hd*HSTR + t*REC}"); k += 1
        for t in (0, 1):
            for a in (0, 1):
                A(f"ds_write_b128 v5, {v(tmp[k],4)} offset:{t*REC + a*512}"); k += 1
        if cfg.epist: stamp(A, cfg, 6)
        A(f"s_mov_b32 s{sT+4}, {fbits(QSCALE)}")
        A(f"s_mov_b32 s{sT+5}, {fbits(QSCALE)}")
        A(f"s_lshl_b32 s{sT+2}, s{sRG}, 11")
        A(f"s_add_u32 s{sT+2}, s{sT+2}, {QX}")
        A(f"v_add_u32 v4, s{sT+2}, v{vL16}")
        for hd, names in ((1, ("QKb0", "QKb1")), (0, ("QKa0", "QKa1"))):
            for t in (0, 1):
                q = ACC[names[t]]
                for i in range(4):
                    A(f"v_pk_mul_f32 {v(q+2*i,2)}, {v(q+2*i,2)}, s[{sT+4}:{sT+5}]")
                dst = vQ[t] if hd == 0 else 16 + 4 * t
                cvt(dst, q)
                if hd == 1: A(f"ds_write_b128 v4, {v(dst,4)} offset:{t*1024}")
    if cfg.epist: stamp(A, cfg, 7)
    A("s_waitcnt lgkmcnt(0)")
    if cfg.epist: stamp(A, cfg, 8)
    A("s_barrier")
    if cfg.epist:
        stamp(A, cfg, 9)
        A("s_waitcnt vmcnt(0)")
        stamp_store(A, cfg, 10)
        A("s_endpgm")
    A.c("K/V stores acknowledged -> raise this wave's flag")
    A(f"v_mov_b32 v{vZ}, 1")
    A(f"s_lshl_b32 s{sJ}, s{sSlab}, 2")
    A(f"s_add_u32 s{sJ}, s{sJ}, s{sF}")
    lstamp(A, cfg, 46)
    A("s_waitcnt vmcnt(0)")
    A("s_mov_b64 exec, 1")
    A(f"buffer_store_dword v{vZ}, off, s[{sWS}:{sWS+3}], s{sJ} sc1")
    A("s_mov_b64 exec, -1")
    lstamp(A, cfg, 47)

def p1_loader(A, cfg):
    A.c("---- phase 1, loader waves: LDS-DMA of x / W chunks")
    if cfg.p1prio == 2: A("s_setprio 1")
    A("v_lshrrev_b32 v13, 3, v0")
    A("v_lshlrev_b32 v13, 10, v13")
    A("v_and_b32 v14, 7, v0")
    A("v_lshrrev_b32 v15, 4, v0")
    A("v_xor_b32 v14, v14, v15")
    A("v_lshl_add_u32 v13, v14, 4, v13")
    A("v_xor_b32 v14, 64, v13")
    for i in range(8):
        A(f"v_add_u32 v{2+i}, {i*8192 - (i&3)*1024}, v{14 if i & 1 else 13}")
    A(f"s_lshl_b32 s{sXb}, s{sSlab}, 18")
    A(f"s_lshl_b32 s{sT}, s{sRG}, 16")
    A(f"s_add_u32 s{sXb}, s{sXb}, s{sT}")
    def issue_x(c):
        slot = c % 3
        A(f"s_add_u32 s{sK2}, s{sKC}, {c}")
        A(f"s_and_b32 s{sK2}, s{sK2}, 7")
        A(f"s_lshl_b32 s{sXo}, s{sK2}, 7")
        A(f"s_lshl_b32 s{sM}, s{sRG}, 13")
        A(f"s_add_u32 m0, s{sM}, {XB[slot]}")
        A(f"s_add_u32 s{sXo}, s{sXo}, s{sXb}")
        for i in range(8):
            if i == 4:
                A(f"s_add_u32 m0, s{sM}, {XB[slot] + 4096}")
                A("s_nop 0")
            A(f"buffer_load_dwordx4 v{2+i}, s[{sX}:{sX+3}], s{sXo} offen offset:{(i&3)*1024} lds")
    def issue_w(c):
        slot = c % 3
        A(f"s_mul_i32 s{sM}, s{sRG}, 3072")
        A(f"s_mul_i32 s{sWo}, s{sK2}, 196608")
        A(f"s_add_u32 m0, s{sM}, {WB + slot*12288}")
        A(f"s_add_u32 s{sWo}, s{sWo}, s{sWb_}")
        for i in range(3):
            A(f"buffer_load_dwordx4 v{11 if i == 1 else 10}, s[{sW}:{sW+3}], s{sWo} offen offset:{i*1024} lds")
    def pf_setup():
        assert cfg.lr == 2
        A(f"s_and_b32 s{sT}, s{sPair}, 7")
        A(f"s_lshl_b32 s{sT}, s{sT}, 15")
        A(f"s_lshl_b32 s{sT+1}, s{sRG}, 13")
        A(f"s_add_u32 s{sT}, s{sT}, s{sT+1}")
        A(f"s_lshl_b32 s{sT+1}, s{sSlab}, 18")
        A(f"s_add_u32 s{sT}, s{sT}, s{sT+1}")
        A(f"s_add_u32 s12, s{sX}, s{sT}")
        A(f"s_addc_u32 s13, s{sX+1}, 0")
        A(f"s_and_b32 s{sT}, s{sSlab}, 3")
        A(f"s_lshl_b32 s{sT}, s{sT}, 1")
        A(f"s_and_b32 s{sT+1}, s{sPair}, 1")
        A(f"s_add_u32 s{sT}, s{sT}, s{sT+1}")
        A(f"s_lshl_b32 s{sT}, s{sT}, 2")
        A(f"s_add_u32 s{sT}, s{sT}, s{sRG}")
        A(f"s_mul_i32 s{sT}, s{sT}, 6144")
        A(f"s_and_b32 s{sT+1}, s{sPair}, 14")
        A(f"s_lshl_b32 s{sT+1}, s{sT+1}, 6")
        A(f"s_add_u32 s{sT}, s{sT}, s{sT+1}")
        A(f"s_add_u32 s16, s{sW}, s{sT}")
        A(f"s_addc_u32 s17, s{sW+1}, 0")
    def pf(c):
        if not cfg.spf or c > 7: return
        A(f"s_add_u32 s{sT}, s{sKC}, {c}")
        A(f"s_and_b32 s{sT}, s{sT}, 7")
        A(f"s_mul_i32 s{sT+1}, s{sT}, 196608")
        A(f"s_lshl_b32 s{sT}, s{sT}, 7")
        if cfg.spfw != 2:
            for e in range(6): A(f"s_load_dword s10, s[16:17], s{sT+1} offset:{1024*e}")
        if cfg.spfw != 1:
            for e in range(8): A(f"s_load_dword s10, s[12:13], s{sT} offset:{1024*e}")
    def issue(c):
        if cfg.wfirst:
            A(f"s_add_u32 s{sK2}, s{sKC}, {c}")
            A(f"s_and_b32 s{sK2}, s{sK2}, 7")
            issue_w(c); issue_x(c)
        else:
            issue_x(c); issue_w(c)
    if cfg.rot in (16, 17, 18):
        A(f"s_and_b32 s{sT+1}, s{sPair}, 3")
        A(f"s_lshl_b32 s{sT+1}, s{sT+1}, 1")
        A(f"s_and_b32 s{sT+3}, s2, 1")
        A(f"s_add_u32 s{sT+1}, s{sT+1}, s{sT+3}")
        if cfg.rot == 16:
            A(f"s_lshr_b32 s{sT+2}, s{sPair}, 1")
            A(f"s_add_u32 s{sT+2}, s{sT+2}, s{sSlab}")
            A(f"s_lshl_b32 s{sT+2}, s{sT+2}, 1")
            A(f"s_add_u32 s{sT+2}, s{sT+2}, s{sT+3}")
        elif cfg.rot == 17:
            A(f"s_lshl_b32 s{sT+2}, s{sSlab}, 1")
            A(f"s_add_u32 s{sT+2}, s{sT+2}, s{sPair}")
        else:
            A(f"s_add_u32 s{sT+2}, s{sPair}, s{sSlab}")
            A(f"s_lshl_b32 s{sT+2}, s{sT+2}, 1")
            A(f"s_add_u32 s{sT+2}, s{sT+2}, s{sT+3}")
    A("s_waitcnt lgkmcnt(0)")
    if cfg.rot in (16, 17, 18):
        A(f"s_cmp_lt_u32 s{sPair}, 16")
        A(f"s_cselect_b32 s{sT+4}, s6, s12")
        A(f"s_lshr_b32 s{sT+4}, s{sT+4}, 7")
        A(f"s_lshr_b32 s{sT+5}, s{sPair}, 1")
        A(f"s_add_u32 s{sT+4}, s{sT+4}, s{sT+5}")
        A(f"s_and_b32 s{sT+4}, s{sT+4}, 7")
        A(f"s_cmp_eq_u32 s{sT+4}, 3")
        A(f"s_cselect_b32 s{sKC}, s{sT+2}, s{sT+1}")
        A(f"s_and_b32 s{sKC}, s{sKC}, 7")
    srd(A, sX, 4, 5, 2048 * 512 * 2)
    lstamp(A, cfg, 1)
    issue_x(0)
    lstamp(A, cfg, 2)
    A(f"s_cmp_lt_u32 s{sPair}, 16")
    A(f"s_cselect_b32 s{sW}, s6, s12")
    A(f"s_cselect_b32 s{sW+1}, s7, s13")
    A(f"s_mov_b32 s{sW+2}, {hex(512*1536*2)}")
    A(f"s_mov_b32 s{sW+3}, 0x20000")
    A(f"s_and_b32 s{sWb_}, s{sPair}, 15")
    A(f"s_lshl_b32 s{sWb_}, s{sWb_}, 6")
    A(f"s_mul_i32 s{sT}, s{sRG}, 49152")
    A(f"s_add_u32 s{sWb_}, s{sWb_}, s{sT}")
    A("v_lshrrev_b32 v13, 2, v0")
    A("v_mul_u32_u24 v13, 3072, v13")
    A("v_and_b32 v14, 3, v0")
    A("v_lshl_add_u32 v10, v14, 4, v13")
    A("v_xor_b32 v11, 32, v10")
    issue_w(0)
    if cfg.spf and cfg.spfe:
        pf_setup()
        for c in range(2, 2 + cfg.spf): pf(c)
    if cfg.late1 == 1: A("s_waitcnt vmcnt(3)")
    if cfg.late1 == 2: A("s_waitcnt vmcnt(8)")
    if cfg.late1 == 3: A("s_waitcnt vmcnt(10)")
    issue(1)
    if cfg.spf and not cfg.spfe:
        pf_setup()
        for c in range(2, 2 + cfg.spf): pf(c)
    lstamp(A, cfg, 3)
    late_srds(A)
    p2_addr(A)
    p2_pre(A, False)
    A(f"v_mov_b32 v{vZ}, 1")
    for c in range(8):
        lstamp(A, cfg, 4 + 3*c)
        A(f"s_waitcnt vmcnt({0 if (cfg.c2c and c == 1) else ((11 if c < 7 else 0) if not (cfg.p1x & 2) else 0)})")
        lstamp(A, cfg, 5 + 3*c)
        A("s_barrier")
        lstamp(A, cfg, 6 + 3*c)
        if c == 0: stamp(A, cfg, 1)
        if cfg.p1pipe and c >= 1: A("s_barrier")
        if c <= 5 and not (cfg.p1x & 2) and not (cfg.c2c and c == 0):
            pf(c + 2 + cfg.spf)
            issue(c + 2)
        if c <= 5 and cfg.p1x & 4:
            for _ in range(0): pass
    p2_pre(A, True)
    consts(A, [SB, SC])
    A(f"v_add_u32 v104, {(SA - SB) % (1 << 32)}, v104")
    A("s_waitcnt lgkmcnt(0)")
    A(f"s_lshl_b32 s{sT+2}, s{sRG}, 11")
    A(f"s_add_u32 s{sT+2}, s{sT+2}, {QX}")
    A(f"v_add_u32 v4, s{sT+2}, v{vL16}")
    A("s_barrier")
    if cfg.epist: A("s_endpgm")
    A(F1LOAD)
    A("ds_read_b128 v[8:11], v4")
    A("ds_read_b128 v[12:15], v4 offset:1024")
    A("s_mov_b64 exec, 0xffff")
    A("ds_write_b128 v104, v[108:111] offset:2048")
    A("ds_write_b128 v104, v[112:115] offset:2064")
    A("s_mov_b64 exec, -1")

vKf, vV0f, vV1f = 16, 20, 24
S_, O_, P_ = [32, 48], [64, 80], 96
M32 = "v_mfma_f32_32x32x16_bf16"
def slot_base(i): return (SB, SC, SA)[i % 3]

def p2_setup(A, cfg):
    A(f"buffer_load_dword v{vGF[0]}, v{vGA}, s[{sWS}:{sWS+3}], s{sGo} offen sc1")
    A(f"buffer_load_dword v{vGF[1]}, v{vGA}, s[{sWS}:{sWS+3}], s{sGo} offen offset:128 sc1")

def p2_pre(A, own_temps):
    if not own_temps:
        A(f"v_and_b32 v{vGA}, 31, v0")
        A(f"v_lshlrev_b32 v{vGA}, 2, v{vGA}")
        A(f"s_lshl_b32 s{sGo}, s{sSlab}, 10")
        A(f"s_lshl_b32 s{sT+1}, s{sRG}, 8")
        A(f"s_add_u32 s{sGo}, s{sGo}, s{sT+1}")
        A(f"s_add_u32 s{sGo}, s{sGo}, {WS_G}")
        for i in range(4): A(f"v_mov_b32 v{vFill+i}, -1")
        A(f"v_and_b32 v{vZA}, 1, v0")
        A(f"v_lshlrev_b32 v{vZA}, 7, v{vZA}")
        A(f"v_mov_b32 v{vZ2}, 128")
        return
    A(f"s_lshl_b32 s{sCH}, s{sPair}, 18")
    A(f"s_lshl_b32 s{sT+1}, s{sWave}, 12")
    A(f"s_add_u32 s{sCH}, s{sCH}, s{sT+1}")
    A(f"s_mul_i32 s{sMB}, s{sWave}, {2*REC}")
    A(f"s_lshl_b32 s{sWoG}, s{sWave}, 13")
    A(f"s_lshl_b32 s{sT+1}, s{sC3}, 7")
    A(f"s_add_u32 s{sWoG}, s{sWoG}, s{sT+1}")
    A(f"s_lshl_b32 s{sWoM}, s{sWave}, 10")

def kv_setup(i):
    return [f"s_add_u32 s{sCO}, s{sSlab}, {i}", f"s_and_b32 s{sCO}, s{sCO}, 7",
            f"s_lshl_b32 s{sCO}, s{sCO}, 15", f"s_add_u32 s{sCO}, s{sCO}, s{sCH}"]
def kv_jobs(i, other=False):
    base = slot_base(i) - (HSTR if other else 0)
    ld = lambda o: f"buffer_load_dwordx4 v{vL16}, s[{sWS}:{sWS+3}], s{sCO} offen offset:{o} sc1 lds"
    return [[f"s_add_u32 m0, s{sMB}, {base}", "s_nop 0", ld(0)], [ld(1024)],
            [f"s_add_u32 m0, s{sMB}, {base + REC - 2048}", "s_nop 0", ld(2048)], [ld(3072)]]
def wo_job(j):
    srd_ = sWOA if j < 8 else sWOB
    return [f"s_add_u32 m0, s{sWoM}, {WO + j*8192}", f"s_add_u32 s{sJ}, s{sWoG}, {(j&7)*65536}",
            f"buffer_load_dwordx4 v{vWoD}, s[{srd_}:{srd_+3}], s{sJ} offen lds"]

def rd(kind, i, t):
    if t == 8: i, t = i + 1, 0
    hi = slot_base(i) == SC
    imm = (0 if hi else slot_base(i)) + t * REC
    if kind == 'K': return f"ds_read_b128 {v(vKf,4)}, v{vKH if hi else vKL} offset:{imm}"
    if kind == 'V0': return f"ds_read_b128 {v(vV0f,4)}, v{vV0H if hi else vV0L} offset:{imm}"
    return f"ds_read_b128 {v(vV1f,4)}, v{vV1H if hi else vV1L} offset:{imm}"

def unit(A, q, first, last, slotA, slotB, slotC, first_o, order=0):
    S, Sn, O, Op = S_[q], S_[q ^ 1], O_[q], O_[q ^ 1]
    e = lambda i: A(f"v_exp_f32 v{S+i}, v{S+i}")
    c = lambda i: A(f"v_cvt_pk_bf16_f32 v{P_+i}, v{S+2*i}, v{S+2*i+1}")
    def run(sl):
        for x in sl:
            if callable(x): x(A)
            else: A(x)
    e(0)
    if not first: A(f"v_cvt_pk_bf16_f32 v{P_+7}, v{Sn+14}, v{Sn+15}")
    e(1); e(2)
    if not first: A(f"{M32} {v(Op,16)}, {v(vV1f,4)}, {v(P_+4,4)}, {v(Op,16)}")
    run(slotA)
    qk = lambda: None if last else A(f"{M32} {v(Sn,16)}, {v(vKf,4)}, {v(vQ[q^1],4)}, 0")
    pv = lambda: A(f"{M32} {v(O,16)}, {v(vV0f,4)}, {v(P_,4)}, {'0' if first_o else v(O,16)}")
    if order == 0:
        c(0); e(3); e(4); c(1); e(5); e(6)
        qk(); run(slotB)
        c(2); e(7); e(8); c(3); e(9); e(10)
        pv(); run(slotC)
        c(4); e(11); e(12); c(5); e(13); e(14); c(6); e(15)
    elif order == 1:
        c(0); e(3); e(4); c(1); e(5); e(6); c(2); e(7)
        qk(); run(slotB)
        e(8); c(3); e(9); e(10); c(4); e(11); e(12)
        pv(); run(slotC)
        c(5); e(13); e(14); c(6); e(15)
    elif order == 2:
        c(0); e(3); e(4)
        qk(); run(slotB)
        c(1); e(5); e(6); c(2); e(7); e(8); c(3); e(9); e(10)
        pv(); run(slotC)
        c(4); e(11); e(12); c(5); e(13); e(14); c(6); e(15)

def p2_main(A, cfg):
    A.c("---- phase 2: attention.  P = exp2(S) with no shift; the row sums ride in the PV MFMA (ones rows);")
    A.c("     they are range-checked afterwards and the true-max path redoes the wave when they are out of range")
    jobs = {}; jobs0 = {}
    def add(i, t, xs): jobs.setdefault((i, t), []).extend(xs)
    for i in range(8):
        if cfg.prio == 1:
            for t, pr in ((1, 2), (3, 1), (5, 0), (7, 3)): add(i, t, [f"s_setprio {pr}"])
        if cfg.prio == 2:
            for t, pr in ((0, 2), (2, 1), (5, 0), (7, 3)): add(i, t, [f"s_setprio {pr}"])
        if cfg.prio == 3:
            for t, pr in ((2, 2), (4, 1), (6, 0), (7, 3)): add(i, t, [f"s_setprio {pr}"])
        if cfg.prio >= 100:
            pp = cfg.prio0 if i == 0 else cfg.prio
            drops = [(pp >> 8) & 15, (pp >> 4) & 15, pp & 15]
            for u, pr in zip(drops, (2, 1, 0)):
                if u & 1: add(i, u >> 1, [f"s_setprio {pr}"])
                else: jobs0.setdefault((i, u >> 1), []).append(f"s_setprio {pr}")
            add(i, 7, ["s_setprio 3"])
    def first_chunks(i, nm):
        def f(A):
            A(f"s_cmp_lt_u32 s{sWave}, 4")
            A(f"s_cbranch_scc1 L_skip_{nm}")
            if i == 1:
                lstamp(A, cfg, 48)
                spin(A, "f1", F1LOAD, vPoll, 1)
                lstamp(A, cfg, 49)
            for x in kv_setup(i): A(x)
            for job in kv_jobs(i):
                for x in job: A(x)
            A(f"s_sub_u32 s{sCO}, s{sCO}, 16384")
            for job in kv_jobs(i, True):
                for x in job: A(x)
            A(f"L_skip_{nm}:")
        return f
    add(0, cfg.t_poll, [first_chunks(1, "c1")])
    add(0, cfg.t_poll + 2, [first_chunks(2, "c2")])
    add(0, 6, [lambda A: lstamp(A, cfg, 50), "s_waitcnt vmcnt(8)", lambda A: lstamp(A, cfg, 51), "s_barrier", lambda A: lstamp(A, cfg, 52)])
    for i in range(8): add(i, 7, ["s_waitcnt vmcnt(0)", "s_barrier"])
    for i in range(1, 6):
        J = kv_jobs(i + 2)
        add(i, 0, kv_setup(i + 2) + J[0]); add(i, 1, J[1]); add(i, 2, J[2]); add(i, 3, J[3])
    wo = {1: [9, 10], 2: [11, 12], 3: [13, 14]}
    for i, js in wo.items():
        for n, j in enumerate(js): add(i, 4 + n, wo_job(j))
    Z2LOAD = f"buffer_load_dword v{vZ2}, v{vZA}, s[{sDBG}:{sDBG+3}], 0 offen offset:4 sc1"
    add(1, 6, [f"buffer_store_dwordx4 v[{vFill}:{vFill+3}], v{vL16}, s[{sWS}:{sWS+3}], s{sOst} offen sc1", f"s_add_u32 s{sJ}, s{sOst}, 65536",
               f"buffer_store_dwordx4 v[{vFill}:{vFill+3}], v{vL16}, s[{sWS}:{sWS+3}], s{sJ} offen sc1"])
    def setwait(i, n):
        k = jobs[(i, 7)].index("s_waitcnt vmcnt(0)")
        if n is None: del jobs[(i, 7)][k]
        else: jobs[(i, 7)][k] = f"s_waitcnt vmcnt({n})"
    setwait(1, 4); setwait(2, 2); setwait(3, 2); setwait(6, None)
    if cfg.tailbar:
        jobs[(7, 7)].remove("s_waitcnt vmcnt(0)"); jobs[(7, 7)].remove("s_barrier")
    jobs[(3, 0)][0:0] = [f"s_cmp_lg_u32 s{sWave}, 0", "s_cbranch_scc1 L_noz2c", f"s_and_b32 s{sJ}, s2, 1", f"s_lshl_b32 s{sJ}, s{sJ}, 7",
               "s_mov_b64 exec, 1", f"buffer_atomic_add v{vZ}, off, s[{sDBG}:{sDBG+3}], s{sJ} offset:4", "s_mov_b64 exec, -1", "L_noz2c:"]
    jobs[(5, 0)][0:0] = [f"s_cmp_eq_u32 s{sWave}, 0", "s_cselect_b32 exec_lo, 3, 0", "s_mov_b32 exec_hi, 0", Z2LOAD, "s_mov_b64 exec, -1"]
    jobs[(5, 7)][-1:-1] = [f"s_movk_i32 s{sJ}, 128", lambda A: spin(A, "z2", Z2LOAD, vZ2, f"s{sJ}", "gt")]
    for n, j in enumerate([0, 1, 2, 3]): add(6, n, wo_job(j))
    for n, j in enumerate([4, 5, 6, 7, 8, 15]): add(7, n, wo_job(j))
    if cfg.align: A(f".p2align {cfg.align}, 0xbf800000" if False else f".p2alignl {cfg.align}, 0xbf800000")
    for _ in range(cfg.shift): A("s_nop 0")
    A(rd('K', 0, 0)); A(rd('V0', 0, 0))
    A("s_waitcnt lgkmcnt(1)")
    if cfg.prio: A("s_setprio 3")
    A(f"{M32} {v(S_[0],16)}, {v(vKf,4)}, {v(vQ[0],4)}, 0")
    A("s_nop 7"); A("s_nop 3")
    for i in range(8):
        for t in range(8):
            first = (i == 0 and t == 0); lastt = (i == 7 and t == 7)
            sA = [rd('V1', i, t)]
            sB = ["s_waitcnt lgkmcnt(1)"] + jobs0.get((i, t), []) + ([] if lastt else [rd('K', i, t + 1)])
            sC = ["s_waitcnt lgkmcnt(0)" if lastt else "s_waitcnt lgkmcnt(1)"]
            unit(A, 0, first, False, sA, sB, sC, first, cfg.order)
            sA = ["s_waitcnt lgkmcnt(0)"]
            sB = list(jobs.get((i, t), []))
            sC = [] if lastt else [rd('V0', i, t + 1)]
            unit(A, 1, False, lastt, sA, sB, sC, first, cfg.order)
        if i == 0: stamp(A, cfg, 4)
        if i < 7: lstamp(A, cfg, 29 + i)
    A("s_nop 0")
    A(f"v_cvt_pk_bf16_f32 v{P_+7}, v{S_[1]+14}, v{S_[1]+15}")
    A("s_nop 1")
    A(f"{M32} {v(O_[1],16)}, {v(vV1f,4)}, {v(P_+4,4)}, {v(O_[1],16)}")

def p2_check(A, cfg):
    if not cfg.slow: return
    A(f"s_mov_b32 s{sT+2}, {fbits(2.0**-24)}")
    A(f"s_mov_b32 s{sT+3}, {fbits(2.0**64)}")
    A(f"s_mov_b32 s{sT+4}, 0x7f800000")
    A("s_mov_b64 s[68:69], 0")
    for q in (0, 1):
        O = O_[q]
        if q == 1: A("s_nop 1")
        A(f"v_add_f32 v104, |v{O}|, |v{O+1}|")
        A(f"v_add_f32 v105, |v{O+2}|, |v{O+3}|")
        A(f"v_add_f32 v106, |v{O+4}|, |v{O+5}|")
        A(f"v_add_f32 v107, |v{O+6}|, |v{O+7}|")
        A(f"v_add_f32 v104, v104, v105")
        A(f"v_add_f32 v106, v106, v107")
        A(f"v_add_f32 v104, v104, v106")
        A(f"v_cmp_nle_f32 vcc, s{sT+2}, v{O+8}")
        A(f"s_or_b64 s[68:69], s[68:69], vcc")
        A(f"v_cmp_nge_f32 vcc, s{sT+3}, v{O+8}")
        A(f"s_or_b64 s[68:69], s[68:69], vcc")
        A(f"v_cmp_ngt_f32 vcc, s{sT+4}, v104")
        A(f"s_or_b64 s[68:69], s[68:69], vcc")
    if cfg.force_slow: A("s_mov_b64 s[68:69], -1")
    A("s_cmp_lg_u64 s[68:69], 0")
    A("s_cbranch_scc1 L_slow")
    A("L_slow_ret:")
    T = Asm()
    T("L_slow:")
    T.c("true-max (online softmax) path, wave-local, K/V fragments straight from the workspace")
    m_, al = [104, 105], 106
    T(f"s_lshl_b32 s{sT}, s{sPair}, 18")
    T(f"s_lshr_b32 s{sT+1}, s{sWave}, 2")
    T(f"s_lshl_b32 s{sT+1}, s{sT+1}, 14")
    T(f"s_add_u32 s{sT}, s{sT}, s{sT+1}")
    T("v_lshrrev_b32 v108, 5, v0")
    T("v_and_b32 v109, 15, v0")
    T("v_lshlrev_b32 v109, 4, v109")
    T("v_lshl_add_u32 v109, v108, 8, v109")
    T("v_and_b32 v108, 11, v0")
    T("v_cmp_eq_u32 vcc, 0, v108")
    T("v_mov_b32 v110, 0")
    T("v_mov_b32 v111, 0x3f803f80")
    T("v_cndmask_b32 v110, v110, v111, vcc")
    for i in range(8): T(f"v_mov_b32 v{vV0f+i}, v110")
    for q in (0, 1):
        T(f"v_mov_b32 v{m_[q]}, 0xff800000")
        for i in range(16): T(f"v_mov_b32 v{O_[q]+i}, 0")
    T(f"s_mov_b32 s{sT+2}, 0")
    T("L_slow_loop:")
    T(f"s_lshr_b32 s{sT+3}, s{sT+2}, 3")
    T(f"s_lshl_b32 s{sT+3}, s{sT+3}, 15")
    T(f"s_and_b32 s{sT+4}, s{sT+2}, 7")
    T(f"s_lshl_b32 s{sT+4}, s{sT+4}, 11")
    T(f"s_add_u32 s{sT+3}, s{sT+3}, s{sT+4}")
    T(f"s_add_u32 s{sT+3}, s{sT+3}, s{sT}")
    T(f"buffer_load_dwordx4 {v(vKf,4)}, v{vL16}, s[{sWS}:{sWS+3}], s{sT+3} offen sc1")
    T("s_mov_b32 exec_lo, 0xffff")
    T("s_mov_b32 exec_hi, 0xffff")
    T(f"buffer_load_dwordx4 {v(vV0f,4)}, v109, s[{sWS}:{sWS+3}], s{sT+3} offen offset:1024 sc1")
    T(f"buffer_load_dwordx4 {v(vV1f,4)}, v109, s[{sWS}:{sWS+3}], s{sT+3} offen offset:1536 sc1")
    T("s_mov_b64 exec, -1")
    T("s_waitcnt vmcnt(0)")
    for q in (0, 1):
        S, O, m = S_[q], O_[q], m_[q]
        T(f"{M32} {v(S,16)}, {v(vKf,4)}, {v(vQ[q],4)}, 0")
        T("s_nop 15"); T("s_nop 3")
        T(f"v_max3_f32 v107, v{S}, v{S+1}, v{m}")
        for i in range(1, 8): T(f"v_max3_f32 v107, v{S+2*i}, v{S+2*i+1}, v107")
        T("v_mov_b32 v108, v107")
        T("s_nop 1")
        T("v_permlane32_swap_b32 v107, v108")
        T("v_max_f32 v107, v107, v108")
        T(f"v_sub_f32 v{al}, v{m}, v107")
        T(f"v_exp_f32 v{al}, v{al}")
        T(f"v_mov_b32 v{m}, v107")
        for i in range(16): T(f"v_sub_f32 v{S+i}, v{S+i}, v107")
        for i in range(16): T(f"v_exp_f32 v{S+i}, v{S+i}")
        for i in range(9): T(f"v_mul_f32 v{O+i}, v{O+i}, v{al}")
        for i in range(8): T(f"v_cvt_pk_bf16_f32 v{P_+i}, v{S+2*i}, v{S+2*i+1}")
        T("s_nop 1")
        T(f"{M32} {v(O,16)}, {v(vV0f,4)}, {v(P_,4)}, {v(O,16)}")
        T(f"{M32} {v(O,16)}, {v(vV1f,4)}, {v(P_+4,4)}, {v(O,16)}")
        T("s_nop 15"); T("s_nop 3")
    T(f"s_add_u32 s{sT+2}, s{sT+2}, 1")
    T(f"s_cmp_lt_u32 s{sT+2}, 64")
    T("s_cbranch_scc1 L_slow_loop")
    T("s_branch L_slow_ret")
    tails.append(T)

def p2_epilogue(A, cfg):
    A.c("---- normalise (gate factor / row sum), round, publish O fragments (the data is its own ready flag:")
    A.c("     the slots were filled with 0xffffffff earlier in this launch and no published word has that value)")
    if cfg.nocheck == 2:
        A("s_sleep 64")
    A(f"s_add_u32 s{sJ}, s{sOst}, 65536")
    A(f"s_mov_b32 s{sT}, 0xfffffffe")
    for q in (0, 1): A(f"v_sub_f32 v{vGF[q]}, s{sGc}, v{vGF[q]}")
    for q in (0, 1): A(f"v_rcp_f32 v{104+2*q}, v{O_[q]+8}")
    for q in (0, 1):
        O = O_[q]
        A(f"v_mul_f32 v{104+2*q}, v{104+2*q}, |v{vGF[q]}|")
        A(f"v_mov_b32 v{105+2*q}, v{104+2*q}")
        for i in range(4): A(f"v_pk_mul_f32 {v(O+2*i,2)}, {v(O+2*i,2)}, {v(104+2*q,2)}")
        for i in range(4): A(f"v_cvt_pk_bf16_f32 v{108+4*q+i}, v{O+2*i}, v{O+2*i+1}")
        for i in range(4): A(f"v_min_u32 v{108+4*q+i}, s{sT}, v{108+4*q+i}")
        A(f"buffer_store_dwordx4 {v(108+4*q,4)}, v{vL16}, s[{sWS}:{sWS+3}], s{sOst if q == 0 else sJ} offen sc1")
    lstamp(A, cfg, 44)

OF, AC, WFR = 128, [32, 48], [64, 72, 80, 88]
PS = 272
def p3(A, cfg):
    A.c("---- phase 3: out tile 64x64 = [gA*OA | gB*OB] @ [WoA ; WoB]")
    LA = cfg.la
    ld = lambda hh, sc=" sc1": f"buffer_load_dwordx4 {v(OF+4*hh,4)}, v4, s[{sWS}:{sWS+3}], s{8+hh//4} offen offset:{(hh%4)*1024}{sc}"
    SC1 = {0: " sc1", 1: "", 2: " nt", 3: " sc0"}[cfg.bulk]
    def rdw(hh):
        F = WFR[hh % 4]
        return [f"ds_read_b64_tr_b16 {v(F,2)}, v2 offset:{hh*2048}", f"ds_read_b64_tr_b16 {v(F+2,2)}, v2 offset:{hh*2048+1024}",
                f"ds_read_b64_tr_b16 {v(F+4,2)}, v3 offset:{hh*2048}", f"ds_read_b64_tr_b16 {v(F+6,2)}, v3 offset:{hh*2048+1024}"]
    def addr():
        A("v_lshrrev_b32 v16, 5, v0")
        A("v_lshlrev_b32 v16, 2, v16")
        A("v_bfe_u32 v17, v0, 2, 2")
        A("v_add_u32 v16, v16, v17")
        A("v_lshlrev_b32 v16, 7, v16")
        A("v_bfe_u32 v17, v0, 4, 1")
        A("v_lshlrev_b32 v17, 1, v17")
        A("v_bfe_u32 v18, v0, 1, 1")
        A("v_add_u32 v17, v17, v18")
        A("v_bfe_u32 v18, v0, 3, 1")
        A("v_lshlrev_b32 v18, 2, v18")
        A("v_xor_b32 v17, v17, v18")
        A("v_lshl_add_u32 v16, v17, 4, v16")
        A("v_and_b32 v17, 1, v0")
        A("v_lshl_add_u32 v16, v17, 3, v16")
        A(f"s_lshr_b32 s{sT+4}, s{sWave}, 1")
        A(f"s_lshl_b32 s{sT+5}, s{sT+4}, 15")
        A(f"s_add_u32 s{sT+5}, s{sT+5}, {WO}")
        A(f"v_add_u32 v2, s{sT+5}, v16")
        A("v_xor_b32 v3, 64, v2")
        A("v_and_b32 v16, 31, v0")
        A(f"s_and_b32 s{sT}, s{sWave}, 1")
        A(f"s_lshl_b32 s{sT}, s{sT}, 5")
        A(f"s_lshl_b32 s{sT+1}, s{sT+4}, 6")
        A(f"s_add_u32 s{sT}, s{sT}, s{sT+1}")
        A(f"v_add_u32 v16, s{sT}, v16")
        A(f"v_mul_u32_u24 v16, {PS}, v16")
        A("v_lshrrev_b32 v17, 5, v0")
        A("v_lshl_add_u32 v6, v17, 4, v16")
        A("v_lshrrev_b32 v16, 3, v0")
        A(f"s_lshl_b32 s{sT}, s{sWave}, 3")
        A(f"v_add_u32 v16, s{sT}, v16")
        A(f"v_mul_u32_u24 v7, {PS}, v16")
        A("v_and_b32 v17, 7, v0")
        A("v_lshl_add_u32 v7, v17, 5, v7")
        A("v_lshlrev_b32 v16, 10, v16")
        A("v_lshl_add_u32 v8, v17, 4, v16")
    for i in range(4): A(f"s_add_u32 s{8+i}, s{sOld}, {4096*i}")
    A(f"s_mov_b32 s{sSpin}, {SPIN_MAX}")
    A(f"v_mov_b32 v4, v{vL16}")
    if cfg.nocheck == 3:
        A("s_sleep 80")
        stamp(A, cfg, 7)
    for hh in range(LA): A(ld(hh, SC1))
    addr()
    lstamp(A, cfg, 55)
    A(f"s_waitcnt vmcnt({2 + LA})")
    A("s_barrier")
    lstamp(A, cfg, 56)
    for x in rdw(0) + rdw(1): A(x)
    A.c("a fragment that still holds fill words is fetched again (with the ones behind it)")
    for hh in range(16):
        F = WFR[hh % 4]; o = OF + 4 * hh
        A(f"L_ostep{hh}:")
        A(f"s_waitcnt vmcnt({min(LA - 1, 15 - hh)})")
        A(f"v_max3_u32 v10, v{o}, v{o+1}, v{o+2}")
        A(f"v_max_u32 v10, v10, v{o+3}")
        A("v_cmp_eq_u32 vcc, -1, v10")
        A(f"s_waitcnt lgkmcnt({4 if hh < 15 else 0})")
        if not cfg.nocheck: A(f"s_cbranch_vccnz L_oretry{hh}")
        A(f"L_ogo{hh}:")
        A(f"{M32} {v(AC[0],16)}, {v(F,4)}, {v(o,4)}, {'0' if hh == 0 else v(AC[0],16)}")
        if hh + LA < 16: A(ld(hh + LA, SC1))
        R = rdw(hh + 2) if hh + 2 < 16 else []
        for x in R[:2]: A(x)
        A(f"{M32} {v(AC[1],16)}, {v(F+4,4)}, {v(o,4)}, {'0' if hh == 0 else v(AC[1],16)}")
        for x in R[2:]: A(x)
        T = Asm()
        T(f"L_oretry{hh}:")
        T(f"s_sub_u32 s{sSpin}, s{sSpin}, 1")
        T(f"s_cmp_gt_i32 s{sSpin}, 0")
        T(f"s_cbranch_scc0 L_ogo{hh}")
        T("s_waitcnt vmcnt(0)")
        if cfg.rsleep: T(f"s_sleep {cfg.rsleep}")
        for h2 in range(hh, min(16, hh + LA)): T(ld(h2))
        T(f"s_branch L_ostep{hh}")
        tails.append(T)
    stamp(A, cfg, 8)
    lstamp(A, cfg, 41)
    if cfg.stamps == 4:
        A(f"s_sub_u32 s80, {SPIN_MAX + 1000}, s{sSpin}")
        A("v_writelane_b32 v31, s80, 53")
    A("s_barrier")
    A("s_nop 7")
    A("s_nop 1")
    for rq in range(4):
        A(f"ds_write_b128 v6, {v(AC[0]+4*rq,4)} offset:{rq*32}")
    for rq in range(4):
        A(f"ds_write_b128 v6, {v(AC[1]+4*rq,4)} offset:{128 + rq*32}")
    A("s_waitcnt lgkmcnt(0)")
    lstamp(A, cfg, 42)
    A("s_barrier")
    lstamp(A, cfg, 43)
    for kq in range(4):
        A(f"ds_read_b128 {v(64+8*kq,4)}, v7 offset:{kq*64*PS}")
        A(f"ds_read_b128 {v(68+8*kq,4)}, v7 offset:{kq*64*PS+16}")
    A("s_waitcnt lgkmcnt(4)")
    for i in range(4): A(f"v_pk_add_f32 {v(64+2*i,2)}, {v(64+2*i,2)}, {v(72+2*i,2)}")
    A("s_waitcnt lgkmcnt(0)")
    for i in range(4): A(f"v_pk_add_f32 {v(80+2*i,2)}, {v(80+2*i,2)}, {v(88+2*i,2)}")
    for i in range(4): A(f"v_pk_add_f32 {v(64+2*i,2)}, {v(64+2*i,2)}, {v(80+2*i,2)}")
    for i in range(4): A(f"v_cvt_pk_bf16_f32 v{96+i}, v{64+2*i}, v{65+2*i}")
    A(f"buffer_store_dwordx4 v[96:99], v8, s[{sOUT}:{sOUT+3}], s{sOut} offen" + ["", " sc1", " nt", " sc0 sc1", " sc1 nt"][cfg.outsc])

def build(cfg):
    tails.clear()
    XSWAP[0] = cfg.xswap
    name = KN + "_kernel"
    A = Asm(); kernel_head(A, name)
    prologue(A, cfg)
    p1_compute(A, cfg)
    stamp(A, cfg, 2)
    lstamp(A, cfg, 27)
    p1_compute_epilogue(A, cfg)
    A("s_branch L_attn")
    A("L_loader:")
    p1_loader(A, cfg)
    stamp(A, cfg, 2)
    A("L_attn:")
    if cfg.dbl: A("s_memrealtime s[82:83]")
    stamp(A, cfg, 3)
    lstamp(A, cfg, 28)
    p2_setup(A, cfg)
    p2_main(A, cfg)
    stamp(A, cfg, 5)
    lstamp(A, cfg, 37)
    if cfg.dbl: A("s_memrealtime s[86:87]")
    p2_check(A, cfg)
    p2_epilogue(A, cfg)
    stamp(A, cfg, 6)
    p3(A, cfg)
    stamp_store(A, cfg, 9)
    if cfg.dbl:
        A("s_cmp_lg_u32 s2, 0")
        A("s_cbranch_scc1 L_end")
        A("s_waitcnt vmcnt(0)")
        A("s_memrealtime s[84:85]")
        A("s_waitcnt lgkmcnt(0)")
        a, b = {1: (80, 84), 2: (80, 82), 3: (82, 86), 4: (86, 84)}[cfg.dbl]
        A(f"s_sub_u32 s88, s{b}, s{a}")
        A("s_add_u32 s88, s88, s84")
        A("L_dbl:")
        A("s_memrealtime s[90:91]")
        A("s_waitcnt lgkmcnt(0)")
        A("s_sub_u32 s89, s90, s88")
        A("s_cmp_lt_i32 s89, 0")
        A("s_cbranch_scc1 L_dbl")
    A("L_end:")
    A("s_endpgm")
    txt = A.text() + "".join(t.text() for t in tails)
    hdr = f"""; gated dual multi-head attention block: one persistent launch, 256 workgroups (one per CU)
; @launch grid=(256,1,1) block=(512,1,1) lds={LDS_TOTAL}
.amdgcn_target "amdgcn-amd-amdhsa--gfx950"
"""
    return hdr + txt + kernel_desc(name, 256)

if __name__ == "__main__":
    import sys
    cfg = Cfg()
    for a in sys.argv[2:]:
        k_, v_ = a.split("=")
        setattr(cfg, k_, int(v_, 0))
    open(sys.argv[1], "w").write(build(cfg))
```

```python
from base import *
import math, struct

KN = "gated_mix__softmax_full_mha__mha_block__prompt"
sX, sW, sG, sWS, sWOA, sWOB, sOUT, sDBG = 24, 28, 32, 36, 40, 44, 48, 52
sWave, sSlab, sPair, sKC, sRG = 56, 57, 58, 59, 60
sSpin = 61
sT = 62
sXb, sXo, sWb_, sWo, sK2, sM = 70, 71, 72, 73, 74, 75
sCH, sCO, sMB, sWoG, sWoM, sJ = 70, 71, 72, 73, 74, 75
sS3, sR3, sC3, sF = 76, 77, 78, 79
WS_KV, WS_O, WS_F1, WS_F2, WS_ST, WS_SIZE = 0, 8 << 20, 12 << 20, (12 << 20) + 16384, 22 << 20, 24 << 20
WS_G = (12 << 20) + 32768
XS, WB, GW, QX, GV = 32768, 98304, 135168, 69632, 77824
XB = {0: 32768, 1: 0, 2: 65536}
SLOT, REC, HSTR = 33280, 2080, 16640
SA, SB, SC = 0, 33280, 130560
WO = 0
LDS_TOTAL = 163840
LOG2E = math.log2(math.e)
QSCALE = 0.25 * LOG2E
SPIN_MAX = 200000
def fbits(x): return hex(struct.unpack("<I", struct.pack("<f", x))[0])
vKL, vV0L, vV1L, vKH, vV0H, vV1H, vL16, vWoD, vPA, vPoll = range(240, 250)
vGF = [250, 251]
vZ = 252
vZA, vZ2 = 254, 255
vGA, vFill, sGo = 253, 232, 3
vIdx, vZero, vKP = 231, 236, 230
SM = "v_smfmac_f32_32x32x32_bf16"
sOst, sOld, sOut, sGc = 4, 5, 6, 7

class Cfg:
    lr = 2
    prio = 0x5AE
    p1prio = 1
    prio0 = 0x37B
    stamps = 0
    slow = 1
    force_slow = 0
    t_poll = 1
    dotmode = 4
    p1pipe = 0
    n_z = 21
    rot = 23
    tailbar = 1
    prog = 32
    bulk = 0
    early = 5
    la = 4
    sm = 1
    wfull = 0
    zearly = 0
    noz = 0
    n_add = 8
    wpf3 = 0
    prot = 0
    uni = 0
    c1c = 0
    t_c2 = 3
    c0st = 0
    pvswap = 0
    ones = 0
    xswap = 1
    nocheck = 0
    late1 = 0
    c2c = 0
    spf = 0
    spfe = 1
    spfw = 0
    p1x = 0
    dbl = 0
    order = 0
    align = 0
    shift = 0
    outsc = 3
    rsleep = 0
    ethr = 32
    spindepth = 0
    sspread = 1
    spinsleep = 0
    wpf2 = 0
    epi2 = 1
    wfirst = 0
    l2pf = 0
    pfoff = 0
    epist = 0
    t16 = 0
    wpf = 0

def stamp(A, cfg, i, force=False):
    if cfg.c0st and not force and i not in (0, 10): return
    if cfg.stamps in (1, 3): A(f"s_memrealtime s[{80+2*i}:{81+2*i}]")
    if cfg.stamps == 2: A(f"s_memtime s[{80+2*i}:{81+2*i}]")
def lstamp(A, cfg, i):
    if cfg.stamps == 4:
        A("s_memrealtime s[80:81]")
        A("s_waitcnt lgkmcnt(0)")
        A(f"v_writelane_b32 v31, s80, {i}")
def stamp_store(A, cfg, n):
    if not cfg.stamps: return
    if cfg.stamps == 4:
        A("s_waitcnt vmcnt(0)")
        lstamp(A, cfg, 40)
        A(f"s_lshl_b32 s{sT}, s2, 3")
        A(f"s_add_u32 s{sT}, s{sT}, s{sWave}")
        A(f"s_lshl_b32 s{sT}, s{sT}, 8")
        A(f"s_add_u32 s{sT}, s{sT}, {WS_ST}")
        A("v_lshlrev_b32 v1, 2, v0")
        A(f"buffer_store_dword v31, v1, s[{sWS}:{sWS+3}], s{sT} offen")
        return
    A("s_waitcnt vmcnt(0)")
    stamp(A, cfg, n)
    A("s_waitcnt lgkmcnt(0)")
    if cfg.stamps == 3:
        A("s_mov_b64 exec, 1")
        A(f"s_not_b32 s{sT}, s80")
        A(f"v_mov_b32 v2, s{sT}")
        A(f"buffer_atomic_umax v2, off, s[{sDBG}:{sDBG+3}], 0 offset:8")
        for i in range(n + 1):
            A(f"v_mov_b32 v{3+i}, s{80+2*i}")
            A(f"buffer_atomic_umax v{3+i}, off, s[{sDBG}:{sDBG+3}], 0 offset:{12+4*i}")
        return
    A(f"s_lshl_b32 s{sT}, s2, 3")
    A(f"s_add_u32 s{sT}, s{sT}, s{sWave}")
    A(f"s_lshl_b32 s{sT}, s{sT}, 6")
    A(f"s_add_u32 s{sT}, s{sT}, {WS_ST}")
    A("v_mov_b32 v1, 0")
    for i in range(n + 1):
        A(f"v_mov_b32 v2, s{80+2*i}")
        A(f"buffer_store_dword v2, v1, s[{sWS}:{sWS+3}], s{sT} offen offset:{4*i}")
        A("s_nop 1")

def prologue(A, cfg):
    if cfg.dbl: A("s_memrealtime s[80:81]")
    stamp(A, cfg, 0)
    if cfg.stamps == 4: A("v_mov_b32 v31, 0")
    lstamp(A, cfg, 0)
    A("s_cmp_ge_u32 s2, 256")
    A("s_cbranch_scc1 L_end")
    A("s_load_dwordx16 s[4:19], s[0:1], 0")
    A("s_load_dwordx4 s[20:23], s[0:1], 64")
    A("v_lshrrev_b32 v1, 6, v0")
    A("v_and_b32 v0, 63, v0")
    A(f"v_readfirstlane_b32 s{sWave}, v1")
    lr = cfg.lr
    A(f"s_and_b32 s{sT}, s2, {(8 >> lr) - 1}")
    A(f"s_lshl_b32 s{sT}, s{sT}, {lr}")
    A(f"s_lshr_b32 s{sT+1}, s2, 3")
    A(f"s_and_b32 s{sT+2}, s{sT+1}, {(1 << lr) - 1}")
    A(f"s_or_b32 s{sSlab}, s{sT}, s{sT+2}")
    A(f"s_and_b32 s{sT}, s2, 7")
    A(f"s_lshr_b32 s{sT}, s{sT}, {3 - lr}")
    A(f"s_lshl_b32 s{sT}, s{sT}, {5 - lr}")
    A(f"s_lshr_b32 s{sT+1}, s{sT+1}, {lr}")
    if cfg.prot:
        A(f"s_add_u32 s{sT+1}, s{sT+1}, {cfg.prot}")
        A(f"s_and_b32 s{sT+1}, s{sT+1}, {(32 >> lr) - 1}")
    A(f"s_add_u32 s{sPair}, s{sT}, s{sT+1}")
    if cfg.rot == 0:
        A(f"s_add_u32 s{sKC}, s{sPair}, s{sSlab}")
    elif cfg.rot == 1:
        A(f"s_lshl_b32 s{sKC}, s{sSlab}, 1")
        A(f"s_add_u32 s{sKC}, s{sKC}, s{sPair}")
    elif cfg.rot == 2:
        A(f"s_and_b32 s{sKC}, s2, 6")
        A(f"s_and_b32 s{sT}, s2, 1")
        A(f"s_lshl_b32 s{sT}, s{sT}, 2")
        A(f"s_add_u32 s{sKC}, s{sKC}, s{sT}")
    elif cfg.rot == 3:
        A(f"s_mov_b32 s{sKC}, 0")
    elif cfg.rot == 4:
        A(f"s_and_b32 s{sKC}, s2, 6")
        A(f"s_add_u32 s{sT}, s{sPair}, s{sSlab}")
        A(f"s_and_b32 s{sT}, s{sT}, 1")
        A(f"s_lshl_b32 s{sT}, s{sT}, 2")
        A(f"s_add_u32 s{sKC}, s{sKC}, s{sT}")
    elif cfg.rot == 5:
        A(f"s_add_u32 s{sT}, s{sPair}, s{sSlab}")
        A(f"s_and_b32 s{sT}, s{sT}, 3")
        A(f"s_lshl_b32 s{sT}, s{sT}, 1")
        A(f"s_and_b32 s{sKC}, s2, 1")
        A(f"s_add_u32 s{sKC}, s{sKC}, s{sT}")
    elif cfg.rot == 6:
        A(f"s_bfe_u32 s{sKC}, s2, 0x20001")
        A(f"s_add_u32 s{sT}, s{sPair}, s{sSlab}")
        A(f"s_and_b32 s{sT}, s{sT}, 1")
        A(f"s_lshl_b32 s{sT}, s{sT}, 2")
        A(f"s_add_u32 s{sKC}, s{sKC}, s{sT}")
    elif cfg.rot == 7:
        A(f"s_add_u32 s{sT}, s{sPair}, s{sSlab}")
        A(f"s_and_b32 s{sT}, s{sT}, 1")
        A(f"s_lshl_b32 s{sKC}, s{sT}, 2")
    elif cfg.rot == 8:
        A(f"s_and_b32 s{sKC}, s2, 6")
        A(f"s_add_u32 s{sT}, s{sPair}, s{sSlab}")
        A(f"s_and_b32 s{sT}, s{sT}, 1")
        A(f"s_lshl_b32 s{sT}, s{sT}, 1")
        A(f"s_add_u32 s{sKC}, s{sKC}, s{sT}")
    elif cfg.rot == 9:
        A(f"s_and_b32 s{sKC}, s2, 3")
        A(f"s_add_u32 s{sT}, s{sPair}, s{sSlab}")
        A(f"s_and_b32 s{sT}, s{sT}, 1")
        A(f"s_lshl_b32 s{sT}, s{sT}, 2")
        A(f"s_add_u32 s{sKC}, s{sKC}, s{sT}")
    elif cfg.rot in (16, 17, 18) or cfg.rot >= 19:
        pass
    elif cfg.rot in (10, 11, 13, 14, 15):
        if cfg.rot in (10, 11): A(f"s_add_u32 s{sT}, s{sPair}, s{sSlab}")
        elif cfg.rot == 13: A(f"s_mov_b32 s{sT}, s{sSlab}")
        elif cfg.rot == 14: A(f"s_mov_b32 s{sT}, s{sPair}")
        elif cfg.rot == 15:
            A(f"s_lshr_b32 s{sT}, s{sPair}, 1")
            A(f"s_add_u32 s{sT}, s{sT}, s{sSlab}")
        A(f"s_and_b32 s{sT}, s{sT}, 3")
        A(f"s_lshl_b32 s{sT}, s{sT}, 1")
        if cfg.rot == 10: A(f"s_bfe_u32 s{sKC}, s2, 0x10001")
        elif cfg.rot == 11: A(f"s_mov_b32 s{sKC}, 0")
        else: A(f"s_and_b32 s{sKC}, s2, 1")
        A(f"s_add_u32 s{sKC}, s{sKC}, s{sT}")
    if cfg.rot not in (16, 17, 18) and cfg.rot < 19: A(f"s_and_b32 s{sKC}, s{sKC}, 7")
    A(f"s_and_b32 s{sRG}, s{sWave}, 3")
    A(f"s_cmp_ge_u32 s{sWave}, 4")
    A("s_cbranch_scc1 L_loader")

XSWAP = [0]
PVSWAP = [0]
SMUSE = [0]
ONES = [0]
def late_srds(A):
    srd(A, sWS, 22, 23, WS_SIZE)
    srd(A, sWOA, 8, 9, 512 * 512 * 2)
    srd(A, sWOB, 14, 15, 512 * 512 * 2)
    srd(A, sOUT, 18, 19, 2048 * 512 * 2)
    srd(A, sDBG, 20, 21, 256)
    if XSWAP[0]:
        A.c("output slab: one this XCD group does not produce itself (speed only)")
        A(f"s_bfe_u32 s{sS3}, s2, 0x20001")
        A(f"s_andn2_b32 s{sR3}, 1, s2")
        A(f"s_lshl_b32 s{sR3}, s{sR3}, 2")
        A(f"s_add_u32 s{sS3}, s{sS3}, s{sR3}")
    else:
        A(f"s_and_b32 s{sS3}, s2, 7")
    A(f"s_bfe_u32 s{sR3}, s2, 0x20003")
    A(f"s_lshr_b32 s{sC3}, s2, 5")
    A(f"s_lshl_b32 s{sF}, s{sPair}, 2")
    A(f"s_add_u32 s{sF}, s{sF}, s{sRG}")
    A(f"s_lshl_b32 s{sF}, s{sF}, 7")
    A(f"s_add_u32 s{sF}, s{sF}, {WS_F1}")
    A.c("scalars of the tail (s4..s7: their pointers are dead by now)")
    A(f"s_lshl_b32 s{sT}, s{sSlab}, 2")
    A(f"s_add_u32 s{sT}, s{sT}, s{sRG}")
    A(f"s_lshl_b32 s{sT}, s{sT}, 17")
    A(f"s_lshl_b32 s{sT+1}, s{sPair}, 1")
    A(f"s_lshr_b32 s{sT+2}, s{sWave}, 2")
    A(f"s_add_u32 s{sT+1}, s{sT+1}, s{sT+2}")
    A(f"s_lshl_b32 s{sT+1}, s{sT+1}, 10")
    A(f"s_add_u32 s{sT}, s{sT}, s{sT+1}")
    A(f"s_add_u32 s{sOst}, s{sT}, {WS_O}")
    A(f"s_lshl_b32 s{sT}, s{sS3}, 3")
    A(f"s_lshl_b32 s{sT+1}, s{sR3}, 1")
    A(f"s_add_u32 s{sT}, s{sT}, s{sT+1}")
    A(f"s_and_b32 s{sT+1}, s{sWave}, 1")
    A(f"s_add_u32 s{sT}, s{sT}, s{sT+1}")
    A(f"s_lshl_b32 s{sT}, s{sT}, 16")
    A(f"s_lshr_b32 s{sT+1}, s{sWave}, 1")
    A(f"s_lshl_b32 s{sT+1}, s{sT+1}, 14")
    A(f"s_add_u32 s{sT}, s{sT}, s{sT+1}")
    A(f"s_add_u32 s{sOld}, s{sT}, {WS_O}")
    A(f"s_lshl_b32 s{sT}, s{sS3}, 8")
    A(f"s_lshl_b32 s{sT+1}, s{sR3}, 6")
    A(f"s_add_u32 s{sT}, s{sT}, s{sT+1}")
    A(f"s_lshl_b32 s{sT}, s{sT}, 10")
    A(f"s_lshl_b32 s{sT+1}, s{sC3}, 7")
    A(f"s_add_u32 s{sOut}, s{sT}, s{sT+1}")
    A(f"s_lshr_b32 s{sGc}, s{sPair}, 4")
    A(f"s_mul_i32 s{sGc}, s{sGc}, 0x3f800000")

def xfrag_addr(A, L, H, t):
    A(f"v_and_b32 v{t}, 31, v0")
    A(f"v_lshrrev_b32 v{t+1}, 5, v0")
    A(f"v_bfe_u32 v{t+2}, v0, 1, 3")
    A(f"v_xor_b32 v{t+2}, v{t+2}, v{t+1}")
    A(f"v_lshlrev_b32 v{t}, 7, v{t}")
    A(f"s_lshl_b32 s{sT}, s{sRG}, 13")
    A(f"v_add_u32 v{t}, s{sT}, v{t}")
    for j in range(4):
        A(f"v_xor_b32 v{t+1}, {2*j}, v{t+2}")
        A(f"v_lshl_add_u32 v{L[j]}, v{t+1}, 4, v{t}")
        A(f"v_add_u32 v{H[j]}, 0x10000, v{L[j]}")

def p2_addr(A):
    A(f"v_lshlrev_b32 v{vL16}, 4, v0")
    A(f"s_lshr_b32 s{sT}, s{sWave}, 2")
    A(f"s_mul_i32 s{sT}, s{sT}, {HSTR}")
    A(f"v_add_u32 v{vKL}, s{sT}, v{vL16}")
    A("v_lshrrev_b32 v104, 5, v0")
    A("v_and_b32 v105, 15, v0")
    A("v_lshlrev_b32 v105, 4, v105")
    A("v_lshl_add_u32 v105, v104, 8, v105")
    A("v_add_u32 v105, 1024, v105")
    A("v_add_u32 v106, 512, v105")
    A("v_and_b32 v104, 11, v0")
    A("v_cmp_eq_u32 vcc, 0, v104")
    A("v_mov_b32 v107, " + ("2048" if ONES[0] == 1 else "2064"))
    A("v_mov_b32 v108, " + ("2064" if ONES[0] == 2 else "2048"))
    A("v_cndmask_b32 v107, v107, v108, vcc")
    A("v_and_b32 v104, 16, v0")
    A("v_cmp_eq_u32 vcc, 0, v104")
    A("s_nop 1")
    A("v_cndmask_b32 v105, v107, v105, vcc")
    A("v_cndmask_b32 v106, v107, v106, vcc")
    A(f"v_add_u32 v{vV0L}, s{sT}, v105")
    A(f"v_add_u32 v{vV1L}, s{sT}, v106")
    A(f"v_add_u32 v{vKH}, {SC}, v{vKL}")
    A(f"v_add_u32 v{vV0H}, {SC}, v{vV0L}")
    A(f"v_add_u32 v{vV1H}, {SC}, v{vV1L}")
    A("v_lshrrev_b32 v104, 3, v0")
    A("v_lshlrev_b32 v104, 10, v104")
    A("v_and_b32 v105, 7, v0")
    A(f"v_lshlrev_b32 v{vPA}, 2, v105")
    A("v_bfe_u32 v106, v0, 4, 1")
    A("v_lshlrev_b32 v106, 2, v106")
    A("v_xor_b32 v105, v105, v106")
    A(f"v_lshl_add_u32 v{vWoD}, v105, 4, v104")

def consts(A, slots):
    A("v_lshrrev_b32 v104, 4, v0")
    A(f"v_mul_u32_u24 v104, {slots[-1] - slots[0]}, v104")
    A("v_and_b32 v105, 15, v0")
    A(f"v_mul_u32_u24 v105, {REC}, v105")
    A("v_add_u32 v104, v104, v105")
    if slots[0]: A(f"v_add_u32 v104, {slots[0]}, v104")
    for i in range(4):
        A(f"v_mov_b32 v{108+i}, 0x3f803f80")
        A(f"v_mov_b32 v{112+i}, 0")
    n = 16 * len(slots)
    A(f"s_mov_b32 exec_lo, {hex((1 << min(n,32)) - 1)}")
    A(f"s_mov_b32 exec_hi, {hex((1 << max(n-32,0)) - 1)}")
    A("ds_write_b128 v104, v[108:111] offset:2048")
    A("ds_write_b128 v104, v[112:115] offset:2064")
    A("s_mov_b64 exec, -1")

tails = []
def spin(A, name, load, reg, val, cmp="ne", sleep=0, depth=0):
    A("s_waitcnt vmcnt(0)")
    A(f"v_cmp_{cmp}_u32 vcc, {val}, v{reg}")
    A("s_nop 0")
    A(f"s_cbranch_vccnz L_spin_{name}")
    A(f"L_ret_{name}:")
    T = Asm()
    T(f"L_spin_{name}:")
    T(f"s_mov_b32 s{sSpin}, {SPIN_MAX}")
    for _ in range(depth):
        T(load)
        if sleep: T(f"s_sleep {sleep}")
    T(f"L_spinl_{name}:")
    if sleep: T(f"s_sleep {sleep}")
    T(load)
    T(f"s_sub_u32 s{sSpin}, s{sSpin}, 1")
    T(f"s_cbranch_scc1 L_ret_{name}")
    T(f"s_waitcnt vmcnt({depth})")
    T(f"v_cmp_{cmp}_u32 vcc, {val}, v{reg}")
    T("s_nop 0")
    T(f"s_cbranch_vccnz L_spinl_{name}")
    T(f"s_branch L_ret_{name}")
    tails.append(T)

vXL, vXH = [2, 3, 4, 5], [6, 7, 8, 9]
vWa, vWb, vWv = 10, 11, 12
ACC = dict(QKa0=32, QKa1=48, QKb0=64, QKb1=80, VV0=96, VV1=112)
FR = [128, 148]
vQ = [8, 12]
F1LOAD = f"buffer_load_dword v{vPoll}, v{vPA}, s[{sWS}:{sWS+3}], s{sF} offen sc1"
SAMPLE = f"buffer_load_dword v28, v5, s[{sWS}:{sWS+3}], s{sOld} offen sc1"
ZLOAD = f"buffer_load_dword v{vZ}, v{vPoll}, s[{sDBG}:{sDBG+3}], 0 offen sc1"

def l2_prefetch(A, cfg):
    assert cfg.lr == 2
    A(f"s_cmp_lt_u32 s{sPair}, 16")
    A(f"s_cselect_b32 s{sW}, s6, s12")
    A(f"s_cselect_b32 s{sW+1}, s7, s13")
    A(f"s_mov_b32 s{sW+2}, {hex(512*1536*2)}")
    A(f"s_mov_b32 s{sW+3}, 0x20000")
    A(f"s_lshl_b32 s{sT}, s{sWave}, 1")
    A(f"s_add_u32 s{sT}, s{sT}, s{sKC}")
    A(f"s_add_u32 s{sT}, s{sT}, {cfg.pfoff}")
    A("v_lshrrev_b32 v46, 5, v0")
    A(f"v_add_u32 v46, s{sT}, v46")
    A("v_and_b32 v46, 7, v46")
    A("v_and_b32 v47, 31, v0")
    A(f"s_lshr_b32 s{sT+1}, s2, 3")
    A(f"s_and_b32 s{sT+2}, s2, 1")
    A(f"s_lshl_b32 s{sT+2}, s{sT+2}, 20")
    A(f"s_lshl_b32 s{sT+3}, s{sT+1}, 15")
    A(f"s_add_u32 s{sT+2}, s{sT+2}, s{sT+3}")
    A("v_lshlrev_b32 v48, 10, v47")
    A("v_lshl_add_u32 v48, v46, 7, v48")
    A(f"buffer_load_dword v200, v48, s[{sX}:{sX+3}], s{sT+2} offen")
    A(f"s_mul_i32 s{sT+1}, s{sT+1}, 24")
    A("v_min_u32 v47, 23, v47")
    A(f"v_add_u32 v47, s{sT+1}, v47")
    A("v_mul_u32_u24 v48, 0x5556, v47")
    A("v_lshrrev_b32 v48, 18, v48")
    A("v_mul_u32_u24 v49, 12, v48")
    A("v_sub_u32 v49, v47, v49")
    A("v_lshl_add_u32 v48, v46, 6, v48")
    A("v_mul_u32_u24 v48, 3072, v48")
    A("v_lshrrev_b32 v47, 2, v49")
    A("v_lshl_add_u32 v48, v47, 10, v48")
    A("v_and_b32 v49, 3, v49")
    A("v_lshl_add_u32 v48, v49, 7, v48")
    A(f"s_and_b32 s{sT+1}, s{sPair}, 8")
    A(f"s_lshl_b32 s{sT+1}, s{sT+1}, 6")
    A(f"buffer_load_dword v201, v48, s[{sW}:{sW+3}], s{sT+1} offen")

def w_prefetch(A, cfg):
    assert cfg.lr == 2
    A(f"s_cmp_lt_u32 s{sPair}, 16")
    A(f"s_cselect_b32 s{sW}, s6, s12")
    A(f"s_cselect_b32 s{sW+1}, s7, s13")
    A(f"s_mov_b32 s{sW+2}, {hex(512*1536*2)}")
    A(f"s_mov_b32 s{sW+3}, 0x20000")
    A(f"s_and_b32 s{sT+1}, s{sPair}, 14")
    A(f"s_lshl_b32 s{sT+1}, s{sT+1}, 6")
    if cfg.wpf2 < 10:
        A(f"s_add_u32 s{sT+3}, s{sW}, s{sT+1}")
        A(f"s_bfe_u32 s{sT+3}, s{sT+3}, 0x30007")
    A(f"s_and_b32 s{sT}, s{sSlab}, 3")
    A(f"s_lshl_b32 s{sT}, s{sT}, 1")
    A(f"s_and_b32 s{sT+2}, s{sPair}, 1")
    A(f"s_add_u32 s{sT}, s{sT}, s{sT+2}")
    A(f"s_add_u32 s{sT}, s{sT}, s{sKC}")
    A(f"s_and_b32 s{sT}, s{sT}, 7")
    A(f"s_mul_i32 s{sT}, s{sT}, 196608")
    A(f"s_add_u32 s{sT}, s{sT}, s{sT+1}")
    A(f"s_mul_i32 s{sT+2}, s{sRG}, 49152")
    A(f"s_add_u32 s{sT}, s{sT}, s{sT+2}")
    A("v_min_u32 v46, 47, v0")
    A("v_lshlrev_b32 v46, 10, v46")
    if cfg.wpf2 < 10:
        A(f"s_cmp_eq_u32 s{sT+3}, 3")
        A("s_cselect_b64 exec, -1, 0")
    A(f"buffer_load_dword v200, v46, s[{sW}:{sW+3}], s{sT} offen")
    A("s_mov_b64 exec, -1")

def hot_prefetch(A, cfg):
    A(f"s_cmp_lt_u32 s{sPair}, 16")
    A(f"s_cselect_b32 s{sW}, s6, s12")
    A(f"s_cselect_b32 s{sW+1}, s7, s13")
    A(f"s_mov_b32 s{sW+2}, {hex(512*1536*2)}")
    A(f"s_mov_b32 s{sW+3}, 0x20000")
    A(f"s_lshr_b32 s{sT}, s{sW}, 7")
    A(f"s_sub_u32 s{sT}, 3, s{sT}")
    A(f"s_and_b32 s{sT}, s{sT}, 7")
    A(f"s_lshl_b32 s{sT}, s{sT}, 7")
    A(f"s_and_b32 s{sT+1}, s{sPair}, 15")
    A(f"s_lshl_b32 s{sT+1}, s{sT+1}, 3")
    A(f"s_add_u32 s{sT+1}, s{sT+1}, s{sSlab}")
    A(f"s_lshl_b32 s{sT+1}, s{sT+1}, 2")
    A(f"s_add_u32 s{sT+1}, s{sT+1}, s{sWave}")
    A(f"s_mul_i32 s{sT+1}, s{sT+1}, 3072")
    A(f"s_add_u32 s{sT}, s{sT}, s{sT+1}")
    A("v_min_u32 v46, 2, v0")
    A("v_lshlrev_b32 v46, 10, v46")
    A(f"buffer_load_dword v200, v46, s[{sW}:{sW+3}], s{sT} offen")

def p1_compute(A, cfg):
    A.c("---- phase 1, compute waves")
    if cfg.p1prio == 1: A("s_setprio 1")
    A("s_waitcnt lgkmcnt(0)")
    A.c("gate g = sigmoid(x . gate_w) of rows 8*wg + 2*wave, +1 (every workgroup covers 8 of the 2048 rows)")
    srd(A, sX, 4, 5, 2048 * 512 * 2)
    srd(A, sG, 16, 17, 1024)
    A(f"s_lshl_b32 s{sT+6}, s2, 2")
    A(f"s_add_u32 s{sT+6}, s{sT+6}, s{sWave}")
    A(f"s_lshl_b32 s{sT+7}, s{sT+6}, 11")
    A("v_lshlrev_b32 v13, 4, v0")
    A(f"buffer_load_dwordx4 v[32:35], v13, s[{sX}:{sX+3}], s{sT+7} offen")
    A(f"buffer_load_dwordx4 v[36:39], v13, s[{sX}:{sX+3}], s{sT+7} offen offset:1024")
    A(f"buffer_load_dwordx4 v[40:43], v13, s[{sG}:{sG+3}], 0 offen")
    if cfg.wpf:
        A.c("pull this workgroup's 1/256 share of both weight matrices towards the chip")
        A(f"s_cmp_lt_u32 s2, 128")
        A(f"s_cselect_b32 s{sW}, s6, s12")
        A(f"s_cselect_b32 s{sW+1}, s7, s13")
        A(f"s_mov_b32 s{sW+2}, {hex(512*1536*2)}")
        A(f"s_mov_b32 s{sW+3}, 0x20000")
        A(f"s_and_b32 s{sT}, s{sT+6}, 511")
        A(f"s_mul_i32 s{sT}, s{sT}, 3072")
        for i in range(3):
            A(f"buffer_load_dwordx4 v[{48+4*i}:{51+4*i}], v13, s[{sW}:{sW+3}], s{sT} offen offset:{1024*i}")
    if cfg.wpf3: hot_prefetch(A, cfg)
    if cfg.wpf2 % 10 == 1: w_prefetch(A, cfg)
    if cfg.c2c:
        A.c("the otherwise idle compute waves fetch chunk 2")
        A(f"s_cmp_lt_u32 s{sPair}, 16")
        A(f"s_cselect_b32 s{sW}, s6, s12")
        A(f"s_cselect_b32 s{sW+1}, s7, s13")
        A(f"s_mov_b32 s{sW+2}, {hex(512*1536*2)}")
        A(f"s_mov_b32 s{sW+3}, 0x20000")
        A("v_lshrrev_b32 v48, 3, v0")
        A("v_lshlrev_b32 v48, 10, v48")
        A("v_and_b32 v49, 7, v0")
        A("v_lshrrev_b32 v50, 4, v0")
        A("v_xor_b32 v49, v49, v50")
        A("v_lshl_add_u32 v48, v49, 4, v48")
        A("v_xor_b32 v49, 64, v48")
        A(f"s_add_u32 s{sK2}, s{sKC}, 2")
        A(f"s_and_b32 s{sK2}, s{sK2}, 7")
        A(f"s_lshl_b32 s{sXo}, s{sK2}, 7")
        A(f"s_lshl_b32 s{sT}, s{sSlab}, 18")
        A(f"s_add_u32 s{sXo}, s{sXo}, s{sT}")
        A(f"s_lshl_b32 s{sT}, s{sRG}, 16")
        A(f"s_add_u32 s{sXo}, s{sXo}, s{sT}")
        A(f"s_lshl_b32 s{sM}, s{sRG}, 13")
        for i in range(8):
            A(f"s_add_u32 m0, s{sM}, {XB[2] + i*1024}")
            A(f"s_add_u32 s{sT}, s{sXo}, {i*8192}")
            A(f"buffer_load_dwordx4 v{49 if i & 1 else 48}, s[{sX}:{sX+3}], s{sT} offen lds")
        A("v_lshrrev_b32 v50, 2, v0")
        A("v_mul_u32_u24 v50, 3072, v50")
        A("v_and_b32 v51, 3, v0")
        A("v_lshl_add_u32 v50, v51, 4, v50")
        A("v_xor_b32 v51, 32, v50")
        A(f"s_and_b32 s{sT}, s{sPair}, 15")
        A(f"s_lshl_b32 s{sT}, s{sT}, 6")
        A(f"s_mul_i32 s{sT+1}, s{sRG}, 49152")
        A(f"s_add_u32 s{sT}, s{sT}, s{sT+1}")
        A(f"s_mul_i32 s{sT+1}, s{sK2}, 196608")
        A(f"s_mul_i32 s{sM}, s{sRG}, 3072")
        A(f"s_add_u32 m0, s{sM}, {WB + 2*12288}")
        A(f"s_add_u32 s{sT}, s{sT}, s{sT+1}")
        for i in range(3):
            A(f"buffer_load_dwordx4 v{51 if i == 1 else 50}, s[{sW}:{sW+3}], s{sT} offen offset:{i*1024} lds")
    late_srds(A)
    A.c("wave 0 clears this workgroup's hand-off words, then counts the workgroup in")
    A(f"s_cmp_lg_u32 s{sWave}, 0")
    A("s_cbranch_scc1 L_nozero")
    A(f"s_lshl_b32 s{sT}, s{sPair}, 9")
    A(f"s_lshl_b32 s{sT+1}, s{sSlab}, 2")
    A(f"s_add_u32 s{sT}, s{sT}, s{sT+1}")
    A(f"s_add_u32 s{sT}, s{sT}, {WS_F1}")
    A("v_lshlrev_b32 v2, 7, v0")
    A(f"v_add_u32 v2, s{sT}, v2")
    A("v_mov_b32 v4, 0")
    A("s_mov_b64 exec, 0xf")
    A(f"buffer_store_dword v4, v2, s[{sWS}:{sWS+3}], 0 offen sc1")
    A("s_mov_b64 exec, -1")
    A("L_nozero:")
    p2_pre(A, False); p2_pre(A, True)
    A("v_and_b32 v2, 1, v0")
    A(f"v_lshlrev_b32 v{vPoll}, 7, v2")
    A(f"v_mov_b32 v{vZ}, 1")
    p2_addr(A)
    xfrag_addr(A, vXL, vXH, 13)
    A("v_lshrrev_b32 v13, 5, v0")
    A("v_lshlrev_b32 v13, 3, v13")
    A("v_bfe_u32 v14, v0, 2, 2")
    A("v_add_u32 v13, v13, v14")
    A("v_lshlrev_b32 v13, 6, v13")
    A("v_and_b32 v14, 3, v0")
    A("v_lshl_add_u32 v13, v14, 3, v13")
    A(f"v_add_u32 v13, {WB}, v13")
    A("v_bfe_u32 v14, v0, 4, 1")
    A("v_mul_u32_u24 v15, 1056, v14")
    A(f"v_add_u32 v{vWa}, v13, v15")
    A("v_mul_u32_u24 v15, 992, v14")
    A(f"v_add3_u32 v{vWb}, v13, v15, 32")
    A("v_lshl_add_u32 v13, v14, 5, v13")
    A(f"v_add_u32 v{vWv}, 2048, v13")
    def reads(c, j, F):
        if cfg.p1x & 8 and (c, j) != (0, 0): return ["s_nop 0"] * 8
        slot = c % 3
        xr = vXH[j] if slot == 2 else vXL[j]
        xi = XS if slot == 0 else 0
        wi = slot * 12288 + j * 3072
        return [f"ds_read_b128 {v(F,4)}, v{xr} offset:{xi}",
                f"ds_read_b64_tr_b16 {v(F+8,2)}, v{vWa} offset:{wi}",
                f"ds_read_b64_tr_b16 {v(F+10,2)}, v{vWa} offset:{wi+256}",
                f"ds_read_b128 {v(F+4,4)}, v{xr} offset:{xi+4096}",
                f"ds_read_b64_tr_b16 {v(F+12,2)}, v{vWb} offset:{wi}",
                f"ds_read_b64_tr_b16 {v(F+14,2)}, v{vWb} offset:{wi+256}",
                f"ds_read_b64_tr_b16 {v(F+16,2)}, v{vWv} offset:{wi}",
                f"ds_read_b64_tr_b16 {v(F+18,2)}, v{vWv} offset:{wi+256}"]
    def mf(F, first):
        def m(D, a, b):
            if cfg.p1x & 1 and not first: return "s_nop 1"
            if cfg.t16:
                q = 4 * (F != FR[0])
                return (f"v_mfma_f32_16x16x32_bf16 {v(D+q,4)}, {v(a,4)}, {v(b,4)}, {'0' if first else v(D+q,4)}\n"
                        f"v_mfma_f32_16x16x32_bf16 {v(D+8+q,4)}, {v(a,4)}, {v(b,4)}, {'0' if first else v(D+8+q,4)}")
            return f"v_mfma_f32_32x32x16_bf16 {v(D,16)}, {v(a,4)}, {v(b,4)}, {'0' if first else v(D,16)}"
        return [m(ACC['QKa0'], F+8, F), m(ACC['QKa1'], F+8, F+4), m(ACC['QKb0'], F+12, F),
                m(ACC['QKb1'], F+12, F+4), m(ACC['VV0'], F, F+16), m(ACC['VV1'], F+4, F+16)]
    A(f"s_lshl_b32 s{sT+6}, s{sT+6}, 3")
    A(f"s_add_u32 s{sT+6}, s{sT+6}, {WS_G}")
    A("v_lshrrev_b32 v13, 5, v0")
    A("v_lshlrev_b32 v13, 2, v13")
    A("v_mov_b32 v44, 0")
    A("v_mov_b32 v45, 0")
    if cfg.l2pf == 1: l2_prefetch(A, cfg)
    A(f"s_waitcnt vmcnt({(3 if cfg.wpf else (2 if cfg.l2pf == 1 else (1 if (cfg.wpf2 % 10 == 1 or cfg.wpf3) else (11 if cfg.c2c else 0))))})")
    if cfg.zearly:
        assert not (cfg.wpf or cfg.l2pf or cfg.wpf2 or cfg.wpf3 or cfg.c2c)
        A.c("wave 0: its clears are acknowledged -> count this workgroup in")
        A(f"s_cmp_lg_u32 s{sWave}, 0")
        A("s_cbranch_scc1 L_noz0")
        A(f"s_and_b32 s{sT}, s2, 1")
        A(f"s_lshl_b32 s{sT}, s{sT}, 7")
        A("s_mov_b64 exec, 1")
        A(f"buffer_atomic_add v{vZ}, off, s[{sDBG}:{sDBG+3}], s{sT}")
        A("s_mov_b64 exec, -1")
        A("L_noz0:")
    if cfg.l2pf == 2: l2_prefetch(A, cfg)
    if cfg.wpf2 % 10 == 2: w_prefetch(A, cfg)
    for i in range(4):
        A(f"v_dot2_f32_bf16 v44, v{32+i}, v{40+i}, v44")
        A(f"v_dot2_f32_bf16 v45, v{36+i}, v{40+i}, v45")
    A("s_nop 2")
    A("v_permlane32_swap_b32 v44, v45")
    A("v_add_f32 v44, v44, v45")
    A("v_mov_b32 v45, v44")
    A("s_nop 1")
    A("v_permlane16_swap_b32 v44, v45")
    A("v_add_f32 v44, v44, v45")
    for ctl in ("quad_perm:[1,0,3,2]", "quad_perm:[2,3,0,1]", "row_half_mirror", "row_mirror"):
        A("s_nop 1")
        A(f"v_add_f32_dpp v44, v44, v44 {ctl} row_mask:0xf bank_mask:0xf")
    A(f"v_mul_f32 v44, {fbits(-LOG2E)}, v44")
    A("v_exp_f32 v44, v44")
    A("s_nop 0")
    A("v_add_f32 v44, 1.0, v44")
    A("v_rcp_f32 v44, v44")
    A("s_mov_b32 exec_lo, 1")
    A("s_mov_b32 exec_hi, 1")
    A(f"buffer_store_dword v44, v13, s[{sWS}:{sWS+3}], s{sT+6} offen sc1")
    A("s_mov_b64 exec, -1")
    if cfg.wpf: A("s_waitcnt vmcnt(1)")
    A("s_barrier")
    stamp(A, cfg, 1)
    for r in reads(0, 0, FR[0]): A(r)
    def wave0_block(n):
        if n == cfg.n_add and not cfg.zearly and not cfg.noz:
            A(f"s_cmp_lg_u32 s{sWave}, 0")
            A("s_cbranch_scc1 L_noz0")
            A(f"s_and_b32 s{sT}, s2, 1")
            A(f"s_lshl_b32 s{sT}, s{sT}, 7")
            A("s_mov_b64 exec, 1")
            A(f"buffer_atomic_add v{vZ}, off, s[{sDBG}:{sDBG+3}], s{sT}")
            A("s_mov_b64 exec, -1")
            A("L_noz0:")
        if n == cfg.n_z and not cfg.noz:
            A(f"s_cmp_lg_u32 s{sWave}, 0")
            A("s_cbranch_scc1 L_noz1")
            A(ZLOAD)
            A("L_noz1:")
    if cfg.p1pipe == 0:
        for n in range(32):
            c, j = divmod(n, 4)
            M = mf(FR[n & 1], n == 0)
            A("s_waitcnt lgkmcnt(0)" if (n != 7 or cfg.zearly) else "s_waitcnt vmcnt(0) lgkmcnt(0)")
            if n == 31:
                for m in M: A(m)
                break
            if j == 3: A("s_barrier")
            c2, j2 = divmod(n + 1, 4)
            R = reads(c2, j2, FR[(n + 1) & 1])
            A(M[0]); A(R[0]); A(R[1]); A(R[2])
            A(M[1]); A(R[3]); A(R[4]); A(R[5])
            A(M[2]); A(R[6]); A(R[7])
            A(M[3])
            wave0_block(n)
            A(M[4]); A(M[5])
    else:
        for n in range(32):
            c, j = divmod(n, 4)
            M = mf(FR[n & 1], n == 0)
            last = n == 31
            c2, j2 = divmod(n + 1, 4)
            R = [""] * 8 if last else reads(c2, j2, FR[(n + 1) & 1])
            k = 0 if last else 3
            A("s_waitcnt lgkmcnt(5)")
            A(M[0])
            A("s_waitcnt lgkmcnt(4)")
            A(M[1])
            if n == 7: A("s_waitcnt vmcnt(0)")
            if j == 3 and not last: A("s_barrier")
            for x in R[0:3]: A(x)
            A(f"s_waitcnt lgkmcnt({2 + k})")
            A(M[2])
            for x in R[3:6]: A(x)
            A(M[3])
            wave0_block(n)
            A(f"s_waitcnt lgkmcnt({2*k})")
            if j == 3 and not last: A("s_barrier")
            A(M[4])
            for x in R[6:8]: A(x)
            A(M[5])

def p1_compute_epilogue(A, cfg):
    A.c("---- phase 1 epilogue: round K/V, publish them (write-through) and keep them in LDS")
    A(f"s_lshl_b32 s{sT}, s{sPair}, 3")
    A(f"s_add_u32 s{sT}, s{sT}, s{sSlab}")
    A(f"s_lshl_b32 s{sT}, s{sT}, 15")
    A(f"s_lshl_b32 s{sT+1}, s{sRG}, 12")
    A(f"s_add_u32 s{sT}, s{sT}, s{sT+1}")
    A(f"s_add_u32 s{sT+1}, s{sT}, 16384")
    A("v_bfe_u32 v13, v0, 4, 1")
    A("v_lshrrev_b32 v14, 5, v0")
    A("v_and_b32 v15, 15, v0")
    A("v_lshlrev_b32 v15, 4, v15")
    A("v_lshl_add_u32 v15, v14, 8, v15")
    A("v_add_u32 v15, 1024, v15")
    A("v_lshl_add_u32 v3, v13, 14, v15")
    A(f"s_mul_i32 s{sT+2}, s{sRG}, {2*REC}")
    A(f"s_add_u32 s{sT+2}, s{sT+2}, {SB}")
    A(f"v_add_u32 v4, s{sT+2}, v{vKP if cfg.sm else vL16}")
    A(f"v_mul_u32_u24 v13, {HSTR}, v13")
    A(f"v_add3_u32 v5, v13, v15, s{sT+2}")
    A.c("wave 0: every workgroup has cleared its hand-off words (checked before any flag is read)")
    A(f"s_cmp_lg_u32 s{sWave}, 0")
    A("s_cbranch_scc1 L_noz2")
    A(f"s_movk_i32 s{sT+3}, 128")
    if not cfg.noz: spin(A, "z", ZLOAD, vZ, f"s{sT+3}", "gt")
    A("L_noz2:")
    def cvt(dst, src):
        for i in range(4):
            A(f"v_cvt_pk_bf16_f32 v{dst+i}, v{src+2*i}, v{src+2*i+1}")
    if cfg.epi2:
        tmp = [128, 132, 136, 140, 144, 148, 152, 156]
        A(f"s_mov_b32 s{sT+4}, {fbits(QSCALE)}")
        A(f"s_mov_b32 s{sT+5}, {fbits(QSCALE)}")
        A(f"s_lshl_b32 s{sT+6}, s{sRG}, 11")
        A(f"s_add_u32 s{sT+6}, s{sT+6}, {QX}")
        A(f"v_add_u32 v6, s{sT+6}, v{vL16}")
        items = []
        for hd, names in ((0, ("QKa0", "QKa1")), (1, ("QKb0", "QKb1"))):
            for t in (0, 1):
                items.append((ACC[names[t]] + 8, f"v{vKP if cfg.sm else vL16}, s[{sWS}:{sWS+3}], s{sT+hd} offen offset:{t*2048}", "v4", hd*HSTR + t*REC))
        for t in (0, 1):
            for a in (0, 1):
                items.append((ACC[f"VV{t}"] + 8 * a, f"v3, s[{sWS}:{sWS+3}], s{sT} offen offset:{t*2048 + a*512}", "v5", t*REC + a*512))
        qs = [("QKb0", 16, 0), ("QKb1", 20, 1024), ("QKa0", vQ[0], None), ("QKa1", vQ[1], None)]
        for k, (src, gaddr, laddr, loff) in enumerate(items):
            cvt(tmp[k], src)
            A(f"buffer_store_dwordx4 {v(tmp[k],4)}, {gaddr} sc1")
            A(f"ds_write_b128 {laddr}, {v(tmp[k],4)} offset:{loff}")
            nm, dst, qoff = qs[k >> 1]
            q = ACC[nm]
            if k & 1 == 0:
                for i in range(4): A(f"v_pk_mul_f32 {v(q+2*i,2)}, {v(q+2*i,2)}, s[{sT+4}:{sT+5}]")
            else:
                cvt(dst, q)
                if qoff is not None: A(f"ds_write_b128 v6, {v(dst,4)} offset:{qoff}")
    else:
        tmp = [128, 132, 136, 140, 144, 148, 152, 156]
        if cfg.epist: stamp(A, cfg, 3)
        k = 0
        for hd, names in ((0, ("QKa0", "QKa1")), (1, ("QKb0", "QKb1"))):
            for t in (0, 1):
                cvt(tmp[k], ACC[names[t]] + 8)
                A(f"buffer_store_dwordx4 {v(tmp[k],4)}, v{vL16}, s[{sWS}:{sWS+3}], s{sT+hd} offen offset:{t*2048} sc1")
                k += 1
        if cfg.epist: stamp(A, cfg, 4)
        for t in (0, 1):
            for a in (0, 1):
                cvt(tmp[k], ACC[f"VV{t}"] + 8 * a)
                A(f"buffer_store_dwordx4 {v(tmp[k],4)}, v3, s[{sWS}:{sWS+3}], s{sT} offen offset:{t*2048 + a*512} sc1")
                k += 1
        if cfg.epist: stamp(A, cfg, 5)
        k = 0
        for hd in (0, 1):
            for t in (0, 1):
                A(f"ds_write_b128 v4, {v(tmp[k],4)} offset:{hd*HSTR + t*REC}"); k += 1
        for t in (0, 1):
            for a in (0, 1):
                A(f"ds_write_b128 v5, {v(tmp[k],4)} offset:{t*REC + a*512}"); k += 1
        if cfg.epist: stamp(A, cfg, 6)
        A(f"s_mov_b32 s{sT+4}, {fbits(QSCALE)}")
        A(f"s_mov_b32 s{sT+5}, {fbits(QSCALE)}")
        A(f"s_lshl_b32 s{sT+2}, s{sRG}, 11")
        A(f"s_add_u32 s{sT+2}, s{sT+2}, {QX}")
        A(f"v_add_u32 v4, s{sT+2}, v{vL16}")
        for hd, names in ((1, ("QKb0", "QKb1")), (0, ("QKa0", "QKa1"))):
            for t in (0, 1):
                q = ACC[names[t]]
                for i in range(4):
                    A(f"v_pk_mul_f32 {v(q+2*i,2)}, {v(q+2*i,2)}, s[{sT+4}:{sT+5}]")
                dst = vQ[t] if hd == 0 else 16 + 4 * t
                cvt(dst, q)
                if hd == 1: A(f"ds_write_b128 v4, {v(dst,4)} offset:{t*1024}")
    if cfg.epist: stamp(A, cfg, 7)
    A("s_waitcnt lgkmcnt(0)")
    if cfg.epist: stamp(A, cfg, 8)
    A("s_barrier")
    if cfg.epist:
        stamp(A, cfg, 9)
        A("s_waitcnt vmcnt(0)")
        stamp_store(A, cfg, 10)
        A("s_endpgm")
    A.c("K/V stores acknowledged -> raise this wave's flag")
    A(f"v_mov_b32 v{vZ}, 1")
    A(f"s_lshl_b32 s{sJ}, s{sSlab}, 2")
    A(f"s_add_u32 s{sJ}, s{sJ}, s{sF}")
    lstamp(A, cfg, 46)
    if cfg.c1c:
        A(F1LOAD)
        p2_setup(A, cfg)
        A(f"s_lshl_b32 s{sT}, s{sSlab}, 2")
        A(f"v_cmp_eq_u32 s[{sT+2}:{sT+3}], s{sT}, v{vPA}")
        A("s_waitcnt vmcnt(3)")
    else:
        A("s_waitcnt vmcnt(0)")
    A("s_mov_b64 exec, 1")
    A(f"buffer_store_dword v{vZ}, off, s[{sWS}:{sWS+3}], s{sJ} sc1")
    A("s_mov_b64 exec, -1")
    lstamp(A, cfg, 47)
    if cfg.c1c:
        A("s_waitcnt vmcnt(3)")
        A(f"v_cmp_ne_u32 vcc, 1, v{vPoll}")
        A(f"s_mov_b32 s{sSpin}, {SPIN_MAX}")
        A(f"s_andn2_b64 s[{sT+4}:{sT+5}], vcc, s[{sT+2}:{sT+3}]")
        A("s_cbranch_scc1 L_f1c")
        A("L_f1c_ret:")
        T = Asm()
        T("L_f1c:")
        T(F1LOAD)
        T(f"s_sub_u32 s{sSpin}, s{sSpin}, 1")
        T("s_cbranch_scc1 L_f1c_ret")
        T("s_waitcnt vmcnt(0)")
        T(f"v_cmp_ne_u32 vcc, 1, v{vPoll}")
        T("s_nop 0")
        T(f"s_andn2_b64 s[{sT+4}:{sT+5}], vcc, s[{sT+2}:{sT+3}]")
        T("s_cbranch_scc1 L_f1c")
        T("s_branch L_f1c_ret")
        tails.append(T)
        lstamp(A, cfg, 49)
        for x in kv_setup(1): A(x)
        for job in kv_jobs(1):
            for x in job: A(x)
        A(f"s_add_u32 s{sCO}, s{sCO}, 16384")
        for job in kv_jobs(1, -1):
            for x in job: A(x)

def p1_loader(A, cfg):
    A.c("---- phase 1, loader waves: LDS-DMA of x / W chunks")
    if cfg.p1prio == 2: A("s_setprio 1")
    A("v_lshrrev_b32 v13, 3, v0")
    A("v_lshlrev_b32 v13, 10, v13")
    A("v_and_b32 v14, 7, v0")
    A("v_lshrrev_b32 v15, 4, v0")
    A("v_xor_b32 v14, v14, v15")
    A("v_lshl_add_u32 v13, v14, 4, v13")
    A("v_xor_b32 v14, 64, v13")
    for i in range(8):
        A(f"v_add_u32 v{2+i}, {i*8192 - (i&3)*1024}, v{14 if i & 1 else 13}")
    A(f"s_lshl_b32 s{sXb}, s{sSlab}, 18")
    A(f"s_lshl_b32 s{sT}, s{sRG}, 16")
    A(f"s_add_u32 s{sXb}, s{sXb}, s{sT}")
    def issue_x(c):
        slot = c % 3
        A(f"s_add_u32 s{sK2}, s{sKC}, {c}")
        A(f"s_and_b32 s{sK2}, s{sK2}, 7")
        A(f"s_lshl_b32 s{sXo}, s{sK2}, 7")
        A(f"s_lshl_b32 s{sM}, s{sRG}, 13")
        A(f"s_add_u32 m0, s{sM}, {XB[slot]}")
        A(f"s_add_u32 s{sXo}, s{sXo}, s{sXb}")
        for i in range(8):
            if i == 4:
                A(f"s_add_u32 m0, s{sM}, {XB[slot] + 4096}")
                A("s_nop 0")
            A(f"buffer_load_dwordx4 v{2+i}, s[{sX}:{sX+3}], s{sXo} offen offset:{(i&3)*1024} lds")
    def issue_w(c):
        slot = c % 3
        A(f"s_mul_i32 s{sM}, s{sRG}, 3072")
        A(f"s_mul_i32 s{sWo}, s{sK2}, 196608")
        A(f"s_add_u32 m0, s{sM}, {WB + slot*12288}")
        A(f"s_add_u32 s{sWo}, s{sWo}, s{sWb_}")
        for i in range(3):
            A(f"buffer_load_dwordx4 v{11 if i == 1 else 10}, s[{sW}:{sW+3}], s{sWo} offen offset:{i*1024} lds")
    def pf_setup():
        assert cfg.lr == 2
        A(f"s_and_b32 s{sT}, s{sPair}, 7")
        A(f"s_lshl_b32 s{sT}, s{sT}, 15")
        A(f"s_lshl_b32 s{sT+1}, s{sRG}, 13")
        A(f"s_add_u32 s{sT}, s{sT}, s{sT+1}")
        A(f"s_lshl_b32 s{sT+1}, s{sSlab}, 18")
        A(f"s_add_u32 s{sT}, s{sT}, s{sT+1}")
        A(f"s_add_u32 s12, s{sX}, s{sT}")
        A(f"s_addc_u32 s13, s{sX+1}, 0")
        A(f"s_and_b32 s{sT}, s{sSlab}, 3")
        A(f"s_lshl_b32 s{sT}, s{sT}, 1")
        A(f"s_and_b32 s{sT+1}, s{sPair}, 1")
        A(f"s_add_u32 s{sT}, s{sT}, s{sT+1}")
        A(f"s_lshl_b32 s{sT}, s{sT}, 2")
        A(f"s_add_u32 s{sT}, s{sT}, s{sRG}")
        A(f"s_mul_i32 s{sT}, s{sT}, 6144")
        A(f"s_and_b32 s{sT+1}, s{sPair}, 14")
        A(f"s_lshl_b32 s{sT+1}, s{sT+1}, 6")
        A(f"s_add_u32 s{sT}, s{sT}, s{sT+1}")
        A(f"s_add_u32 s16, s{sW}, s{sT}")
        A(f"s_addc_u32 s17, s{sW+1}, 0")
    def pf(c):
        if not cfg.spf or c > 7: return
        A(f"s_add_u32 s{sT}, s{sKC}, {c}")
        A(f"s_and_b32 s{sT}, s{sT}, 7")
        A(f"s_mul_i32 s{sT+1}, s{sT}, 196608")
        A(f"s_lshl_b32 s{sT}, s{sT}, 7")
        if cfg.spfw != 2:
            for e in range(6): A(f"s_load_dword s10, s[16:17], s{sT+1} offset:{1024*e}")
        if cfg.spfw != 1:
            for e in range(8): A(f"s_load_dword s10, s[12:13], s{sT} offset:{1024*e}")
    def issue(c):
        if cfg.wfirst:
            A(f"s_add_u32 s{sK2}, s{sKC}, {c}")
            A(f"s_and_b32 s{sK2}, s{sK2}, 7")
            issue_w(c); issue_x(c)
        else:
            issue_x(c); issue_w(c)
    if cfg.rot in (16, 17, 18):
        A(f"s_and_b32 s{sT+1}, s{sPair}, 3")
        A(f"s_lshl_b32 s{sT+1}, s{sT+1}, 1")
        A(f"s_and_b32 s{sT+3}, s2, 1")
        A(f"s_add_u32 s{sT+1}, s{sT+1}, s{sT+3}")
        if cfg.rot == 16:
            A(f"s_lshr_b32 s{sT+2}, s{sPair}, 1")
            A(f"s_add_u32 s{sT+2}, s{sT+2}, s{sSlab}")
            A(f"s_lshl_b32 s{sT+2}, s{sT+2}, 1")
            A(f"s_add_u32 s{sT+2}, s{sT+2}, s{sT+3}")
        elif cfg.rot == 17:
            A(f"s_lshl_b32 s{sT+2}, s{sSlab}, 1")
            A(f"s_add_u32 s{sT+2}, s{sT+2}, s{sPair}")
        else:
            A(f"s_add_u32 s{sT+2}, s{sPair}, s{sSlab}")
            A(f"s_lshl_b32 s{sT+2}, s{sT+2}, 1")
            A(f"s_add_u32 s{sT+2}, s{sT+2}, s{sT+3}")
    if cfg.rot >= 19:
        A(f"s_lshr_b32 s{sT+1}, s{sPair}, 1")
        A(f"s_add_u32 s{sT+1}, s{sT+1}, s{sSlab}")
        if cfg.rot == 19: A(f"s_and_b32 s{sT+1}, s{sT+1}, 3")
        if cfg.rot == 20:
            A(f"s_and_b32 s{sT+1}, s{sT+1}, 1")
            A(f"s_lshl_b32 s{sT+1}, s{sT+1}, 1")
        if cfg.rot == 21:
            A(f"s_and_b32 s{sT+1}, s{sT+1}, 3")
            A(f"s_lshl_b32 s{sT+1}, s{sT+1}, 1")
            A(f"s_min_u32 s{sT+1}, s{sT+1}, 5")
        if cfg.rot == 22:
            A(f"s_and_b32 s{sT+1}, s{sT+1}, 3")
            A(f"s_mul_i32 s{sT+1}, s{sT+1}, 3")
            A(f"s_lshr_b32 s{sT+1}, s{sT+1}, 1")
        if cfg.rot == 23:
            A(f"s_and_b32 s{sT+1}, s{sT+1}, 1")
            A(f"s_mul_i32 s{sT+1}, s{sT+1}, 3")
        A(f"s_add_u32 s{sT+1}, s{sT+1}, 4")
    A("s_waitcnt lgkmcnt(0)")
    if cfg.rot >= 19:
        A(f"s_lshr_b32 s{sT+2}, s4, 7")
        A(f"s_sub_u32 s{sKC}, s{sT+1}, s{sT+2}")
        A(f"s_and_b32 s{sKC}, s{sKC}, 7")
    if cfg.rot in (16, 17, 18):
        A(f"s_cmp_lt_u32 s{sPair}, 16")
        A(f"s_cselect_b32 s{sT+4}, s6, s12")
        A(f"s_lshr_b32 s{sT+4}, s{sT+4}, 7")
        A(f"s_lshr_b32 s{sT+5}, s{sPair}, 1")
        A(f"s_add_u32 s{sT+4}, s{sT+4}, s{sT+5}")
        A(f"s_and_b32 s{sT+4}, s{sT+4}, 7")
        A(f"s_cmp_eq_u32 s{sT+4}, 3")
        A(f"s_cselect_b32 s{sKC}, s{sT+2}, s{sT+1}")
        A(f"s_and_b32 s{sKC}, s{sKC}, 7")
    srd(A, sX, 4, 5, 2048 * 512 * 2)
    lstamp(A, cfg, 1)
    issue_x(0)
    lstamp(A, cfg, 2)
    A(f"s_cmp_lt_u32 s{sPair}, 16")
    A(f"s_cselect_b32 s{sW}, s6, s12")
    A(f"s_cselect_b32 s{sW+1}, s7, s13")
    A(f"s_mov_b32 s{sW+2}, {hex(512*1536*2)}")
    A(f"s_mov_b32 s{sW+3}, 0x20000")
    A(f"s_and_b32 s{sWb_}, s{sPair}, 15")
    A(f"s_lshl_b32 s{sWb_}, s{sWb_}, 6")
    A(f"s_mul_i32 s{sT}, s{sRG}, 49152")
    A(f"s_add_u32 s{sWb_}, s{sWb_}, s{sT}")
    if cfg.wfull:
        A("v_lshrrev_b32 v13, 3, v0")
        A("v_mul_u32_u24 v13, 3072, v13")
        A("v_and_b32 v14, 7, v0")
        A(f"s_and_b32 s{sWb_}, s{sWb_}, 0xffffff80")
    else:
        A("v_lshrrev_b32 v13, 2, v0")
        A("v_mul_u32_u24 v13, 3072, v13")
        A("v_and_b32 v14, 3, v0")
    A("v_lshl_add_u32 v10, v14, 4, v13")
    A("v_xor_b32 v11, 32, v10")
    issue_w(0)
    if cfg.spf and cfg.spfe:
        pf_setup()
        for c in range(2, 2 + cfg.spf): pf(c)
    if cfg.late1 == 1: A("s_waitcnt vmcnt(3)")
    if cfg.late1 == 2: A("s_waitcnt vmcnt(8)")
    if cfg.late1 == 3: A("s_waitcnt vmcnt(10)")
    issue(1)
    if cfg.spf and not cfg.spfe:
        pf_setup()
        for c in range(2, 2 + cfg.spf): pf(c)
    lstamp(A, cfg, 3)
    late_srds(A)
    p2_addr(A)
    p2_pre(A, False)
    A(f"v_mov_b32 v{vZ}, 1")
    for c in range(8):
        lstamp(A, cfg, 4 + 3*c)
        A(f"s_waitcnt vmcnt({0 if (cfg.c2c and c == 1) else ((11 if c < 7 else 0) if not (cfg.p1x & 2) else 0)})")
        lstamp(A, cfg, 5 + 3*c)
        A("s_barrier")
        lstamp(A, cfg, 6 + 3*c)
        if c == 0: stamp(A, cfg, 1)
        if cfg.p1pipe and c >= 1: A("s_barrier")
        if c <= 5 and not (cfg.p1x & 2) and not (cfg.c2c and c == 0):
            pf(c + 2 + cfg.spf)
            issue(c + 2)
        if c <= 5 and cfg.p1x & 4:
            for _ in range(0): pass
    p2_pre(A, True)
    consts(A, [SB, SC])
    A(f"v_add_u32 v104, {(SA - SB) % (1 << 32)}, v104")
    A("s_waitcnt lgkmcnt(0)")
    A(f"s_lshl_b32 s{sT+2}, s{sRG}, 11")
    A(f"s_add_u32 s{sT+2}, s{sT+2}, {QX}")
    A(f"v_add_u32 v4, s{sT+2}, v{vL16}")
    A("s_barrier")
    if cfg.epist: A("s_endpgm")
    if not cfg.uni: A(F1LOAD)
    A("ds_read_b128 v[8:11], v4")
    A("ds_read_b128 v[12:15], v4 offset:1024")
    A("s_mov_b64 exec, 0xffff")
    A("ds_write_b128 v104, v[108:111] offset:2048")
    A("ds_write_b128 v104, v[112:115] offset:2064")
    A("s_mov_b64 exec, -1")

vKf, vV0f, vV1f = 16, 20, 24
S_, O_, P_ = [32, 48], [64, 80], 96
M32 = "v_mfma_f32_32x32x16_bf16"
def slot_base(i): return (SB, SC, SA)[i % 3]

def p2_setup(A, cfg, now=False):
    if cfg.zearly and not now: return
    A(f"buffer_load_dword v{vGF[0]}, v{vGA}, s[{sWS}:{sWS+3}], s{sGo} offen sc1")
    A(f"buffer_load_dword v{vGF[1]}, v{vGA}, s[{sWS}:{sWS+3}], s{sGo} offen offset:128 sc1")

def p2_pre(A, own_temps):
    if not own_temps:
        A(f"v_and_b32 v{vGA}, 31, v0")
        A(f"v_lshlrev_b32 v{vGA}, 2, v{vGA}")
        A(f"s_lshl_b32 s{sGo}, s{sSlab}, 10")
        A(f"s_lshl_b32 s{sT+1}, s{sRG}, 8")
        A(f"s_add_u32 s{sGo}, s{sGo}, s{sT+1}")
        A(f"s_add_u32 s{sGo}, s{sGo}, {WS_G}")
        for i in range(4): A(f"v_mov_b32 v{vFill+i}, -1")
        for i in range(4): A(f"v_mov_b32 v{vZero+i}, 0")
        A(f"v_mov_b32 v{vIdx}, 0xdddd")
        A(f"v_and_b32 v{vKP}, 0x33, v0")
        A(f"v_bfe_u32 v{vZA}, v0, 2, 1")
        A(f"v_lshl_or_b32 v{vKP}, v{vZA}, 3, v{vKP}")
        A(f"v_bfe_u32 v{vZA}, v0, 3, 1")
        A(f"v_lshl_or_b32 v{vKP}, v{vZA}, 2, v{vKP}")
        A(f"v_lshlrev_b32 v{vKP}, 4, v{vKP}")
        A(f"v_and_b32 v{vZA}, 1, v0")
        A(f"v_lshlrev_b32 v{vZA}, 7, v{vZA}")
        A(f"v_mov_b32 v{vZ2}, 128")
        return
    A(f"s_lshl_b32 s{sCH}, s{sPair}, 18")
    A(f"s_lshl_b32 s{sT+1}, s{sWave}, 12")
    A(f"s_add_u32 s{sCH}, s{sCH}, s{sT+1}")
    A(f"s_mul_i32 s{sMB}, s{sWave}, {2*REC}")
    A(f"s_lshl_b32 s{sWoG}, s{sWave}, 13")
    A(f"s_lshl_b32 s{sT+1}, s{sC3}, 7")
    A(f"s_add_u32 s{sWoG}, s{sWoG}, s{sT+1}")
    A(f"s_lshl_b32 s{sWoM}, s{sWave}, 10")

def kv_setup(i):
    return [f"s_add_u32 s{sCO}, s{sSlab}, {i}", f"s_and_b32 s{sCO}, s{sCO}, 7",
            f"s_lshl_b32 s{sCO}, s{sCO}, 15", f"s_add_u32 s{sCO}, s{sCO}, s{sCH}"]
def kv_jobs(i, other=False):
    base = slot_base(i) - (HSTR * int(other))
    ld = lambda o: f"buffer_load_dwordx4 v{vL16}, s[{sWS}:{sWS+3}], s{sCO} offen offset:{o} sc1 lds"
    return [[f"s_add_u32 m0, s{sMB}, {base}", "s_nop 0", ld(0)], [ld(1024)],
            [f"s_add_u32 m0, s{sMB}, {base + REC - 2048}", "s_nop 0", ld(2048)], [ld(3072)]]
def wo_job(j):
    srd_ = sWOA if j < 8 else sWOB
    return [f"s_add_u32 m0, s{sWoM}, {WO + j*8192}", f"s_add_u32 s{sJ}, s{sWoG}, {(j&7)*65536}",
            f"buffer_load_dwordx4 v{vWoD}, s[{srd_}:{srd_+3}], s{sJ} offen lds"]

def rd(kind, i, t):
    if t == 8: i, t = i + 1, 0
    hi = slot_base(i) == SC
    imm = (0 if hi else slot_base(i)) + t * REC
    if kind == 'K': return f"ds_read_b128 {v(vKf,4)}, v{vKH if hi else vKL} offset:{imm}"
    if kind == 'V0': return f"ds_read_b128 {v(vV0f,4)}, v{vV0H if hi else vV0L} offset:{imm}"
    return f"ds_read_b128 {v(vV1f,4)}, v{vV1H if hi else vV1L} offset:{imm}"

def unit(A, q, first, last, slotA, slotB, slotC, first_o, order=0):
    S, Sn, O, Op = S_[q], S_[q ^ 1], O_[q], O_[q ^ 1]
    e = lambda i: A(f"v_exp_f32 v{S+i}, v{S+i}")
    c = lambda i: A(f"v_cvt_pk_bf16_f32 v{P_+i}, v{S+2*i}, v{S+2*i+1}")
    def run(sl):
        for x in sl:
            if callable(x): x(A)
            else: A(x)
    if not SMUSE[0]:
        e(0)
        if not first: A(f"v_cvt_pk_bf16_f32 v{P_+7}, v{Sn+14}, v{Sn+15}")
        e(1); e(2)
    sw = (lambda a, b: f"{b}, {a}") if PVSWAP[0] else (lambda a, b: f"{a}, {b}")
    if not SMUSE[0]:
        if not first: A(f"{M32} {v(Op,16)}, {sw(v(vV1f,4), v(P_+4,4))}, {v(Op,16)}")
        run(slotA)
    if SMUSE[0]:
        qk = lambda: None if last else A(f"{M32} {v(Sn,16)}, {v(vKf,4)}, {v(vQ[q^1],4)}, 0")
        pos = {1: (1, 4, 9), 2: (2, 4, 10), 3: (1, 3, 9)}[SMUSE[0]]
        for i in range(16):
            e(i)
            if i == pos[0]:
                if not first: A(f"{SM} {v(Op,16)}, {v(vV1f,4)}, {v(Sn+8,8)}, v{vIdx}")
                run(slotA)
            if i == pos[1]: qk(); run(slotB)
            if i == pos[2]:
                A(f"{SM} {v(O,16)}, {v(vV0f,4)}, {v(S,8)}, v{vIdx}")
                run(slotC)
        return
    qk = lambda: None if last else A(f"{M32} {v(Sn,16)}, {v(vKf,4)}, {v(vQ[q^1],4)}, 0")
    pv = lambda: A(f"{M32} {v(O,16)}, {sw(v(vV0f,4), v(P_,4))}, {'0' if first_o else v(O,16)}")
    if order == 0:
        c(0); e(3); e(4); c(1); e(5); e(6)
        qk(); run(slotB)
        c(2); e(7); e(8); c(3); e(9); e(10)
        pv(); run(slotC)
        c(4); e(11); e(12); c(5); e(13); e(14); c(6); e(15)
    elif order == 1:
        c(0); e(3); e(4); c(1); e(5); e(6); c(2); e(7)
        qk(); run(slotB)
        e(8); c(3); e(9); e(10); c(4); e(11); e(12)
        pv(); run(slotC)
        c(5); e(13); e(14); c(6); e(15)
    elif order == 2:
        c(0); e(3); e(4)
        qk(); run(slotB)
        c(1); e(5); e(6); c(2); e(7); e(8); c(3); e(9); e(10)
        pv(); run(slotC)
        c(4); e(11); e(12); c(5); e(13); e(14); c(6); e(15)

def p2_main(A, cfg):
    A.c("---- phase 2: attention.  P = exp2(S) with no shift; the row sums ride in the PV MFMA (ones rows);")
    A.c("     they are range-checked afterwards and the true-max path redoes the wave when they are out of range")
    jobs = {}; jobs0 = {}
    def add(i, t, xs): jobs.setdefault((i, t), []).extend(xs)
    for i in range(8):
        if cfg.prio == 1:
            for t, pr in ((1, 2), (3, 1), (5, 0), (7, 3)): add(i, t, [f"s_setprio {pr}"])
        if cfg.prio == 2:
            for t, pr in ((0, 2), (2, 1), (5, 0), (7, 3)): add(i, t, [f"s_setprio {pr}"])
        if cfg.prio == 3:
            for t, pr in ((2, 2), (4, 1), (6, 0), (7, 3)): add(i, t, [f"s_setprio {pr}"])
        if cfg.prio >= 100:
            pp = cfg.prio0 if i == 0 else cfg.prio
            drops = [(pp >> 8) & 15, (pp >> 4) & 15, pp & 15]
            for u, pr in zip(drops, (2, 1, 0)):
                if u & 1: add(i, u >> 1, [f"s_setprio {pr}"])
                else: jobs0.setdefault((i, u >> 1), []).append(f"s_setprio {pr}")
            add(i, 7, ["s_setprio 3"])
    def first_chunks(i, nm):
        def f(A):
            A(f"s_cmp_lt_u32 s{sWave}, 4")
            A(f"s_cbranch_scc1 L_skip_{nm}")
            if i == 1 or cfg.c1c:
                lstamp(A, cfg, 48)
                spin(A, "f1", F1LOAD, vPoll, 1)
                lstamp(A, cfg, 49)
            for x in kv_setup(i): A(x)
            for job in kv_jobs(i):
                for x in job: A(x)
            A(f"s_sub_u32 s{sCO}, s{sCO}, 16384")
            for job in kv_jobs(i, True):
                for x in job: A(x)
            A(f"L_skip_{nm}:")
        return f
    if cfg.uni:
        add(0, cfg.uni - 1, [F1LOAD])
        add(0, cfg.uni, [lambda A: lstamp(A, cfg, 48), lambda A: spin(A, "f1", F1LOAD, vPoll, 1), lambda A: lstamp(A, cfg, 49)]
            + kv_setup(1) + sum(kv_jobs(1), []))
    else:
        if not cfg.c1c: add(0, cfg.t_poll, [first_chunks(1, "c1")])
        add(0, cfg.t_c2, [first_chunks(2, "c2")])
    if cfg.uni:
        add(0, 6, [lambda A: lstamp(A, cfg, 50), "s_waitcnt vmcnt(0)", lambda A: lstamp(A, cfg, 51), "s_barrier", lambda A: lstamp(A, cfg, 52)])
    elif cfg.c1c:
        add(0, 6, [lambda A: lstamp(A, cfg, 50), f"s_cmp_ge_u32 s{sWave}, 4", "s_cbranch_scc1 L_nw1", "s_waitcnt vmcnt(0)", "L_nw1:",
                   lambda A: lstamp(A, cfg, 51), "s_barrier", lambda A: lstamp(A, cfg, 52)])
    else:
        add(0, 6, [lambda A: lstamp(A, cfg, 50), "s_waitcnt vmcnt(8)", lambda A: lstamp(A, cfg, 51), "s_barrier", lambda A: lstamp(A, cfg, 52)])
    for i in range(8): add(i, 7, ["s_waitcnt vmcnt(0)", "s_barrier"])
    for i in range(1, 6):
        J = kv_jobs(i + 2)
        if cfg.uni and i == 1:
            J2 = kv_jobs(2)
            add(1, 0, kv_setup(2) + J2[0] + J2[1]); add(1, 1, J2[2] + J2[3])
            add(1, 2, kv_setup(3) + J[0] + J[1]); add(1, 3, J[2] + J[3])
            add(1, 6, ["s_waitcnt vmcnt(6)", "s_barrier"])
            continue
        add(i, 0, kv_setup(i + 2) + J[0]); add(i, 1, J[1]); add(i, 2, J[2]); add(i, 3, J[3])
    wo = {1: [9, 10], 2: [11, 12], 3: [13, 14]}
    for i, js in wo.items():
        for n, j in enumerate(js): add(i, 4 + n, wo_job(j))
    Z2LOAD = f"buffer_load_dword v{vZ2}, v{vZA}, s[{sDBG}:{sDBG+3}], 0 offen offset:4 sc1"
    add(1, 6, [f"buffer_store_dwordx4 v[{vFill}:{vFill+3}], v{vL16}, s[{sWS}:{sWS+3}], s{sOst} offen sc1", f"s_add_u32 s{sJ}, s{sOst}, 65536",
               f"buffer_store_dwordx4 v[{vFill}:{vFill+3}], v{vL16}, s[{sWS}:{sWS+3}], s{sJ} offen sc1"])
    def setwait(i, n):
        k = jobs[(i, 7)].index("s_waitcnt vmcnt(0)")
        if n is None: del jobs[(i, 7)][k]
        else: jobs[(i, 7)][k] = f"s_waitcnt vmcnt({n})"
    setwait(1, 4); setwait(2, 2); setwait(3, 2); setwait(6, None)
    if cfg.tailbar:
        jobs[(7, 7)].remove("s_waitcnt vmcnt(0)"); jobs[(7, 7)].remove("s_barrier")
    jobs[(3, 0)][0:0] = [f"s_cmp_lg_u32 s{sWave}, 0", "s_cbranch_scc1 L_noz2c", f"s_and_b32 s{sJ}, s2, 1", f"s_lshl_b32 s{sJ}, s{sJ}, 7",
               "s_mov_b64 exec, 1", f"buffer_atomic_add v{vZ}, off, s[{sDBG}:{sDBG+3}], s{sJ} offset:4", "s_mov_b64 exec, -1", "L_noz2c:"]
    jobs[(5, 0)][0:0] = [f"s_cmp_eq_u32 s{sWave}, 0", "s_cselect_b32 exec_lo, 3, 0", "s_mov_b32 exec_hi, 0", Z2LOAD, "s_mov_b64 exec, -1"]
    jobs[(5, 7)][-1:-1] = [f"s_movk_i32 s{sJ}, 128", lambda A: spin(A, "z2", Z2LOAD, vZ2, f"s{sJ}", "gt")]
    for n, j in enumerate([0, 1, 2, 3]): add(6, n, wo_job(j))
    if cfg.zearly: add(6, 4, [lambda A: p2_setup(A, cfg, True)])
    for n, j in enumerate([4, 5, 6, 7, 8, 15]): add(7, n, wo_job(j))
    if cfg.align: A(f".p2align {cfg.align}, 0xbf800000" if False else f".p2alignl {cfg.align}, 0xbf800000")
    for _ in range(cfg.shift): A("s_nop 0")
    if cfg.c0st == 1: stamp(A, cfg, 1, True)
    A(rd('K', 0, 0)); A(rd('V0', 0, 0))
    A("s_waitcnt lgkmcnt(1)")
    if cfg.prio: A("s_setprio 3")
    A(f"{M32} {v(S_[0],16)}, {v(vKf,4)}, {v(vQ[0],4)}, 0")
    if cfg.sm:
        for q in (0, 1): A(f"{M32} {v(O_[q],16)}, {v(vZero,4)}, {v(vZero,4)}, 0")
        A("s_nop 7"); A("s_nop 1")
    else:
        A("s_nop 7"); A("s_nop 3")
    for i in range(8):
        for t in range(8):
            first = (i == 0 and t == 0); lastt = (i == 7 and t == 7)
            sA = [rd('V1', i, t)]
            sB = ["s_waitcnt lgkmcnt(1)"] + jobs0.get((i, t), []) + ([] if lastt else [rd('K', i, t + 1)])
            sC = ["s_waitcnt lgkmcnt(0)" if lastt else "s_waitcnt lgkmcnt(1)"]
            unit(A, 0, first, False, sA, sB, sC, first, cfg.order)
            sA = ["s_waitcnt lgkmcnt(0)"]
            sB = list(jobs.get((i, t), []))
            sC = [] if lastt else [rd('V0', i, t + 1)]
            unit(A, 1, False, lastt, sA, sB, sC, first, cfg.order)
            if cfg.c0st and i == cfg.c0st - 1: stamp(A, cfg, 2 + t, True)
        if i == 0: stamp(A, cfg, 4)
        if cfg.c0st and i == cfg.c0st - 2: stamp(A, cfg, 1, True)
        if i < 7: lstamp(A, cfg, 29 + i)
    if cfg.sm:
        A("s_nop 1")
        A(f"{SM} {v(O_[1],16)}, {v(vV1f,4)}, {v(S_[1]+8,8)}, v{vIdx}")
        return
    A("s_nop 0")
    A(f"v_cvt_pk_bf16_f32 v{P_+7}, v{S_[1]+14}, v{S_[1]+15}")
    A("s_nop 1")
    A(f"{M32} {v(O_[1],16)}, {v(vV1f,4)}, {v(P_+4,4)}, {v(O_[1],16)}")

def p2_check(A, cfg):
    if not cfg.slow: return
    A(f"s_mov_b32 s{sT+2}, {fbits(2.0**-24)}")
    A(f"s_mov_b32 s{sT+3}, {fbits(2.0**64)}")
    A(f"s_mov_b32 s{sT+4}, 0x7f800000")
    A("s_mov_b64 s[68:69], 0")
    for q in (0, 1):
        O = O_[q]
        if q == 1: A("s_nop 1")
        A(f"v_add_f32 v104, |v{O}|, |v{O+1}|")
        A(f"v_add_f32 v105, |v{O+2}|, |v{O+3}|")
        A(f"v_add_f32 v106, |v{O+4}|, |v{O+5}|")
        A(f"v_add_f32 v107, |v{O+6}|, |v{O+7}|")
        A(f"v_add_f32 v104, v104, v105")
        A(f"v_add_f32 v106, v106, v107")
        A(f"v_add_f32 v104, v104, v106")
        A(f"v_cmp_nle_f32 vcc, s{sT+2}, v{O+8}")
        A(f"s_or_b64 s[68:69], s[68:69], vcc")
        A(f"v_cmp_nge_f32 vcc, s{sT+3}, v{O+8}")
        A(f"s_or_b64 s[68:69], s[68:69], vcc")
        A(f"v_cmp_ngt_f32 vcc, s{sT+4}, v104")
        A(f"s_or_b64 s[68:69], s[68:69], vcc")
    if cfg.force_slow: A("s_mov_b64 s[68:69], -1")
    A("s_cmp_lg_u64 s[68:69], 0")
    A("s_cbranch_scc1 L_slow")
    A("L_slow_ret:")
    T = Asm()
    T("L_slow:")
    T.c("true-max (online softmax) path, wave-local, K/V fragments straight from the workspace")
    m_, al = [104, 105], 106
    T(f"s_lshl_b32 s{sT}, s{sPair}, 18")
    T(f"s_lshr_b32 s{sT+1}, s{sWave}, 2")
    T(f"s_lshl_b32 s{sT+1}, s{sT+1}, 14")
    T(f"s_add_u32 s{sT}, s{sT}, s{sT+1}")
    T("v_lshrrev_b32 v108, 5, v0")
    T("v_and_b32 v109, 15, v0")
    T("v_lshlrev_b32 v109, 4, v109")
    T("v_lshl_add_u32 v109, v108, 8, v109")
    T("v_and_b32 v108, 11, v0")
    T("v_cmp_eq_u32 vcc, 0, v108")
    T("v_mov_b32 v110, 0")
    T("v_mov_b32 v111, 0x3f803f80")
    T("v_cndmask_b32 v110, v110, v111, vcc")
    for i in range(8): T(f"v_mov_b32 v{vV0f+i}, v110")
    for q in (0, 1):
        T(f"v_mov_b32 v{m_[q]}, 0xff800000")
        for i in range(16): T(f"v_mov_b32 v{O_[q]+i}, 0")
    T(f"s_mov_b32 s{sT+2}, 0")
    T("L_slow_loop:")
    T(f"s_lshr_b32 s{sT+3}, s{sT+2}, 3")
    T(f"s_lshl_b32 s{sT+3}, s{sT+3}, 15")
    T(f"s_and_b32 s{sT+4}, s{sT+2}, 7")
    T(f"s_lshl_b32 s{sT+4}, s{sT+4}, 11")
    T(f"s_add_u32 s{sT+3}, s{sT+3}, s{sT+4}")
    T(f"s_add_u32 s{sT+3}, s{sT+3}, s{sT}")
    T(f"buffer_load_dwordx4 {v(vKf,4)}, v{vL16}, s[{sWS}:{sWS+3}], s{sT+3} offen sc1")
    T("s_mov_b32 exec_lo, 0xffff")
    T("s_mov_b32 exec_hi, 0xffff")
    T(f"buffer_load_dwordx4 {v(vV0f,4)}, v109, s[{sWS}:{sWS+3}], s{sT+3} offen offset:1024 sc1")
    T(f"buffer_load_dwordx4 {v(vV1f,4)}, v109, s[{sWS}:{sWS+3}], s{sT+3} offen offset:1536 sc1")
    T("s_mov_b64 exec, -1")
    T("s_waitcnt vmcnt(0)")
    for q in (0, 1):
        S, O, m = S_[q], O_[q], m_[q]
        T(f"{M32} {v(S,16)}, {v(vKf,4)}, {v(vQ[q],4)}, 0")
        T("s_nop 15"); T("s_nop 3")
        T(f"v_max3_f32 v107, v{S}, v{S+1}, v{m}")
        for i in range(1, 8): T(f"v_max3_f32 v107, v{S+2*i}, v{S+2*i+1}, v107")
        T("v_mov_b32 v108, v107")
        T("s_nop 1")
        T("v_permlane32_swap_b32 v107, v108")
        T("v_max_f32 v107, v107, v108")
        T(f"v_sub_f32 v{al}, v{m}, v107")
        T(f"v_exp_f32 v{al}, v{al}")
        T(f"v_mov_b32 v{m}, v107")
        for i in range(16): T(f"v_sub_f32 v{S+i}, v{S+i}, v107")
        for i in range(16): T(f"v_exp_f32 v{S+i}, v{S+i}")
        for i in range(9): T(f"v_mul_f32 v{O+i}, v{O+i}, v{al}")
        if cfg.sm:
            T("s_nop 1")
            T(f"{SM} {v(O,16)}, {v(vV0f,4)}, {v(S,8)}, v{vIdx}")
            T(f"{SM} {v(O,16)}, {v(vV1f,4)}, {v(S+8,8)}, v{vIdx}")
        else:
            for i in range(8): T(f"v_cvt_pk_bf16_f32 v{P_+i}, v{S+2*i}, v{S+2*i+1}")
            T("s_nop 1")
            T(f"{M32} {v(O,16)}, {v(vV0f,4)}, {v(P_,4)}, {v(O,16)}")
            T(f"{M32} {v(O,16)}, {v(vV1f,4)}, {v(P_+4,4)}, {v(O,16)}")
        T("s_nop 15"); T("s_nop 3")
    T(f"s_add_u32 s{sT+2}, s{sT+2}, 1")
    T(f"s_cmp_lt_u32 s{sT+2}, 64")
    T("s_cbranch_scc1 L_slow_loop")
    T("s_branch L_slow_ret")
    tails.append(T)

def p2_epilogue(A, cfg):
    A.c("---- normalise (gate factor / row sum), round, publish O fragments (the data is its own ready flag:")
    A.c("     the slots were filled with 0xffffffff earlier in this launch and no published word has that value)")
    if cfg.nocheck == 2:
        A("s_sleep 64")
    A(f"s_add_u32 s{sJ}, s{sOst}, 65536")
    A(f"s_mov_b32 s{sT}, 0xfffffffe")
    if cfg.zearly: A("s_waitcnt vmcnt(6)")
    for q in (0, 1): A(f"v_sub_f32 v{vGF[q]}, s{sGc}, v{vGF[q]}")
    for q in (0, 1): A(f"v_rcp_f32 v{104+2*q}, v{O_[q]+8}")
    for q in (0, 1):
        O = O_[q]
        A(f"v_mul_f32 v{104+2*q}, v{104+2*q}, |v{vGF[q]}|")
        A(f"v_mov_b32 v{105+2*q}, v{104+2*q}")
        for i in range(4): A(f"v_pk_mul_f32 {v(O+2*i,2)}, {v(O+2*i,2)}, {v(104+2*q,2)}")
        for i in range(4): A(f"v_cvt_pk_bf16_f32 v{108+4*q+i}, v{O+2*i}, v{O+2*i+1}")
        for i in range(4): A(f"v_min_u32 v{108+4*q+i}, s{sT}, v{108+4*q+i}")
        A(f"buffer_store_dwordx4 {v(108+4*q,4)}, v{vL16}, s[{sWS}:{sWS+3}], s{sOst if q == 0 else sJ} offen sc1")
    lstamp(A, cfg, 44)

OF, AC, WFR = 128, [32, 48], [64, 72, 80, 88]
PS = 272
def p3(A, cfg):
    A.c("---- phase 3: out tile 64x64 = [gA*OA | gB*OB] @ [WoA ; WoB]")
    LA = cfg.la
    ld = lambda hh, sc=" sc1": f"buffer_load_dwordx4 {v(OF+4*hh,4)}, v4, s[{sWS}:{sWS+3}], s{8+hh//4} offen offset:{(hh%4)*1024}{sc}"
    SC1 = {0: " sc1", 1: "", 2: " nt", 3: " sc0"}[cfg.bulk]
    def rdw(hh):
        F = WFR[hh % 4]
        return [f"ds_read_b64_tr_b16 {v(F,2)}, v2 offset:{hh*2048}", f"ds_read_b64_tr_b16 {v(F+2,2)}, v2 offset:{hh*2048+1024}",
                f"ds_read_b64_tr_b16 {v(F+4,2)}, v3 offset:{hh*2048}", f"ds_read_b64_tr_b16 {v(F+6,2)}, v3 offset:{hh*2048+1024}"]
    def addr():
        A("v_lshrrev_b32 v16, 5, v0")
        A("v_lshlrev_b32 v16, 2, v16")
        A("v_bfe_u32 v17, v0, 2, 2")
        A("v_add_u32 v16, v16, v17")
        A("v_lshlrev_b32 v16, 7, v16")
        A("v_bfe_u32 v17, v0, 4, 1")
        A("v_lshlrev_b32 v17, 1, v17")
        A("v_bfe_u32 v18, v0, 1, 1")
        A("v_add_u32 v17, v17, v18")
        A("v_bfe_u32 v18, v0, 3, 1")
        A("v_lshlrev_b32 v18, 2, v18")
        A("v_xor_b32 v17, v17, v18")
        A("v_lshl_add_u32 v16, v17, 4, v16")
        A("v_and_b32 v17, 1, v0")
        A("v_lshl_add_u32 v16, v17, 3, v16")
        A(f"s_lshr_b32 s{sT+4}, s{sWave}, 1")
        A(f"s_lshl_b32 s{sT+5}, s{sT+4}, 15")
        A(f"s_add_u32 s{sT+5}, s{sT+5}, {WO}")
        A(f"v_add_u32 v2, s{sT+5}, v16")
        A("v_xor_b32 v3, 64, v2")
        A("v_and_b32 v16, 31, v0")
        A(f"s_and_b32 s{sT}, s{sWave}, 1")
        A(f"s_lshl_b32 s{sT}, s{sT}, 5")
        A(f"s_lshl_b32 s{sT+1}, s{sT+4}, 6")
        A(f"s_add_u32 s{sT}, s{sT}, s{sT+1}")
        A(f"v_add_u32 v16, s{sT}, v16")
        A(f"v_mul_u32_u24 v16, {PS}, v16")
        A("v_lshrrev_b32 v17, 5, v0")
        A("v_lshl_add_u32 v6, v17, 4, v16")
        A("v_lshrrev_b32 v16, 3, v0")
        A(f"s_lshl_b32 s{sT}, s{sWave}, 3")
        A(f"v_add_u32 v16, s{sT}, v16")
        A(f"v_mul_u32_u24 v7, {PS}, v16")
        A("v_and_b32 v17, 7, v0")
        A("v_lshl_add_u32 v7, v17, 5, v7")
        A("v_lshlrev_b32 v16, 10, v16")
        A("v_lshl_add_u32 v8, v17, 4, v16")
    for i in range(4): A(f"s_add_u32 s{8+i}, s{sOld}, {4096*i}")
    A(f"s_mov_b32 s{sSpin}, {SPIN_MAX}")
    A(f"v_mov_b32 v4, v{vL16}")
    if cfg.nocheck == 3:
        A("s_sleep 80")
        stamp(A, cfg, 7)
    for hh in range(LA): A(ld(hh, SC1))
    addr()
    lstamp(A, cfg, 55)
    A(f"s_waitcnt vmcnt({2 + LA})")
    A("s_barrier")
    lstamp(A, cfg, 56)
    for x in rdw(0) + rdw(1): A(x)
    A.c("a fragment that still holds fill words is fetched again (with the ones behind it)")
    for hh in range(16):
        F = WFR[hh % 4]; o = OF + 4 * hh
        A(f"L_ostep{hh}:")
        A(f"s_waitcnt vmcnt({min(LA - 1, 15 - hh)})")
        A(f"v_max3_u32 v10, v{o}, v{o+1}, v{o+2}")
        A(f"v_max_u32 v10, v10, v{o+3}")
        A("v_cmp_eq_u32 vcc, -1, v10")
        A(f"s_waitcnt lgkmcnt({4 if hh < 15 else 0})")
        if not cfg.nocheck: A(f"s_cbranch_vccnz L_oretry{hh}")
        A(f"L_ogo{hh}:")
        A(f"{M32} {v(AC[0],16)}, {v(F,4)}, {v(o,4)}, {'0' if hh == 0 else v(AC[0],16)}")
        if hh + LA < 16: A(ld(hh + LA, SC1))
        R = rdw(hh + 2) if hh + 2 < 16 else []
        for x in R[:2]: A(x)
        A(f"{M32} {v(AC[1],16)}, {v(F+4,4)}, {v(o,4)}, {'0' if hh == 0 else v(AC[1],16)}")
        for x in R[2:]: A(x)
        T = Asm()
        T(f"L_oretry{hh}:")
        T(f"s_sub_u32 s{sSpin}, s{sSpin}, 1")
        T(f"s_cmp_gt_i32 s{sSpin}, 0")
        T(f"s_cbranch_scc0 L_ogo{hh}")
        T("s_waitcnt vmcnt(0)")
        if cfg.rsleep: T(f"s_sleep {cfg.rsleep}")
        for h2 in range(hh, min(16, hh + LA)): T(ld(h2))
        T(f"s_branch L_ostep{hh}")
        tails.append(T)
    stamp(A, cfg, 8)
    lstamp(A, cfg, 41)
    if cfg.stamps == 4:
        A(f"s_sub_u32 s80, {SPIN_MAX + 1000}, s{sSpin}")
        A("v_writelane_b32 v31, s80, 53")
    A("s_barrier")
    A("s_nop 7")
    A("s_nop 1")
    for rq in range(4):
        A(f"ds_write_b128 v6, {v(AC[0]+4*rq,4)} offset:{rq*32}")
    for rq in range(4):
        A(f"ds_write_b128 v6, {v(AC[1]+4*rq,4)} offset:{128 + rq*32}")
    A("s_waitcnt lgkmcnt(0)")
    lstamp(A, cfg, 42)
    A("s_barrier")
    lstamp(A, cfg, 43)
    for kq in range(4):
        A(f"ds_read_b128 {v(64+8*kq,4)}, v7 offset:{kq*64*PS}")
        A(f"ds_read_b128 {v(68+8*kq,4)}, v7 offset:{kq*64*PS+16}")
    A("s_waitcnt lgkmcnt(4)")
    for i in range(4): A(f"v_pk_add_f32 {v(64+2*i,2)}, {v(64+2*i,2)}, {v(72+2*i,2)}")
    A("s_waitcnt lgkmcnt(0)")
    for i in range(4): A(f"v_pk_add_f32 {v(80+2*i,2)}, {v(80+2*i,2)}, {v(88+2*i,2)}")
    for i in range(4): A(f"v_pk_add_f32 {v(64+2*i,2)}, {v(64+2*i,2)}, {v(80+2*i,2)}")
    for i in range(4): A(f"v_cvt_pk_bf16_f32 v{96+i}, v{64+2*i}, v{65+2*i}")
    A(f"buffer_store_dwordx4 v[96:99], v8, s[{sOUT}:{sOUT+3}], s{sOut} offen" + ["", " sc1", " nt", " sc0 sc1", " sc1 nt"][cfg.outsc])

def build(cfg):
    tails.clear()
    XSWAP[0] = cfg.xswap
    PVSWAP[0] = cfg.pvswap
    SMUSE[0] = cfg.sm
    ONES[0] = cfg.ones
    name = KN + "_kernel"
    A = Asm(); kernel_head(A, name)
    prologue(A, cfg)
    p1_compute(A, cfg)
    stamp(A, cfg, 2)
    lstamp(A, cfg, 27)
    p1_compute_epilogue(A, cfg)
    A("s_branch L_attn")
    A("L_loader:")
    p1_loader(A, cfg)
    stamp(A, cfg, 2)
    if cfg.c1c: p2_setup(A, cfg)
    A("L_attn:")
    if cfg.dbl: A("s_memrealtime s[82:83]")
    stamp(A, cfg, 3)
    lstamp(A, cfg, 28)
    if not cfg.c1c: p2_setup(A, cfg)
    p2_main(A, cfg)
    stamp(A, cfg, 5)
    lstamp(A, cfg, 37)
    if cfg.dbl: A("s_memrealtime s[86:87]")
    p2_check(A, cfg)
    p2_epilogue(A, cfg)
    stamp(A, cfg, 6)
    p3(A, cfg)
    stamp_store(A, cfg, 10 if cfg.c0st else 9)
    if cfg.dbl:
        A("s_cmp_lg_u32 s2, 0")
        A("s_cbranch_scc1 L_end")
        A("s_waitcnt vmcnt(0)")
        A("s_memrealtime s[84:85]")
        A("s_waitcnt lgkmcnt(0)")
        a, b = {1: (80, 84), 2: (80, 82), 3: (82, 86), 4: (86, 84)}[cfg.dbl]
        A(f"s_sub_u32 s88, s{b}, s{a}")
        A("s_add_u32 s88, s88, s84")
        A("L_dbl:")
        A("s_memrealtime s[90:91]")
        A("s_waitcnt lgkmcnt(0)")
        A("s_sub_u32 s89, s90, s88")
        A("s_cmp_lt_i32 s89, 0")
        A("s_cbranch_scc1 L_dbl")
    A("L_end:")
    A("s_endpgm")
    txt = A.text() + "".join(t.text() for t in tails)
    hdr = f"""; gated dual multi-head attention block: one persistent launch, 256 workgroups (one per CU)
; @launch grid=(256,1,1) block=(512,1,1) lds={LDS_TOTAL}
.amdgcn_target "amdgcn-amd-amdhsa--gfx950"
"""
    return hdr + txt + kernel_desc(name, 256)

if __name__ == "__main__":
    import sys
    cfg = Cfg()
    for a in sys.argv[2:]:
        k_, v_ = a.split("=")
        setattr(cfg, k_, int(v_, 0))
    open(sys.argv[1], "w").write(build(cfg))
```

```python
from base import *
import math, struct

KN = "gated_mix__softmax_full_mha__mha_block__prompt"
sX, sW, sG, sWS, sWOA, sWOB, sOUT, sDBG = 24, 28, 32, 36, 40, 44, 48, 52
sWave, sSlab, sPair, sKC, sRG = 56, 57, 58, 59, 60
sSpin = 61
sT = 62
sXb, sXo, sWb_, sWo, sK2, sM = 70, 71, 72, 73, 74, 75
sCH, sCO, sMB, sWoG, sWoM, sJ = 70, 71, 72, 73, 74, 75
sS3, sR3, sC3, sF = 76, 77, 78, 79
WS_KV, WS_O, WS_F1, WS_F2, WS_ST, WS_SIZE = 0, 8 << 20, 12 << 20, (12 << 20) + 16384, 22 << 20, 24 << 20
WS_G = (12 << 20) + 32768
XS, WB, GW, QX, GV = 32768, 98304, 135168, 69632, 77824
XB = {0: 32768, 1: 0, 2: 65536}
SLOT, REC, HSTR = 33280, 2080, 16640
SA, SB, SC = 0, 33280, 130560
WO = 0
LDS_TOTAL = 163840
LOG2E = math.log2(math.e)
QSCALE = 0.25 * LOG2E
SPIN_MAX = 200000
def fbits(x): return hex(struct.unpack("<I", struct.pack("<f", x))[0])
vKL, vV0L, vV1L, vKH, vV0H, vV1H, vL16, vWoD, vPA, vPoll = range(240, 250)
vGF = [250, 251]
vZ = 252
vZA, vZ2 = 254, 255
vGA, vFill, sGo = 253, 232, 3
vIdx, vZero, vKP = 231, 236, 230
SM = "v_smfmac_f32_32x32x32_bf16"
sOst, sOld, sOut, sGc = 4, 5, 6, 7

class Cfg:
    lr = 2
    prio = 0x6BE
    p1prio = 1
    prio0 = 0x37B
    stamps = 0
    slow = 1
    force_slow = 0
    t_poll = 3
    dotmode = 4
    p1pipe = 0
    n_z = 21
    rot = 23
    tailbar = 1
    prog = 32
    bulk = 0
    early = 5
    la = 4
    korder = 1
    t_load = 2
    zld = 1
    sm = 1
    wfull = 0
    zearly = 0
    noz = 0
    n_add = 8
    wpf3 = 0
    prot = 0
    uni = 0
    c1c = 0
    t_c2 = 4
    c0st = 0
    pvswap = 0
    ones = 0
    xswap = 1
    nocheck = 0
    late1 = 0
    c2c = 0
    spf = 0
    spfe = 1
    spfw = 0
    p1x = 0
    dbl = 0
    order = 0
    align = 0
    shift = 0
    outsc = 3
    rsleep = 0
    ethr = 32
    spindepth = 0
    sspread = 1
    spinsleep = 0
    wpf2 = 0
    epi2 = 1
    wfirst = 0
    l2pf = 0
    pfoff = 0
    epist = 0
    t16 = 0
    wpf = 0

def stamp(A, cfg, i, force=False):
    if cfg.c0st and not force and i not in (0, 10): return
    if cfg.stamps in (1, 3): A(f"s_memrealtime s[{80+2*i}:{81+2*i}]")
    if cfg.stamps == 2: A(f"s_memtime s[{80+2*i}:{81+2*i}]")
def lstamp(A, cfg, i):
    if cfg.stamps == 4:
        A("s_memrealtime s[80:81]")
        A("s_waitcnt lgkmcnt(0)")
        A(f"v_writelane_b32 v31, s80, {i}")
def stamp_store(A, cfg, n):
    if not cfg.stamps: return
    if cfg.stamps == 4:
        A("s_waitcnt vmcnt(0)")
        lstamp(A, cfg, 40)
        A(f"s_lshl_b32 s{sT}, s2, 3")
        A(f"s_add_u32 s{sT}, s{sT}, s{sWave}")
        A(f"s_lshl_b32 s{sT}, s{sT}, 8")
        A(f"s_add_u32 s{sT}, s{sT}, {WS_ST}")
        A("v_lshlrev_b32 v1, 2, v0")
        A(f"buffer_store_dword v31, v1, s[{sWS}:{sWS+3}], s{sT} offen")
        return
    A("s_waitcnt vmcnt(0)")
    stamp(A, cfg, n)
    A("s_waitcnt lgkmcnt(0)")
    if cfg.stamps == 3:
        A("s_mov_b64 exec, 1")
        A(f"s_not_b32 s{sT}, s80")
        A(f"v_mov_b32 v2, s{sT}")
        A(f"buffer_atomic_umax v2, off, s[{sDBG}:{sDBG+3}], 0 offset:8")
        for i in range(n + 1):
            A(f"v_mov_b32 v{3+i}, s{80+2*i}")
            A(f"buffer_atomic_umax v{3+i}, off, s[{sDBG}:{sDBG+3}], 0 offset:{12+4*i}")
        return
    A(f"s_lshl_b32 s{sT}, s2, 3")
    A(f"s_add_u32 s{sT}, s{sT}, s{sWave}")
    A(f"s_lshl_b32 s{sT}, s{sT}, 6")
    A(f"s_add_u32 s{sT}, s{sT}, {WS_ST}")
    A("v_mov_b32 v1, 0")
    for i in range(n + 1):
        A(f"v_mov_b32 v2, s{80+2*i}")
        A(f"buffer_store_dword v2, v1, s[{sWS}:{sWS+3}], s{sT} offen offset:{4*i}")
        A("s_nop 1")

def prologue(A, cfg):
    if cfg.dbl: A("s_memrealtime s[80:81]")
    stamp(A, cfg, 0)
    if cfg.stamps == 4: A("v_mov_b32 v31, 0")
    lstamp(A, cfg, 0)
    A("s_cmp_ge_u32 s2, 256")
    A("s_cbranch_scc1 L_end")
    A("s_load_dwordx16 s[4:19], s[0:1], 0")
    A("s_load_dwordx4 s[20:23], s[0:1], 64")
    A("v_lshrrev_b32 v1, 6, v0")
    A("v_and_b32 v0, 63, v0")
    A(f"v_readfirstlane_b32 s{sWave}, v1")
    lr = cfg.lr
    A(f"s_and_b32 s{sT}, s2, {(8 >> lr) - 1}")
    A(f"s_lshl_b32 s{sT}, s{sT}, {lr}")
    A(f"s_lshr_b32 s{sT+1}, s2, 3")
    A(f"s_and_b32 s{sT+2}, s{sT+1}, {(1 << lr) - 1}")
    A(f"s_or_b32 s{sSlab}, s{sT}, s{sT+2}")
    A(f"s_and_b32 s{sT}, s2, 7")
    A(f"s_lshr_b32 s{sT}, s{sT}, {3 - lr}")
    A(f"s_lshl_b32 s{sT}, s{sT}, {5 - lr}")
    A(f"s_lshr_b32 s{sT+1}, s{sT+1}, {lr}")
    if cfg.prot:
        A(f"s_add_u32 s{sT+1}, s{sT+1}, {cfg.prot}")
        A(f"s_and_b32 s{sT+1}, s{sT+1}, {(32 >> lr) - 1}")
    A(f"s_add_u32 s{sPair}, s{sT}, s{sT+1}")
    if cfg.rot == 0:
        A(f"s_add_u32 s{sKC}, s{sPair}, s{sSlab}")
    elif cfg.rot == 1:
        A(f"s_lshl_b32 s{sKC}, s{sSlab}, 1")
        A(f"s_add_u32 s{sKC}, s{sKC}, s{sPair}")
    elif cfg.rot == 2:
        A(f"s_and_b32 s{sKC}, s2, 6")
        A(f"s_and_b32 s{sT}, s2, 1")
        A(f"s_lshl_b32 s{sT}, s{sT}, 2")
        A(f"s_add_u32 s{sKC}, s{sKC}, s{sT}")
    elif cfg.rot == 3:
        A(f"s_mov_b32 s{sKC}, 0")
    elif cfg.rot == 4:
        A(f"s_and_b32 s{sKC}, s2, 6")
        A(f"s_add_u32 s{sT}, s{sPair}, s{sSlab}")
        A(f"s_and_b32 s{sT}, s{sT}, 1")
        A(f"s_lshl_b32 s{sT}, s{sT}, 2")
        A(f"s_add_u32 s{sKC}, s{sKC}, s{sT}")
    elif cfg.rot == 5:
        A(f"s_add_u32 s{sT}, s{sPair}, s{sSlab}")
        A(f"s_and_b32 s{sT}, s{sT}, 3")
        A(f"s_lshl_b32 s{sT}, s{sT}, 1")
        A(f"s_and_b32 s{sKC}, s2, 1")
        A(f"s_add_u32 s{sKC}, s{sKC}, s{sT}")
    elif cfg.rot == 6:
        A(f"s_bfe_u32 s{sKC}, s2, 0x20001")
        A(f"s_add_u32 s{sT}, s{sPair}, s{sSlab}")
        A(f"s_and_b32 s{sT}, s{sT}, 1")
        A(f"s_lshl_b32 s{sT}, s{sT}, 2")
        A(f"s_add_u32 s{sKC}, s{sKC}, s{sT}")
    elif cfg.rot == 7:
        A(f"s_add_u32 s{sT}, s{sPair}, s{sSlab}")
        A(f"s_and_b32 s{sT}, s{sT}, 1")
        A(f"s_lshl_b32 s{sKC}, s{sT}, 2")
    elif cfg.rot == 8:
        A(f"s_and_b32 s{sKC}, s2, 6")
        A(f"s_add_u32 s{sT}, s{sPair}, s{sSlab}")
        A(f"s_and_b32 s{sT}, s{sT}, 1")
        A(f"s_lshl_b32 s{sT}, s{sT}, 1")
        A(f"s_add_u32 s{sKC}, s{sKC}, s{sT}")
    elif cfg.rot == 9:
        A(f"s_and_b32 s{sKC}, s2, 3")
        A(f"s_add_u32 s{sT}, s{sPair}, s{sSlab}")
        A(f"s_and_b32 s{sT}, s{sT}, 1")
        A(f"s_lshl_b32 s{sT}, s{sT}, 2")
        A(f"s_add_u32 s{sKC}, s{sKC}, s{sT}")
    elif cfg.rot in (16, 17, 18) or cfg.rot >= 19:
        pass
    elif cfg.rot in (10, 11, 13, 14, 15):
        if cfg.rot in (10, 11): A(f"s_add_u32 s{sT}, s{sPair}, s{sSlab}")
        elif cfg.rot == 13: A(f"s_mov_b32 s{sT}, s{sSlab}")
        elif cfg.rot == 14: A(f"s_mov_b32 s{sT}, s{sPair}")
        elif cfg.rot == 15:
            A(f"s_lshr_b32 s{sT}, s{sPair}, 1")
            A(f"s_add_u32 s{sT}, s{sT}, s{sSlab}")
        A(f"s_and_b32 s{sT}, s{sT}, 3")
        A(f"s_lshl_b32 s{sT}, s{sT}, 1")
        if cfg.rot == 10: A(f"s_bfe_u32 s{sKC}, s2, 0x10001")
        elif cfg.rot == 11: A(f"s_mov_b32 s{sKC}, 0")
        else: A(f"s_and_b32 s{sKC}, s2, 1")
        A(f"s_add_u32 s{sKC}, s{sKC}, s{sT}")
    if cfg.rot not in (16, 17, 18) and cfg.rot < 19: A(f"s_and_b32 s{sKC}, s{sKC}, 7")
    A(f"s_and_b32 s{sRG}, s{sWave}, 3")
    A(f"s_cmp_ge_u32 s{sWave}, 4")
    A("s_cbranch_scc1 L_loader")

XSWAP = [0]
PVSWAP = [0]
SMUSE = [0]
ONES = [0]
def late_srds(A):
    srd(A, sWS, 22, 23, WS_SIZE)
    srd(A, sWOA, 8, 9, 512 * 512 * 2)
    srd(A, sWOB, 14, 15, 512 * 512 * 2)
    srd(A, sOUT, 18, 19, 2048 * 512 * 2)
    srd(A, sDBG, 20, 21, 256)
    if XSWAP[0]:
        A.c("output slab: one this XCD group does not produce itself (speed only)")
        A(f"s_bfe_u32 s{sS3}, s2, 0x20001")
        A(f"s_andn2_b32 s{sR3}, 1, s2")
        A(f"s_lshl_b32 s{sR3}, s{sR3}, 2")
        A(f"s_add_u32 s{sS3}, s{sS3}, s{sR3}")
    else:
        A(f"s_and_b32 s{sS3}, s2, 7")
    A(f"s_bfe_u32 s{sR3}, s2, 0x20003")
    A(f"s_lshr_b32 s{sC3}, s2, 5")
    A(f"s_lshl_b32 s{sF}, s{sPair}, 2")
    A(f"s_add_u32 s{sF}, s{sF}, s{sRG}")
    A(f"s_lshl_b32 s{sF}, s{sF}, 7")
    A(f"s_add_u32 s{sF}, s{sF}, {WS_F1}")
    A.c("scalars of the tail (s4..s7: their pointers are dead by now)")
    A(f"s_lshl_b32 s{sT}, s{sSlab}, 2")
    A(f"s_add_u32 s{sT}, s{sT}, s{sRG}")
    A(f"s_lshl_b32 s{sT}, s{sT}, 17")
    A(f"s_lshl_b32 s{sT+1}, s{sPair}, 1")
    A(f"s_lshr_b32 s{sT+2}, s{sWave}, 2")
    A(f"s_add_u32 s{sT+1}, s{sT+1}, s{sT+2}")
    A(f"s_lshl_b32 s{sT+1}, s{sT+1}, 10")
    A(f"s_add_u32 s{sT}, s{sT}, s{sT+1}")
    A(f"s_add_u32 s{sOst}, s{sT}, {WS_O}")
    A(f"s_lshl_b32 s{sT}, s{sS3}, 3")
    A(f"s_lshl_b32 s{sT+1}, s{sR3}, 1")
    A(f"s_add_u32 s{sT}, s{sT}, s{sT+1}")
    A(f"s_and_b32 s{sT+1}, s{sWave}, 1")
    A(f"s_add_u32 s{sT}, s{sT}, s{sT+1}")
    A(f"s_lshl_b32 s{sT}, s{sT}, 16")
    A(f"s_lshr_b32 s{sT+1}, s{sWave}, 1")
    A(f"s_lshl_b32 s{sT+1}, s{sT+1}, 14")
    A(f"s_add_u32 s{sT}, s{sT}, s{sT+1}")
    A(f"s_add_u32 s{sOld}, s{sT}, {WS_O}")
    A(f"s_lshl_b32 s{sT}, s{sS3}, 8")
    A(f"s_lshl_b32 s{sT+1}, s{sR3}, 6")
    A(f"s_add_u32 s{sT}, s{sT}, s{sT+1}")
    A(f"s_lshl_b32 s{sT}, s{sT}, 10")
    A(f"s_lshl_b32 s{sT+1}, s{sC3}, 7")
    A(f"s_add_u32 s{sOut}, s{sT}, s{sT+1}")
    A(f"s_lshr_b32 s{sGc}, s{sPair}, 4")
    A(f"s_mul_i32 s{sGc}, s{sGc}, 0x3f800000")

def xfrag_addr(A, L, H, t):
    A(f"v_and_b32 v{t}, 31, v0")
    A(f"v_lshrrev_b32 v{t+1}, 5, v0")
    A(f"v_bfe_u32 v{t+2}, v0, 1, 3")
    A(f"v_xor_b32 v{t+2}, v{t+2}, v{t+1}")
    A(f"v_lshlrev_b32 v{t}, 7, v{t}")
    A(f"s_lshl_b32 s{sT}, s{sRG}, 13")
    A(f"v_add_u32 v{t}, s{sT}, v{t}")
    for j in range(4):
        A(f"v_xor_b32 v{t+1}, {2*j}, v{t+2}")
        A(f"v_lshl_add_u32 v{L[j]}, v{t+1}, 4, v{t}")
        A(f"v_add_u32 v{H[j]}, 0x10000, v{L[j]}")

def p2_addr(A):
    A(f"v_lshlrev_b32 v{vL16}, 4, v0")
    A(f"s_lshr_b32 s{sT}, s{sWave}, 2")
    A(f"s_mul_i32 s{sT}, s{sT}, {HSTR}")
    A(f"v_add_u32 v{vKL}, s{sT}, v{vL16}")
    A("v_lshrrev_b32 v104, 5, v0")
    A("v_and_b32 v105, 15, v0")
    A("v_lshlrev_b32 v105, 4, v105")
    A("v_lshl_add_u32 v105, v104, 8, v105")
    A("v_add_u32 v105, 1024, v105")
    A("v_add_u32 v106, 512, v105")
    A("v_and_b32 v104, 11, v0")
    A("v_cmp_eq_u32 vcc, 0, v104")
    A("v_mov_b32 v107, " + ("2048" if ONES[0] == 1 else "2064"))
    A("v_mov_b32 v108, " + ("2064" if ONES[0] == 2 else "2048"))
    A("v_cndmask_b32 v107, v107, v108, vcc")
    A("v_and_b32 v104, 16, v0")
    A("v_cmp_eq_u32 vcc, 0, v104")
    A("s_nop 1")
    A("v_cndmask_b32 v105, v107, v105, vcc")
    A("v_cndmask_b32 v106, v107, v106, vcc")
    A(f"v_add_u32 v{vV0L}, s{sT}, v105")
    A(f"v_add_u32 v{vV1L}, s{sT}, v106")
    A(f"v_add_u32 v{vKH}, {SC}, v{vKL}")
    A(f"v_add_u32 v{vV0H}, {SC}, v{vV0L}")
    A(f"v_add_u32 v{vV1H}, {SC}, v{vV1L}")
    A("v_lshrrev_b32 v104, 3, v0")
    A("v_lshlrev_b32 v104, 10, v104")
    A("v_and_b32 v105, 7, v0")
    A(f"v_lshlrev_b32 v{vPA}, 2, v105")
    A("v_bfe_u32 v106, v0, 4, 1")
    A("v_lshlrev_b32 v106, 2, v106")
    A("v_xor_b32 v105, v105, v106")
    A(f"v_lshl_add_u32 v{vWoD}, v105, 4, v104")

def consts(A, slots):
    A("v_lshrrev_b32 v104, 4, v0")
    A(f"v_mul_u32_u24 v104, {slots[-1] - slots[0]}, v104")
    A("v_and_b32 v105, 15, v0")
    A(f"v_mul_u32_u24 v105, {REC}, v105")
    A("v_add_u32 v104, v104, v105")
    if slots[0]: A(f"v_add_u32 v104, {slots[0]}, v104")
    for i in range(4):
        A(f"v_mov_b32 v{108+i}, 0x3f803f80")
        A(f"v_mov_b32 v{112+i}, 0")
    n = 16 * len(slots)
    A(f"s_mov_b32 exec_lo, {hex((1 << min(n,32)) - 1)}")
    A(f"s_mov_b32 exec_hi, {hex((1 << max(n-32,0)) - 1)}")
    A("ds_write_b128 v104, v[108:111] offset:2048")
    A("ds_write_b128 v104, v[112:115] offset:2064")
    A("s_mov_b64 exec, -1")

tails = []
def spin(A, name, load, reg, val, cmp="ne", sleep=0, depth=0):
    A("s_waitcnt vmcnt(0)")
    A(f"v_cmp_{cmp}_u32 vcc, {val}, v{reg}")
    A("s_nop 0")
    A(f"s_cbranch_vccnz L_spin_{name}")
    A(f"L_ret_{name}:")
    T = Asm()
    T(f"L_spin_{name}:")
    T(f"s_mov_b32 s{sSpin}, {SPIN_MAX}")
    for _ in range(depth):
        T(load)
        if sleep: T(f"s_sleep {sleep}")
    T(f"L_spinl_{name}:")
    if sleep: T(f"s_sleep {sleep}")
    T(load)
    T(f"s_sub_u32 s{sSpin}, s{sSpin}, 1")
    T(f"s_cbranch_scc1 L_ret_{name}")
    T(f"s_waitcnt vmcnt({depth})")
    T(f"v_cmp_{cmp}_u32 vcc, {val}, v{reg}")
    T("s_nop 0")
    T(f"s_cbranch_vccnz L_spinl_{name}")
    T(f"s_branch L_ret_{name}")
    tails.append(T)

vXL, vXH = [2, 3, 4, 5], [6, 7, 8, 9]
vWa, vWb, vWv = 10, 11, 12
ACC = dict(QKa0=32, QKa1=48, QKb0=64, QKb1=80, VV0=96, VV1=112)
FR = [128, 148]
vQ = [8, 12]
F1LOAD = f"buffer_load_dword v{vPoll}, v{vPA}, s[{sWS}:{sWS+3}], s{sF} offen sc1"
SAMPLE = f"buffer_load_dword v28, v5, s[{sWS}:{sWS+3}], s{sOld} offen sc1"
ZLOAD = f"buffer_load_dword v{vZ}, v{vPoll}, s[{sDBG}:{sDBG+3}], 0 offen sc1"

def l2_prefetch(A, cfg):
    assert cfg.lr == 2
    A(f"s_cmp_lt_u32 s{sPair}, 16")
    A(f"s_cselect_b32 s{sW}, s6, s12")
    A(f"s_cselect_b32 s{sW+1}, s7, s13")
    A(f"s_mov_b32 s{sW+2}, {hex(512*1536*2)}")
    A(f"s_mov_b32 s{sW+3}, 0x20000")
    A(f"s_lshl_b32 s{sT}, s{sWave}, 1")
    A(f"s_add_u32 s{sT}, s{sT}, s{sKC}")
    A(f"s_add_u32 s{sT}, s{sT}, {cfg.pfoff}")
    A("v_lshrrev_b32 v46, 5, v0")
    A(f"v_add_u32 v46, s{sT}, v46")
    A("v_and_b32 v46, 7, v46")
    A("v_and_b32 v47, 31, v0")
    A(f"s_lshr_b32 s{sT+1}, s2, 3")
    A(f"s_and_b32 s{sT+2}, s2, 1")
    A(f"s_lshl_b32 s{sT+2}, s{sT+2}, 20")
    A(f"s_lshl_b32 s{sT+3}, s{sT+1}, 15")
    A(f"s_add_u32 s{sT+2}, s{sT+2}, s{sT+3}")
    A("v_lshlrev_b32 v48, 10, v47")
    A("v_lshl_add_u32 v48, v46, 7, v48")
    A(f"buffer_load_dword v200, v48, s[{sX}:{sX+3}], s{sT+2} offen")
    A(f"s_mul_i32 s{sT+1}, s{sT+1}, 24")
    A("v_min_u32 v47, 23, v47")
    A(f"v_add_u32 v47, s{sT+1}, v47")
    A("v_mul_u32_u24 v48, 0x5556, v47")
    A("v_lshrrev_b32 v48, 18, v48")
    A("v_mul_u32_u24 v49, 12, v48")
    A("v_sub_u32 v49, v47, v49")
    A("v_lshl_add_u32 v48, v46, 6, v48")
    A("v_mul_u32_u24 v48, 3072, v48")
    A("v_lshrrev_b32 v47, 2, v49")
    A("v_lshl_add_u32 v48, v47, 10, v48")
    A("v_and_b32 v49, 3, v49")
    A("v_lshl_add_u32 v48, v49, 7, v48")
    A(f"s_and_b32 s{sT+1}, s{sPair}, 8")
    A(f"s_lshl_b32 s{sT+1}, s{sT+1}, 6")
    A(f"buffer_load_dword v201, v48, s[{sW}:{sW+3}], s{sT+1} offen")

def w_prefetch(A, cfg):
    assert cfg.lr == 2
    A(f"s_cmp_lt_u32 s{sPair}, 16")
    A(f"s_cselect_b32 s{sW}, s6, s12")
    A(f"s_cselect_b32 s{sW+1}, s7, s13")
    A(f"s_mov_b32 s{sW+2}, {hex(512*1536*2)}")
    A(f"s_mov_b32 s{sW+3}, 0x20000")
    A(f"s_and_b32 s{sT+1}, s{sPair}, 14")
    A(f"s_lshl_b32 s{sT+1}, s{sT+1}, 6")
    if cfg.wpf2 < 10:
        A(f"s_add_u32 s{sT+3}, s{sW}, s{sT+1}")
        A(f"s_bfe_u32 s{sT+3}, s{sT+3}, 0x30007")
    A(f"s_and_b32 s{sT}, s{sSlab}, 3")
    A(f"s_lshl_b32 s{sT}, s{sT}, 1")
    A(f"s_and_b32 s{sT+2}, s{sPair}, 1")
    A(f"s_add_u32 s{sT}, s{sT}, s{sT+2}")
    A(f"s_add_u32 s{sT}, s{sT}, s{sKC}")
    A(f"s_and_b32 s{sT}, s{sT}, 7")
    A(f"s_mul_i32 s{sT}, s{sT}, 196608")
    A(f"s_add_u32 s{sT}, s{sT}, s{sT+1}")
    A(f"s_mul_i32 s{sT+2}, s{sRG}, 49152")
    A(f"s_add_u32 s{sT}, s{sT}, s{sT+2}")
    A("v_min_u32 v46, 47, v0")
    A("v_lshlrev_b32 v46, 10, v46")
    if cfg.wpf2 < 10:
        A(f"s_cmp_eq_u32 s{sT+3}, 3")
        A("s_cselect_b64 exec, -1, 0")
    A(f"buffer_load_dword v200, v46, s[{sW}:{sW+3}], s{sT} offen")
    A("s_mov_b64 exec, -1")

def hot_prefetch(A, cfg):
    A(f"s_cmp_lt_u32 s{sPair}, 16")
    A(f"s_cselect_b32 s{sW}, s6, s12")
    A(f"s_cselect_b32 s{sW+1}, s7, s13")
    A(f"s_mov_b32 s{sW+2}, {hex(512*1536*2)}")
    A(f"s_mov_b32 s{sW+3}, 0x20000")
    A(f"s_lshr_b32 s{sT}, s{sW}, 7")
    A(f"s_sub_u32 s{sT}, 3, s{sT}")
    A(f"s_and_b32 s{sT}, s{sT}, 7")
    A(f"s_lshl_b32 s{sT}, s{sT}, 7")
    A(f"s_and_b32 s{sT+1}, s{sPair}, 15")
    A(f"s_lshl_b32 s{sT+1}, s{sT+1}, 3")
    A(f"s_add_u32 s{sT+1}, s{sT+1}, s{sSlab}")
    A(f"s_lshl_b32 s{sT+1}, s{sT+1}, 2")
    A(f"s_add_u32 s{sT+1}, s{sT+1}, s{sWave}")
    A(f"s_mul_i32 s{sT+1}, s{sT+1}, 3072")
    A(f"s_add_u32 s{sT}, s{sT}, s{sT+1}")
    A("v_min_u32 v46, 2, v0")
    A("v_lshlrev_b32 v46, 10, v46")
    A(f"buffer_load_dword v200, v46, s[{sW}:{sW+3}], s{sT} offen")

def p1_compute(A, cfg):
    A.c("---- phase 1, compute waves")
    if cfg.p1prio == 1: A("s_setprio 1")
    A("s_waitcnt lgkmcnt(0)")
    A.c("gate g = sigmoid(x . gate_w) of rows 8*wg + 2*wave, +1 (every workgroup covers 8 of the 2048 rows)")
    srd(A, sX, 4, 5, 2048 * 512 * 2)
    srd(A, sG, 16, 17, 1024)
    A(f"s_lshl_b32 s{sT+6}, s2, 2")
    A(f"s_add_u32 s{sT+6}, s{sT+6}, s{sWave}")
    A(f"s_lshl_b32 s{sT+7}, s{sT+6}, 11")
    A("v_lshlrev_b32 v13, 4, v0")
    A(f"buffer_load_dwordx4 v[32:35], v13, s[{sX}:{sX+3}], s{sT+7} offen")
    A(f"buffer_load_dwordx4 v[36:39], v13, s[{sX}:{sX+3}], s{sT+7} offen offset:1024")
    A(f"buffer_load_dwordx4 v[40:43], v13, s[{sG}:{sG+3}], 0 offen")
    if cfg.wpf:
        A.c("pull this workgroup's 1/256 share of both weight matrices towards the chip")
        A(f"s_cmp_lt_u32 s2, 128")
        A(f"s_cselect_b32 s{sW}, s6, s12")
        A(f"s_cselect_b32 s{sW+1}, s7, s13")
        A(f"s_mov_b32 s{sW+2}, {hex(512*1536*2)}")
        A(f"s_mov_b32 s{sW+3}, 0x20000")
        A(f"s_and_b32 s{sT}, s{sT+6}, 511")
        A(f"s_mul_i32 s{sT}, s{sT}, 3072")
        for i in range(3):
            A(f"buffer_load_dwordx4 v[{48+4*i}:{51+4*i}], v13, s[{sW}:{sW+3}], s{sT} offen offset:{1024*i}")
    if cfg.wpf3: hot_prefetch(A, cfg)
    if cfg.wpf2 % 10 == 1: w_prefetch(A, cfg)
    if cfg.c2c:
        A.c("the otherwise idle compute waves fetch chunk 2")
        A(f"s_cmp_lt_u32 s{sPair}, 16")
        A(f"s_cselect_b32 s{sW}, s6, s12")
        A(f"s_cselect_b32 s{sW+1}, s7, s13")
        A(f"s_mov_b32 s{sW+2}, {hex(512*1536*2)}")
        A(f"s_mov_b32 s{sW+3}, 0x20000")
        A("v_lshrrev_b32 v48, 3, v0")
        A("v_lshlrev_b32 v48, 10, v48")
        A("v_and_b32 v49, 7, v0")
        A("v_lshrrev_b32 v50, 4, v0")
        A("v_xor_b32 v49, v49, v50")
        A("v_lshl_add_u32 v48, v49, 4, v48")
        A("v_xor_b32 v49, 64, v48")
        A(f"s_add_u32 s{sK2}, s{sKC}, 2")
        A(f"s_and_b32 s{sK2}, s{sK2}, 7")
        A(f"s_lshl_b32 s{sXo}, s{sK2}, 7")
        A(f"s_lshl_b32 s{sT}, s{sSlab}, 18")
        A(f"s_add_u32 s{sXo}, s{sXo}, s{sT}")
        A(f"s_lshl_b32 s{sT}, s{sRG}, 16")
        A(f"s_add_u32 s{sXo}, s{sXo}, s{sT}")
        A(f"s_lshl_b32 s{sM}, s{sRG}, 13")
        for i in range(8):
            A(f"s_add_u32 m0, s{sM}, {XB[2] + i*1024}")
            A(f"s_add_u32 s{sT}, s{sXo}, {i*8192}")
            A(f"buffer_load_dwordx4 v{49 if i & 1 else 48}, s[{sX}:{sX+3}], s{sT} offen lds")
        A("v_lshrrev_b32 v50, 2, v0")
        A("v_mul_u32_u24 v50, 3072, v50")
        A("v_and_b32 v51, 3, v0")
        A("v_lshl_add_u32 v50, v51, 4, v50")
        A("v_xor_b32 v51, 32, v50")
        A(f"s_and_b32 s{sT}, s{sPair}, 15")
        A(f"s_lshl_b32 s{sT}, s{sT}, 6")
        A(f"s_mul_i32 s{sT+1}, s{sRG}, 49152")
        A(f"s_add_u32 s{sT}, s{sT}, s{sT+1}")
        A(f"s_mul_i32 s{sT+1}, s{sK2}, 196608")
        A(f"s_mul_i32 s{sM}, s{sRG}, 3072")
        A(f"s_add_u32 m0, s{sM}, {WB + 2*12288}")
        A(f"s_add_u32 s{sT}, s{sT}, s{sT+1}")
        for i in range(3):
            A(f"buffer_load_dwordx4 v{51 if i == 1 else 50}, s[{sW}:{sW+3}], s{sT} offen offset:{i*1024} lds")
    late_srds(A)
    A.c("wave 0 clears this workgroup's hand-off words, then counts the workgroup in")
    A(f"s_cmp_lg_u32 s{sWave}, 0")
    A("s_cbranch_scc1 L_nozero")
    A(f"s_lshl_b32 s{sT}, s{sPair}, 9")
    A(f"s_lshl_b32 s{sT+1}, s{sSlab}, 2")
    A(f"s_add_u32 s{sT}, s{sT}, s{sT+1}")
    A(f"s_add_u32 s{sT}, s{sT}, {WS_F1}")
    A("v_lshlrev_b32 v2, 7, v0")
    A(f"v_add_u32 v2, s{sT}, v2")
    A("v_mov_b32 v4, 0")
    A("s_mov_b64 exec, 0xf")
    A(f"buffer_store_dword v4, v2, s[{sWS}:{sWS+3}], 0 offen sc1")
    A("s_mov_b64 exec, -1")
    A("L_nozero:")
    p2_pre(A, False); p2_pre(A, True)
    A("v_and_b32 v2, 1, v0")
    A(f"v_lshlrev_b32 v{vPoll}, 7, v2")
    A(f"v_mov_b32 v{vZ}, 1")
    p2_addr(A)
    xfrag_addr(A, vXL, vXH, 13)
    A("v_lshrrev_b32 v13, 5, v0")
    A("v_lshlrev_b32 v13, 3, v13")
    A("v_bfe_u32 v14, v0, 2, 2")
    A("v_add_u32 v13, v13, v14")
    A("v_lshlrev_b32 v13, 6, v13")
    A("v_and_b32 v14, 3, v0")
    A("v_lshl_add_u32 v13, v14, 3, v13")
    A(f"v_add_u32 v13, {WB}, v13")
    A("v_bfe_u32 v14, v0, 4, 1")
    A("v_mul_u32_u24 v15, 1056, v14")
    A(f"v_add_u32 v{vWa}, v13, v15")
    A("v_mul_u32_u24 v15, 992, v14")
    A(f"v_add3_u32 v{vWb}, v13, v15, 32")
    A("v_lshl_add_u32 v13, v14, 5, v13")
    A(f"v_add_u32 v{vWv}, 2048, v13")
    def reads(c, j, F):
        if cfg.p1x & 8 and (c, j) != (0, 0): return ["s_nop 0"] * 8
        slot = c % 3
        xr = vXH[j] if slot == 2 else vXL[j]
        xi = XS if slot == 0 else 0
        wi = slot * 12288 + j * 3072
        return [f"ds_read_b128 {v(F,4)}, v{xr} offset:{xi}",
                f"ds_read_b64_tr_b16 {v(F+8,2)}, v{vWa} offset:{wi}",
                f"ds_read_b64_tr_b16 {v(F+10,2)}, v{vWa} offset:{wi+256}",
                f"ds_read_b128 {v(F+4,4)}, v{xr} offset:{xi+4096}",
                f"ds_read_b64_tr_b16 {v(F+12,2)}, v{vWb} offset:{wi}",
                f"ds_read_b64_tr_b16 {v(F+14,2)}, v{vWb} offset:{wi+256}",
                f"ds_read_b64_tr_b16 {v(F+16,2)}, v{vWv} offset:{wi}",
                f"ds_read_b64_tr_b16 {v(F+18,2)}, v{vWv} offset:{wi+256}"]
    def mf(F, first):
        def m(D, a, b):
            if cfg.p1x & 1 and not first: return "s_nop 1"
            if cfg.t16:
                q = 4 * (F != FR[0])
                return (f"v_mfma_f32_16x16x32_bf16 {v(D+q,4)}, {v(a,4)}, {v(b,4)}, {'0' if first else v(D+q,4)}\n"
                        f"v_mfma_f32_16x16x32_bf16 {v(D+8+q,4)}, {v(a,4)}, {v(b,4)}, {'0' if first else v(D+8+q,4)}")
            return f"v_mfma_f32_32x32x16_bf16 {v(D,16)}, {v(a,4)}, {v(b,4)}, {'0' if first else v(D,16)}"
        return [m(ACC['QKa0'], F+8, F), m(ACC['QKa1'], F+8, F+4), m(ACC['QKb0'], F+12, F),
                m(ACC['QKb1'], F+12, F+4), m(ACC['VV0'], F, F+16), m(ACC['VV1'], F+4, F+16)]
    A(f"s_lshl_b32 s{sT+6}, s{sT+6}, 3")
    A(f"s_add_u32 s{sT+6}, s{sT+6}, {WS_G}")
    A("v_lshrrev_b32 v13, 5, v0")
    A("v_lshlrev_b32 v13, 2, v13")
    A("v_mov_b32 v44, 0")
    A("v_mov_b32 v45, 0")
    if cfg.l2pf == 1: l2_prefetch(A, cfg)
    A(f"s_waitcnt vmcnt({(3 if cfg.wpf else (2 if cfg.l2pf == 1 else (1 if (cfg.wpf2 % 10 == 1 or cfg.wpf3) else (11 if cfg.c2c else 0))))})")
    if cfg.zearly:
        assert not (cfg.wpf or cfg.l2pf or cfg.wpf2 or cfg.wpf3 or cfg.c2c)
        A.c("wave 0: its clears are acknowledged -> count this workgroup in")
        A(f"s_cmp_lg_u32 s{sWave}, 0")
        A("s_cbranch_scc1 L_noz0")
        A(f"s_and_b32 s{sT}, s2, 1")
        A(f"s_lshl_b32 s{sT}, s{sT}, 7")
        A("s_mov_b64 exec, 1")
        A(f"buffer_atomic_add v{vZ}, off, s[{sDBG}:{sDBG+3}], s{sT}")
        A("s_mov_b64 exec, -1")
        A("L_noz0:")
    if cfg.l2pf == 2: l2_prefetch(A, cfg)
    if cfg.wpf2 % 10 == 2: w_prefetch(A, cfg)
    for i in range(4):
        A(f"v_dot2_f32_bf16 v44, v{32+i}, v{40+i}, v44")
        A(f"v_dot2_f32_bf16 v45, v{36+i}, v{40+i}, v45")
    A("s_nop 2")
    A("v_permlane32_swap_b32 v44, v45")
    A("v_add_f32 v44, v44, v45")
    A("v_mov_b32 v45, v44")
    A("s_nop 1")
    A("v_permlane16_swap_b32 v44, v45")
    A("v_add_f32 v44, v44, v45")
    for ctl in ("quad_perm:[1,0,3,2]", "quad_perm:[2,3,0,1]", "row_half_mirror", "row_mirror"):
        A("s_nop 1")
        A(f"v_add_f32_dpp v44, v44, v44 {ctl} row_mask:0xf bank_mask:0xf")
    A(f"v_mul_f32 v44, {fbits(-LOG2E)}, v44")
    A("v_exp_f32 v44, v44")
    A("s_nop 0")
    A("v_add_f32 v44, 1.0, v44")
    A("v_rcp_f32 v44, v44")
    A("s_mov_b32 exec_lo, 1")
    A("s_mov_b32 exec_hi, 1")
    A(f"buffer_store_dword v44, v13, s[{sWS}:{sWS+3}], s{sT+6} offen sc1")
    A("s_mov_b64 exec, -1")
    if cfg.wpf: A("s_waitcnt vmcnt(1)")
    A("s_barrier")
    stamp(A, cfg, 1)
    for r in reads(0, 0, FR[0]): A(r)
    def wave0_block(n):
        if n == cfg.n_add and not cfg.zearly and not cfg.noz:
            A(f"s_cmp_lg_u32 s{sWave}, 0")
            A("s_cbranch_scc1 L_noz0")
            A(f"s_and_b32 s{sT}, s2, 1")
            A(f"s_lshl_b32 s{sT}, s{sT}, 7")
            A("s_mov_b64 exec, 1")
            A(f"buffer_atomic_add v{vZ}, off, s[{sDBG}:{sDBG+3}], s{sT}")
            A("s_mov_b64 exec, -1")
            A("L_noz0:")
        if n == cfg.n_z and not cfg.noz and not cfg.zld:
            A(f"s_cmp_lg_u32 s{sWave}, 0")
            A("s_cbranch_scc1 L_noz1")
            A(ZLOAD)
            A("L_noz1:")
    if cfg.p1pipe == 0:
        for n in range(32):
            c, j = divmod(n, 4)
            M = mf(FR[n & 1], n == 0)
            A("s_waitcnt lgkmcnt(0)" if (n != 7 or cfg.zearly) else "s_waitcnt vmcnt(0) lgkmcnt(0)")
            if n == 31:
                for m in M: A(m)
                break
            if j == 3: A("s_barrier")
            c2, j2 = divmod(n + 1, 4)
            R = reads(c2, j2, FR[(n + 1) & 1])
            A(M[0]); A(R[0]); A(R[1]); A(R[2])
            A(M[1]); A(R[3]); A(R[4]); A(R[5])
            A(M[2]); A(R[6]); A(R[7])
            A(M[3])
            wave0_block(n)
            A(M[4]); A(M[5])
    else:
        for n in range(32):
            c, j = divmod(n, 4)
            M = mf(FR[n & 1], n == 0)
            last = n == 31
            c2, j2 = divmod(n + 1, 4)
            R = [""] * 8 if last else reads(c2, j2, FR[(n + 1) & 1])
            k = 0 if last else 3
            A("s_waitcnt lgkmcnt(5)")
            A(M[0])
            A("s_waitcnt lgkmcnt(4)")
            A(M[1])
            if n == 7: A("s_waitcnt vmcnt(0)")
            if j == 3 and not last: A("s_barrier")
            for x in R[0:3]: A(x)
            A(f"s_waitcnt lgkmcnt({2 + k})")
            A(M[2])
            for x in R[3:6]: A(x)
            A(M[3])
            wave0_block(n)
            A(f"s_waitcnt lgkmcnt({2*k})")
            if j == 3 and not last: A("s_barrier")
            A(M[4])
            for x in R[6:8]: A(x)
            A(M[5])

def p1_compute_epilogue(A, cfg):
    A.c("---- phase 1 epilogue: round K/V, publish them (write-through) and keep them in LDS")
    A(f"s_lshl_b32 s{sT}, s{sPair}, 3")
    A(f"s_add_u32 s{sT}, s{sT}, s{sSlab}")
    A(f"s_lshl_b32 s{sT}, s{sT}, 15")
    A(f"s_lshl_b32 s{sT+1}, s{sRG}, 12")
    A(f"s_add_u32 s{sT}, s{sT}, s{sT+1}")
    A(f"s_add_u32 s{sT+1}, s{sT}, 16384")
    A("v_bfe_u32 v13, v0, 4, 1")
    A("v_lshrrev_b32 v14, 5, v0")
    A("v_and_b32 v15, 15, v0")
    A("v_lshlrev_b32 v15, 4, v15")
    A("v_lshl_add_u32 v15, v14, 8, v15")
    A("v_add_u32 v15, 1024, v15")
    A("v_lshl_add_u32 v3, v13, 14, v15")
    A(f"s_mul_i32 s{sT+2}, s{sRG}, {2*REC}")
    A(f"s_add_u32 s{sT+2}, s{sT+2}, {SB}")
    A(f"v_add_u32 v4, s{sT+2}, v{vKP if cfg.sm else vL16}")
    A(f"v_mul_u32_u24 v13, {HSTR}, v13")
    A(f"v_add3_u32 v5, v13, v15, s{sT+2}")
    if not cfg.zld:
        A.c("wave 0: every workgroup has cleared its hand-off words (checked before any flag is read)")
        A(f"s_cmp_lg_u32 s{sWave}, 0")
        A("s_cbranch_scc1 L_noz2")
        A(f"s_movk_i32 s{sT+3}, 128")
        if not cfg.noz: spin(A, "z", ZLOAD, vZ, f"s{sT+3}", "gt")
        A("L_noz2:")
    def cvt(dst, src):
        for i in range(4):
            A(f"v_cvt_pk_bf16_f32 v{dst+i}, v{src+2*i}, v{src+2*i+1}")
    if cfg.epi2:
        tmp = [128, 132, 136, 140, 144, 148, 152, 156]
        A(f"s_mov_b32 s{sT+4}, {fbits(QSCALE)}")
        A(f"s_mov_b32 s{sT+5}, {fbits(QSCALE)}")
        A(f"s_lshl_b32 s{sT+6}, s{sRG}, 11")
        A(f"s_add_u32 s{sT+6}, s{sT+6}, {QX}")
        A(f"v_add_u32 v6, s{sT+6}, v{vL16}")
        items = []
        for hd, names in ((0, ("QKa0", "QKa1")), (1, ("QKb0", "QKb1"))):
            for t in (0, 1):
                items.append((ACC[names[t]] + 8, f"v{vKP if cfg.sm else vL16}, s[{sWS}:{sWS+3}], s{sT+hd} offen offset:{t*2048}", "v4", hd*HSTR + t*REC))
        for t in (0, 1):
            for a in (0, 1):
                items.append((ACC[f"VV{t}"] + 8 * a, f"v3, s[{sWS}:{sWS+3}], s{sT} offen offset:{t*2048 + a*512}", "v5", t*REC + a*512))
        qs = [("QKb0", 16, 0), ("QKb1", 20, 1024), ("QKa0", vQ[0], None), ("QKa1", vQ[1], None)]
        for k, (src, gaddr, laddr, loff) in enumerate(items):
            cvt(tmp[k], src)
            A(f"buffer_store_dwordx4 {v(tmp[k],4)}, {gaddr} sc1")
            A(f"ds_write_b128 {laddr}, {v(tmp[k],4)} offset:{loff}")
            nm, dst, qoff = qs[k >> 1]
            q = ACC[nm]
            if k & 1 == 0:
                for i in range(4): A(f"v_pk_mul_f32 {v(q+2*i,2)}, {v(q+2*i,2)}, s[{sT+4}:{sT+5}]")
            else:
                cvt(dst, q)
                if qoff is not None: A(f"ds_write_b128 v6, {v(dst,4)} offset:{qoff}")
    else:
        tmp = [128, 132, 136, 140, 144, 148, 152, 156]
        if cfg.epist: stamp(A, cfg, 3)
        k = 0
        for hd, names in ((0, ("QKa0", "QKa1")), (1, ("QKb0", "QKb1"))):
            for t in (0, 1):
                cvt(tmp[k], ACC[names[t]] + 8)
                A(f"buffer_store_dwordx4 {v(tmp[k],4)}, v{vL16}, s[{sWS}:{sWS+3}], s{sT+hd} offen offset:{t*2048} sc1")
                k += 1
        if cfg.epist: stamp(A, cfg, 4)
        for t in (0, 1):
            for a in (0, 1):
                cvt(tmp[k], ACC[f"VV{t}"] + 8 * a)
                A(f"buffer_store_dwordx4 {v(tmp[k],4)}, v3, s[{sWS}:{sWS+3}], s{sT} offen offset:{t*2048 + a*512} sc1")
                k += 1
        if cfg.epist: stamp(A, cfg, 5)
        k = 0
        for hd in (0, 1):
            for t in (0, 1):
                A(f"ds_write_b128 v4, {v(tmp[k],4)} offset:{hd*HSTR + t*REC}"); k += 1
        for t in (0, 1):
            for a in (0, 1):
                A(f"ds_write_b128 v5, {v(tmp[k],4)} offset:{t*REC + a*512}"); k += 1
        if cfg.epist: stamp(A, cfg, 6)
        A(f"s_mov_b32 s{sT+4}, {fbits(QSCALE)}")
        A(f"s_mov_b32 s{sT+5}, {fbits(QSCALE)}")
        A(f"s_lshl_b32 s{sT+2}, s{sRG}, 11")
        A(f"s_add_u32 s{sT+2}, s{sT+2}, {QX}")
        A(f"v_add_u32 v4, s{sT+2}, v{vL16}")
        for hd, names in ((1, ("QKb0", "QKb1")), (0, ("QKa0", "QKa1"))):
            for t in (0, 1):
                q = ACC[names[t]]
                for i in range(4):
                    A(f"v_pk_mul_f32 {v(q+2*i,2)}, {v(q+2*i,2)}, s[{sT+4}:{sT+5}]")
                dst = vQ[t] if hd == 0 else 16 + 4 * t
                cvt(dst, q)
                if hd == 1: A(f"ds_write_b128 v4, {v(dst,4)} offset:{t*1024}")
    if cfg.epist: stamp(A, cfg, 7)
    A("s_waitcnt lgkmcnt(0)")
    if cfg.epist: stamp(A, cfg, 8)
    A("s_barrier")
    if cfg.epist:
        stamp(A, cfg, 9)
        A("s_waitcnt vmcnt(0)")
        stamp_store(A, cfg, 10)
        A("s_endpgm")
    A.c("K/V stores acknowledged -> raise this wave's flag")
    A(f"v_mov_b32 v{vZ}, 1")
    A(f"s_lshl_b32 s{sJ}, s{sSlab}, 2")
    A(f"s_add_u32 s{sJ}, s{sJ}, s{sF}")
    lstamp(A, cfg, 46)
    if cfg.c1c:
        A(F1LOAD)
        p2_setup(A, cfg)
        A(f"s_lshl_b32 s{sT}, s{sSlab}, 2")
        A(f"v_cmp_eq_u32 s[{sT+2}:{sT+3}], s{sT}, v{vPA}")
        A("s_waitcnt vmcnt(3)")
    else:
        A("s_waitcnt vmcnt(0)")
    A("s_mov_b64 exec, 1")
    A(f"buffer_store_dword v{vZ}, off, s[{sWS}:{sWS+3}], s{sJ} sc1")
    A("s_mov_b64 exec, -1")
    lstamp(A, cfg, 47)
    if cfg.c1c:
        A("s_waitcnt vmcnt(3)")
        A(f"v_cmp_ne_u32 vcc, 1, v{vPoll}")
        A(f"s_mov_b32 s{sSpin}, {SPIN_MAX}")
        A(f"s_andn2_b64 s[{sT+4}:{sT+5}], vcc, s[{sT+2}:{sT+3}]")
        A("s_cbranch_scc1 L_f1c")
        A("L_f1c_ret:")
        T = Asm()
        T("L_f1c:")
        T(F1LOAD)
        T(f"s_sub_u32 s{sSpin}, s{sSpin}, 1")
        T("s_cbranch_scc1 L_f1c_ret")
        T("s_waitcnt vmcnt(0)")
        T(f"v_cmp_ne_u32 vcc, 1, v{vPoll}")
        T("s_nop 0")
        T(f"s_andn2_b64 s[{sT+4}:{sT+5}], vcc, s[{sT+2}:{sT+3}]")
        T("s_cbranch_scc1 L_f1c")
        T("s_branch L_f1c_ret")
        tails.append(T)
        lstamp(A, cfg, 49)
        for x in kv_setup(1): A(x)
        for job in kv_jobs(1):
            for x in job: A(x)
        A(f"s_add_u32 s{sCO}, s{sCO}, 16384")
        for job in kv_jobs(1, -1):
            for x in job: A(x)

def p1_loader(A, cfg):
    A.c("---- phase 1, loader waves: LDS-DMA of x / W chunks")
    if cfg.p1prio == 2: A("s_setprio 1")
    A("v_lshrrev_b32 v13, 3, v0")
    A("v_lshlrev_b32 v13, 10, v13")
    A("v_and_b32 v14, 7, v0")
    A("v_lshrrev_b32 v15, 4, v0")
    A("v_xor_b32 v14, v14, v15")
    A("v_lshl_add_u32 v13, v14, 4, v13")
    A("v_xor_b32 v14, 64, v13")
    for i in range(8):
        A(f"v_add_u32 v{2+i}, {i*8192 - (i&3)*1024}, v{14 if i & 1 else 13}")
    A(f"s_lshl_b32 s{sXb}, s{sSlab}, 18")
    A(f"s_lshl_b32 s{sT}, s{sRG}, 16")
    A(f"s_add_u32 s{sXb}, s{sXb}, s{sT}")
    def issue_x(c):
        slot = c % 3
        A(f"s_add_u32 s{sK2}, s{sKC}, {c}")
        A(f"s_and_b32 s{sK2}, s{sK2}, 7")
        A(f"s_lshl_b32 s{sXo}, s{sK2}, 7")
        A(f"s_lshl_b32 s{sM}, s{sRG}, 13")
        A(f"s_add_u32 m0, s{sM}, {XB[slot]}")
        A(f"s_add_u32 s{sXo}, s{sXo}, s{sXb}")
        for i in range(8):
            if i == 4:
                A(f"s_add_u32 m0, s{sM}, {XB[slot] + 4096}")
                A("s_nop 0")
            A(f"buffer_load_dwordx4 v{2+i}, s[{sX}:{sX+3}], s{sXo} offen offset:{(i&3)*1024} lds")
    def issue_w(c):
        slot = c % 3
        A(f"s_mul_i32 s{sM}, s{sRG}, 3072")
        A(f"s_mul_i32 s{sWo}, s{sK2}, 196608")
        A(f"s_add_u32 m0, s{sM}, {WB + slot*12288}")
        A(f"s_add_u32 s{sWo}, s{sWo}, s{sWb_}")
        for i in range(3):
            A(f"buffer_load_dwordx4 v{11 if i == 1 else 10}, s[{sW}:{sW+3}], s{sWo} offen offset:{i*1024} lds")
    def pf_setup():
        assert cfg.lr == 2
        A(f"s_and_b32 s{sT}, s{sPair}, 7")
        A(f"s_lshl_b32 s{sT}, s{sT}, 15")
        A(f"s_lshl_b32 s{sT+1}, s{sRG}, 13")
        A(f"s_add_u32 s{sT}, s{sT}, s{sT+1}")
        A(f"s_lshl_b32 s{sT+1}, s{sSlab}, 18")
        A(f"s_add_u32 s{sT}, s{sT}, s{sT+1}")
        A(f"s_add_u32 s12, s{sX}, s{sT}")
        A(f"s_addc_u32 s13, s{sX+1}, 0")
        A(f"s_and_b32 s{sT}, s{sSlab}, 3")
        A(f"s_lshl_b32 s{sT}, s{sT}, 1")
        A(f"s_and_b32 s{sT+1}, s{sPair}, 1")
        A(f"s_add_u32 s{sT}, s{sT}, s{sT+1}")
        A(f"s_lshl_b32 s{sT}, s{sT}, 2")
        A(f"s_add_u32 s{sT}, s{sT}, s{sRG}")
        A(f"s_mul_i32 s{sT}, s{sT}, 6144")
        A(f"s_and_b32 s{sT+1}, s{sPair}, 14")
        A(f"s_lshl_b32 s{sT+1}, s{sT+1}, 6")
        A(f"s_add_u32 s{sT}, s{sT}, s{sT+1}")
        A(f"s_add_u32 s16, s{sW}, s{sT}")
        A(f"s_addc_u32 s17, s{sW+1}, 0")
    def pf(c):
        if not cfg.spf or c > 7: return
        A(f"s_add_u32 s{sT}, s{sKC}, {c}")
        A(f"s_and_b32 s{sT}, s{sT}, 7")
        A(f"s_mul_i32 s{sT+1}, s{sT}, 196608")
        A(f"s_lshl_b32 s{sT}, s{sT}, 7")
        if cfg.spfw != 2:
            for e in range(6): A(f"s_load_dword s10, s[16:17], s{sT+1} offset:{1024*e}")
        if cfg.spfw != 1:
            for e in range(8): A(f"s_load_dword s10, s[12:13], s{sT} offset:{1024*e}")
    def issue(c):
        if cfg.wfirst:
            A(f"s_add_u32 s{sK2}, s{sKC}, {c}")
            A(f"s_and_b32 s{sK2}, s{sK2}, 7")
            issue_w(c); issue_x(c)
        else:
            issue_x(c); issue_w(c)
    if cfg.rot in (16, 17, 18):
        A(f"s_and_b32 s{sT+1}, s{sPair}, 3")
        A(f"s_lshl_b32 s{sT+1}, s{sT+1}, 1")
        A(f"s_and_b32 s{sT+3}, s2, 1")
        A(f"s_add_u32 s{sT+1}, s{sT+1}, s{sT+3}")
        if cfg.rot == 16:
            A(f"s_lshr_b32 s{sT+2}, s{sPair}, 1")
            A(f"s_add_u32 s{sT+2}, s{sT+2}, s{sSlab}")
            A(f"s_lshl_b32 s{sT+2}, s{sT+2}, 1")
            A(f"s_add_u32 s{sT+2}, s{sT+2}, s{sT+3}")
        elif cfg.rot == 17:
            A(f"s_lshl_b32 s{sT+2}, s{sSlab}, 1")
            A(f"s_add_u32 s{sT+2}, s{sT+2}, s{sPair}")
        else:
            A(f"s_add_u32 s{sT+2}, s{sPair}, s{sSlab}")
            A(f"s_lshl_b32 s{sT+2}, s{sT+2}, 1")
            A(f"s_add_u32 s{sT+2}, s{sT+2}, s{sT+3}")
    if cfg.rot >= 19:
        A(f"s_lshr_b32 s{sT+1}, s{sPair}, 1")
        A(f"s_add_u32 s{sT+1}, s{sT+1}, s{sSlab}")
        if cfg.rot == 19: A(f"s_and_b32 s{sT+1}, s{sT+1}, 3")
        if cfg.rot == 20:
            A(f"s_and_b32 s{sT+1}, s{sT+1}, 1")
            A(f"s_lshl_b32 s{sT+1}, s{sT+1}, 1")
        if cfg.rot == 21:
            A(f"s_and_b32 s{sT+1}, s{sT+1}, 3")
            A(f"s_lshl_b32 s{sT+1}, s{sT+1}, 1")
            A(f"s_min_u32 s{sT+1}, s{sT+1}, 5")
        if cfg.rot == 22:
            A(f"s_and_b32 s{sT+1}, s{sT+1}, 3")
            A(f"s_mul_i32 s{sT+1}, s{sT+1}, 3")
            A(f"s_lshr_b32 s{sT+1}, s{sT+1}, 1")
        if cfg.rot == 23:
            A(f"s_and_b32 s{sT+1}, s{sT+1}, 1")
            A(f"s_mul_i32 s{sT+1}, s{sT+1}, 3")
        A(f"s_add_u32 s{sT+1}, s{sT+1}, 4")
    A("s_waitcnt lgkmcnt(0)")
    if cfg.rot >= 19:
        A(f"s_lshr_b32 s{sT+2}, s4, 7")
        A(f"s_sub_u32 s{sKC}, s{sT+1}, s{sT+2}")
        A(f"s_and_b32 s{sKC}, s{sKC}, 7")
    if cfg.rot in (16, 17, 18):
        A(f"s_cmp_lt_u32 s{sPair}, 16")
        A(f"s_cselect_b32 s{sT+4}, s6, s12")
        A(f"s_lshr_b32 s{sT+4}, s{sT+4}, 7")
        A(f"s_lshr_b32 s{sT+5}, s{sPair}, 1")
        A(f"s_add_u32 s{sT+4}, s{sT+4}, s{sT+5}")
        A(f"s_and_b32 s{sT+4}, s{sT+4}, 7")
        A(f"s_cmp_eq_u32 s{sT+4}, 3")
        A(f"s_cselect_b32 s{sKC}, s{sT+2}, s{sT+1}")
        A(f"s_and_b32 s{sKC}, s{sKC}, 7")
    srd(A, sX, 4, 5, 2048 * 512 * 2)
    lstamp(A, cfg, 1)
    issue_x(0)
    lstamp(A, cfg, 2)
    A(f"s_cmp_lt_u32 s{sPair}, 16")
    A(f"s_cselect_b32 s{sW}, s6, s12")
    A(f"s_cselect_b32 s{sW+1}, s7, s13")
    A(f"s_mov_b32 s{sW+2}, {hex(512*1536*2)}")
    A(f"s_mov_b32 s{sW+3}, 0x20000")
    A(f"s_and_b32 s{sWb_}, s{sPair}, 15")
    A(f"s_lshl_b32 s{sWb_}, s{sWb_}, 6")
    A(f"s_mul_i32 s{sT}, s{sRG}, 49152")
    A(f"s_add_u32 s{sWb_}, s{sWb_}, s{sT}")
    if cfg.wfull:
        A("v_lshrrev_b32 v13, 3, v0")
        A("v_mul_u32_u24 v13, 3072, v13")
        A("v_and_b32 v14, 7, v0")
        A(f"s_and_b32 s{sWb_}, s{sWb_}, 0xffffff80")
    else:
        A("v_lshrrev_b32 v13, 2, v0")
        A("v_mul_u32_u24 v13, 3072, v13")
        A("v_and_b32 v14, 3, v0")
    A("v_lshl_add_u32 v10, v14, 4, v13")
    A("v_xor_b32 v11, 32, v10")
    issue_w(0)
    if cfg.spf and cfg.spfe:
        pf_setup()
        for c in range(2, 2 + cfg.spf): pf(c)
    if cfg.late1 == 1: A("s_waitcnt vmcnt(3)")
    if cfg.late1 == 2: A("s_waitcnt vmcnt(8)")
    if cfg.late1 == 3: A("s_waitcnt vmcnt(10)")
    issue(1)
    if cfg.spf and not cfg.spfe:
        pf_setup()
        for c in range(2, 2 + cfg.spf): pf(c)
    lstamp(A, cfg, 3)
    late_srds(A)
    p2_addr(A)
    p2_pre(A, False)
    A(f"v_mov_b32 v{vZ}, 1")
    for c in range(8):
        lstamp(A, cfg, 4 + 3*c)
        A(f"s_waitcnt vmcnt({0 if (cfg.c2c and c == 1) else ((11 if c < 7 else 0) if not (cfg.p1x & 2) else 0)})")
        lstamp(A, cfg, 5 + 3*c)
        A("s_barrier")
        lstamp(A, cfg, 6 + 3*c)
        if c == 0: stamp(A, cfg, 1)
        if cfg.p1pipe and c >= 1: A("s_barrier")
        if c <= 5 and not (cfg.p1x & 2) and not (cfg.c2c and c == 0):
            pf(c + 2 + cfg.spf)
            issue(c + 2)
        if c <= 5 and cfg.p1x & 4:
            for _ in range(0): pass
    if cfg.zld:
        A.c("wave 4: every workgroup has cleared its hand-off words (checked before any flag is read)")
        A(f"v_mov_b32 v{vPoll}, v{vZA}")
        A(f"s_cmp_lg_u32 s{sWave}, 4")
        A("s_cbranch_scc1 L_noz2")
        A(ZLOAD)
        A("L_noz2:")
    p2_pre(A, True)
    consts(A, [SB, SC])
    if cfg.zld:
        A(f"s_cmp_lg_u32 s{sWave}, 4")
        A("s_cbranch_scc1 L_noz3")
        A(f"s_movk_i32 s{sT+3}, 128")
        spin(A, "z", ZLOAD, vZ, f"s{sT+3}", "gt")
        A("L_noz3:")
    A(f"v_add_u32 v104, {(SA - SB) % (1 << 32)}, v104")
    A("s_waitcnt lgkmcnt(0)")
    A(f"s_lshl_b32 s{sT+2}, s{sRG}, 11")
    A(f"s_add_u32 s{sT+2}, s{sT+2}, {QX}")
    A(f"v_add_u32 v4, s{sT+2}, v{vL16}")
    A("s_barrier")
    if cfg.epist: A("s_endpgm")
    if not cfg.uni and cfg.t_load < 0: A(F1LOAD)
    A("ds_read_b128 v[8:11], v4")
    A("ds_read_b128 v[12:15], v4 offset:1024")
    A("s_mov_b64 exec, 0xffff")
    A("ds_write_b128 v104, v[108:111] offset:2048")
    A("ds_write_b128 v104, v[112:115] offset:2064")
    A("s_mov_b64 exec, -1")

vKf, vV0f, vV1f = 16, 20, 24
S_, O_, P_ = [32, 48], [64, 80], 96
M32 = "v_mfma_f32_32x32x16_bf16"
def slot_base(i): return (SB, SC, SA)[i % 3]

def p2_setup(A, cfg, now=False):
    if cfg.zearly and not now: return
    A(f"buffer_load_dword v{vGF[0]}, v{vGA}, s[{sWS}:{sWS+3}], s{sGo} offen sc1")
    A(f"buffer_load_dword v{vGF[1]}, v{vGA}, s[{sWS}:{sWS+3}], s{sGo} offen offset:128 sc1")

def p2_pre(A, own_temps):
    if not own_temps:
        A(f"v_and_b32 v{vGA}, 31, v0")
        A(f"v_lshlrev_b32 v{vGA}, 2, v{vGA}")
        A(f"s_lshl_b32 s{sGo}, s{sSlab}, 10")
        A(f"s_lshl_b32 s{sT+1}, s{sRG}, 8")
        A(f"s_add_u32 s{sGo}, s{sGo}, s{sT+1}")
        A(f"s_add_u32 s{sGo}, s{sGo}, {WS_G}")
        for i in range(4): A(f"v_mov_b32 v{vFill+i}, -1")
        for i in range(4): A(f"v_mov_b32 v{vZero+i}, 0")
        A(f"v_mov_b32 v{vIdx}, 0xdddd")
        A(f"v_and_b32 v{vKP}, 0x33, v0")
        A(f"v_bfe_u32 v{vZA}, v0, 2, 1")
        A(f"v_lshl_or_b32 v{vKP}, v{vZA}, 3, v{vKP}")
        A(f"v_bfe_u32 v{vZA}, v0, 3, 1")
        A(f"v_lshl_or_b32 v{vKP}, v{vZA}, 2, v{vKP}")
        A(f"v_lshlrev_b32 v{vKP}, 4, v{vKP}")
        A(f"v_and_b32 v{vZA}, 1, v0")
        A(f"v_lshlrev_b32 v{vZA}, 7, v{vZA}")
        A(f"v_mov_b32 v{vZ2}, 128")
        return
    A(f"s_lshl_b32 s{sCH}, s{sPair}, 18")
    A(f"s_lshl_b32 s{sT+1}, s{sWave}, 12")
    A(f"s_add_u32 s{sCH}, s{sCH}, s{sT+1}")
    A(f"s_mul_i32 s{sMB}, s{sWave}, {2*REC}")
    A(f"s_lshl_b32 s{sWoG}, s{sWave}, 13")
    A(f"s_lshl_b32 s{sT+1}, s{sC3}, 7")
    A(f"s_add_u32 s{sWoG}, s{sWoG}, s{sT+1}")
    A(f"s_lshl_b32 s{sWoM}, s{sWave}, 10")
    A(f"s_andn2_b32 s{sT+1}, 4, s{sSlab}")
    A(f"s_lshl_b32 s{sT+1}, s{sT+1}, 15")
    A(f"s_add_u32 s{sCHx}, s{sCH}, s{sT+1}")

ORDER = [0]
sCHx = 12
def kv_setup(i):
    if ORDER[0]:
        if i <= 4: return [f"s_add_u32 s{sCO}, s{sCHx}, {(i - 1) << 15}"]
        return [f"s_add_u32 s{sCO}, s{sSlab}, {i - 4}", f"s_and_b32 s{sCO}, s{sCO}, 3", f"s_and_b32 s{sJ}, s{sSlab}, 4",
                f"s_or_b32 s{sCO}, s{sCO}, s{sJ}", f"s_lshl_b32 s{sCO}, s{sCO}, 15", f"s_add_u32 s{sCO}, s{sCO}, s{sCH}"]
    return [f"s_add_u32 s{sCO}, s{sSlab}, {i}", f"s_and_b32 s{sCO}, s{sCO}, 7",
            f"s_lshl_b32 s{sCO}, s{sCO}, 15", f"s_add_u32 s{sCO}, s{sCO}, s{sCH}"]
def kv_jobs(i, other=False):
    base = slot_base(i) - (HSTR * int(other))
    ld = lambda o: f"buffer_load_dwordx4 v{vL16}, s[{sWS}:{sWS+3}], s{sCO} offen offset:{o} sc1 lds"
    return [[f"s_add_u32 m0, s{sMB}, {base}", "s_nop 0", ld(0)], [ld(1024)],
            [f"s_add_u32 m0, s{sMB}, {base + REC - 2048}", "s_nop 0", ld(2048)], [ld(3072)]]
def wo_job(j):
    srd_ = sWOA if j < 8 else sWOB
    return [f"s_add_u32 m0, s{sWoM}, {WO + j*8192}", f"s_add_u32 s{sJ}, s{sWoG}, {(j&7)*65536}",
            f"buffer_load_dwordx4 v{vWoD}, s[{srd_}:{srd_+3}], s{sJ} offen lds"]

def rd(kind, i, t):
    if t == 8: i, t = i + 1, 0
    hi = slot_base(i) == SC
    imm = (0 if hi else slot_base(i)) + t * REC
    if kind == 'K': return f"ds_read_b128 {v(vKf,4)}, v{vKH if hi else vKL} offset:{imm}"
    if kind == 'V0': return f"ds_read_b128 {v(vV0f,4)}, v{vV0H if hi else vV0L} offset:{imm}"
    return f"ds_read_b128 {v(vV1f,4)}, v{vV1H if hi else vV1L} offset:{imm}"

def unit(A, q, first, last, slotA, slotB, slotC, first_o, order=0):
    S, Sn, O, Op = S_[q], S_[q ^ 1], O_[q], O_[q ^ 1]
    e = lambda i: A(f"v_exp_f32 v{S+i}, v{S+i}")
    c = lambda i: A(f"v_cvt_pk_bf16_f32 v{P_+i}, v{S+2*i}, v{S+2*i+1}")
    def run(sl):
        for x in sl:
            if callable(x): x(A)
            else: A(x)
    if not SMUSE[0]:
        e(0)
        if not first: A(f"v_cvt_pk_bf16_f32 v{P_+7}, v{Sn+14}, v{Sn+15}")
        e(1); e(2)
    sw = (lambda a, b: f"{b}, {a}") if PVSWAP[0] else (lambda a, b: f"{a}, {b}")
    if not SMUSE[0]:
        if not first: A(f"{M32} {v(Op,16)}, {sw(v(vV1f,4), v(P_+4,4))}, {v(Op,16)}")
        run(slotA)
    if SMUSE[0]:
        qk = lambda: None if last else A(f"{M32} {v(Sn,16)}, {v(vKf,4)}, {v(vQ[q^1],4)}, 0")
        pos = {1: (1, 4, 9), 2: (2, 4, 10), 3: (1, 3, 9)}[SMUSE[0]]
        for i in range(16):
            e(i)
            if i == pos[0]:
                if not first: A(f"{SM} {v(Op,16)}, {v(vV1f,4)}, {v(Sn+8,8)}, v{vIdx}")
                run(slotA)
            if i == pos[1]: qk(); run(slotB)
            if i == pos[2]:
                A(f"{SM} {v(O,16)}, {v(vV0f,4)}, {v(S,8)}, v{vIdx}")
                run(slotC)
        return
    qk = lambda: None if last else A(f"{M32} {v(Sn,16)}, {v(vKf,4)}, {v(vQ[q^1],4)}, 0")
    pv = lambda: A(f"{M32} {v(O,16)}, {sw(v(vV0f,4), v(P_,4))}, {'0' if first_o else v(O,16)}")
    if order == 0:
        c(0); e(3); e(4); c(1); e(5); e(6)
        qk(); run(slotB)
        c(2); e(7); e(8); c(3); e(9); e(10)
        pv(); run(slotC)
        c(4); e(11); e(12); c(5); e(13); e(14); c(6); e(15)
    elif order == 1:
        c(0); e(3); e(4); c(1); e(5); e(6); c(2); e(7)
        qk(); run(slotB)
        e(8); c(3); e(9); e(10); c(4); e(11); e(12)
        pv(); run(slotC)
        c(5); e(13); e(14); c(6); e(15)
    elif order == 2:
        c(0); e(3); e(4)
        qk(); run(slotB)
        c(1); e(5); e(6); c(2); e(7); e(8); c(3); e(9); e(10)
        pv(); run(slotC)
        c(4); e(11); e(12); c(5); e(13); e(14); c(6); e(15)

def p2_main(A, cfg):
    A.c("---- phase 2: attention.  P = exp2(S) with no shift; the row sums ride in the PV MFMA (ones rows);")
    A.c("     they are range-checked afterwards and the true-max path redoes the wave when they are out of range")
    jobs = {}; jobs0 = {}
    def add(i, t, xs): jobs.setdefault((i, t), []).extend(xs)
    for i in range(8):
        if cfg.prio == 1:
            for t, pr in ((1, 2), (3, 1), (5, 0), (7, 3)): add(i, t, [f"s_setprio {pr}"])
        if cfg.prio == 2:
            for t, pr in ((0, 2), (2, 1), (5, 0), (7, 3)): add(i, t, [f"s_setprio {pr}"])
        if cfg.prio == 3:
            for t, pr in ((2, 2), (4, 1), (6, 0), (7, 3)): add(i, t, [f"s_setprio {pr}"])
        if cfg.prio >= 100:
            pp = cfg.prio0 if i == 0 else cfg.prio
            drops = [(pp >> 8) & 15, (pp >> 4) & 15, pp & 15]
            for u, pr in zip(drops, (2, 1, 0)):
                if u & 1: add(i, u >> 1, [f"s_setprio {pr}"])
                else: jobs0.setdefault((i, u >> 1), []).append(f"s_setprio {pr}")
            add(i, 7, ["s_setprio 3"])
    def first_chunks(i, nm):
        def f(A):
            A(f"s_cmp_lt_u32 s{sWave}, 4")
            A(f"s_cbranch_scc1 L_skip_{nm}")
            if i == 1 or cfg.c1c:
                lstamp(A, cfg, 48)
                spin(A, "f1", F1LOAD, vPoll, 1)
                lstamp(A, cfg, 49)
            for x in kv_setup(i): A(x)
            for job in kv_jobs(i):
                for x in job: A(x)
            A(f"s_sub_u32 s{sCO}, s{sCO}, 16384")
            for job in kv_jobs(i, True):
                for x in job: A(x)
            A(f"L_skip_{nm}:")
        return f
    if cfg.uni:
        add(0, cfg.uni - 1, [F1LOAD])
        add(0, cfg.uni, [lambda A: lstamp(A, cfg, 48), lambda A: spin(A, "f1", F1LOAD, vPoll, 1), lambda A: lstamp(A, cfg, 49)]
            + kv_setup(1) + sum(kv_jobs(1), []))
    else:
        if cfg.t_load >= 0:
            add(0, cfg.t_load, [f"s_cmp_lt_u32 s{sWave}, 4", "s_cbranch_scc1 L_nopoll", F1LOAD, "L_nopoll:"])
        if not cfg.c1c: add(0, cfg.t_poll, [first_chunks(1, "c1")])
        add(0, cfg.t_c2, [first_chunks(2, "c2")])
    if cfg.uni:
        add(0, 6, [lambda A: lstamp(A, cfg, 50), "s_waitcnt vmcnt(0)", lambda A: lstamp(A, cfg, 51), "s_barrier", lambda A: lstamp(A, cfg, 52)])
    elif cfg.c1c:
        add(0, 6, [lambda A: lstamp(A, cfg, 50), f"s_cmp_ge_u32 s{sWave}, 4", "s_cbranch_scc1 L_nw1", "s_waitcnt vmcnt(0)", "L_nw1:",
                   lambda A: lstamp(A, cfg, 51), "s_barrier", lambda A: lstamp(A, cfg, 52)])
    else:
        add(0, 6, [lambda A: lstamp(A, cfg, 50), "s_waitcnt vmcnt(8)", lambda A: lstamp(A, cfg, 51), "s_barrier", lambda A: lstamp(A, cfg, 52)])
    for i in range(8): add(i, 7, ["s_waitcnt vmcnt(0)", "s_barrier"])
    for i in range(1, 6):
        J = kv_jobs(i + 2)
        if cfg.uni and i == 1:
            J2 = kv_jobs(2)
            add(1, 0, kv_setup(2) + J2[0] + J2[1]); add(1, 1, J2[2] + J2[3])
            add(1, 2, kv_setup(3) + J[0] + J[1]); add(1, 3, J[2] + J[3])
            add(1, 6, ["s_waitcnt vmcnt(6)", "s_barrier"])
            continue
        add(i, 0, kv_setup(i + 2) + J[0]); add(i, 1, J[1]); add(i, 2, J[2]); add(i, 3, J[3])
    wo = {1: [9, 10], 2: [11, 12], 3: [13, 14]}
    for i, js in wo.items():
        for n, j in enumerate(js): add(i, 4 + n, wo_job(j))
    Z2LOAD = f"buffer_load_dword v{vZ2}, v{vZA}, s[{sDBG}:{sDBG+3}], 0 offen offset:4 sc1"
    add(1, 6, [f"buffer_store_dwordx4 v[{vFill}:{vFill+3}], v{vL16}, s[{sWS}:{sWS+3}], s{sOst} offen sc1", f"s_add_u32 s{sJ}, s{sOst}, 65536",
               f"buffer_store_dwordx4 v[{vFill}:{vFill+3}], v{vL16}, s[{sWS}:{sWS+3}], s{sJ} offen sc1"])
    def setwait(i, n):
        k = jobs[(i, 7)].index("s_waitcnt vmcnt(0)")
        if n is None: del jobs[(i, 7)][k]
        else: jobs[(i, 7)][k] = f"s_waitcnt vmcnt({n})"
    setwait(1, 4); setwait(2, 2); setwait(3, 2); setwait(6, None)
    if cfg.tailbar:
        jobs[(7, 7)].remove("s_waitcnt vmcnt(0)"); jobs[(7, 7)].remove("s_barrier")
    jobs[(3, 0)][0:0] = [f"s_cmp_lg_u32 s{sWave}, 0", "s_cbranch_scc1 L_noz2c", f"s_and_b32 s{sJ}, s2, 1", f"s_lshl_b32 s{sJ}, s{sJ}, 7",
               "s_mov_b64 exec, 1", f"buffer_atomic_add v{vZ}, off, s[{sDBG}:{sDBG+3}], s{sJ} offset:4", "s_mov_b64 exec, -1", "L_noz2c:"]
    jobs[(5, 0)][0:0] = [f"s_cmp_eq_u32 s{sWave}, 0", "s_cselect_b32 exec_lo, 3, 0", "s_mov_b32 exec_hi, 0", Z2LOAD, "s_mov_b64 exec, -1"]
    jobs[(5, 7)][-1:-1] = [f"s_movk_i32 s{sJ}, 128", lambda A: spin(A, "z2", Z2LOAD, vZ2, f"s{sJ}", "gt")]
    for n, j in enumerate([0, 1, 2, 3]): add(6, n, wo_job(j))
    if cfg.zearly: add(6, 4, [lambda A: p2_setup(A, cfg, True)])
    for n, j in enumerate([4, 5, 6, 7, 8, 15]): add(7, n, wo_job(j))
    if cfg.align: A(f".p2align {cfg.align}, 0xbf800000" if False else f".p2alignl {cfg.align}, 0xbf800000")
    for _ in range(cfg.shift): A("s_nop 0")
    if cfg.c0st == 1: stamp(A, cfg, 1, True)
    A(rd('K', 0, 0)); A(rd('V0', 0, 0))
    A("s_waitcnt lgkmcnt(1)")
    if cfg.prio: A("s_setprio 3")
    A(f"{M32} {v(S_[0],16)}, {v(vKf,4)}, {v(vQ[0],4)}, 0")
    if cfg.sm:
        for q in (0, 1): A(f"{M32} {v(O_[q],16)}, {v(vZero,4)}, {v(vZero,4)}, 0")
        A("s_nop 7"); A("s_nop 1")
    else:
        A("s_nop 7"); A("s_nop 3")
    for i in range(8):
        for t in range(8):
            first = (i == 0 and t == 0); lastt = (i == 7 and t == 7)
            sA = [rd('V1', i, t)]
            sB = ["s_waitcnt lgkmcnt(1)"] + jobs0.get((i, t), []) + ([] if lastt else [rd('K', i, t + 1)])
            sC = ["s_waitcnt lgkmcnt(0)" if lastt else "s_waitcnt lgkmcnt(1)"]
            unit(A, 0, first, False, sA, sB, sC, first, cfg.order)
            sA = ["s_waitcnt lgkmcnt(0)"]
            sB = list(jobs.get((i, t), []))
            sC = [] if lastt else [rd('V0', i, t + 1)]
            unit(A, 1, False, lastt, sA, sB, sC, first, cfg.order)
            if cfg.c0st and i == cfg.c0st - 1: stamp(A, cfg, 2 + t, True)
        if i == 0: stamp(A, cfg, 4)
        if cfg.c0st and i == cfg.c0st - 2: stamp(A, cfg, 1, True)
        if i < 7: lstamp(A, cfg, 29 + i)
    if cfg.sm:
        A("s_nop 1")
        A(f"{SM} {v(O_[1],16)}, {v(vV1f,4)}, {v(S_[1]+8,8)}, v{vIdx}")
        return
    A("s_nop 0")
    A(f"v_cvt_pk_bf16_f32 v{P_+7}, v{S_[1]+14}, v{S_[1]+15}")
    A("s_nop 1")
    A(f"{M32} {v(O_[1],16)}, {v(vV1f,4)}, {v(P_+4,4)}, {v(O_[1],16)}")

def p2_check(A, cfg):
    if not cfg.slow: return
    A(f"s_mov_b32 s{sT+2}, {fbits(2.0**-24)}")
    A(f"s_mov_b32 s{sT+3}, {fbits(2.0**64)}")
    A(f"s_mov_b32 s{sT+4}, 0x7f800000")
    A("s_mov_b64 s[68:69], 0")
    for q in (0, 1):
        O = O_[q]
        if q == 1: A("s_nop 1")
        A(f"v_add_f32 v104, |v{O}|, |v{O+1}|")
        A(f"v_add_f32 v105, |v{O+2}|, |v{O+3}|")
        A(f"v_add_f32 v106, |v{O+4}|, |v{O+5}|")
        A(f"v_add_f32 v107, |v{O+6}|, |v{O+7}|")
        A(f"v_add_f32 v104, v104, v105")
        A(f"v_add_f32 v106, v106, v107")
        A(f"v_add_f32 v104, v104, v106")
        A(f"v_cmp_nle_f32 vcc, s{sT+2}, v{O+8}")
        A(f"s_or_b64 s[68:69], s[68:69], vcc")
        A(f"v_cmp_nge_f32 vcc, s{sT+3}, v{O+8}")
        A(f"s_or_b64 s[68:69], s[68:69], vcc")
        A(f"v_cmp_ngt_f32 vcc, s{sT+4}, v104")
        A(f"s_or_b64 s[68:69], s[68:69], vcc")
    if cfg.force_slow: A("s_mov_b64 s[68:69], -1")
    A("s_cmp_lg_u64 s[68:69], 0")
    A("s_cbranch_scc1 L_slow")
    A("L_slow_ret:")
    T = Asm()
    T("L_slow:")
    T.c("true-max (online softmax) path, wave-local, K/V fragments straight from the workspace")
    m_, al = [104, 105], 106
    T(f"s_lshl_b32 s{sT}, s{sPair}, 18")
    T(f"s_lshr_b32 s{sT+1}, s{sWave}, 2")
    T(f"s_lshl_b32 s{sT+1}, s{sT+1}, 14")
    T(f"s_add_u32 s{sT}, s{sT}, s{sT+1}")
    T("v_lshrrev_b32 v108, 5, v0")
    T("v_and_b32 v109, 15, v0")
    T("v_lshlrev_b32 v109, 4, v109")
    T("v_lshl_add_u32 v109, v108, 8, v109")
    T("v_and_b32 v108, 11, v0")
    T("v_cmp_eq_u32 vcc, 0, v108")
    T("v_mov_b32 v110, 0")
    T("v_mov_b32 v111, 0x3f803f80")
    T("v_cndmask_b32 v110, v110, v111, vcc")
    for i in range(8): T(f"v_mov_b32 v{vV0f+i}, v110")
    for q in (0, 1):
        T(f"v_mov_b32 v{m_[q]}, 0xff800000")
        for i in range(16): T(f"v_mov_b32 v{O_[q]+i}, 0")
    T(f"s_mov_b32 s{sT+2}, 0")
    T("L_slow_loop:")
    T(f"s_lshr_b32 s{sT+3}, s{sT+2}, 3")
    T(f"s_lshl_b32 s{sT+3}, s{sT+3}, 15")
    T(f"s_and_b32 s{sT+4}, s{sT+2}, 7")
    T(f"s_lshl_b32 s{sT+4}, s{sT+4}, 11")
    T(f"s_add_u32 s{sT+3}, s{sT+3}, s{sT+4}")
    T(f"s_add_u32 s{sT+3}, s{sT+3}, s{sT}")
    T(f"buffer_load_dwordx4 {v(vKf,4)}, v{vL16}, s[{sWS}:{sWS+3}], s{sT+3} offen sc1")
    T("s_mov_b32 exec_lo, 0xffff")
    T("s_mov_b32 exec_hi, 0xffff")
    T(f"buffer_load_dwordx4 {v(vV0f,4)}, v109, s[{sWS}:{sWS+3}], s{sT+3} offen offset:1024 sc1")
    T(f"buffer_load_dwordx4 {v(vV1f,4)}, v109, s[{sWS}:{sWS+3}], s{sT+3} offen offset:1536 sc1")
    T("s_mov_b64 exec, -1")
    T("s_waitcnt vmcnt(0)")
    for q in (0, 1):
        S, O, m = S_[q], O_[q], m_[q]
        T(f"{M32} {v(S,16)}, {v(vKf,4)}, {v(vQ[q],4)}, 0")
        T("s_nop 15"); T("s_nop 3")
        T(f"v_max3_f32 v107, v{S}, v{S+1}, v{m}")
        for i in range(1, 8): T(f"v_max3_f32 v107, v{S+2*i}, v{S+2*i+1}, v107")
        T("v_mov_b32 v108, v107")
        T("s_nop 1")
        T("v_permlane32_swap_b32 v107, v108")
        T("v_max_f32 v107, v107, v108")
        T(f"v_sub_f32 v{al}, v{m}, v107")
        T(f"v_exp_f32 v{al}, v{al}")
        T(f"v_mov_b32 v{m}, v107")
        for i in range(16): T(f"v_sub_f32 v{S+i}, v{S+i}, v107")
        for i in range(16): T(f"v_exp_f32 v{S+i}, v{S+i}")
        for i in range(9): T(f"v_mul_f32 v{O+i}, v{O+i}, v{al}")
        if cfg.sm:
            T("s_nop 1")
            T(f"{SM} {v(O,16)}, {v(vV0f,4)}, {v(S,8)}, v{vIdx}")
            T(f"{SM} {v(O,16)}, {v(vV1f,4)}, {v(S+8,8)}, v{vIdx}")
        else:
            for i in range(8): T(f"v_cvt_pk_bf16_f32 v{P_+i}, v{S+2*i}, v{S+2*i+1}")
            T("s_nop 1")
            T(f"{M32} {v(O,16)}, {v(vV0f,4)}, {v(P_,4)}, {v(O,16)}")
            T(f"{M32} {v(O,16)}, {v(vV1f,4)}, {v(P_+4,4)}, {v(O,16)}")
        T("s_nop 15"); T("s_nop 3")
    T(f"s_add_u32 s{sT+2}, s{sT+2}, 1")
    T(f"s_cmp_lt_u32 s{sT+2}, 64")
    T("s_cbranch_scc1 L_slow_loop")
    T("s_branch L_slow_ret")
    tails.append(T)

def p2_epilogue(A, cfg):
    A.c("---- normalise (gate factor / row sum), round, publish O fragments (the data is its own ready flag:")
    A.c("     the slots were filled with 0xffffffff earlier in this launch and no published word has that value)")
    if cfg.nocheck == 2:
        A("s_sleep 64")
    A(f"s_add_u32 s{sJ}, s{sOst}, 65536")
    A(f"s_mov_b32 s{sT}, 0xfffffffe")
    if cfg.zearly: A("s_waitcnt vmcnt(6)")
    for q in (0, 1): A(f"v_sub_f32 v{vGF[q]}, s{sGc}, v{vGF[q]}")
    for q in (0, 1): A(f"v_rcp_f32 v{104+2*q}, v{O_[q]+8}")
    for q in (0, 1):
        O = O_[q]
        A(f"v_mul_f32 v{104+2*q}, v{104+2*q}, |v{vGF[q]}|")
        A(f"v_mov_b32 v{105+2*q}, v{104+2*q}")
        for i in range(4): A(f"v_pk_mul_f32 {v(O+2*i,2)}, {v(O+2*i,2)}, {v(104+2*q,2)}")
        for i in range(4): A(f"v_cvt_pk_bf16_f32 v{108+4*q+i}, v{O+2*i}, v{O+2*i+1}")
        for i in range(4): A(f"v_min_u32 v{108+4*q+i}, s{sT}, v{108+4*q+i}")
        A(f"buffer_store_dwordx4 {v(108+4*q,4)}, v{vL16}, s[{sWS}:{sWS+3}], s{sOst if q == 0 else sJ} offen sc1")
    lstamp(A, cfg, 44)

OF, AC, WFR = 128, [32, 48], [64, 72, 80, 88]
PS = 272
def p3(A, cfg):
    A.c("---- phase 3: out tile 64x64 = [gA*OA | gB*OB] @ [WoA ; WoB]")
    LA = cfg.la
    ld = lambda hh, sc=" sc1": f"buffer_load_dwordx4 {v(OF+4*hh,4)}, v4, s[{sWS}:{sWS+3}], s{8+hh//4} offen offset:{(hh%4)*1024}{sc}"
    SC1 = {0: " sc1", 1: "", 2: " nt", 3: " sc0"}[cfg.bulk]
    def rdw(hh):
        F = WFR[hh % 4]
        return [f"ds_read_b64_tr_b16 {v(F,2)}, v2 offset:{hh*2048}", f"ds_read_b64_tr_b16 {v(F+2,2)}, v2 offset:{hh*2048+1024}",
                f"ds_read_b64_tr_b16 {v(F+4,2)}, v3 offset:{hh*2048}", f"ds_read_b64_tr_b16 {v(F+6,2)}, v3 offset:{hh*2048+1024}"]
    def addr():
        A("v_lshrrev_b32 v16, 5, v0")
        A("v_lshlrev_b32 v16, 2, v16")
        A("v_bfe_u32 v17, v0, 2, 2")
        A("v_add_u32 v16, v16, v17")
        A("v_lshlrev_b32 v16, 7, v16")
        A("v_bfe_u32 v17, v0, 4, 1")
        A("v_lshlrev_b32 v17, 1, v17")
        A("v_bfe_u32 v18, v0, 1, 1")
        A("v_add_u32 v17, v17, v18")
        A("v_bfe_u32 v18, v0, 3, 1")
        A("v_lshlrev_b32 v18, 2, v18")
        A("v_xor_b32 v17, v17, v18")
        A("v_lshl_add_u32 v16, v17, 4, v16")
        A("v_and_b32 v17, 1, v0")
        A("v_lshl_add_u32 v16, v17, 3, v16")
        A(f"s_lshr_b32 s{sT+4}, s{sWave}, 1")
        A(f"s_lshl_b32 s{sT+5}, s{sT+4}, 15")
        A(f"s_add_u32 s{sT+5}, s{sT+5}, {WO}")
        A(f"v_add_u32 v2, s{sT+5}, v16")
        A("v_xor_b32 v3, 64, v2")
        A("v_and_b32 v16, 31, v0")
        A(f"s_and_b32 s{sT}, s{sWave}, 1")
        A(f"s_lshl_b32 s{sT}, s{sT}, 5")
        A(f"s_lshl_b32 s{sT+1}, s{sT+4}, 6")
        A(f"s_add_u32 s{sT}, s{sT}, s{sT+1}")
        A(f"v_add_u32 v16, s{sT}, v16")
        A(f"v_mul_u32_u24 v16, {PS}, v16")
        A("v_lshrrev_b32 v17, 5, v0")
        A("v_lshl_add_u32 v6, v17, 4, v16")
        A("v_lshrrev_b32 v16, 3, v0")
        A(f"s_lshl_b32 s{sT}, s{sWave}, 3")
        A(f"v_add_u32 v16, s{sT}, v16")
        A(f"v_mul_u32_u24 v7, {PS}, v16")
        A("v_and_b32 v17, 7, v0")
        A("v_lshl_add_u32 v7, v17, 5, v7")
        A("v_lshlrev_b32 v16, 10, v16")
        A("v_lshl_add_u32 v8, v17, 4, v16")
    for i in range(4): A(f"s_add_u32 s{8+i}, s{sOld}, {4096*i}")
    A(f"s_mov_b32 s{sSpin}, {SPIN_MAX}")
    A(f"v_mov_b32 v4, v{vL16}")
    if cfg.nocheck == 3:
        A("s_sleep 80")
        stamp(A, cfg, 7)
    for hh in range(LA): A(ld(hh, SC1))
    addr()
    lstamp(A, cfg, 55)
    A(f"s_waitcnt vmcnt({2 + LA})")
    A("s_barrier")
    lstamp(A, cfg, 56)
    for x in rdw(0) + rdw(1): A(x)
    A.c("a fragment that still holds fill words is fetched again (with the ones behind it)")
    for hh in range(16):
        F = WFR[hh % 4]; o = OF + 4 * hh
        A(f"L_ostep{hh}:")
        A(f"s_waitcnt vmcnt({min(LA - 1, 15 - hh)})")
        A(f"v_max3_u32 v10, v{o}, v{o+1}, v{o+2}")
        A(f"v_max_u32 v10, v10, v{o+3}")
        A("v_cmp_eq_u32 vcc, -1, v10")
        A(f"s_waitcnt lgkmcnt({4 if hh < 15 else 0})")
        if not cfg.nocheck: A(f"s_cbranch_vccnz L_oretry{hh}")
        A(f"L_ogo{hh}:")
        A(f"{M32} {v(AC[0],16)}, {v(F,4)}, {v(o,4)}, {'0' if hh == 0 else v(AC[0],16)}")
        if hh + LA < 16: A(ld(hh + LA, SC1))
        R = rdw(hh + 2) if hh + 2 < 16 else []
        for x in R[:2]: A(x)
        A(f"{M32} {v(AC[1],16)}, {v(F+4,4)}, {v(o,4)}, {'0' if hh == 0 else v(AC[1],16)}")
        for x in R[2:]: A(x)
        T = Asm()
        T(f"L_oretry{hh}:")
        T(f"s_sub_u32 s{sSpin}, s{sSpin}, 1")
        T(f"s_cmp_gt_i32 s{sSpin}, 0")
        T(f"s_cbranch_scc0 L_ogo{hh}")
        T("s_waitcnt vmcnt(0)")
        if cfg.rsleep: T(f"s_sleep {cfg.rsleep}")
        for h2 in range(hh, min(16, hh + LA)): T(ld(h2))
        T(f"s_branch L_ostep{hh}")
        tails.append(T)
    stamp(A, cfg, 8)
    lstamp(A, cfg, 41)
    if cfg.stamps == 4:
        A(f"s_sub_u32 s80, {SPIN_MAX + 1000}, s{sSpin}")
        A("v_writelane_b32 v31, s80, 53")
    A("s_barrier")
    A("s_nop 7")
    A("s_nop 1")
    for rq in range(4):
        A(f"ds_write_b128 v6, {v(AC[0]+4*rq,4)} offset:{rq*32}")
    for rq in range(4):
        A(f"ds_write_b128 v6, {v(AC[1]+4*rq,4)} offset:{128 + rq*32}")
    A("s_waitcnt lgkmcnt(0)")
    lstamp(A, cfg, 42)
    A("s_barrier")
    lstamp(A, cfg, 43)
    for kq in range(4):
        A(f"ds_read_b128 {v(64+8*kq,4)}, v7 offset:{kq*64*PS}")
        A(f"ds_read_b128 {v(68+8*kq,4)}, v7 offset:{kq*64*PS+16}")
    A("s_waitcnt lgkmcnt(4)")
    for i in range(4): A(f"v_pk_add_f32 {v(64+2*i,2)}, {v(64+2*i,2)}, {v(72+2*i,2)}")
    A("s_waitcnt lgkmcnt(0)")
    for i in range(4): A(f"v_pk_add_f32 {v(80+2*i,2)}, {v(80+2*i,2)}, {v(88+2*i,2)}")
    for i in range(4): A(f"v_pk_add_f32 {v(64+2*i,2)}, {v(64+2*i,2)}, {v(80+2*i,2)}")
    for i in range(4): A(f"v_cvt_pk_bf16_f32 v{96+i}, v{64+2*i}, v{65+2*i}")
    A(f"buffer_store_dwordx4 v[96:99], v8, s[{sOUT}:{sOUT+3}], s{sOut} offen" + ["", " sc1", " nt", " sc0 sc1", " sc1 nt"][cfg.outsc])

def build(cfg):
    tails.clear()
    XSWAP[0] = cfg.xswap
    PVSWAP[0] = cfg.pvswap
    SMUSE[0] = cfg.sm
    ORDER[0] = cfg.korder
    ONES[0] = cfg.ones
    name = KN + "_kernel"
    A = Asm(); kernel_head(A, name)
    prologue(A, cfg)
    p1_compute(A, cfg)
    stamp(A, cfg, 2)
    lstamp(A, cfg, 27)
    p1_compute_epilogue(A, cfg)
    A("s_branch L_attn")
    A("L_loader:")
    p1_loader(A, cfg)
    stamp(A, cfg, 2)
    if cfg.c1c: p2_setup(A, cfg)
    A("L_attn:")
    if cfg.dbl: A("s_memrealtime s[82:83]")
    stamp(A, cfg, 3)
    lstamp(A, cfg, 28)
    if not cfg.c1c: p2_setup(A, cfg)
    p2_main(A, cfg)
    stamp(A, cfg, 5)
    lstamp(A, cfg, 37)
    if cfg.dbl: A("s_memrealtime s[86:87]")
    p2_check(A, cfg)
    p2_epilogue(A, cfg)
    stamp(A, cfg, 6)
    p3(A, cfg)
    stamp_store(A, cfg, 10 if cfg.c0st else 9)
    if cfg.dbl:
        A("s_cmp_lg_u32 s2, 0")
        A("s_cbranch_scc1 L_end")
        A("s_waitcnt vmcnt(0)")
        A("s_memrealtime s[84:85]")
        A("s_waitcnt lgkmcnt(0)")
        a, b = {1: (80, 84), 2: (80, 82), 3: (82, 86), 4: (86, 84)}[cfg.dbl]
        A(f"s_sub_u32 s88, s{b}, s{a}")
        A("s_add_u32 s88, s88, s84")
        A("L_dbl:")
        A("s_memrealtime s[90:91]")
        A("s_waitcnt lgkmcnt(0)")
        A("s_sub_u32 s89, s90, s88")
        A("s_cmp_lt_i32 s89, 0")
        A("s_cbranch_scc1 L_dbl")
    A("L_end:")
    A("s_endpgm")
    txt = A.text() + "".join(t.text() for t in tails)
    hdr = f"""; gated dual multi-head attention block: one persistent launch, 256 workgroups (one per CU)
; @launch grid=(256,1,1) block=(512,1,1) lds={LDS_TOTAL}
.amdgcn_target "amdgcn-amd-amdhsa--gfx950"
"""
    return hdr + txt + kernel_desc(name, 256)

if __name__ == "__main__":
    import sys
    cfg = Cfg()
    for a in sys.argv[2:]:
        k_, v_ = a.split("=")
        setattr(cfg, k_, int(v_, 0))
    open(sys.argv[1], "w").write(build(cfg))
```

```python
from base import *
import math, struct

KN = "gated_mix__softmax_full_mha__mha_block__prompt"
sX, sW, sG, sWS, sWOA, sWOB, sOUT, sDBG = 24, 28, 32, 36, 40, 44, 48, 52
sWave, sSlab, sPair, sKC, sRG = 56, 57, 58, 59, 60
sSpin = 61
sT = 62
sXb, sXo, sWb_, sWo, sK2, sM = 70, 71, 72, 73, 74, 75
sCH, sCO, sMB, sWoG, sWoM, sJ = 70, 71, 72, 73, 74, 75
sS3, sR3, sC3, sF = 76, 77, 78, 79
WS_KV, WS_O, WS_F1, WS_F2, WS_ST, WS_SIZE = 0, 8 << 20, 12 << 20, (12 << 20) + 16384, 22 << 20, 24 << 20
WS_G = (12 << 20) + 32768
XS, WB, GW, QX, GV = 32768, 98304, 135168, 69632, 77824
XB = {0: 32768, 1: 0, 2: 65536}
SLOT, REC, HSTR = 33280, 2080, 16640
SA, SB, SC = 0, 33280, 130560
WO = 0
LDS_TOTAL = 163840
LOG2E = math.log2(math.e)
QSCALE = 0.25 * LOG2E
SPIN_MAX = 200000
def fbits(x): return hex(struct.unpack("<I", struct.pack("<f", x))[0])
vKL, vV0L, vV1L, vKH, vV0H, vV1H, vL16, vWoD, vPA, vPoll = range(240, 250)
vGF = [250, 251]
vZ = 252
vZA, vZ2 = 254, 255
vGA, vFill, sGo = 253, 232, 3
vIdx, vZero, vKP = 231, 236, 230
SM = "v_smfmac_f32_32x32x32_bf16"
sOst, sOld, sOut, sGc = 4, 5, 6, 7

class Cfg:
    lr = 2
    prio = 0x6BE
    p1prio = 1
    prio0 = 0x37B
    stamps = 0
    slow = 1
    force_slow = 0
    t_poll = 3
    dotmode = 4
    p1pipe = 0
    n_z = 21
    rot = 23
    tailbar = 1
    prog = 32
    bulk = 0
    early = 5
    la = 4
    p3w = 4
    la4 = 8
    p3pipe = 1
    korder = 1
    t_load = 2
    zld = 1
    sm = 1
    wfull = 0
    zearly = 0
    noz = 0
    n_add = 8
    wpf3 = 0
    prot = 0
    uni = 0
    c1c = 0
    t_c2 = 4
    c0st = 0
    pvswap = 0
    ones = 0
    xswap = 1
    nocheck = 0
    late1 = 0
    c2c = 0
    spf = 0
    spfe = 1
    spfw = 0
    p1x = 0
    dbl = 0
    order = 0
    align = 0
    shift = 0
    outsc = 3
    rsleep = 0
    ethr = 32
    spindepth = 0
    sspread = 1
    spinsleep = 0
    wpf2 = 0
    epi2 = 1
    wfirst = 0
    l2pf = 0
    pfoff = 0
    epist = 0
    t16 = 0
    wpf = 0

def stamp(A, cfg, i, force=False):
    if cfg.c0st and not force and i not in (0, 10): return
    if cfg.stamps in (1, 3): A(f"s_memrealtime s[{80+2*i}:{81+2*i}]")
    if cfg.stamps == 2: A(f"s_memtime s[{80+2*i}:{81+2*i}]")
def lstamp(A, cfg, i):
    if cfg.stamps == 4:
        A("s_memrealtime s[80:81]")
        A("s_waitcnt lgkmcnt(0)")
        A(f"v_writelane_b32 v31, s80, {i}")
def stamp_store(A, cfg, n):
    if not cfg.stamps: return
    if cfg.stamps == 4:
        A("s_waitcnt vmcnt(0)")
        lstamp(A, cfg, 40)
        A(f"s_lshl_b32 s{sT}, s2, 3")
        A(f"s_add_u32 s{sT}, s{sT}, s{sWave}")
        A(f"s_lshl_b32 s{sT}, s{sT}, 8")
        A(f"s_add_u32 s{sT}, s{sT}, {WS_ST}")
        A("v_lshlrev_b32 v1, 2, v0")
        A(f"buffer_store_dword v31, v1, s[{sWS}:{sWS+3}], s{sT} offen")
        return
    A("s_waitcnt vmcnt(0)")
    stamp(A, cfg, n)
    A("s_waitcnt lgkmcnt(0)")
    if cfg.stamps == 3:
        A("s_mov_b64 exec, 1")
        A(f"s_not_b32 s{sT}, s80")
        A(f"v_mov_b32 v2, s{sT}")
        A(f"buffer_atomic_umax v2, off, s[{sDBG}:{sDBG+3}], 0 offset:8")
        for i in range(n + 1):
            A(f"v_mov_b32 v{3+i}, s{80+2*i}")
            A(f"buffer_atomic_umax v{3+i}, off, s[{sDBG}:{sDBG+3}], 0 offset:{12+4*i}")
        return
    A(f"s_lshl_b32 s{sT}, s2, 3")
    A(f"s_add_u32 s{sT}, s{sT}, s{sWave}")
    A(f"s_lshl_b32 s{sT}, s{sT}, 6")
    A(f"s_add_u32 s{sT}, s{sT}, {WS_ST}")
    A("v_mov_b32 v1, 0")
    for i in range(n + 1):
        A(f"v_mov_b32 v2, s{80+2*i}")
        A(f"buffer_store_dword v2, v1, s[{sWS}:{sWS+3}], s{sT} offen offset:{4*i}")
        A("s_nop 1")

def prologue(A, cfg):
    if cfg.dbl: A("s_memrealtime s[80:81]")
    stamp(A, cfg, 0)
    if cfg.stamps == 4: A("v_mov_b32 v31, 0")
    lstamp(A, cfg, 0)
    A("s_cmp_ge_u32 s2, 256")
    A("s_cbranch_scc1 L_end")
    A("s_load_dwordx16 s[4:19], s[0:1], 0")
    A("s_load_dwordx4 s[20:23], s[0:1], 64")
    A("v_lshrrev_b32 v1, 6, v0")
    A("v_and_b32 v0, 63, v0")
    A(f"v_readfirstlane_b32 s{sWave}, v1")
    lr = cfg.lr
    A(f"s_and_b32 s{sT}, s2, {(8 >> lr) - 1}")
    A(f"s_lshl_b32 s{sT}, s{sT}, {lr}")
    A(f"s_lshr_b32 s{sT+1}, s2, 3")
    A(f"s_and_b32 s{sT+2}, s{sT+1}, {(1 << lr) - 1}")
    A(f"s_or_b32 s{sSlab}, s{sT}, s{sT+2}")
    A(f"s_and_b32 s{sT}, s2, 7")
    A(f"s_lshr_b32 s{sT}, s{sT}, {3 - lr}")
    A(f"s_lshl_b32 s{sT}, s{sT}, {5 - lr}")
    A(f"s_lshr_b32 s{sT+1}, s{sT+1}, {lr}")
    if cfg.prot:
        A(f"s_add_u32 s{sT+1}, s{sT+1}, {cfg.prot}")
        A(f"s_and_b32 s{sT+1}, s{sT+1}, {(32 >> lr) - 1}")
    A(f"s_add_u32 s{sPair}, s{sT}, s{sT+1}")
    if cfg.rot == 0:
        A(f"s_add_u32 s{sKC}, s{sPair}, s{sSlab}")
    elif cfg.rot == 1:
        A(f"s_lshl_b32 s{sKC}, s{sSlab}, 1")
        A(f"s_add_u32 s{sKC}, s{sKC}, s{sPair}")
    elif cfg.rot == 2:
        A(f"s_and_b32 s{sKC}, s2, 6")
        A(f"s_and_b32 s{sT}, s2, 1")
        A(f"s_lshl_b32 s{sT}, s{sT}, 2")
        A(f"s_add_u32 s{sKC}, s{sKC}, s{sT}")
    elif cfg.rot == 3:
        A(f"s_mov_b32 s{sKC}, 0")
    elif cfg.rot == 4:
        A(f"s_and_b32 s{sKC}, s2, 6")
        A(f"s_add_u32 s{sT}, s{sPair}, s{sSlab}")
        A(f"s_and_b32 s{sT}, s{sT}, 1")
        A(f"s_lshl_b32 s{sT}, s{sT}, 2")
        A(f"s_add_u32 s{sKC}, s{sKC}, s{sT}")
    elif cfg.rot == 5:
        A(f"s_add_u32 s{sT}, s{sPair}, s{sSlab}")
        A(f"s_and_b32 s{sT}, s{sT}, 3")
        A(f"s_lshl_b32 s{sT}, s{sT}, 1")
        A(f"s_and_b32 s{sKC}, s2, 1")
        A(f"s_add_u32 s{sKC}, s{sKC}, s{sT}")
    elif cfg.rot == 6:
        A(f"s_bfe_u32 s{sKC}, s2, 0x20001")
        A(f"s_add_u32 s{sT}, s{sPair}, s{sSlab}")
        A(f"s_and_b32 s{sT}, s{sT}, 1")
        A(f"s_lshl_b32 s{sT}, s{sT}, 2")
        A(f"s_add_u32 s{sKC}, s{sKC}, s{sT}")
    elif cfg.rot == 7:
        A(f"s_add_u32 s{sT}, s{sPair}, s{sSlab}")
        A(f"s_and_b32 s{sT}, s{sT}, 1")
        A(f"s_lshl_b32 s{sKC}, s{sT}, 2")
    elif cfg.rot == 8:
        A(f"s_and_b32 s{sKC}, s2, 6")
        A(f"s_add_u32 s{sT}, s{sPair}, s{sSlab}")
        A(f"s_and_b32 s{sT}, s{sT}, 1")
        A(f"s_lshl_b32 s{sT}, s{sT}, 1")
        A(f"s_add_u32 s{sKC}, s{sKC}, s{sT}")
    elif cfg.rot == 9:
        A(f"s_and_b32 s{sKC}, s2, 3")
        A(f"s_add_u32 s{sT}, s{sPair}, s{sSlab}")
        A(f"s_and_b32 s{sT}, s{sT}, 1")
        A(f"s_lshl_b32 s{sT}, s{sT}, 2")
        A(f"s_add_u32 s{sKC}, s{sKC}, s{sT}")
    elif cfg.rot in (16, 17, 18) or cfg.rot >= 19:
        pass
    elif cfg.rot in (10, 11, 13, 14, 15):
        if cfg.rot in (10, 11): A(f"s_add_u32 s{sT}, s{sPair}, s{sSlab}")
        elif cfg.rot == 13: A(f"s_mov_b32 s{sT}, s{sSlab}")
        elif cfg.rot == 14: A(f"s_mov_b32 s{sT}, s{sPair}")
        elif cfg.rot == 15:
            A(f"s_lshr_b32 s{sT}, s{sPair}, 1")
            A(f"s_add_u32 s{sT}, s{sT}, s{sSlab}")
        A(f"s_and_b32 s{sT}, s{sT}, 3")
        A(f"s_lshl_b32 s{sT}, s{sT}, 1")
        if cfg.rot == 10: A(f"s_bfe_u32 s{sKC}, s2, 0x10001")
        elif cfg.rot == 11: A(f"s_mov_b32 s{sKC}, 0")
        else: A(f"s_and_b32 s{sKC}, s2, 1")
        A(f"s_add_u32 s{sKC}, s{sKC}, s{sT}")
    if cfg.rot not in (16, 17, 18) and cfg.rot < 19: A(f"s_and_b32 s{sKC}, s{sKC}, 7")
    A(f"s_and_b32 s{sRG}, s{sWave}, 3")
    A(f"s_cmp_ge_u32 s{sWave}, 4")
    A("s_cbranch_scc1 L_loader")

XSWAP = [0]
P3W = [8]
PVSWAP = [0]
SMUSE = [0]
ONES = [0]
def late_srds(A):
    srd(A, sWS, 22, 23, WS_SIZE)
    srd(A, sWOA, 8, 9, 512 * 512 * 2)
    srd(A, sWOB, 14, 15, 512 * 512 * 2)
    srd(A, sOUT, 18, 19, 2048 * 512 * 2)
    srd(A, sDBG, 20, 21, 256)
    if XSWAP[0]:
        A.c("output slab: one this XCD group does not produce itself (speed only)")
        A(f"s_bfe_u32 s{sS3}, s2, 0x20001")
        A(f"s_andn2_b32 s{sR3}, 1, s2")
        A(f"s_lshl_b32 s{sR3}, s{sR3}, 2")
        A(f"s_add_u32 s{sS3}, s{sS3}, s{sR3}")
    else:
        A(f"s_and_b32 s{sS3}, s2, 7")
    A(f"s_bfe_u32 s{sR3}, s2, 0x20003")
    A(f"s_lshr_b32 s{sC3}, s2, 5")
    A(f"s_lshl_b32 s{sF}, s{sPair}, 2")
    A(f"s_add_u32 s{sF}, s{sF}, s{sRG}")
    A(f"s_lshl_b32 s{sF}, s{sF}, 7")
    A(f"s_add_u32 s{sF}, s{sF}, {WS_F1}")
    A.c("scalars of the tail (s4..s7: their pointers are dead by now)")
    A(f"s_lshl_b32 s{sT}, s{sSlab}, 2")
    A(f"s_add_u32 s{sT}, s{sT}, s{sRG}")
    A(f"s_lshl_b32 s{sT}, s{sT}, 17")
    A(f"s_lshl_b32 s{sT+1}, s{sPair}, 1")
    A(f"s_lshr_b32 s{sT+2}, s{sWave}, 2")
    A(f"s_add_u32 s{sT+1}, s{sT+1}, s{sT+2}")
    A(f"s_lshl_b32 s{sT+1}, s{sT+1}, 10")
    A(f"s_add_u32 s{sT}, s{sT}, s{sT+1}")
    A(f"s_add_u32 s{sOst}, s{sT}, {WS_O}")
    A(f"s_lshl_b32 s{sT}, s{sS3}, 3")
    A(f"s_lshl_b32 s{sT+1}, s{sR3}, 1")
    A(f"s_add_u32 s{sT}, s{sT}, s{sT+1}")
    A(f"s_and_b32 s{sT+1}, s{sWave}, 1")
    A(f"s_add_u32 s{sT}, s{sT}, s{sT+1}")
    A(f"s_lshl_b32 s{sT}, s{sT}, 16")
    A(f"s_lshr_b32 s{sT+1}, s{sWave}, 1")
    A(f"s_lshl_b32 s{sT+1}, s{sT+1}, {15 if P3W[0] == 4 else 14}")
    A(f"s_add_u32 s{sT}, s{sT}, s{sT+1}")
    A(f"s_add_u32 s{sOld}, s{sT}, {WS_O}")
    A(f"s_lshl_b32 s{sT}, s{sS3}, 8")
    A(f"s_lshl_b32 s{sT+1}, s{sR3}, 6")
    A(f"s_add_u32 s{sT}, s{sT}, s{sT+1}")
    A(f"s_lshl_b32 s{sT}, s{sT}, 10")
    A(f"s_lshl_b32 s{sT+1}, s{sC3}, 7")
    A(f"s_add_u32 s{sOut}, s{sT}, s{sT+1}")
    A(f"s_lshr_b32 s{sGc}, s{sPair}, 4")
    A(f"s_mul_i32 s{sGc}, s{sGc}, 0x3f800000")

def xfrag_addr(A, L, H, t):
    A(f"v_and_b32 v{t}, 31, v0")
    A(f"v_lshrrev_b32 v{t+1}, 5, v0")
    A(f"v_bfe_u32 v{t+2}, v0, 1, 3")
    A(f"v_xor_b32 v{t+2}, v{t+2}, v{t+1}")
    A(f"v_lshlrev_b32 v{t}, 7, v{t}")
    A(f"s_lshl_b32 s{sT}, s{sRG}, 13")
    A(f"v_add_u32 v{t}, s{sT}, v{t}")
    for j in range(4):
        A(f"v_xor_b32 v{t+1}, {2*j}, v{t+2}")
        A(f"v_lshl_add_u32 v{L[j]}, v{t+1}, 4, v{t}")
        A(f"v_add_u32 v{H[j]}, 0x10000, v{L[j]}")

def p2_addr(A):
    A(f"v_lshlrev_b32 v{vL16}, 4, v0")
    A(f"s_lshr_b32 s{sT}, s{sWave}, 2")
    A(f"s_mul_i32 s{sT}, s{sT}, {HSTR}")
    A(f"v_add_u32 v{vKL}, s{sT}, v{vL16}")
    A("v_lshrrev_b32 v104, 5, v0")
    A("v_and_b32 v105, 15, v0")
    A("v_lshlrev_b32 v105, 4, v105")
    A("v_lshl_add_u32 v105, v104, 8, v105")
    A("v_add_u32 v105, 1024, v105")
    A("v_add_u32 v106, 512, v105")
    A("v_and_b32 v104, 11, v0")
    A("v_cmp_eq_u32 vcc, 0, v104")
    A("v_mov_b32 v107, " + ("2048" if ONES[0] == 1 else "2064"))
    A("v_mov_b32 v108, " + ("2064" if ONES[0] == 2 else "2048"))
    A("v_cndmask_b32 v107, v107, v108, vcc")
    A("v_and_b32 v104, 16, v0")
    A("v_cmp_eq_u32 vcc, 0, v104")
    A("s_nop 1")
    A("v_cndmask_b32 v105, v107, v105, vcc")
    A("v_cndmask_b32 v106, v107, v106, vcc")
    A(f"v_add_u32 v{vV0L}, s{sT}, v105")
    A(f"v_add_u32 v{vV1L}, s{sT}, v106")
    A(f"v_add_u32 v{vKH}, {SC}, v{vKL}")
    A(f"v_add_u32 v{vV0H}, {SC}, v{vV0L}")
    A(f"v_add_u32 v{vV1H}, {SC}, v{vV1L}")
    A("v_lshrrev_b32 v104, 3, v0")
    A("v_lshlrev_b32 v104, 10, v104")
    A("v_and_b32 v105, 7, v0")
    A(f"v_lshlrev_b32 v{vPA}, 2, v105")
    A("v_bfe_u32 v106, v0, 4, 1")
    A("v_lshlrev_b32 v106, 2, v106")
    A("v_xor_b32 v105, v105, v106")
    A(f"v_lshl_add_u32 v{vWoD}, v105, 4, v104")

def consts(A, slots):
    A("v_lshrrev_b32 v104, 4, v0")
    A(f"v_mul_u32_u24 v104, {slots[-1] - slots[0]}, v104")
    A("v_and_b32 v105, 15, v0")
    A(f"v_mul_u32_u24 v105, {REC}, v105")
    A("v_add_u32 v104, v104, v105")
    if slots[0]: A(f"v_add_u32 v104, {slots[0]}, v104")
    for i in range(4):
        A(f"v_mov_b32 v{108+i}, 0x3f803f80")
        A(f"v_mov_b32 v{112+i}, 0")
    n = 16 * len(slots)
    A(f"s_mov_b32 exec_lo, {hex((1 << min(n,32)) - 1)}")
    A(f"s_mov_b32 exec_hi, {hex((1 << max(n-32,0)) - 1)}")
    A("ds_write_b128 v104, v[108:111] offset:2048")
    A("ds_write_b128 v104, v[112:115] offset:2064")
    A("s_mov_b64 exec, -1")

tails = []
def spin(A, name, load, reg, val, cmp="ne", sleep=0, depth=0):
    A("s_waitcnt vmcnt(0)")
    A(f"v_cmp_{cmp}_u32 vcc, {val}, v{reg}")
    A("s_nop 0")
    A(f"s_cbranch_vccnz L_spin_{name}")
    A(f"L_ret_{name}:")
    T = Asm()
    T(f"L_spin_{name}:")
    T(f"s_mov_b32 s{sSpin}, {SPIN_MAX}")
    for _ in range(depth):
        T(load)
        if sleep: T(f"s_sleep {sleep}")
    T(f"L_spinl_{name}:")
    if sleep: T(f"s_sleep {sleep}")
    T(load)
    T(f"s_sub_u32 s{sSpin}, s{sSpin}, 1")
    T(f"s_cbranch_scc1 L_ret_{name}")
    T(f"s_waitcnt vmcnt({depth})")
    T(f"v_cmp_{cmp}_u32 vcc, {val}, v{reg}")
    T("s_nop 0")
    T(f"s_cbranch_vccnz L_spinl_{name}")
    T(f"s_branch L_ret_{name}")
    tails.append(T)

vXL, vXH = [2, 3, 4, 5], [6, 7, 8, 9]
vWa, vWb, vWv = 10, 11, 12
ACC = dict(QKa0=32, QKa1=48, QKb0=64, QKb1=80, VV0=96, VV1=112)
FR = [128, 148]
vQ = [8, 12]
F1LOAD = f"buffer_load_dword v{vPoll}, v{vPA}, s[{sWS}:{sWS+3}], s{sF} offen sc1"
SAMPLE = f"buffer_load_dword v28, v5, s[{sWS}:{sWS+3}], s{sOld} offen sc1"
ZLOAD = f"buffer_load_dword v{vZ}, v{vPoll}, s[{sDBG}:{sDBG+3}], 0 offen sc1"

def l2_prefetch(A, cfg):
    assert cfg.lr == 2
    A(f"s_cmp_lt_u32 s{sPair}, 16")
    A(f"s_cselect_b32 s{sW}, s6, s12")
    A(f"s_cselect_b32 s{sW+1}, s7, s13")
    A(f"s_mov_b32 s{sW+2}, {hex(512*1536*2)}")
    A(f"s_mov_b32 s{sW+3}, 0x20000")
    A(f"s_lshl_b32 s{sT}, s{sWave}, 1")
    A(f"s_add_u32 s{sT}, s{sT}, s{sKC}")
    A(f"s_add_u32 s{sT}, s{sT}, {cfg.pfoff}")
    A("v_lshrrev_b32 v46, 5, v0")
    A(f"v_add_u32 v46, s{sT}, v46")
    A("v_and_b32 v46, 7, v46")
    A("v_and_b32 v47, 31, v0")
    A(f"s_lshr_b32 s{sT+1}, s2, 3")
    A(f"s_and_b32 s{sT+2}, s2, 1")
    A(f"s_lshl_b32 s{sT+2}, s{sT+2}, 20")
    A(f"s_lshl_b32 s{sT+3}, s{sT+1}, 15")
    A(f"s_add_u32 s{sT+2}, s{sT+2}, s{sT+3}")
    A("v_lshlrev_b32 v48, 10, v47")
    A("v_lshl_add_u32 v48, v46, 7, v48")
    A(f"buffer_load_dword v200, v48, s[{sX}:{sX+3}], s{sT+2} offen")
    A(f"s_mul_i32 s{sT+1}, s{sT+1}, 24")
    A("v_min_u32 v47, 23, v47")
    A(f"v_add_u32 v47, s{sT+1}, v47")
    A("v_mul_u32_u24 v48, 0x5556, v47")
    A("v_lshrrev_b32 v48, 18, v48")
    A("v_mul_u32_u24 v49, 12, v48")
    A("v_sub_u32 v49, v47, v49")
    A("v_lshl_add_u32 v48, v46, 6, v48")
    A("v_mul_u32_u24 v48, 3072, v48")
    A("v_lshrrev_b32 v47, 2, v49")
    A("v_lshl_add_u32 v48, v47, 10, v48")
    A("v_and_b32 v49, 3, v49")
    A("v_lshl_add_u32 v48, v49, 7, v48")
    A(f"s_and_b32 s{sT+1}, s{sPair}, 8")
    A(f"s_lshl_b32 s{sT+1}, s{sT+1}, 6")
    A(f"buffer_load_dword v201, v48, s[{sW}:{sW+3}], s{sT+1} offen")

def w_prefetch(A, cfg):
    assert cfg.lr == 2
    A(f"s_cmp_lt_u32 s{sPair}, 16")
    A(f"s_cselect_b32 s{sW}, s6, s12")
    A(f"s_cselect_b32 s{sW+1}, s7, s13")
    A(f"s_mov_b32 s{sW+2}, {hex(512*1536*2)}")
    A(f"s_mov_b32 s{sW+3}, 0x20000")
    A(f"s_and_b32 s{sT+1}, s{sPair}, 14")
    A(f"s_lshl_b32 s{sT+1}, s{sT+1}, 6")
    if cfg.wpf2 < 10:
        A(f"s_add_u32 s{sT+3}, s{sW}, s{sT+1}")
        A(f"s_bfe_u32 s{sT+3}, s{sT+3}, 0x30007")
    A(f"s_and_b32 s{sT}, s{sSlab}, 3")
    A(f"s_lshl_b32 s{sT}, s{sT}, 1")
    A(f"s_and_b32 s{sT+2}, s{sPair}, 1")
    A(f"s_add_u32 s{sT}, s{sT}, s{sT+2}")
    A(f"s_add_u32 s{sT}, s{sT}, s{sKC}")
    A(f"s_and_b32 s{sT}, s{sT}, 7")
    A(f"s_mul_i32 s{sT}, s{sT}, 196608")
    A(f"s_add_u32 s{sT}, s{sT}, s{sT+1}")
    A(f"s_mul_i32 s{sT+2}, s{sRG}, 49152")
    A(f"s_add_u32 s{sT}, s{sT}, s{sT+2}")
    A("v_min_u32 v46, 47, v0")
    A("v_lshlrev_b32 v46, 10, v46")
    if cfg.wpf2 < 10:
        A(f"s_cmp_eq_u32 s{sT+3}, 3")
        A("s_cselect_b64 exec, -1, 0")
    A(f"buffer_load_dword v200, v46, s[{sW}:{sW+3}], s{sT} offen")
    A("s_mov_b64 exec, -1")

def hot_prefetch(A, cfg):
    A(f"s_cmp_lt_u32 s{sPair}, 16")
    A(f"s_cselect_b32 s{sW}, s6, s12")
    A(f"s_cselect_b32 s{sW+1}, s7, s13")
    A(f"s_mov_b32 s{sW+2}, {hex(512*1536*2)}")
    A(f"s_mov_b32 s{sW+3}, 0x20000")
    A(f"s_lshr_b32 s{sT}, s{sW}, 7")
    A(f"s_sub_u32 s{sT}, 3, s{sT}")
    A(f"s_and_b32 s{sT}, s{sT}, 7")
    A(f"s_lshl_b32 s{sT}, s{sT}, 7")
    A(f"s_and_b32 s{sT+1}, s{sPair}, 15")
    A(f"s_lshl_b32 s{sT+1}, s{sT+1}, 3")
    A(f"s_add_u32 s{sT+1}, s{sT+1}, s{sSlab}")
    A(f"s_lshl_b32 s{sT+1}, s{sT+1}, 2")
    A(f"s_add_u32 s{sT+1}, s{sT+1}, s{sWave}")
    A(f"s_mul_i32 s{sT+1}, s{sT+1}, 3072")
    A(f"s_add_u32 s{sT}, s{sT}, s{sT+1}")
    A("v_min_u32 v46, 2, v0")
    A("v_lshlrev_b32 v46, 10, v46")
    A(f"buffer_load_dword v200, v46, s[{sW}:{sW+3}], s{sT} offen")

def p1_compute(A, cfg):
    A.c("---- phase 1, compute waves")
    if cfg.p1prio == 1: A("s_setprio 1")
    A("s_waitcnt lgkmcnt(0)")
    A.c("gate g = sigmoid(x . gate_w) of rows 8*wg + 2*wave, +1 (every workgroup covers 8 of the 2048 rows)")
    srd(A, sX, 4, 5, 2048 * 512 * 2)
    srd(A, sG, 16, 17, 1024)
    A(f"s_lshl_b32 s{sT+6}, s2, 2")
    A(f"s_add_u32 s{sT+6}, s{sT+6}, s{sWave}")
    A(f"s_lshl_b32 s{sT+7}, s{sT+6}, 11")
    A("v_lshlrev_b32 v13, 4, v0")
    A(f"buffer_load_dwordx4 v[32:35], v13, s[{sX}:{sX+3}], s{sT+7} offen")
    A(f"buffer_load_dwordx4 v[36:39], v13, s[{sX}:{sX+3}], s{sT+7} offen offset:1024")
    A(f"buffer_load_dwordx4 v[40:43], v13, s[{sG}:{sG+3}], 0 offen")
    if cfg.wpf:
        A.c("pull this workgroup's 1/256 share of both weight matrices towards the chip")
        A(f"s_cmp_lt_u32 s2, 128")
        A(f"s_cselect_b32 s{sW}, s6, s12")
        A(f"s_cselect_b32 s{sW+1}, s7, s13")
        A(f"s_mov_b32 s{sW+2}, {hex(512*1536*2)}")
        A(f"s_mov_b32 s{sW+3}, 0x20000")
        A(f"s_and_b32 s{sT}, s{sT+6}, 511")
        A(f"s_mul_i32 s{sT}, s{sT}, 3072")
        for i in range(3):
            A(f"buffer_load_dwordx4 v[{48+4*i}:{51+4*i}], v13, s[{sW}:{sW+3}], s{sT} offen offset:{1024*i}")
    if cfg.wpf3: hot_prefetch(A, cfg)
    if cfg.wpf2 % 10 == 1: w_prefetch(A, cfg)
    if cfg.c2c:
        A.c("the otherwise idle compute waves fetch chunk 2")
        A(f"s_cmp_lt_u32 s{sPair}, 16")
        A(f"s_cselect_b32 s{sW}, s6, s12")
        A(f"s_cselect_b32 s{sW+1}, s7, s13")
        A(f"s_mov_b32 s{sW+2}, {hex(512*1536*2)}")
        A(f"s_mov_b32 s{sW+3}, 0x20000")
        A("v_lshrrev_b32 v48, 3, v0")
        A("v_lshlrev_b32 v48, 10, v48")
        A("v_and_b32 v49, 7, v0")
        A("v_lshrrev_b32 v50, 4, v0")
        A("v_xor_b32 v49, v49, v50")
        A("v_lshl_add_u32 v48, v49, 4, v48")
        A("v_xor_b32 v49, 64, v48")
        A(f"s_add_u32 s{sK2}, s{sKC}, 2")
        A(f"s_and_b32 s{sK2}, s{sK2}, 7")
        A(f"s_lshl_b32 s{sXo}, s{sK2}, 7")
        A(f"s_lshl_b32 s{sT}, s{sSlab}, 18")
        A(f"s_add_u32 s{sXo}, s{sXo}, s{sT}")
        A(f"s_lshl_b32 s{sT}, s{sRG}, 16")
        A(f"s_add_u32 s{sXo}, s{sXo}, s{sT}")
        A(f"s_lshl_b32 s{sM}, s{sRG}, 13")
        for i in range(8):
            A(f"s_add_u32 m0, s{sM}, {XB[2] + i*1024}")
            A(f"s_add_u32 s{sT}, s{sXo}, {i*8192}")
            A(f"buffer_load_dwordx4 v{49 if i & 1 else 48}, s[{sX}:{sX+3}], s{sT} offen lds")
        A("v_lshrrev_b32 v50, 2, v0")
        A("v_mul_u32_u24 v50, 3072, v50")
        A("v_and_b32 v51, 3, v0")
        A("v_lshl_add_u32 v50, v51, 4, v50")
        A("v_xor_b32 v51, 32, v50")
        A(f"s_and_b32 s{sT}, s{sPair}, 15")
        A(f"s_lshl_b32 s{sT}, s{sT}, 6")
        A(f"s_mul_i32 s{sT+1}, s{sRG}, 49152")
        A(f"s_add_u32 s{sT}, s{sT}, s{sT+1}")
        A(f"s_mul_i32 s{sT+1}, s{sK2}, 196608")
        A(f"s_mul_i32 s{sM}, s{sRG}, 3072")
        A(f"s_add_u32 m0, s{sM}, {WB + 2*12288}")
        A(f"s_add_u32 s{sT}, s{sT}, s{sT+1}")
        for i in range(3):
            A(f"buffer_load_dwordx4 v{51 if i == 1 else 50}, s[{sW}:{sW+3}], s{sT} offen offset:{i*1024} lds")
    late_srds(A)
    A.c("wave 0 clears this workgroup's hand-off words, then counts the workgroup in")
    A(f"s_cmp_lg_u32 s{sWave}, 0")
    A("s_cbranch_scc1 L_nozero")
    A(f"s_lshl_b32 s{sT}, s{sPair}, 9")
    A(f"s_lshl_b32 s{sT+1}, s{sSlab}, 2")
    A(f"s_add_u32 s{sT}, s{sT}, s{sT+1}")
    A(f"s_add_u32 s{sT}, s{sT}, {WS_F1}")
    A("v_lshlrev_b32 v2, 7, v0")
    A(f"v_add_u32 v2, s{sT}, v2")
    A("v_mov_b32 v4, 0")
    A("s_mov_b64 exec, 0xf")
    A(f"buffer_store_dword v4, v2, s[{sWS}:{sWS+3}], 0 offen sc1")
    A("s_mov_b64 exec, -1")
    A("L_nozero:")
    p2_pre(A, False); p2_pre(A, True)
    A("v_and_b32 v2, 1, v0")
    A(f"v_lshlrev_b32 v{vPoll}, 7, v2")
    A(f"v_mov_b32 v{vZ}, 1")
    p2_addr(A)
    xfrag_addr(A, vXL, vXH, 13)
    A("v_lshrrev_b32 v13, 5, v0")
    A("v_lshlrev_b32 v13, 3, v13")
    A("v_bfe_u32 v14, v0, 2, 2")
    A("v_add_u32 v13, v13, v14")
    A("v_lshlrev_b32 v13, 6, v13")
    A("v_and_b32 v14, 3, v0")
    A("v_lshl_add_u32 v13, v14, 3, v13")
    A(f"v_add_u32 v13, {WB}, v13")
    A("v_bfe_u32 v14, v0, 4, 1")
    A("v_mul_u32_u24 v15, 1056, v14")
    A(f"v_add_u32 v{vWa}, v13, v15")
    A("v_mul_u32_u24 v15, 992, v14")
    A(f"v_add3_u32 v{vWb}, v13, v15, 32")
    A("v_lshl_add_u32 v13, v14, 5, v13")
    A(f"v_add_u32 v{vWv}, 2048, v13")
    def reads(c, j, F):
        if cfg.p1x & 8 and (c, j) != (0, 0): return ["s_nop 0"] * 8
        slot = c % 3
        xr = vXH[j] if slot == 2 else vXL[j]
        xi = XS if slot == 0 else 0
        wi = slot * 12288 + j * 3072
        return [f"ds_read_b128 {v(F,4)}, v{xr} offset:{xi}",
                f"ds_read_b64_tr_b16 {v(F+8,2)}, v{vWa} offset:{wi}",
                f"ds_read_b64_tr_b16 {v(F+10,2)}, v{vWa} offset:{wi+256}",
                f"ds_read_b128 {v(F+4,4)}, v{xr} offset:{xi+4096}",
                f"ds_read_b64_tr_b16 {v(F+12,2)}, v{vWb} offset:{wi}",
                f"ds_read_b64_tr_b16 {v(F+14,2)}, v{vWb} offset:{wi+256}",
                f"ds_read_b64_tr_b16 {v(F+16,2)}, v{vWv} offset:{wi}",
                f"ds_read_b64_tr_b16 {v(F+18,2)}, v{vWv} offset:{wi+256}"]
    def mf(F, first):
        def m(D, a, b):
            if cfg.p1x & 1 and not first: return "s_nop 1"
            if cfg.t16:
                q = 4 * (F != FR[0])
                return (f"v_mfma_f32_16x16x32_bf16 {v(D+q,4)}, {v(a,4)}, {v(b,4)}, {'0' if first else v(D+q,4)}\n"
                        f"v_mfma_f32_16x16x32_bf16 {v(D+8+q,4)}, {v(a,4)}, {v(b,4)}, {'0' if first else v(D+8+q,4)}")
            return f"v_mfma_f32_32x32x16_bf16 {v(D,16)}, {v(a,4)}, {v(b,4)}, {'0' if first else v(D,16)}"
        return [m(ACC['QKa0'], F+8, F), m(ACC['QKa1'], F+8, F+4), m(ACC['QKb0'], F+12, F),
                m(ACC['QKb1'], F+12, F+4), m(ACC['VV0'], F, F+16), m(ACC['VV1'], F+4, F+16)]
    A(f"s_lshl_b32 s{sT+6}, s{sT+6}, 3")
    A(f"s_add_u32 s{sT+6}, s{sT+6}, {WS_G}")
    A("v_lshrrev_b32 v13, 5, v0")
    A("v_lshlrev_b32 v13, 2, v13")
    A("v_mov_b32 v44, 0")
    A("v_mov_b32 v45, 0")
    if cfg.l2pf == 1: l2_prefetch(A, cfg)
    A(f"s_waitcnt vmcnt({(3 if cfg.wpf else (2 if cfg.l2pf == 1 else (1 if (cfg.wpf2 % 10 == 1 or cfg.wpf3) else (11 if cfg.c2c else 0))))})")
    if cfg.zearly:
        assert not (cfg.wpf or cfg.l2pf or cfg.wpf2 or cfg.wpf3 or cfg.c2c)
        A.c("wave 0: its clears are acknowledged -> count this workgroup in")
        A(f"s_cmp_lg_u32 s{sWave}, 0")
        A("s_cbranch_scc1 L_noz0")
        A(f"s_and_b32 s{sT}, s2, 1")
        A(f"s_lshl_b32 s{sT}, s{sT}, 7")
        A("s_mov_b64 exec, 1")
        A(f"buffer_atomic_add v{vZ}, off, s[{sDBG}:{sDBG+3}], s{sT}")
        A("s_mov_b64 exec, -1")
        A("L_noz0:")
    if cfg.l2pf == 2: l2_prefetch(A, cfg)
    if cfg.wpf2 % 10 == 2: w_prefetch(A, cfg)
    for i in range(4):
        A(f"v_dot2_f32_bf16 v44, v{32+i}, v{40+i}, v44")
        A(f"v_dot2_f32_bf16 v45, v{36+i}, v{40+i}, v45")
    A("s_nop 2")
    A("v_permlane32_swap_b32 v44, v45")
    A("v_add_f32 v44, v44, v45")
    A("v_mov_b32 v45, v44")
    A("s_nop 1")
    A("v_permlane16_swap_b32 v44, v45")
    A("v_add_f32 v44, v44, v45")
    for ctl in ("quad_perm:[1,0,3,2]", "quad_perm:[2,3,0,1]", "row_half_mirror", "row_mirror"):
        A("s_nop 1")
        A(f"v_add_f32_dpp v44, v44, v44 {ctl} row_mask:0xf bank_mask:0xf")
    A(f"v_mul_f32 v44, {fbits(-LOG2E)}, v44")
    A("v_exp_f32 v44, v44")
    A("s_nop 0")
    A("v_add_f32 v44, 1.0, v44")
    A("v_rcp_f32 v44, v44")
    A("s_mov_b32 exec_lo, 1")
    A("s_mov_b32 exec_hi, 1")
    A(f"buffer_store_dword v44, v13, s[{sWS}:{sWS+3}], s{sT+6} offen sc1")
    A("s_mov_b64 exec, -1")
    if cfg.wpf: A("s_waitcnt vmcnt(1)")
    A("s_barrier")
    stamp(A, cfg, 1)
    for r in reads(0, 0, FR[0]): A(r)
    def wave0_block(n):
        if n == cfg.n_add and not cfg.zearly and not cfg.noz:
            A(f"s_cmp_lg_u32 s{sWave}, 0")
            A("s_cbranch_scc1 L_noz0")
            A(f"s_and_b32 s{sT}, s2, 1")
            A(f"s_lshl_b32 s{sT}, s{sT}, 7")
            A("s_mov_b64 exec, 1")
            A(f"buffer_atomic_add v{vZ}, off, s[{sDBG}:{sDBG+3}], s{sT}")
            A("s_mov_b64 exec, -1")
            A("L_noz0:")
        if n == cfg.n_z and not cfg.noz and not cfg.zld:
            A(f"s_cmp_lg_u32 s{sWave}, 0")
            A("s_cbranch_scc1 L_noz1")
            A(ZLOAD)
            A("L_noz1:")
    if cfg.p1pipe == 0:
        for n in range(32):
            c, j = divmod(n, 4)
            M = mf(FR[n & 1], n == 0)
            A("s_waitcnt lgkmcnt(0)" if (n != 7 or cfg.zearly) else "s_waitcnt vmcnt(0) lgkmcnt(0)")
            if n == 31:
                for m in M: A(m)
                break
            if j == 3: A("s_barrier")
            c2, j2 = divmod(n + 1, 4)
            R = reads(c2, j2, FR[(n + 1) & 1])
            A(M[0]); A(R[0]); A(R[1]); A(R[2])
            A(M[1]); A(R[3]); A(R[4]); A(R[5])
            A(M[2]); A(R[6]); A(R[7])
            A(M[3])
            wave0_block(n)
            A(M[4]); A(M[5])
    else:
        for n in range(32):
            c, j = divmod(n, 4)
            M = mf(FR[n & 1], n == 0)
            last = n == 31
            c2, j2 = divmod(n + 1, 4)
            R = [""] * 8 if last else reads(c2, j2, FR[(n + 1) & 1])
            k = 0 if last else 3
            A("s_waitcnt lgkmcnt(5)")
            A(M[0])
            A("s_waitcnt lgkmcnt(4)")
            A(M[1])
            if n == 7: A("s_waitcnt vmcnt(0)")
            if j == 3 and not last: A("s_barrier")
            for x in R[0:3]: A(x)
            A(f"s_waitcnt lgkmcnt({2 + k})")
            A(M[2])
            for x in R[3:6]: A(x)
            A(M[3])
            wave0_block(n)
            A(f"s_waitcnt lgkmcnt({2*k})")
            if j == 3 and not last: A("s_barrier")
            A(M[4])
            for x in R[6:8]: A(x)
            A(M[5])

def p1_compute_epilogue(A, cfg):
    A.c("---- phase 1 epilogue: round K/V, publish them (write-through) and keep them in LDS")
    A(f"s_lshl_b32 s{sT}, s{sPair}, 3")
    A(f"s_add_u32 s{sT}, s{sT}, s{sSlab}")
    A(f"s_lshl_b32 s{sT}, s{sT}, 15")
    A(f"s_lshl_b32 s{sT+1}, s{sRG}, 12")
    A(f"s_add_u32 s{sT}, s{sT}, s{sT+1}")
    A(f"s_add_u32 s{sT+1}, s{sT}, 16384")
    A("v_bfe_u32 v13, v0, 4, 1")
    A("v_lshrrev_b32 v14, 5, v0")
    A("v_and_b32 v15, 15, v0")
    A("v_lshlrev_b32 v15, 4, v15")
    A("v_lshl_add_u32 v15, v14, 8, v15")
    A("v_add_u32 v15, 1024, v15")
    A("v_lshl_add_u32 v3, v13, 14, v15")
    A(f"s_mul_i32 s{sT+2}, s{sRG}, {2*REC}")
    A(f"s_add_u32 s{sT+2}, s{sT+2}, {SB}")
    A(f"v_add_u32 v4, s{sT+2}, v{vKP if cfg.sm else vL16}")
    A(f"v_mul_u32_u24 v13, {HSTR}, v13")
    A(f"v_add3_u32 v5, v13, v15, s{sT+2}")
    if not cfg.zld:
        A.c("wave 0: every workgroup has cleared its hand-off words (checked before any flag is read)")
        A(f"s_cmp_lg_u32 s{sWave}, 0")
        A("s_cbranch_scc1 L_noz2")
        A(f"s_movk_i32 s{sT+3}, 128")
        if not cfg.noz: spin(A, "z", ZLOAD, vZ, f"s{sT+3}", "gt")
        A("L_noz2:")
    def cvt(dst, src):
        for i in range(4):
            A(f"v_cvt_pk_bf16_f32 v{dst+i}, v{src+2*i}, v{src+2*i+1}")
    if cfg.epi2:
        tmp = [128, 132, 136, 140, 144, 148, 152, 156]
        A(f"s_mov_b32 s{sT+4}, {fbits(QSCALE)}")
        A(f"s_mov_b32 s{sT+5}, {fbits(QSCALE)}")
        A(f"s_lshl_b32 s{sT+6}, s{sRG}, 11")
        A(f"s_add_u32 s{sT+6}, s{sT+6}, {QX}")
        A(f"v_add_u32 v6, s{sT+6}, v{vL16}")
        items = []
        for hd, names in ((0, ("QKa0", "QKa1")), (1, ("QKb0", "QKb1"))):
            for t in (0, 1):
                items.append((ACC[names[t]] + 8, f"v{vKP if cfg.sm else vL16}, s[{sWS}:{sWS+3}], s{sT+hd} offen offset:{t*2048}", "v4", hd*HSTR + t*REC))
        for t in (0, 1):
            for a in (0, 1):
                items.append((ACC[f"VV{t}"] + 8 * a, f"v3, s[{sWS}:{sWS+3}], s{sT} offen offset:{t*2048 + a*512}", "v5", t*REC + a*512))
        qs = [("QKb0", 16, 0), ("QKb1", 20, 1024), ("QKa0", vQ[0], None), ("QKa1", vQ[1], None)]
        for k, (src, gaddr, laddr, loff) in enumerate(items):
            cvt(tmp[k], src)
            A(f"buffer_store_dwordx4 {v(tmp[k],4)}, {gaddr} sc1")
            A(f"ds_write_b128 {laddr}, {v(tmp[k],4)} offset:{loff}")
            nm, dst, qoff = qs[k >> 1]
            q = ACC[nm]
            if k & 1 == 0:
                for i in range(4): A(f"v_pk_mul_f32 {v(q+2*i,2)}, {v(q+2*i,2)}, s[{sT+4}:{sT+5}]")
            else:
                cvt(dst, q)
                if qoff is not None: A(f"ds_write_b128 v6, {v(dst,4)} offset:{qoff}")
    else:
        tmp = [128, 132, 136, 140, 144, 148, 152, 156]
        if cfg.epist: stamp(A, cfg, 3)
        k = 0
        for hd, names in ((0, ("QKa0", "QKa1")), (1, ("QKb0", "QKb1"))):
            for t in (0, 1):
                cvt(tmp[k], ACC[names[t]] + 8)
                A(f"buffer_store_dwordx4 {v(tmp[k],4)}, v{vL16}, s[{sWS}:{sWS+3}], s{sT+hd} offen offset:{t*2048} sc1")
                k += 1
        if cfg.epist: stamp(A, cfg, 4)
        for t in (0, 1):
            for a in (0, 1):
                cvt(tmp[k], ACC[f"VV{t}"] + 8 * a)
                A(f"buffer_store_dwordx4 {v(tmp[k],4)}, v3, s[{sWS}:{sWS+3}], s{sT} offen offset:{t*2048 + a*512} sc1")
                k += 1
        if cfg.epist: stamp(A, cfg, 5)
        k = 0
        for hd in (0, 1):
            for t in (0, 1):
                A(f"ds_write_b128 v4, {v(tmp[k],4)} offset:{hd*HSTR + t*REC}"); k += 1
        for t in (0, 1):
            for a in (0, 1):
                A(f"ds_write_b128 v5, {v(tmp[k],4)} offset:{t*REC + a*512}"); k += 1
        if cfg.epist: stamp(A, cfg, 6)
        A(f"s_mov_b32 s{sT+4}, {fbits(QSCALE)}")
        A(f"s_mov_b32 s{sT+5}, {fbits(QSCALE)}")
        A(f"s_lshl_b32 s{sT+2}, s{sRG}, 11")
        A(f"s_add_u32 s{sT+2}, s{sT+2}, {QX}")
        A(f"v_add_u32 v4, s{sT+2}, v{vL16}")
        for hd, names in ((1, ("QKb0", "QKb1")), (0, ("QKa0", "QKa1"))):
            for t in (0, 1):
                q = ACC[names[t]]
                for i in range(4):
                    A(f"v_pk_mul_f32 {v(q+2*i,2)}, {v(q+2*i,2)}, s[{sT+4}:{sT+5}]")
                dst = vQ[t] if hd == 0 else 16 + 4 * t
                cvt(dst, q)
                if hd == 1: A(f"ds_write_b128 v4, {v(dst,4)} offset:{t*1024}")
    if cfg.epist: stamp(A, cfg, 7)
    A("s_waitcnt lgkmcnt(0)")
    if cfg.epist: stamp(A, cfg, 8)
    A("s_barrier")
    if cfg.epist:
        stamp(A, cfg, 9)
        A("s_waitcnt vmcnt(0)")
        stamp_store(A, cfg, 10)
        A("s_endpgm")
    A.c("K/V stores acknowledged -> raise this wave's flag")
    A(f"v_mov_b32 v{vZ}, 1")
    A(f"s_lshl_b32 s{sJ}, s{sSlab}, 2")
    A(f"s_add_u32 s{sJ}, s{sJ}, s{sF}")
    lstamp(A, cfg, 46)
    if cfg.c1c:
        A(F1LOAD)
        p2_setup(A, cfg)
        A(f"s_lshl_b32 s{sT}, s{sSlab}, 2")
        A(f"v_cmp_eq_u32 s[{sT+2}:{sT+3}], s{sT}, v{vPA}")
        A("s_waitcnt vmcnt(3)")
    else:
        A("s_waitcnt vmcnt(0)")
    A("s_mov_b64 exec, 1")
    A(f"buffer_store_dword v{vZ}, off, s[{sWS}:{sWS+3}], s{sJ} sc1")
    A("s_mov_b64 exec, -1")
    lstamp(A, cfg, 47)
    if cfg.c1c:
        A("s_waitcnt vmcnt(3)")
        A(f"v_cmp_ne_u32 vcc, 1, v{vPoll}")
        A(f"s_mov_b32 s{sSpin}, {SPIN_MAX}")
        A(f"s_andn2_b64 s[{sT+4}:{sT+5}], vcc, s[{sT+2}:{sT+3}]")
        A("s_cbranch_scc1 L_f1c")
        A("L_f1c_ret:")
        T = Asm()
        T("L_f1c:")
        T(F1LOAD)
        T(f"s_sub_u32 s{sSpin}, s{sSpin}, 1")
        T("s_cbranch_scc1 L_f1c_ret")
        T("s_waitcnt vmcnt(0)")
        T(f"v_cmp_ne_u32 vcc, 1, v{vPoll}")
        T("s_nop 0")
        T(f"s_andn2_b64 s[{sT+4}:{sT+5}], vcc, s[{sT+2}:{sT+3}]")
        T("s_cbranch_scc1 L_f1c")
        T("s_branch L_f1c_ret")
        tails.append(T)
        lstamp(A, cfg, 49)
        for x in kv_setup(1): A(x)
        for job in kv_jobs(1):
            for x in job: A(x)
        A(f"s_add_u32 s{sCO}, s{sCO}, 16384")
        for job in kv_jobs(1, -1):
            for x in job: A(x)

def p1_loader(A, cfg):
    A.c("---- phase 1, loader waves: LDS-DMA of x / W chunks")
    if cfg.p1prio == 2: A("s_setprio 1")
    A("v_lshrrev_b32 v13, 3, v0")
    A("v_lshlrev_b32 v13, 10, v13")
    A("v_and_b32 v14, 7, v0")
    A("v_lshrrev_b32 v15, 4, v0")
    A("v_xor_b32 v14, v14, v15")
    A("v_lshl_add_u32 v13, v14, 4, v13")
    A("v_xor_b32 v14, 64, v13")
    for i in range(8):
        A(f"v_add_u32 v{2+i}, {i*8192 - (i&3)*1024}, v{14 if i & 1 else 13}")
    A(f"s_lshl_b32 s{sXb}, s{sSlab}, 18")
    A(f"s_lshl_b32 s{sT}, s{sRG}, 16")
    A(f"s_add_u32 s{sXb}, s{sXb}, s{sT}")
    def issue_x(c):
        slot = c % 3
        A(f"s_add_u32 s{sK2}, s{sKC}, {c}")
        A(f"s_and_b32 s{sK2}, s{sK2}, 7")
        A(f"s_lshl_b32 s{sXo}, s{sK2}, 7")
        A(f"s_lshl_b32 s{sM}, s{sRG}, 13")
        A(f"s_add_u32 m0, s{sM}, {XB[slot]}")
        A(f"s_add_u32 s{sXo}, s{sXo}, s{sXb}")
        for i in range(8):
            if i == 4:
                A(f"s_add_u32 m0, s{sM}, {XB[slot] + 4096}")
                A("s_nop 0")
            A(f"buffer_load_dwordx4 v{2+i}, s[{sX}:{sX+3}], s{sXo} offen offset:{(i&3)*1024} lds")
    def issue_w(c):
        slot = c % 3
        A(f"s_mul_i32 s{sM}, s{sRG}, 3072")
        A(f"s_mul_i32 s{sWo}, s{sK2}, 196608")
        A(f"s_add_u32 m0, s{sM}, {WB + slot*12288}")
        A(f"s_add_u32 s{sWo}, s{sWo}, s{sWb_}")
        for i in range(3):
            A(f"buffer_load_dwordx4 v{11 if i == 1 else 10}, s[{sW}:{sW+3}], s{sWo} offen offset:{i*1024} lds")
    def pf_setup():
        assert cfg.lr == 2
        A(f"s_and_b32 s{sT}, s{sPair}, 7")
        A(f"s_lshl_b32 s{sT}, s{sT}, 15")
        A(f"s_lshl_b32 s{sT+1}, s{sRG}, 13")
        A(f"s_add_u32 s{sT}, s{sT}, s{sT+1}")
        A(f"s_lshl_b32 s{sT+1}, s{sSlab}, 18")
        A(f"s_add_u32 s{sT}, s{sT}, s{sT+1}")
        A(f"s_add_u32 s12, s{sX}, s{sT}")
        A(f"s_addc_u32 s13, s{sX+1}, 0")
        A(f"s_and_b32 s{sT}, s{sSlab}, 3")
        A(f"s_lshl_b32 s{sT}, s{sT}, 1")
        A(f"s_and_b32 s{sT+1}, s{sPair}, 1")
        A(f"s_add_u32 s{sT}, s{sT}, s{sT+1}")
        A(f"s_lshl_b32 s{sT}, s{sT}, 2")
        A(f"s_add_u32 s{sT}, s{sT}, s{sRG}")
        A(f"s_mul_i32 s{sT}, s{sT}, 6144")
        A(f"s_and_b32 s{sT+1}, s{sPair}, 14")
        A(f"s_lshl_b32 s{sT+1}, s{sT+1}, 6")
        A(f"s_add_u32 s{sT}, s{sT}, s{sT+1}")
        A(f"s_add_u32 s16, s{sW}, s{sT}")
        A(f"s_addc_u32 s17, s{sW+1}, 0")
    def pf(c):
        if not cfg.spf or c > 7: return
        A(f"s_add_u32 s{sT}, s{sKC}, {c}")
        A(f"s_and_b32 s{sT}, s{sT}, 7")
        A(f"s_mul_i32 s{sT+1}, s{sT}, 196608")
        A(f"s_lshl_b32 s{sT}, s{sT}, 7")
        if cfg.spfw != 2:
            for e in range(6): A(f"s_load_dword s10, s[16:17], s{sT+1} offset:{1024*e}")
        if cfg.spfw != 1:
            for e in range(8): A(f"s_load_dword s10, s[12:13], s{sT} offset:{1024*e}")
    def issue(c):
        if cfg.wfirst:
            A(f"s_add_u32 s{sK2}, s{sKC}, {c}")
            A(f"s_and_b32 s{sK2}, s{sK2}, 7")
            issue_w(c); issue_x(c)
        else:
            issue_x(c); issue_w(c)
    if cfg.rot in (16, 17, 18):
        A(f"s_and_b32 s{sT+1}, s{sPair}, 3")
        A(f"s_lshl_b32 s{sT+1}, s{sT+1}, 1")
        A(f"s_and_b32 s{sT+3}, s2, 1")
        A(f"s_add_u32 s{sT+1}, s{sT+1}, s{sT+3}")
        if cfg.rot == 16:
            A(f"s_lshr_b32 s{sT+2}, s{sPair}, 1")
            A(f"s_add_u32 s{sT+2}, s{sT+2}, s{sSlab}")
            A(f"s_lshl_b32 s{sT+2}, s{sT+2}, 1")
            A(f"s_add_u32 s{sT+2}, s{sT+2}, s{sT+3}")
        elif cfg.rot == 17:
            A(f"s_lshl_b32 s{sT+2}, s{sSlab}, 1")
            A(f"s_add_u32 s{sT+2}, s{sT+2}, s{sPair}")
        else:
            A(f"s_add_u32 s{sT+2}, s{sPair}, s{sSlab}")
            A(f"s_lshl_b32 s{sT+2}, s{sT+2}, 1")
            A(f"s_add_u32 s{sT+2}, s{sT+2}, s{sT+3}")
    if cfg.rot >= 19:
        A(f"s_lshr_b32 s{sT+1}, s{sPair}, 1")
        A(f"s_add_u32 s{sT+1}, s{sT+1}, s{sSlab}")
        if cfg.rot == 19: A(f"s_and_b32 s{sT+1}, s{sT+1}, 3")
        if cfg.rot == 20:
            A(f"s_and_b32 s{sT+1}, s{sT+1}, 1")
            A(f"s_lshl_b32 s{sT+1}, s{sT+1}, 1")
        if cfg.rot == 21:
            A(f"s_and_b32 s{sT+1}, s{sT+1}, 3")
            A(f"s_lshl_b32 s{sT+1}, s{sT+1}, 1")
            A(f"s_min_u32 s{sT+1}, s{sT+1}, 5")
        if cfg.rot == 22:
            A(f"s_and_b32 s{sT+1}, s{sT+1}, 3")
            A(f"s_mul_i32 s{sT+1}, s{sT+1}, 3")
            A(f"s_lshr_b32 s{sT+1}, s{sT+1}, 1")
        if cfg.rot == 23:
            A(f"s_and_b32 s{sT+1}, s{sT+1}, 1")
            A(f"s_mul_i32 s{sT+1}, s{sT+1}, 3")
        A(f"s_add_u32 s{sT+1}, s{sT+1}, 4")
    A("s_waitcnt lgkmcnt(0)")
    if cfg.rot >= 19:
        A(f"s_lshr_b32 s{sT+2}, s4, 7")
        A(f"s_sub_u32 s{sKC}, s{sT+1}, s{sT+2}")
        A(f"s_and_b32 s{sKC}, s{sKC}, 7")
    if cfg.rot in (16, 17, 18):
        A(f"s_cmp_lt_u32 s{sPair}, 16")
        A(f"s_cselect_b32 s{sT+4}, s6, s12")
        A(f"s_lshr_b32 s{sT+4}, s{sT+4}, 7")
        A(f"s_lshr_b32 s{sT+5}, s{sPair}, 1")
        A(f"s_add_u32 s{sT+4}, s{sT+4}, s{sT+5}")
        A(f"s_and_b32 s{sT+4}, s{sT+4}, 7")
        A(f"s_cmp_eq_u32 s{sT+4}, 3")
        A(f"s_cselect_b32 s{sKC}, s{sT+2}, s{sT+1}")
        A(f"s_and_b32 s{sKC}, s{sKC}, 7")
    srd(A, sX, 4, 5, 2048 * 512 * 2)
    lstamp(A, cfg, 1)
    issue_x(0)
    lstamp(A, cfg, 2)
    A(f"s_cmp_lt_u32 s{sPair}, 16")
    A(f"s_cselect_b32 s{sW}, s6, s12")
    A(f"s_cselect_b32 s{sW+1}, s7, s13")
    A(f"s_mov_b32 s{sW+2}, {hex(512*1536*2)}")
    A(f"s_mov_b32 s{sW+3}, 0x20000")
    A(f"s_and_b32 s{sWb_}, s{sPair}, 15")
    A(f"s_lshl_b32 s{sWb_}, s{sWb_}, 6")
    A(f"s_mul_i32 s{sT}, s{sRG}, 49152")
    A(f"s_add_u32 s{sWb_}, s{sWb_}, s{sT}")
    if cfg.wfull:
        A("v_lshrrev_b32 v13, 3, v0")
        A("v_mul_u32_u24 v13, 3072, v13")
        A("v_and_b32 v14, 7, v0")
        A(f"s_and_b32 s{sWb_}, s{sWb_}, 0xffffff80")
    else:
        A("v_lshrrev_b32 v13, 2, v0")
        A("v_mul_u32_u24 v13, 3072, v13")
        A("v_and_b32 v14, 3, v0")
    A("v_lshl_add_u32 v10, v14, 4, v13")
    A("v_xor_b32 v11, 32, v10")
    issue_w(0)
    if cfg.spf and cfg.spfe:
        pf_setup()
        for c in range(2, 2 + cfg.spf): pf(c)
    if cfg.late1 == 1: A("s_waitcnt vmcnt(3)")
    if cfg.late1 == 2: A("s_waitcnt vmcnt(8)")
    if cfg.late1 == 3: A("s_waitcnt vmcnt(10)")
    issue(1)
    if cfg.spf and not cfg.spfe:
        pf_setup()
        for c in range(2, 2 + cfg.spf): pf(c)
    lstamp(A, cfg, 3)
    late_srds(A)
    p2_addr(A)
    p2_pre(A, False)
    A(f"v_mov_b32 v{vZ}, 1")
    for c in range(8):
        lstamp(A, cfg, 4 + 3*c)
        A(f"s_waitcnt vmcnt({0 if (cfg.c2c and c == 1) else ((11 if c < 7 else 0) if not (cfg.p1x & 2) else 0)})")
        lstamp(A, cfg, 5 + 3*c)
        A("s_barrier")
        lstamp(A, cfg, 6 + 3*c)
        if c == 0: stamp(A, cfg, 1)
        if cfg.p1pipe and c >= 1: A("s_barrier")
        if c <= 5 and not (cfg.p1x & 2) and not (cfg.c2c and c == 0):
            pf(c + 2 + cfg.spf)
            issue(c + 2)
        if c <= 5 and cfg.p1x & 4:
            for _ in range(0): pass
    if cfg.zld:
        A.c("wave 4: every workgroup has cleared its hand-off words (checked before any flag is read)")
        A(f"v_mov_b32 v{vPoll}, v{vZA}")
        A(f"s_cmp_lg_u32 s{sWave}, 4")
        A("s_cbranch_scc1 L_noz2")
        A(ZLOAD)
        A("L_noz2:")
    p2_pre(A, True)
    consts(A, [SB, SC])
    if cfg.zld:
        A(f"s_cmp_lg_u32 s{sWave}, 4")
        A("s_cbranch_scc1 L_noz3")
        A(f"s_movk_i32 s{sT+3}, 128")
        spin(A, "z", ZLOAD, vZ, f"s{sT+3}", "gt")
        A("L_noz3:")
    A(f"v_add_u32 v104, {(SA - SB) % (1 << 32)}, v104")
    A("s_waitcnt lgkmcnt(0)")
    A(f"s_lshl_b32 s{sT+2}, s{sRG}, 11")
    A(f"s_add_u32 s{sT+2}, s{sT+2}, {QX}")
    A(f"v_add_u32 v4, s{sT+2}, v{vL16}")
    A("s_barrier")
    if cfg.epist: A("s_endpgm")
    if not cfg.uni and cfg.t_load < 0: A(F1LOAD)
    A("ds_read_b128 v[8:11], v4")
    A("ds_read_b128 v[12:15], v4 offset:1024")
    A("s_mov_b64 exec, 0xffff")
    A("ds_write_b128 v104, v[108:111] offset:2048")
    A("ds_write_b128 v104, v[112:115] offset:2064")
    A("s_mov_b64 exec, -1")

vKf, vV0f, vV1f = 16, 20, 24
S_, O_, P_ = [32, 48], [64, 80], 96
M32 = "v_mfma_f32_32x32x16_bf16"
def slot_base(i): return (SB, SC, SA)[i % 3]

def p2_setup(A, cfg, now=False):
    if cfg.zearly and not now: return
    A(f"buffer_load_dword v{vGF[0]}, v{vGA}, s[{sWS}:{sWS+3}], s{sGo} offen sc1")
    A(f"buffer_load_dword v{vGF[1]}, v{vGA}, s[{sWS}:{sWS+3}], s{sGo} offen offset:128 sc1")

def p2_pre(A, own_temps):
    if not own_temps:
        A(f"v_and_b32 v{vGA}, 31, v0")
        A(f"v_lshlrev_b32 v{vGA}, 2, v{vGA}")
        A(f"s_lshl_b32 s{sGo}, s{sSlab}, 10")
        A(f"s_lshl_b32 s{sT+1}, s{sRG}, 8")
        A(f"s_add_u32 s{sGo}, s{sGo}, s{sT+1}")
        A(f"s_add_u32 s{sGo}, s{sGo}, {WS_G}")
        for i in range(4): A(f"v_mov_b32 v{vFill+i}, -1")
        for i in range(4): A(f"v_mov_b32 v{vZero+i}, 0")
        A(f"v_mov_b32 v{vIdx}, 0xdddd")
        A(f"v_and_b32 v{vKP}, 0x33, v0")
        A(f"v_bfe_u32 v{vZA}, v0, 2, 1")
        A(f"v_lshl_or_b32 v{vKP}, v{vZA}, 3, v{vKP}")
        A(f"v_bfe_u32 v{vZA}, v0, 3, 1")
        A(f"v_lshl_or_b32 v{vKP}, v{vZA}, 2, v{vKP}")
        A(f"v_lshlrev_b32 v{vKP}, 4, v{vKP}")
        A(f"v_and_b32 v{vZA}, 1, v0")
        A(f"v_lshlrev_b32 v{vZA}, 7, v{vZA}")
        A(f"v_mov_b32 v{vZ2}, 128")
        return
    A(f"s_lshl_b32 s{sCH}, s{sPair}, 18")
    A(f"s_lshl_b32 s{sT+1}, s{sWave}, 12")
    A(f"s_add_u32 s{sCH}, s{sCH}, s{sT+1}")
    A(f"s_mul_i32 s{sMB}, s{sWave}, {2*REC}")
    A(f"s_lshl_b32 s{sWoG}, s{sWave}, 13")
    A(f"s_lshl_b32 s{sT+1}, s{sC3}, 7")
    A(f"s_add_u32 s{sWoG}, s{sWoG}, s{sT+1}")
    A(f"s_lshl_b32 s{sWoM}, s{sWave}, 10")
    A(f"s_andn2_b32 s{sT+1}, 4, s{sSlab}")
    A(f"s_lshl_b32 s{sT+1}, s{sT+1}, 15")
    A(f"s_add_u32 s{sCHx}, s{sCH}, s{sT+1}")

ORDER = [0]
sCHx = 12
def kv_setup(i):
    if ORDER[0]:
        if i <= 4: return [f"s_add_u32 s{sCO}, s{sCHx}, {(i - 1) << 15}"]
        return [f"s_add_u32 s{sCO}, s{sSlab}, {i - 4}", f"s_and_b32 s{sCO}, s{sCO}, 3", f"s_and_b32 s{sJ}, s{sSlab}, 4",
                f"s_or_b32 s{sCO}, s{sCO}, s{sJ}", f"s_lshl_b32 s{sCO}, s{sCO}, 15", f"s_add_u32 s{sCO}, s{sCO}, s{sCH}"]
    return [f"s_add_u32 s{sCO}, s{sSlab}, {i}", f"s_and_b32 s{sCO}, s{sCO}, 7",
            f"s_lshl_b32 s{sCO}, s{sCO}, 15", f"s_add_u32 s{sCO}, s{sCO}, s{sCH}"]
def kv_jobs(i, other=False):
    base = slot_base(i) - (HSTR * int(other))
    ld = lambda o: f"buffer_load_dwordx4 v{vL16}, s[{sWS}:{sWS+3}], s{sCO} offen offset:{o} sc1 lds"
    return [[f"s_add_u32 m0, s{sMB}, {base}", "s_nop 0", ld(0)], [ld(1024)],
            [f"s_add_u32 m0, s{sMB}, {base + REC - 2048}", "s_nop 0", ld(2048)], [ld(3072)]]
def wo_job(j):
    srd_ = sWOA if j < 8 else sWOB
    return [f"s_add_u32 m0, s{sWoM}, {WO + j*8192}", f"s_add_u32 s{sJ}, s{sWoG}, {(j&7)*65536}",
            f"buffer_load_dwordx4 v{vWoD}, s[{srd_}:{srd_+3}], s{sJ} offen lds"]

def rd(kind, i, t):
    if t == 8: i, t = i + 1, 0
    hi = slot_base(i) == SC
    imm = (0 if hi else slot_base(i)) + t * REC
    if kind == 'K': return f"ds_read_b128 {v(vKf,4)}, v{vKH if hi else vKL} offset:{imm}"
    if kind == 'V0': return f"ds_read_b128 {v(vV0f,4)}, v{vV0H if hi else vV0L} offset:{imm}"
    return f"ds_read_b128 {v(vV1f,4)}, v{vV1H if hi else vV1L} offset:{imm}"

def unit(A, q, first, last, slotA, slotB, slotC, first_o, order=0):
    S, Sn, O, Op = S_[q], S_[q ^ 1], O_[q], O_[q ^ 1]
    e = lambda i: A(f"v_exp_f32 v{S+i}, v{S+i}")
    c = lambda i: A(f"v_cvt_pk_bf16_f32 v{P_+i}, v{S+2*i}, v{S+2*i+1}")
    def run(sl):
        for x in sl:
            if callable(x): x(A)
            else: A(x)
    if not SMUSE[0]:
        e(0)
        if not first: A(f"v_cvt_pk_bf16_f32 v{P_+7}, v{Sn+14}, v{Sn+15}")
        e(1); e(2)
    sw = (lambda a, b: f"{b}, {a}") if PVSWAP[0] else (lambda a, b: f"{a}, {b}")
    if not SMUSE[0]:
        if not first: A(f"{M32} {v(Op,16)}, {sw(v(vV1f,4), v(P_+4,4))}, {v(Op,16)}")
        run(slotA)
    if SMUSE[0]:
        qk = lambda: None if last else A(f"{M32} {v(Sn,16)}, {v(vKf,4)}, {v(vQ[q^1],4)}, 0")
        pos = {1: (1, 4, 9), 2: (2, 4, 10), 3: (1, 3, 9)}[SMUSE[0]]
        for i in range(16):
            e(i)
            if i == pos[0]:
                if not first: A(f"{SM} {v(Op,16)}, {v(vV1f,4)}, {v(Sn+8,8)}, v{vIdx}")
                run(slotA)
            if i == pos[1]: qk(); run(slotB)
            if i == pos[2]:
                A(f"{SM} {v(O,16)}, {v(vV0f,4)}, {v(S,8)}, v{vIdx}")
                run(slotC)
        return
    qk = lambda: None if last else A(f"{M32} {v(Sn,16)}, {v(vKf,4)}, {v(vQ[q^1],4)}, 0")
    pv = lambda: A(f"{M32} {v(O,16)}, {sw(v(vV0f,4), v(P_,4))}, {'0' if first_o else v(O,16)}")
    if order == 0:
        c(0); e(3); e(4); c(1); e(5); e(6)
        qk(); run(slotB)
        c(2); e(7); e(8); c(3); e(9); e(10)
        pv(); run(slotC)
        c(4); e(11); e(12); c(5); e(13); e(14); c(6); e(15)
    elif order == 1:
        c(0); e(3); e(4); c(1); e(5); e(6); c(2); e(7)
        qk(); run(slotB)
        e(8); c(3); e(9); e(10); c(4); e(11); e(12)
        pv(); run(slotC)
        c(5); e(13); e(14); c(6); e(15)
    elif order == 2:
        c(0); e(3); e(4)
        qk(); run(slotB)
        c(1); e(5); e(6); c(2); e(7); e(8); c(3); e(9); e(10)
        pv(); run(slotC)
        c(4); e(11); e(12); c(5); e(13); e(14); c(6); e(15)

def p2_main(A, cfg):
    A.c("---- phase 2: attention.  P = exp2(S) with no shift; the row sums ride in the PV MFMA (ones rows);")
    A.c("     they are range-checked afterwards and the true-max path redoes the wave when they are out of range")
    jobs = {}; jobs0 = {}
    def add(i, t, xs): jobs.setdefault((i, t), []).extend(xs)
    for i in range(8):
        if cfg.prio == 1:
            for t, pr in ((1, 2), (3, 1), (5, 0), (7, 3)): add(i, t, [f"s_setprio {pr}"])
        if cfg.prio == 2:
            for t, pr in ((0, 2), (2, 1), (5, 0), (7, 3)): add(i, t, [f"s_setprio {pr}"])
        if cfg.prio == 3:
            for t, pr in ((2, 2), (4, 1), (6, 0), (7, 3)): add(i, t, [f"s_setprio {pr}"])
        if cfg.prio >= 100:
            pp = cfg.prio0 if i == 0 else cfg.prio
            drops = [(pp >> 8) & 15, (pp >> 4) & 15, pp & 15]
            for u, pr in zip(drops, (2, 1, 0)):
                if u & 1: add(i, u >> 1, [f"s_setprio {pr}"])
                else: jobs0.setdefault((i, u >> 1), []).append(f"s_setprio {pr}")
            add(i, 7, ["s_setprio 3"])
    def first_chunks(i, nm):
        def f(A):
            A(f"s_cmp_lt_u32 s{sWave}, 4")
            A(f"s_cbranch_scc1 L_skip_{nm}")
            if i == 1 or cfg.c1c:
                lstamp(A, cfg, 48)
                spin(A, "f1", F1LOAD, vPoll, 1)
                lstamp(A, cfg, 49)
            for x in kv_setup(i): A(x)
            for job in kv_jobs(i):
                for x in job: A(x)
            A(f"s_sub_u32 s{sCO}, s{sCO}, 16384")
            for job in kv_jobs(i, True):
                for x in job: A(x)
            A(f"L_skip_{nm}:")
        return f
    if cfg.uni:
        add(0, cfg.uni - 1, [F1LOAD])
        add(0, cfg.uni, [lambda A: lstamp(A, cfg, 48), lambda A: spin(A, "f1", F1LOAD, vPoll, 1), lambda A: lstamp(A, cfg, 49)]
            + kv_setup(1) + sum(kv_jobs(1), []))
    else:
        if cfg.t_load >= 0:
            add(0, cfg.t_load, [f"s_cmp_lt_u32 s{sWave}, 4", "s_cbranch_scc1 L_nopoll", F1LOAD, "L_nopoll:"])
        if not cfg.c1c: add(0, cfg.t_poll, [first_chunks(1, "c1")])
        add(0, cfg.t_c2, [first_chunks(2, "c2")])
    if cfg.uni:
        add(0, 6, [lambda A: lstamp(A, cfg, 50), "s_waitcnt vmcnt(0)", lambda A: lstamp(A, cfg, 51), "s_barrier", lambda A: lstamp(A, cfg, 52)])
    elif cfg.c1c:
        add(0, 6, [lambda A: lstamp(A, cfg, 50), f"s_cmp_ge_u32 s{sWave}, 4", "s_cbranch_scc1 L_nw1", "s_waitcnt vmcnt(0)", "L_nw1:",
                   lambda A: lstamp(A, cfg, 51), "s_barrier", lambda A: lstamp(A, cfg, 52)])
    else:
        add(0, 6, [lambda A: lstamp(A, cfg, 50), "s_waitcnt vmcnt(8)", lambda A: lstamp(A, cfg, 51), "s_barrier", lambda A: lstamp(A, cfg, 52)])
    for i in range(8): add(i, 7, ["s_waitcnt vmcnt(0)", "s_barrier"])
    for i in range(1, 6):
        J = kv_jobs(i + 2)
        if cfg.uni and i == 1:
            J2 = kv_jobs(2)
            add(1, 0, kv_setup(2) + J2[0] + J2[1]); add(1, 1, J2[2] + J2[3])
            add(1, 2, kv_setup(3) + J[0] + J[1]); add(1, 3, J[2] + J[3])
            add(1, 6, ["s_waitcnt vmcnt(6)", "s_barrier"])
            continue
        add(i, 0, kv_setup(i + 2) + J[0]); add(i, 1, J[1]); add(i, 2, J[2]); add(i, 3, J[3])
    wo = {1: [9, 10], 2: [11, 12], 3: [13, 14]}
    for i, js in wo.items():
        for n, j in enumerate(js): add(i, 4 + n, wo_job(j))
    Z2LOAD = f"buffer_load_dword v{vZ2}, v{vZA}, s[{sDBG}:{sDBG+3}], 0 offen offset:4 sc1"
    add(1, 6, [f"buffer_store_dwordx4 v[{vFill}:{vFill+3}], v{vL16}, s[{sWS}:{sWS+3}], s{sOst} offen sc1", f"s_add_u32 s{sJ}, s{sOst}, 65536",
               f"buffer_store_dwordx4 v[{vFill}:{vFill+3}], v{vL16}, s[{sWS}:{sWS+3}], s{sJ} offen sc1"])
    def setwait(i, n):
        k = jobs[(i, 7)].index("s_waitcnt vmcnt(0)")
        if n is None: del jobs[(i, 7)][k]
        else: jobs[(i, 7)][k] = f"s_waitcnt vmcnt({n})"
    setwait(1, 4); setwait(2, 2); setwait(3, 2); setwait(6, None)
    if cfg.tailbar:
        jobs[(7, 7)].remove("s_waitcnt vmcnt(0)"); jobs[(7, 7)].remove("s_barrier")
    jobs[(3, 0)][0:0] = [f"s_cmp_lg_u32 s{sWave}, 0", "s_cbranch_scc1 L_noz2c", f"s_and_b32 s{sJ}, s2, 1", f"s_lshl_b32 s{sJ}, s{sJ}, 7",
               "s_mov_b64 exec, 1", f"buffer_atomic_add v{vZ}, off, s[{sDBG}:{sDBG+3}], s{sJ} offset:4", "s_mov_b64 exec, -1", "L_noz2c:"]
    jobs[(5, 0)][0:0] = [f"s_cmp_eq_u32 s{sWave}, 0", "s_cselect_b32 exec_lo, 3, 0", "s_mov_b32 exec_hi, 0", Z2LOAD, "s_mov_b64 exec, -1"]
    jobs[(5, 7)][-1:-1] = [f"s_movk_i32 s{sJ}, 128", lambda A: spin(A, "z2", Z2LOAD, vZ2, f"s{sJ}", "gt")]
    for n, j in enumerate([0, 1, 2, 3]): add(6, n, wo_job(j))
    if cfg.zearly: add(6, 4, [lambda A: p2_setup(A, cfg, True)])
    for n, j in enumerate([4, 5, 6, 7, 8, 15]): add(7, n, wo_job(j))
    if cfg.align: A(f".p2align {cfg.align}, 0xbf800000" if False else f".p2alignl {cfg.align}, 0xbf800000")
    for _ in range(cfg.shift): A("s_nop 0")
    if cfg.c0st == 1: stamp(A, cfg, 1, True)
    A(rd('K', 0, 0)); A(rd('V0', 0, 0))
    A("s_waitcnt lgkmcnt(1)")
    if cfg.prio: A("s_setprio 3")
    A(f"{M32} {v(S_[0],16)}, {v(vKf,4)}, {v(vQ[0],4)}, 0")
    if cfg.sm:
        for q in (0, 1): A(f"{M32} {v(O_[q],16)}, {v(vZero,4)}, {v(vZero,4)}, 0")
        A("s_nop 7"); A("s_nop 1")
    else:
        A("s_nop 7"); A("s_nop 3")
    for i in range(8):
        for t in range(8):
            first = (i == 0 and t == 0); lastt = (i == 7 and t == 7)
            sA = [rd('V1', i, t)]
            sB = ["s_waitcnt lgkmcnt(1)"] + jobs0.get((i, t), []) + ([] if lastt else [rd('K', i, t + 1)])
            sC = ["s_waitcnt lgkmcnt(0)" if lastt else "s_waitcnt lgkmcnt(1)"]
            unit(A, 0, first, False, sA, sB, sC, first, cfg.order)
            sA = ["s_waitcnt lgkmcnt(0)"]
            sB = list(jobs.get((i, t), []))
            sC = [] if lastt else [rd('V0', i, t + 1)]
            unit(A, 1, False, lastt, sA, sB, sC, first, cfg.order)
            if cfg.c0st and i == cfg.c0st - 1: stamp(A, cfg, 2 + t, True)
        if i == 0: stamp(A, cfg, 4)
        if cfg.c0st and i == cfg.c0st - 2: stamp(A, cfg, 1, True)
        if i < 7: lstamp(A, cfg, 29 + i)
    if cfg.sm:
        A("s_nop 1")
        A(f"{SM} {v(O_[1],16)}, {v(vV1f,4)}, {v(S_[1]+8,8)}, v{vIdx}")
        return
    A("s_nop 0")
    A(f"v_cvt_pk_bf16_f32 v{P_+7}, v{S_[1]+14}, v{S_[1]+15}")
    A("s_nop 1")
    A(f"{M32} {v(O_[1],16)}, {v(vV1f,4)}, {v(P_+4,4)}, {v(O_[1],16)}")

def p2_check(A, cfg):
    if not cfg.slow: return
    A(f"s_mov_b32 s{sT+2}, {fbits(2.0**-24)}")
    A(f"s_mov_b32 s{sT+3}, {fbits(2.0**64)}")
    A(f"s_mov_b32 s{sT+4}, 0x7f800000")
    A("s_mov_b64 s[68:69], 0")
    for q in (0, 1):
        O = O_[q]
        if q == 1: A("s_nop 1")
        A(f"v_add_f32 v104, |v{O}|, |v{O+1}|")
        A(f"v_add_f32 v105, |v{O+2}|, |v{O+3}|")
        A(f"v_add_f32 v106, |v{O+4}|, |v{O+5}|")
        A(f"v_add_f32 v107, |v{O+6}|, |v{O+7}|")
        A(f"v_add_f32 v104, v104, v105")
        A(f"v_add_f32 v106, v106, v107")
        A(f"v_add_f32 v104, v104, v106")
        A(f"v_cmp_nle_f32 vcc, s{sT+2}, v{O+8}")
        A(f"s_or_b64 s[68:69], s[68:69], vcc")
        A(f"v_cmp_nge_f32 vcc, s{sT+3}, v{O+8}")
        A(f"s_or_b64 s[68:69], s[68:69], vcc")
        A(f"v_cmp_ngt_f32 vcc, s{sT+4}, v104")
        A(f"s_or_b64 s[68:69], s[68:69], vcc")
    if cfg.force_slow: A("s_mov_b64 s[68:69], -1")
    A("s_cmp_lg_u64 s[68:69], 0")
    A("s_cbranch_scc1 L_slow")
    A("L_slow_ret:")
    T = Asm()
    T("L_slow:")
    T.c("true-max (online softmax) path, wave-local, K/V fragments straight from the workspace")
    m_, al = [104, 105], 106
    T(f"s_lshl_b32 s{sT}, s{sPair}, 18")
    T(f"s_lshr_b32 s{sT+1}, s{sWave}, 2")
    T(f"s_lshl_b32 s{sT+1}, s{sT+1}, 14")
    T(f"s_add_u32 s{sT}, s{sT}, s{sT+1}")
    T("v_lshrrev_b32 v108, 5, v0")
    T("v_and_b32 v109, 15, v0")
    T("v_lshlrev_b32 v109, 4, v109")
    T("v_lshl_add_u32 v109, v108, 8, v109")
    T("v_and_b32 v108, 11, v0")
    T("v_cmp_eq_u32 vcc, 0, v108")
    T("v_mov_b32 v110, 0")
    T("v_mov_b32 v111, 0x3f803f80")
    T("v_cndmask_b32 v110, v110, v111, vcc")
    for i in range(8): T(f"v_mov_b32 v{vV0f+i}, v110")
    for q in (0, 1):
        T(f"v_mov_b32 v{m_[q]}, 0xff800000")
        for i in range(16): T(f"v_mov_b32 v{O_[q]+i}, 0")
    T(f"s_mov_b32 s{sT+2}, 0")
    T("L_slow_loop:")
    T(f"s_lshr_b32 s{sT+3}, s{sT+2}, 3")
    T(f"s_lshl_b32 s{sT+3}, s{sT+3}, 15")
    T(f"s_and_b32 s{sT+4}, s{sT+2}, 7")
    T(f"s_lshl_b32 s{sT+4}, s{sT+4}, 11")
    T(f"s_add_u32 s{sT+3}, s{sT+3}, s{sT+4}")
    T(f"s_add_u32 s{sT+3}, s{sT+3}, s{sT}")
    T(f"buffer_load_dwordx4 {v(vKf,4)}, v{vL16}, s[{sWS}:{sWS+3}], s{sT+3} offen sc1")
    T("s_mov_b32 exec_lo, 0xffff")
    T("s_mov_b32 exec_hi, 0xffff")
    T(f"buffer_load_dwordx4 {v(vV0f,4)}, v109, s[{sWS}:{sWS+3}], s{sT+3} offen offset:1024 sc1")
    T(f"buffer_load_dwordx4 {v(vV1f,4)}, v109, s[{sWS}:{sWS+3}], s{sT+3} offen offset:1536 sc1")
    T("s_mov_b64 exec, -1")
    T("s_waitcnt vmcnt(0)")
    for q in (0, 1):
        S, O, m = S_[q], O_[q], m_[q]
        T(f"{M32} {v(S,16)}, {v(vKf,4)}, {v(vQ[q],4)}, 0")
        T("s_nop 15"); T("s_nop 3")
        T(f"v_max3_f32 v107, v{S}, v{S+1}, v{m}")
        for i in range(1, 8): T(f"v_max3_f32 v107, v{S+2*i}, v{S+2*i+1}, v107")
        T("v_mov_b32 v108, v107")
        T("s_nop 1")
        T("v_permlane32_swap_b32 v107, v108")
        T("v_max_f32 v107, v107, v108")
        T(f"v_sub_f32 v{al}, v{m}, v107")
        T(f"v_exp_f32 v{al}, v{al}")
        T(f"v_mov_b32 v{m}, v107")
        for i in range(16): T(f"v_sub_f32 v{S+i}, v{S+i}, v107")
        for i in range(16): T(f"v_exp_f32 v{S+i}, v{S+i}")
        for i in range(9): T(f"v_mul_f32 v{O+i}, v{O+i}, v{al}")
        if cfg.sm:
            T("s_nop 1")
            T(f"{SM} {v(O,16)}, {v(vV0f,4)}, {v(S,8)}, v{vIdx}")
            T(f"{SM} {v(O,16)}, {v(vV1f,4)}, {v(S+8,8)}, v{vIdx}")
        else:
            for i in range(8): T(f"v_cvt_pk_bf16_f32 v{P_+i}, v{S+2*i}, v{S+2*i+1}")
            T("s_nop 1")
            T(f"{M32} {v(O,16)}, {v(vV0f,4)}, {v(P_,4)}, {v(O,16)}")
            T(f"{M32} {v(O,16)}, {v(vV1f,4)}, {v(P_+4,4)}, {v(O,16)}")
        T("s_nop 15"); T("s_nop 3")
    T(f"s_add_u32 s{sT+2}, s{sT+2}, 1")
    T(f"s_cmp_lt_u32 s{sT+2}, 64")
    T("s_cbranch_scc1 L_slow_loop")
    T("s_branch L_slow_ret")
    tails.append(T)

def p2_epilogue(A, cfg):
    A.c("---- normalise (gate factor / row sum), round, publish O fragments (the data is its own ready flag:")
    A.c("     the slots were filled with 0xffffffff earlier in this launch and no published word has that value)")
    if cfg.nocheck == 2:
        A("s_sleep 64")
    A(f"s_add_u32 s{sJ}, s{sOst}, 65536")
    A(f"s_mov_b32 s{sT}, 0xfffffffe")
    if cfg.zearly: A("s_waitcnt vmcnt(6)")
    for q in (0, 1): A(f"v_sub_f32 v{vGF[q]}, s{sGc}, v{vGF[q]}")
    for q in (0, 1): A(f"v_rcp_f32 v{104+2*q}, v{O_[q]+8}")
    for q in (0, 1):
        O = O_[q]
        A(f"v_mul_f32 v{104+2*q}, v{104+2*q}, |v{vGF[q]}|")
        A(f"v_mov_b32 v{105+2*q}, v{104+2*q}")
        for i in range(4): A(f"v_pk_mul_f32 {v(O+2*i,2)}, {v(O+2*i,2)}, {v(104+2*q,2)}")
        for i in range(4): A(f"v_cvt_pk_bf16_f32 v{108+4*q+i}, v{O+2*i}, v{O+2*i+1}")
        for i in range(4): A(f"v_min_u32 v{108+4*q+i}, s{sT}, v{108+4*q+i}")
        A(f"buffer_store_dwordx4 {v(108+4*q,4)}, v{vL16}, s[{sWS}:{sWS+3}], s{sOst if q == 0 else sJ} offen sc1")
    lstamp(A, cfg, 44)

OF, AC, WFR = 128, [32, 48], [64, 72, 80, 88]
PS = 272
def p3(A, cfg):
    A.c("---- phase 3: out tile 64x64 = [gA*OA | gB*OB] @ [WoA ; WoB]")
    LA = cfg.la
    ld = lambda hh, sc=" sc1": f"buffer_load_dwordx4 {v(OF+4*hh,4)}, v4, s[{sWS}:{sWS+3}], s{8+hh//4} offen offset:{(hh%4)*1024}{sc}"
    SC1 = {0: " sc1", 1: "", 2: " nt", 3: " sc0"}[cfg.bulk]
    def rdw(hh):
        F = WFR[hh % 4]
        return [f"ds_read_b64_tr_b16 {v(F,2)}, v2 offset:{hh*2048}", f"ds_read_b64_tr_b16 {v(F+2,2)}, v2 offset:{hh*2048+1024}",
                f"ds_read_b64_tr_b16 {v(F+4,2)}, v3 offset:{hh*2048}", f"ds_read_b64_tr_b16 {v(F+6,2)}, v3 offset:{hh*2048+1024}"]
    def addr():
        A("v_lshrrev_b32 v16, 5, v0")
        A("v_lshlrev_b32 v16, 2, v16")
        A("v_bfe_u32 v17, v0, 2, 2")
        A("v_add_u32 v16, v16, v17")
        A("v_lshlrev_b32 v16, 7, v16")
        A("v_bfe_u32 v17, v0, 4, 1")
        A("v_lshlrev_b32 v17, 1, v17")
        A("v_bfe_u32 v18, v0, 1, 1")
        A("v_add_u32 v17, v17, v18")
        A("v_bfe_u32 v18, v0, 3, 1")
        A("v_lshlrev_b32 v18, 2, v18")
        A("v_xor_b32 v17, v17, v18")
        A("v_lshl_add_u32 v16, v17, 4, v16")
        A("v_and_b32 v17, 1, v0")
        A("v_lshl_add_u32 v16, v17, 3, v16")
        A(f"s_lshr_b32 s{sT+4}, s{sWave}, 1")
        A(f"s_lshl_b32 s{sT+5}, s{sT+4}, 15")
        A(f"s_add_u32 s{sT+5}, s{sT+5}, {WO}")
        A(f"v_add_u32 v2, s{sT+5}, v16")
        A("v_xor_b32 v3, 64, v2")
        A("v_and_b32 v16, 31, v0")
        A(f"s_and_b32 s{sT}, s{sWave}, 1")
        A(f"s_lshl_b32 s{sT}, s{sT}, 5")
        A(f"s_lshl_b32 s{sT+1}, s{sT+4}, 6")
        A(f"s_add_u32 s{sT}, s{sT}, s{sT+1}")
        A(f"v_add_u32 v16, s{sT}, v16")
        A(f"v_mul_u32_u24 v16, {PS}, v16")
        A("v_lshrrev_b32 v17, 5, v0")
        A("v_lshl_add_u32 v6, v17, 4, v16")
        A("v_lshrrev_b32 v16, 3, v0")
        A(f"s_lshl_b32 s{sT}, s{sWave}, 3")
        A(f"v_add_u32 v16, s{sT}, v16")
        A(f"v_mul_u32_u24 v7, {PS}, v16")
        A("v_and_b32 v17, 7, v0")
        A("v_lshl_add_u32 v7, v17, 5, v7")
        A("v_lshlrev_b32 v16, 10, v16")
        A("v_lshl_add_u32 v8, v17, 4, v16")
    for i in range(4): A(f"s_add_u32 s{8+i}, s{sOld}, {4096*i}")
    A(f"s_mov_b32 s{sSpin}, {SPIN_MAX}")
    A(f"v_mov_b32 v4, v{vL16}")
    if cfg.nocheck == 3:
        A("s_sleep 80")
        stamp(A, cfg, 7)
    for hh in range(LA): A(ld(hh, SC1))
    addr()
    lstamp(A, cfg, 55)
    A(f"s_waitcnt vmcnt({2 + LA})")
    A("s_barrier")
    lstamp(A, cfg, 56)
    for x in rdw(0) + rdw(1): A(x)
    A.c("a fragment that still holds fill words is fetched again (with the ones behind it)")
    for hh in range(16):
        F = WFR[hh % 4]; o = OF + 4 * hh
        A(f"L_ostep{hh}:")
        A(f"s_waitcnt vmcnt({min(LA - 1, 15 - hh)})")
        A(f"v_max3_u32 v10, v{o}, v{o+1}, v{o+2}")
        A(f"v_max_u32 v10, v10, v{o+3}")
        A("v_cmp_eq_u32 vcc, -1, v10")
        A(f"s_waitcnt lgkmcnt({4 if hh < 15 else 0})")
        if not cfg.nocheck: A(f"s_cbranch_vccnz L_oretry{hh}")
        A(f"L_ogo{hh}:")
        A(f"{M32} {v(AC[0],16)}, {v(F,4)}, {v(o,4)}, {'0' if hh == 0 else v(AC[0],16)}")
        if hh + LA < 16: A(ld(hh + LA, SC1))
        R = rdw(hh + 2) if hh + 2 < 16 else []
        for x in R[:2]: A(x)
        A(f"{M32} {v(AC[1],16)}, {v(F+4,4)}, {v(o,4)}, {'0' if hh == 0 else v(AC[1],16)}")
        for x in R[2:]: A(x)
        T = Asm()
        T(f"L_oretry{hh}:")
        T(f"s_sub_u32 s{sSpin}, s{sSpin}, 1")
        T(f"s_cmp_gt_i32 s{sSpin}, 0")
        T(f"s_cbranch_scc0 L_ogo{hh}")
        T("s_waitcnt vmcnt(0)")
        if cfg.rsleep: T(f"s_sleep {cfg.rsleep}")
        for h2 in range(hh, min(16, hh + LA)): T(ld(h2))
        T(f"s_branch L_ostep{hh}")
        tails.append(T)
    stamp(A, cfg, 8)
    lstamp(A, cfg, 41)
    if cfg.stamps == 4:
        A(f"s_sub_u32 s80, {SPIN_MAX + 1000}, s{sSpin}")
        A("v_writelane_b32 v31, s80, 53")
    A("s_barrier")
    A("s_nop 7")
    A("s_nop 1")
    for rq in range(4):
        A(f"ds_write_b128 v6, {v(AC[0]+4*rq,4)} offset:{rq*32}")
    for rq in range(4):
        A(f"ds_write_b128 v6, {v(AC[1]+4*rq,4)} offset:{128 + rq*32}")
    A("s_waitcnt lgkmcnt(0)")
    lstamp(A, cfg, 42)
    A("s_barrier")
    lstamp(A, cfg, 43)
    for kq in range(4):
        A(f"ds_read_b128 {v(64+8*kq,4)}, v7 offset:{kq*64*PS}")
        A(f"ds_read_b128 {v(68+8*kq,4)}, v7 offset:{kq*64*PS+16}")
    A("s_waitcnt lgkmcnt(4)")
    for i in range(4): A(f"v_pk_add_f32 {v(64+2*i,2)}, {v(64+2*i,2)}, {v(72+2*i,2)}")
    A("s_waitcnt lgkmcnt(0)")
    for i in range(4): A(f"v_pk_add_f32 {v(80+2*i,2)}, {v(80+2*i,2)}, {v(88+2*i,2)}")
    for i in range(4): A(f"v_pk_add_f32 {v(64+2*i,2)}, {v(64+2*i,2)}, {v(80+2*i,2)}")
    for i in range(4): A(f"v_cvt_pk_bf16_f32 v{96+i}, v{64+2*i}, v{65+2*i}")
    A(f"buffer_store_dwordx4 v[96:99], v8, s[{sOUT}:{sOUT+3}], s{sOut} offen" + ["", " sc1", " nt", " sc0 sc1", " sc1 nt"][cfg.outsc])

R0 = 131072
def p3_four(A, cfg):
    A.c("---- phase 3: out tile 64x64 = [gA*OA | gB*OB] @ [WoA ; WoB]")
    LA = cfg.la4; NR = 16
    ofr = lambda hh: OF + 4 * (hh % NR)
    ld = lambda hh: f"buffer_load_dwordx4 {v(ofr(hh),4)}, v4, s[{sWS}:{sWS+3}], s{8+hh//4} offen offset:{(hh%4)*1024} sc1"
    def rdw(hh):
        F = WFR[hh % 4]
        return [f"ds_read_b64_tr_b16 {v(F,2)}, v2 offset:{hh*2048}", f"ds_read_b64_tr_b16 {v(F+2,2)}, v2 offset:{hh*2048+1024}",
                f"ds_read_b64_tr_b16 {v(F+4,2)}, v3 offset:{hh*2048}", f"ds_read_b64_tr_b16 {v(F+6,2)}, v3 offset:{hh*2048+1024}"]
    A(f"s_cmp_ge_u32 s{sWave}, 4")
    A("s_cbranch_scc1 L_p3_idle")
    for i in range(8): A(f"s_add_u32 s{8+i}, s{sOld}, {4096*i}")
    A(f"s_mov_b32 s{sSpin}, {SPIN_MAX}")
    A(f"v_mov_b32 v4, v{vL16}")
    for hh in range(LA): A(ld(hh))
    A("v_lshrrev_b32 v16, 5, v0")
    A("v_lshlrev_b32 v16, 2, v16")
    A("v_bfe_u32 v17, v0, 2, 2")
    A("v_add_u32 v16, v16, v17")
    A("v_lshlrev_b32 v16, 7, v16")
    A("v_bfe_u32 v17, v0, 4, 1")
    A("v_lshlrev_b32 v17, 1, v17")
    A("v_bfe_u32 v18, v0, 1, 1")
    A("v_add_u32 v17, v17, v18")
    A("v_bfe_u32 v18, v0, 3, 1")
    A("v_lshlrev_b32 v18, 2, v18")
    A("v_xor_b32 v17, v17, v18")
    A("v_lshl_add_u32 v16, v17, 4, v16")
    A("v_and_b32 v17, 1, v0")
    A("v_lshl_add_u32 v16, v17, 3, v16")
    A(f"s_lshr_b32 s{sT+4}, s{sWave}, 1")
    A(f"s_lshl_b32 s{sT+5}, s{sT+4}, 16")
    A(f"s_add_u32 s{sT+5}, s{sT+5}, {WO}")
    A(f"v_add_u32 v2, s{sT+5}, v16")
    A("v_xor_b32 v3, 64, v2")
    A.c("partial sums: [branch][row 64][16 quads], quad index xor (row & 7)")
    A("v_and_b32 v16, 31, v0")
    A(f"s_and_b32 s{sT}, s{sWave}, 1")
    A(f"s_lshl_b32 s{sT}, s{sT}, 13")
    A(f"s_lshl_b32 s{sT+1}, s{sT+4}, 14")
    A(f"s_add_u32 s{sT}, s{sT}, s{sT+1}")
    A(f"s_add_u32 s{sT}, s{sT}, {R0}")
    A("v_lshlrev_b32 v16, 8, v16")
    A("v_lshrrev_b32 v17, 5, v0")
    A("v_and_b32 v18, 7, v0")
    A("v_xor_b32 v17, v17, v18")
    A("v_lshl_add_u32 v16, v17, 4, v16")
    A(f"v_add_u32 v12, s{sT}, v16")
    for i in (1, 2, 3): A(f"v_xor_b32 v{12+i}, {32*i}, v12")
    A(f"s_waitcnt vmcnt({2 + LA})")
    A("s_barrier")
    for x in rdw(0) + rdw(1): A(x)
    A.c("a fragment that still holds fill words is fetched again (with the ones behind it)")
    def check(hh, part):
        o = ofr(hh)
        if part == 0:
            A(f"L_ostep{hh}:")
            A(f"s_waitcnt vmcnt({min(LA - 1, 31 - hh)})")
            A(f"v_max3_u32 v10, v{o}, v{o+1}, v{o+2}")
            A(f"v_max_u32 v10, v10, v{o+3}")
            A("v_cmp_eq_u32 vcc, -1, v10")
        else:
            A(f"s_cbranch_vccnz L_oretry{hh}")
            A(f"L_ogo{hh}:")
            T = Asm()
            T(f"L_oretry{hh}:")
            T(f"s_sub_u32 s{sSpin}, s{sSpin}, 1")
            T(f"s_cmp_gt_i32 s{sSpin}, 0")
            T(f"s_cbranch_scc0 L_ogo{hh}")
            T("s_waitcnt vmcnt(0)")
            for h2 in range(hh, min(32, hh + LA)): T(ld(h2))
            T(f"s_waitcnt vmcnt({min(LA - 1, 31 - hh)})")
            T(f"v_max3_u32 v10, v{o}, v{o+1}, v{o+2}")
            T(f"v_max_u32 v10, v10, v{o+3}")
            T("v_cmp_eq_u32 vcc, -1, v10")
            T("s_nop 0")
            T(f"s_cbranch_vccnz L_oretry{hh}")
            T(f"s_branch L_ogo{hh}")
            tails.append(T)
    if cfg.p3pipe:
        check(0, 0); A("s_waitcnt lgkmcnt(4)"); check(0, 1)
        for hh in range(32):
            F = WFR[hh % 4]; o = ofr(hh)
            R = rdw(hh + 2) if hh + 2 < 32 else []
            A(f"{M32} {v(AC[0],16)}, {v(F,4)}, {v(o,4)}, {'0' if hh == 0 else v(AC[0],16)}")
            if hh + LA < 32: A(ld(hh + LA))
            if hh < 31: check(hh + 1, 0)
            A(f"{M32} {v(AC[1],16)}, {v(F+4,4)}, {v(o,4)}, {'0' if hh == 0 else v(AC[1],16)}")
            for x in R: A(x)
            if hh < 31:
                A(f"s_waitcnt lgkmcnt({4 if hh + 1 < 31 else 0})")
                check(hh + 1, 1)
    else:
        for hh in range(32):
            F = WFR[hh % 4]; o = ofr(hh)
            A(f"L_ostep{hh}:")
            A(f"s_waitcnt vmcnt({min(LA - 1, 31 - hh)})")
            A(f"v_max3_u32 v10, v{o}, v{o+1}, v{o+2}")
            A(f"v_max_u32 v10, v10, v{o+3}")
            A("v_cmp_eq_u32 vcc, -1, v10")
            A(f"s_waitcnt lgkmcnt({4 if hh < 31 else 0})")
            A(f"s_cbranch_vccnz L_oretry{hh}")
            A(f"L_ogo{hh}:")
            A(f"{M32} {v(AC[0],16)}, {v(F,4)}, {v(o,4)}, {'0' if hh == 0 else v(AC[0],16)}")
            if hh + LA < 32: A(ld(hh + LA))
            R = rdw(hh + 2) if hh + 2 < 32 else []
            for x in R[:2]: A(x)
            A(f"{M32} {v(AC[1],16)}, {v(F+4,4)}, {v(o,4)}, {'0' if hh == 0 else v(AC[1],16)}")
            for x in R[2:]: A(x)
            T = Asm()
            T(f"L_oretry{hh}:")
            T(f"s_sub_u32 s{sSpin}, s{sSpin}, 1")
            T(f"s_cmp_gt_i32 s{sSpin}, 0")
            T(f"s_cbranch_scc0 L_ogo{hh}")
            T("s_waitcnt vmcnt(0)")
            for h2 in range(hh, min(32, hh + LA)): T(ld(h2))
            T(f"s_branch L_ostep{hh}")
            tails.append(T)
    stamp(A, cfg, 8)
    A("s_nop 7")
    A("s_nop 2")
    for ct in (0, 1):
        for rq in range(4):
            A(f"ds_write_b128 v{12+rq}, {v(AC[ct]+4*rq,4)} offset:{ct*128}")
    A("s_branch L_p3_fin")
    A("L_p3_idle:")
    A("s_waitcnt vmcnt(2)")
    A("s_barrier")
    stamp(A, cfg, 8)
    A("L_p3_fin:")
    A("v_lshrrev_b32 v16, 3, v0")
    A(f"s_lshl_b32 s{sT}, s{sWave}, 3")
    A(f"v_add_u32 v16, s{sT}, v16")
    A("v_and_b32 v17, 7, v0")
    A("v_lshlrev_b32 v18, 1, v17")
    A("v_and_b32 v19, 7, v16")
    A("v_xor_b32 v18, v18, v19")
    A("v_lshlrev_b32 v18, 4, v18")
    A("v_lshl_add_u32 v7, v16, 8, v18")
    A(f"v_add_u32 v7, {R0}, v7")
    A("v_xor_b32 v6, 16, v7")
    A("v_lshlrev_b32 v16, 10, v16")
    A("v_lshl_add_u32 v8, v17, 4, v16")
    A("s_waitcnt lgkmcnt(0)")
    A("s_barrier")
    A("ds_read_b128 v[64:67], v7")
    A("ds_read_b128 v[72:75], v7 offset:16384")
    A("ds_read_b128 v[68:71], v6")
    A("ds_read_b128 v[76:79], v6 offset:16384")
    A("s_waitcnt lgkmcnt(2)")
    for i in range(2): A(f"v_pk_add_f32 {v(64+2*i,2)}, {v(64+2*i,2)}, {v(72+2*i,2)}")
    A("s_waitcnt lgkmcnt(0)")
    for i in range(2, 4): A(f"v_pk_add_f32 {v(64+2*i,2)}, {v(64+2*i,2)}, {v(72+2*i,2)}")
    for i in range(4): A(f"v_cvt_pk_bf16_f32 v{96+i}, v{64+2*i}, v{65+2*i}")
    A(f"buffer_store_dwordx4 v[96:99], v8, s[{sOUT}:{sOUT+3}], s{sOut} offen" + ["", " sc1", " nt", " sc0 sc1", " sc1 nt"][cfg.outsc])

def build(cfg):
    tails.clear()
    XSWAP[0] = cfg.xswap
    P3W[0] = cfg.p3w
    PVSWAP[0] = cfg.pvswap
    SMUSE[0] = cfg.sm
    ORDER[0] = cfg.korder
    ONES[0] = cfg.ones
    name = KN + "_kernel"
    A = Asm(); kernel_head(A, name)
    prologue(A, cfg)
    p1_compute(A, cfg)
    stamp(A, cfg, 2)
    lstamp(A, cfg, 27)
    p1_compute_epilogue(A, cfg)
    A("s_branch L_attn")
    A("L_loader:")
    p1_loader(A, cfg)
    stamp(A, cfg, 2)
    if cfg.c1c: p2_setup(A, cfg)
    A("L_attn:")
    if cfg.dbl: A("s_memrealtime s[82:83]")
    stamp(A, cfg, 3)
    lstamp(A, cfg, 28)
    if not cfg.c1c: p2_setup(A, cfg)
    p2_main(A, cfg)
    stamp(A, cfg, 5)
    lstamp(A, cfg, 37)
    if cfg.dbl: A("s_memrealtime s[86:87]")
    p2_check(A, cfg)
    p2_epilogue(A, cfg)
    stamp(A, cfg, 6)
    if cfg.p3w == 4: p3_four(A, cfg)
    else: p3(A, cfg)
    stamp_store(A, cfg, 10 if cfg.c0st else 9)
    if cfg.dbl:
        A("s_cmp_lg_u32 s2, 0")
        A("s_cbranch_scc1 L_end")
        A("s_waitcnt vmcnt(0)")
        A("s_memrealtime s[84:85]")
        A("s_waitcnt lgkmcnt(0)")
        a, b = {1: (80, 84), 2: (80, 82), 3: (82, 86), 4: (86, 84)}[cfg.dbl]
        A(f"s_sub_u32 s88, s{b}, s{a}")
        A("s_add_u32 s88, s88, s84")
        A("L_dbl:")
        A("s_memrealtime s[90:91]")
        A("s_waitcnt lgkmcnt(0)")
        A("s_sub_u32 s89, s90, s88")
        A("s_cmp_lt_i32 s89, 0")
        A("s_cbranch_scc1 L_dbl")
    A("L_end:")
    A("s_endpgm")
    txt = A.text() + "".join(t.text() for t in tails)
    hdr = f"""; gated dual multi-head attention block: one persistent launch, 256 workgroups (one per CU)
; @launch grid=(256,1,1) block=(512,1,1) lds={LDS_TOTAL}
.amdgcn_target "amdgcn-amd-amdhsa--gfx950"
"""
    return hdr + txt + kernel_desc(name, 256)

if __name__ == "__main__":
    import sys
    cfg = Cfg()
    for a in sys.argv[2:]:
        k_, v_ = a.split("=")
        setattr(cfg, k_, int(v_, 0))
    open(sys.argv[1], "w").write(build(cfg))
```

```python
from base import *
import math, struct

KN = "gated_mix__softmax_full_mha__mha_block__prompt"
sX, sW, sG, sWS, sWOA, sWOB, sOUT, sDBG = 24, 28, 32, 36, 40, 44, 48, 52
sWave, sSlab, sPair, sKC, sRG = 56, 57, 58, 59, 60
sSpin = 61
sT = 62
sXb, sXo, sWb_, sWo, sK2, sM = 70, 71, 72, 73, 74, 75
sCH, sCO, sMB, sWoG, sWoM, sJ = 70, 71, 72, 73, 74, 75
sS3, sR3, sC3, sF = 76, 77, 78, 79
WS_KV, WS_O, WS_F1, WS_F2, WS_ST, WS_SIZE = 0, 8 << 20, 12 << 20, (12 << 20) + 16384, 22 << 20, 24 << 20
WS_G = (12 << 20) + 32768
XS, WB, GW, QX, GV = 32768, 98304, 135168, 69632, 77824
XB = {0: 32768, 1: 0, 2: 65536}
SLOT, REC, HSTR = 33280, 2080, 16640
SA, SB, SC = 0, 33280, 130560
WO = 0
LDS_TOTAL = 163840
LOG2E = math.log2(math.e)
QSCALE = 0.25 * LOG2E
SPIN_MAX = 200000
def fbits(x): return hex(struct.unpack("<I", struct.pack("<f", x))[0])
vKL, vV0L, vV1L, vKH, vV0H, vV1H, vL16, vWoD, vPA, vPoll = range(240, 250)
vGF = [250, 251]
vZ = 252
vZA, vZ2 = 254, 255
vGA, vFill, sGo = 253, 232, 3
vIdx, vZero, vKP = 231, 236, 230
SM = "v_smfmac_f32_32x32x32_bf16"
sOst, sOld, sOut, sGc = 4, 5, 6, 7
sZp = 13

class Cfg:
    lr = 2
    prio = 0x6BE
    p1prio = 1
    prio0 = 0x37B
    stamps = 0
    slow = 1
    force_slow = 0
    t_poll = 3
    dotmode = 4
    p1pipe = 0
    n_z = 21
    rot = 23
    tailbar = 1
    prog = 32
    bulk = 0
    early = 5
    la = 4
    cshift = 1
    p3w = 4
    la4 = 8
    p3pipe = 1
    korder = 1
    t_load = 2
    zld = 1
    sm = 1
    wfull = 0
    zearly = 2
    noz = 0
    n_add = 8
    wpf3 = 0
    prot = 0
    uni = 0
    c1c = 0
    t_c2 = 4
    c0st = 0
    pvswap = 0
    ones = 0
    xswap = 1
    nocheck = 0
    late1 = 0
    c2c = 0
    spf = 0
    spfe = 1
    spfw = 0
    p1x = 0
    dbl = 0
    order = 0
    align = 0
    shift = 0
    outsc = 3
    rsleep = 0
    ethr = 32
    spindepth = 0
    sspread = 1
    spinsleep = 0
    wpf2 = 0
    epi2 = 1
    wfirst = 0
    l2pf = 0
    pfoff = 0
    epist = 0
    t16 = 0
    wpf = 0

def stamp(A, cfg, i, force=False):
    if cfg.c0st and not force and i not in (0, 10): return
    if cfg.stamps in (1, 3): A(f"s_memrealtime s[{80+2*i}:{81+2*i}]")
    if cfg.stamps == 2: A(f"s_memtime s[{80+2*i}:{81+2*i}]")
def lstamp(A, cfg, i):
    if cfg.stamps == 4:
        A("s_memrealtime s[80:81]")
        A("s_waitcnt lgkmcnt(0)")
        A(f"v_writelane_b32 v31, s80, {i}")
def stamp_store(A, cfg, n):
    if not cfg.stamps: return
    if cfg.stamps == 4:
        A("s_waitcnt vmcnt(0)")
        lstamp(A, cfg, 40)
        A(f"s_lshl_b32 s{sT}, s2, 3")
        A(f"s_add_u32 s{sT}, s{sT}, s{sWave}")
        A(f"s_lshl_b32 s{sT}, s{sT}, 8")
        A(f"s_add_u32 s{sT}, s{sT}, {WS_ST}")
        A("v_lshlrev_b32 v1, 2, v0")
        A(f"buffer_store_dword v31, v1, s[{sWS}:{sWS+3}], s{sT} offen")
        return
    A("s_waitcnt vmcnt(0)")
    stamp(A, cfg, n)
    A("s_waitcnt lgkmcnt(0)")
    if cfg.stamps == 3:
        A("s_mov_b64 exec, 1")
        A(f"s_not_b32 s{sT}, s80")
        A(f"v_mov_b32 v2, s{sT}")
        A(f"buffer_atomic_umax v2, off, s[{sDBG}:{sDBG+3}], 0 offset:8")
        for i in range(n + 1):
            A(f"v_mov_b32 v{3+i}, s{80+2*i}")
            A(f"buffer_atomic_umax v{3+i}, off, s[{sDBG}:{sDBG+3}], 0 offset:{12+4*i}")
        return
    A(f"s_lshl_b32 s{sT}, s2, 3")
    A(f"s_add_u32 s{sT}, s{sT}, s{sWave}")
    A(f"s_lshl_b32 s{sT}, s{sT}, 6")
    A(f"s_add_u32 s{sT}, s{sT}, {WS_ST}")
    A("v_mov_b32 v1, 0")
    for i in range(n + 1):
        A(f"v_mov_b32 v2, s{80+2*i}")
        A(f"buffer_store_dword v2, v1, s[{sWS}:{sWS+3}], s{sT} offen offset:{4*i}")
        A("s_nop 1")

def prologue(A, cfg):
    if cfg.dbl: A("s_memrealtime s[80:81]")
    stamp(A, cfg, 0)
    if cfg.stamps == 4: A("v_mov_b32 v31, 0")
    lstamp(A, cfg, 0)
    A("s_cmp_ge_u32 s2, 256")
    A("s_cbranch_scc1 L_end")
    A("s_load_dwordx16 s[4:19], s[0:1], 0")
    A("s_load_dwordx4 s[20:23], s[0:1], 64")
    A("v_lshrrev_b32 v1, 6, v0")
    A("v_and_b32 v0, 63, v0")
    A(f"v_readfirstlane_b32 s{sWave}, v1")
    lr = cfg.lr
    A(f"s_and_b32 s{sT}, s2, {(8 >> lr) - 1}")
    A(f"s_lshl_b32 s{sT}, s{sT}, {lr}")
    A(f"s_lshr_b32 s{sT+1}, s2, 3")
    A(f"s_and_b32 s{sT+2}, s{sT+1}, {(1 << lr) - 1}")
    A(f"s_or_b32 s{sSlab}, s{sT}, s{sT+2}")
    A(f"s_and_b32 s{sT}, s2, 7")
    A(f"s_lshr_b32 s{sT}, s{sT}, {3 - lr}")
    A(f"s_lshl_b32 s{sT}, s{sT}, {5 - lr}")
    A(f"s_lshr_b32 s{sT+1}, s{sT+1}, {lr}")
    if cfg.prot:
        A(f"s_add_u32 s{sT+1}, s{sT+1}, {cfg.prot}")
        A(f"s_and_b32 s{sT+1}, s{sT+1}, {(32 >> lr) - 1}")
    A(f"s_add_u32 s{sPair}, s{sT}, s{sT+1}")
    if cfg.rot == 0:
        A(f"s_add_u32 s{sKC}, s{sPair}, s{sSlab}")
    elif cfg.rot == 1:
        A(f"s_lshl_b32 s{sKC}, s{sSlab}, 1")
        A(f"s_add_u32 s{sKC}, s{sKC}, s{sPair}")
    elif cfg.rot == 2:
        A(f"s_and_b32 s{sKC}, s2, 6")
        A(f"s_and_b32 s{sT}, s2, 1")
        A(f"s_lshl_b32 s{sT}, s{sT}, 2")
        A(f"s_add_u32 s{sKC}, s{sKC}, s{sT}")
    elif cfg.rot == 3:
        A(f"s_mov_b32 s{sKC}, 0")
    elif cfg.rot == 4:
        A(f"s_and_b32 s{sKC}, s2, 6")
        A(f"s_add_u32 s{sT}, s{sPair}, s{sSlab}")
        A(f"s_and_b32 s{sT}, s{sT}, 1")
        A(f"s_lshl_b32 s{sT}, s{sT}, 2")
        A(f"s_add_u32 s{sKC}, s{sKC}, s{sT}")
    elif cfg.rot == 5:
        A(f"s_add_u32 s{sT}, s{sPair}, s{sSlab}")
        A(f"s_and_b32 s{sT}, s{sT}, 3")
        A(f"s_lshl_b32 s{sT}, s{sT}, 1")
        A(f"s_and_b32 s{sKC}, s2, 1")
        A(f"s_add_u32 s{sKC}, s{sKC}, s{sT}")
    elif cfg.rot == 6:
        A(f"s_bfe_u32 s{sKC}, s2, 0x20001")
        A(f"s_add_u32 s{sT}, s{sPair}, s{sSlab}")
        A(f"s_and_b32 s{sT}, s{sT}, 1")
        A(f"s_lshl_b32 s{sT}, s{sT}, 2")
        A(f"s_add_u32 s{sKC}, s{sKC}, s{sT}")
    elif cfg.rot == 7:
        A(f"s_add_u32 s{sT}, s{sPair}, s{sSlab}")
        A(f"s_and_b32 s{sT}, s{sT}, 1")
        A(f"s_lshl_b32 s{sKC}, s{sT}, 2")
    elif cfg.rot == 8:
        A(f"s_and_b32 s{sKC}, s2, 6")
        A(f"s_add_u32 s{sT}, s{sPair}, s{sSlab}")
        A(f"s_and_b32 s{sT}, s{sT}, 1")
        A(f"s_lshl_b32 s{sT}, s{sT}, 1")
        A(f"s_add_u32 s{sKC}, s{sKC}, s{sT}")
    elif cfg.rot == 9:
        A(f"s_and_b32 s{sKC}, s2, 3")
        A(f"s_add_u32 s{sT}, s{sPair}, s{sSlab}")
        A(f"s_and_b32 s{sT}, s{sT}, 1")
        A(f"s_lshl_b32 s{sT}, s{sT}, 2")
        A(f"s_add_u32 s{sKC}, s{sKC}, s{sT}")
    elif cfg.rot in (16, 17, 18) or cfg.rot >= 19:
        pass
    elif cfg.rot in (10, 11, 13, 14, 15):
        if cfg.rot in (10, 11): A(f"s_add_u32 s{sT}, s{sPair}, s{sSlab}")
        elif cfg.rot == 13: A(f"s_mov_b32 s{sT}, s{sSlab}")
        elif cfg.rot == 14: A(f"s_mov_b32 s{sT}, s{sPair}")
        elif cfg.rot == 15:
            A(f"s_lshr_b32 s{sT}, s{sPair}, 1")
            A(f"s_add_u32 s{sT}, s{sT}, s{sSlab}")
        A(f"s_and_b32 s{sT}, s{sT}, 3")
        A(f"s_lshl_b32 s{sT}, s{sT}, 1")
        if cfg.rot == 10: A(f"s_bfe_u32 s{sKC}, s2, 0x10001")
        elif cfg.rot == 11: A(f"s_mov_b32 s{sKC}, 0")
        else: A(f"s_and_b32 s{sKC}, s2, 1")
        A(f"s_add_u32 s{sKC}, s{sKC}, s{sT}")
    if cfg.rot not in (16, 17, 18) and cfg.rot < 19: A(f"s_and_b32 s{sKC}, s{sKC}, 7")
    A(f"s_and_b32 s{sRG}, s{sWave}, 3")
    A(f"s_cmp_ge_u32 s{sWave}, 4")
    A("s_cbranch_scc1 L_loader")

XSWAP = [0]
P3W = [8]
PVSWAP = [0]
SHIFT = ["0"]
SMUSE = [0]
ONES = [0]
def late_srds(A):
    srd(A, sWS, 22, 23, WS_SIZE)
    srd(A, sWOA, 8, 9, 512 * 512 * 2)
    srd(A, sWOB, 14, 15, 512 * 512 * 2)
    srd(A, sOUT, 18, 19, 2048 * 512 * 2)
    srd(A, sDBG, 20, 21, 256)
    if XSWAP[0]:
        A.c("output slab: one this XCD group does not produce itself (speed only)")
        A(f"s_bfe_u32 s{sS3}, s2, 0x20001")
        A(f"s_andn2_b32 s{sR3}, 1, s2")
        A(f"s_lshl_b32 s{sR3}, s{sR3}, 2")
        A(f"s_add_u32 s{sS3}, s{sS3}, s{sR3}")
    else:
        A(f"s_and_b32 s{sS3}, s2, 7")
    A(f"s_bfe_u32 s{sR3}, s2, 0x20003")
    A(f"s_lshr_b32 s{sC3}, s2, 5")
    A(f"s_lshl_b32 s{sF}, s{sPair}, 2")
    A(f"s_add_u32 s{sF}, s{sF}, s{sRG}")
    A(f"s_lshl_b32 s{sF}, s{sF}, 7")
    A(f"s_add_u32 s{sF}, s{sF}, {WS_F1}")
    A.c("scalars of the tail (s4..s7: their pointers are dead by now)")
    A(f"s_lshl_b32 s{sT}, s{sSlab}, 2")
    A(f"s_add_u32 s{sT}, s{sT}, s{sRG}")
    A(f"s_lshl_b32 s{sT}, s{sT}, 17")
    A(f"s_lshl_b32 s{sT+1}, s{sPair}, 1")
    A(f"s_lshr_b32 s{sT+2}, s{sWave}, 2")
    A(f"s_add_u32 s{sT+1}, s{sT+1}, s{sT+2}")
    A(f"s_lshl_b32 s{sT+1}, s{sT+1}, 10")
    A(f"s_add_u32 s{sT}, s{sT}, s{sT+1}")
    A(f"s_add_u32 s{sOst}, s{sT}, {WS_O}")
    A(f"s_lshl_b32 s{sT}, s{sS3}, 3")
    A(f"s_lshl_b32 s{sT+1}, s{sR3}, 1")
    A(f"s_add_u32 s{sT}, s{sT}, s{sT+1}")
    A(f"s_and_b32 s{sT+1}, s{sWave}, 1")
    A(f"s_add_u32 s{sT}, s{sT}, s{sT+1}")
    A(f"s_lshl_b32 s{sT}, s{sT}, 16")
    A(f"s_lshr_b32 s{sT+1}, s{sWave}, 1")
    A(f"s_lshl_b32 s{sT+1}, s{sT+1}, {15 if P3W[0] == 4 else 14}")
    A(f"s_add_u32 s{sT}, s{sT}, s{sT+1}")
    A(f"s_add_u32 s{sOld}, s{sT}, {WS_O}")
    A(f"s_lshl_b32 s{sT}, s{sS3}, 8")
    A(f"s_lshl_b32 s{sT+1}, s{sR3}, 6")
    A(f"s_add_u32 s{sT}, s{sT}, s{sT+1}")
    A(f"s_lshl_b32 s{sT}, s{sT}, 10")
    A(f"s_lshl_b32 s{sT+1}, s{sC3}, 7")
    A(f"s_add_u32 s{sOut}, s{sT}, s{sT+1}")
    A(f"s_lshr_b32 s{sGc}, s{sPair}, 4")
    A(f"s_lshl_b32 s{sZp}, s{sGc}, 7")
    A(f"s_and_b32 s{sT}, s{sPair}, 15")
    A(f"s_lshl_b32 s{sT}, s{sT}, 2")
    A(f"s_add_u32 s{sZp}, s{sZp}, s{sT}")
    A(f"s_add_u32 s{sZp}, s{sZp}, 8")
    A(f"s_mul_i32 s{sGc}, s{sGc}, 0x3f800000")

def xfrag_addr(A, L, H, t):
    A(f"v_and_b32 v{t}, 31, v0")
    A(f"v_lshrrev_b32 v{t+1}, 5, v0")
    A(f"v_bfe_u32 v{t+2}, v0, 1, 3")
    A(f"v_xor_b32 v{t+2}, v{t+2}, v{t+1}")
    A(f"v_lshlrev_b32 v{t}, 7, v{t}")
    A(f"s_lshl_b32 s{sT}, s{sRG}, 13")
    A(f"v_add_u32 v{t}, s{sT}, v{t}")
    for j in range(4):
        A(f"v_xor_b32 v{t+1}, {2*j}, v{t+2}")
        A(f"v_lshl_add_u32 v{L[j]}, v{t+1}, 4, v{t}")
        A(f"v_add_u32 v{H[j]}, 0x10000, v{L[j]}")

def p2_addr(A):
    A(f"v_lshlrev_b32 v{vL16}, 4, v0")
    A(f"s_lshr_b32 s{sT}, s{sWave}, 2")
    A(f"s_mul_i32 s{sT}, s{sT}, {HSTR}")
    A(f"v_add_u32 v{vKL}, s{sT}, v{vL16}")
    A("v_lshrrev_b32 v104, 5, v0")
    A("v_and_b32 v105, 15, v0")
    A("v_lshlrev_b32 v105, 4, v105")
    A("v_lshl_add_u32 v105, v104, 8, v105")
    A("v_add_u32 v105, 1024, v105")
    A("v_add_u32 v106, 512, v105")
    A("v_and_b32 v104, 11, v0")
    A("v_cmp_eq_u32 vcc, 0, v104")
    A("v_mov_b32 v107, " + ("2048" if ONES[0] == 1 else "2064"))
    A("v_mov_b32 v108, " + ("2064" if ONES[0] == 2 else "2048"))
    A("v_cndmask_b32 v107, v107, v108, vcc")
    A("v_and_b32 v104, 16, v0")
    A("v_cmp_eq_u32 vcc, 0, v104")
    A("s_nop 1")
    A("v_cndmask_b32 v105, v107, v105, vcc")
    A("v_cndmask_b32 v106, v107, v106, vcc")
    A(f"v_add_u32 v{vV0L}, s{sT}, v105")
    A(f"v_add_u32 v{vV1L}, s{sT}, v106")
    A(f"v_add_u32 v{vKH}, {SC}, v{vKL}")
    A(f"v_add_u32 v{vV0H}, {SC}, v{vV0L}")
    A(f"v_add_u32 v{vV1H}, {SC}, v{vV1L}")
    A("v_lshrrev_b32 v104, 3, v0")
    A("v_lshlrev_b32 v104, 10, v104")
    A("v_and_b32 v105, 7, v0")
    A(f"v_lshlrev_b32 v{vPA}, 2, v105")
    A("v_bfe_u32 v106, v0, 4, 1")
    A("v_lshlrev_b32 v106, 2, v106")
    A("v_xor_b32 v105, v105, v106")
    A(f"v_lshl_add_u32 v{vWoD}, v105, 4, v104")

def consts(A, slots):
    A("v_lshrrev_b32 v104, 4, v0")
    A(f"v_mul_u32_u24 v104, {slots[-1] - slots[0]}, v104")
    A("v_and_b32 v105, 15, v0")
    A(f"v_mul_u32_u24 v105, {REC}, v105")
    A("v_add_u32 v104, v104, v105")
    if slots[0]: A(f"v_add_u32 v104, {slots[0]}, v104")
    for i in range(4):
        A(f"v_mov_b32 v{108+i}, 0x3f803f80")
        A(f"v_mov_b32 v{112+i}, 0")
    n = 16 * len(slots)
    A(f"s_mov_b32 exec_lo, {hex((1 << min(n,32)) - 1)}")
    A(f"s_mov_b32 exec_hi, {hex((1 << max(n-32,0)) - 1)}")
    A("ds_write_b128 v104, v[108:111] offset:2048")
    A("ds_write_b128 v104, v[112:115] offset:2064")
    A("s_mov_b64 exec, -1")

tails = []
def spin(A, name, load, reg, val, cmp="ne", sleep=0, depth=0):
    A("s_waitcnt vmcnt(0)")
    A(f"v_cmp_{cmp}_u32 vcc, {val}, v{reg}")
    A("s_nop 0")
    A(f"s_cbranch_vccnz L_spin_{name}")
    A(f"L_ret_{name}:")
    T = Asm()
    T(f"L_spin_{name}:")
    T(f"s_mov_b32 s{sSpin}, {SPIN_MAX}")
    for _ in range(depth):
        T(load)
        if sleep: T(f"s_sleep {sleep}")
    T(f"L_spinl_{name}:")
    if sleep: T(f"s_sleep {sleep}")
    T(load)
    T(f"s_sub_u32 s{sSpin}, s{sSpin}, 1")
    T(f"s_cbranch_scc1 L_ret_{name}")
    T(f"s_waitcnt vmcnt({depth})")
    T(f"v_cmp_{cmp}_u32 vcc, {val}, v{reg}")
    T("s_nop 0")
    T(f"s_cbranch_vccnz L_spinl_{name}")
    T(f"s_branch L_ret_{name}")
    tails.append(T)

vXL, vXH = [2, 3, 4, 5], [6, 7, 8, 9]
vWa, vWb, vWv = 10, 11, 12
ACC = dict(QKa0=32, QKa1=48, QKb0=64, QKb1=80, VV0=96, VV1=112)
FR = [128, 148]
vQ = [8, 12]
F1LOAD = f"buffer_load_dword v{vPoll}, v{vPA}, s[{sWS}:{sWS+3}], s{sF} offen sc1"
SAMPLE = f"buffer_load_dword v28, v5, s[{sWS}:{sWS+3}], s{sOld} offen sc1"
ZLOAD = f"buffer_load_dword v{vZ}, off, s[{sDBG}:{sDBG+3}], s{sZp} sc1"

def l2_prefetch(A, cfg):
    assert cfg.lr == 2
    A(f"s_cmp_lt_u32 s{sPair}, 16")
    A(f"s_cselect_b32 s{sW}, s6, s12")
    A(f"s_cselect_b32 s{sW+1}, s7, s13")
    A(f"s_mov_b32 s{sW+2}, {hex(512*1536*2)}")
    A(f"s_mov_b32 s{sW+3}, 0x20000")
    A(f"s_lshl_b32 s{sT}, s{sWave}, 1")
    A(f"s_add_u32 s{sT}, s{sT}, s{sKC}")
    A(f"s_add_u32 s{sT}, s{sT}, {cfg.pfoff}")
    A("v_lshrrev_b32 v46, 5, v0")
    A(f"v_add_u32 v46, s{sT}, v46")
    A("v_and_b32 v46, 7, v46")
    A("v_and_b32 v47, 31, v0")
    A(f"s_lshr_b32 s{sT+1}, s2, 3")
    A(f"s_and_b32 s{sT+2}, s2, 1")
    A(f"s_lshl_b32 s{sT+2}, s{sT+2}, 20")
    A(f"s_lshl_b32 s{sT+3}, s{sT+1}, 15")
    A(f"s_add_u32 s{sT+2}, s{sT+2}, s{sT+3}")
    A("v_lshlrev_b32 v48, 10, v47")
    A("v_lshl_add_u32 v48, v46, 7, v48")
    A(f"buffer_load_dword v200, v48, s[{sX}:{sX+3}], s{sT+2} offen")
    A(f"s_mul_i32 s{sT+1}, s{sT+1}, 24")
    A("v_min_u32 v47, 23, v47")
    A(f"v_add_u32 v47, s{sT+1}, v47")
    A("v_mul_u32_u24 v48, 0x5556, v47")
    A("v_lshrrev_b32 v48, 18, v48")
    A("v_mul_u32_u24 v49, 12, v48")
    A("v_sub_u32 v49, v47, v49")
    A("v_lshl_add_u32 v48, v46, 6, v48")
    A("v_mul_u32_u24 v48, 3072, v48")
    A("v_lshrrev_b32 v47, 2, v49")
    A("v_lshl_add_u32 v48, v47, 10, v48")
    A("v_and_b32 v49, 3, v49")
    A("v_lshl_add_u32 v48, v49, 7, v48")
    A(f"s_and_b32 s{sT+1}, s{sPair}, 8")
    A(f"s_lshl_b32 s{sT+1}, s{sT+1}, 6")
    A(f"buffer_load_dword v201, v48, s[{sW}:{sW+3}], s{sT+1} offen")

def w_prefetch(A, cfg):
    assert cfg.lr == 2
    A(f"s_cmp_lt_u32 s{sPair}, 16")
    A(f"s_cselect_b32 s{sW}, s6, s12")
    A(f"s_cselect_b32 s{sW+1}, s7, s13")
    A(f"s_mov_b32 s{sW+2}, {hex(512*1536*2)}")
    A(f"s_mov_b32 s{sW+3}, 0x20000")
    A(f"s_and_b32 s{sT+1}, s{sPair}, 14")
    A(f"s_lshl_b32 s{sT+1}, s{sT+1}, 6")
    if cfg.wpf2 < 10:
        A(f"s_add_u32 s{sT+3}, s{sW}, s{sT+1}")
        A(f"s_bfe_u32 s{sT+3}, s{sT+3}, 0x30007")
    A(f"s_and_b32 s{sT}, s{sSlab}, 3")
    A(f"s_lshl_b32 s{sT}, s{sT}, 1")
    A(f"s_and_b32 s{sT+2}, s{sPair}, 1")
    A(f"s_add_u32 s{sT}, s{sT}, s{sT+2}")
    A(f"s_add_u32 s{sT}, s{sT}, s{sKC}")
    A(f"s_and_b32 s{sT}, s{sT}, 7")
    A(f"s_mul_i32 s{sT}, s{sT}, 196608")
    A(f"s_add_u32 s{sT}, s{sT}, s{sT+1}")
    A(f"s_mul_i32 s{sT+2}, s{sRG}, 49152")
    A(f"s_add_u32 s{sT}, s{sT}, s{sT+2}")
    A("v_min_u32 v46, 47, v0")
    A("v_lshlrev_b32 v46, 10, v46")
    if cfg.wpf2 < 10:
        A(f"s_cmp_eq_u32 s{sT+3}, 3")
        A("s_cselect_b64 exec, -1, 0")
    A(f"buffer_load_dword v200, v46, s[{sW}:{sW+3}], s{sT} offen")
    A("s_mov_b64 exec, -1")

def hot_prefetch(A, cfg):
    A(f"s_cmp_lt_u32 s{sPair}, 16")
    A(f"s_cselect_b32 s{sW}, s6, s12")
    A(f"s_cselect_b32 s{sW+1}, s7, s13")
    A(f"s_mov_b32 s{sW+2}, {hex(512*1536*2)}")
    A(f"s_mov_b32 s{sW+3}, 0x20000")
    A(f"s_lshr_b32 s{sT}, s{sW}, 7")
    A(f"s_sub_u32 s{sT}, 3, s{sT}")
    A(f"s_and_b32 s{sT}, s{sT}, 7")
    A(f"s_lshl_b32 s{sT}, s{sT}, 7")
    A(f"s_and_b32 s{sT+1}, s{sPair}, 15")
    A(f"s_lshl_b32 s{sT+1}, s{sT+1}, 3")
    A(f"s_add_u32 s{sT+1}, s{sT+1}, s{sSlab}")
    A(f"s_lshl_b32 s{sT+1}, s{sT+1}, 2")
    A(f"s_add_u32 s{sT+1}, s{sT+1}, s{sWave}")
    A(f"s_mul_i32 s{sT+1}, s{sT+1}, 3072")
    A(f"s_add_u32 s{sT}, s{sT}, s{sT+1}")
    A("v_min_u32 v46, 2, v0")
    A("v_lshlrev_b32 v46, 10, v46")
    A(f"buffer_load_dword v200, v46, s[{sW}:{sW+3}], s{sT} offen")

def p1_compute(A, cfg):
    A.c("---- phase 1, compute waves")
    if cfg.p1prio == 1: A("s_setprio 1")
    A("s_waitcnt lgkmcnt(0)")
    A.c("gate g = sigmoid(x . gate_w) of rows 8*wg + 2*wave, +1 (every workgroup covers 8 of the 2048 rows)")
    srd(A, sX, 4, 5, 2048 * 512 * 2)
    srd(A, sG, 16, 17, 1024)
    A(f"s_lshl_b32 s{sT+6}, s2, 2")
    A(f"s_add_u32 s{sT+6}, s{sT+6}, s{sWave}")
    A(f"s_lshl_b32 s{sT+7}, s{sT+6}, 11")
    A("v_lshlrev_b32 v13, 4, v0")
    A(f"buffer_load_dwordx4 v[32:35], v13, s[{sX}:{sX+3}], s{sT+7} offen")
    A(f"buffer_load_dwordx4 v[36:39], v13, s[{sX}:{sX+3}], s{sT+7} offen offset:1024")
    A(f"buffer_load_dwordx4 v[40:43], v13, s[{sG}:{sG+3}], 0 offen")
    if cfg.wpf:
        A.c("pull this workgroup's 1/256 share of both weight matrices towards the chip")
        A(f"s_cmp_lt_u32 s2, 128")
        A(f"s_cselect_b32 s{sW}, s6, s12")
        A(f"s_cselect_b32 s{sW+1}, s7, s13")
        A(f"s_mov_b32 s{sW+2}, {hex(512*1536*2)}")
        A(f"s_mov_b32 s{sW+3}, 0x20000")
        A(f"s_and_b32 s{sT}, s{sT+6}, 511")
        A(f"s_mul_i32 s{sT}, s{sT}, 3072")
        for i in range(3):
            A(f"buffer_load_dwordx4 v[{48+4*i}:{51+4*i}], v13, s[{sW}:{sW+3}], s{sT} offen offset:{1024*i}")
    if cfg.wpf3: hot_prefetch(A, cfg)
    if cfg.wpf2 % 10 == 1: w_prefetch(A, cfg)
    if cfg.c2c:
        A.c("the otherwise idle compute waves fetch chunk 2")
        A(f"s_cmp_lt_u32 s{sPair}, 16")
        A(f"s_cselect_b32 s{sW}, s6, s12")
        A(f"s_cselect_b32 s{sW+1}, s7, s13")
        A(f"s_mov_b32 s{sW+2}, {hex(512*1536*2)}")
        A(f"s_mov_b32 s{sW+3}, 0x20000")
        A("v_lshrrev_b32 v48, 3, v0")
        A("v_lshlrev_b32 v48, 10, v48")
        A("v_and_b32 v49, 7, v0")
        A("v_lshrrev_b32 v50, 4, v0")
        A("v_xor_b32 v49, v49, v50")
        A("v_lshl_add_u32 v48, v49, 4, v48")
        A("v_xor_b32 v49, 64, v48")
        A(f"s_add_u32 s{sK2}, s{sKC}, 2")
        A(f"s_and_b32 s{sK2}, s{sK2}, 7")
        A(f"s_lshl_b32 s{sXo}, s{sK2}, 7")
        A(f"s_lshl_b32 s{sT}, s{sSlab}, 18")
        A(f"s_add_u32 s{sXo}, s{sXo}, s{sT}")
        A(f"s_lshl_b32 s{sT}, s{sRG}, 16")
        A(f"s_add_u32 s{sXo}, s{sXo}, s{sT}")
        A(f"s_lshl_b32 s{sM}, s{sRG}, 13")
        for i in range(8):
            A(f"s_add_u32 m0, s{sM}, {XB[2] + i*1024}")
            A(f"s_add_u32 s{sT}, s{sXo}, {i*8192}")
            A(f"buffer_load_dwordx4 v{49 if i & 1 else 48}, s[{sX}:{sX+3}], s{sT} offen lds")
        A("v_lshrrev_b32 v50, 2, v0")
        A("v_mul_u32_u24 v50, 3072, v50")
        A("v_and_b32 v51, 3, v0")
        A("v_lshl_add_u32 v50, v51, 4, v50")
        A("v_xor_b32 v51, 32, v50")
        A(f"s_and_b32 s{sT}, s{sPair}, 15")
        A(f"s_lshl_b32 s{sT}, s{sT}, 6")
        A(f"s_mul_i32 s{sT+1}, s{sRG}, 49152")
        A(f"s_add_u32 s{sT}, s{sT}, s{sT+1}")
        A(f"s_mul_i32 s{sT+1}, s{sK2}, 196608")
        A(f"s_mul_i32 s{sM}, s{sRG}, 3072")
        A(f"s_add_u32 m0, s{sM}, {WB + 2*12288}")
        A(f"s_add_u32 s{sT}, s{sT}, s{sT+1}")
        for i in range(3):
            A(f"buffer_load_dwordx4 v{51 if i == 1 else 50}, s[{sW}:{sW+3}], s{sT} offen offset:{i*1024} lds")
    late_srds(A)
    A.c("wave 0 clears this workgroup's hand-off words, then counts the workgroup in")
    A(f"s_cmp_lg_u32 s{sWave}, 0")
    A("s_cbranch_scc1 L_nozero")
    A(f"s_lshl_b32 s{sT}, s{sPair}, 9")
    A(f"s_lshl_b32 s{sT+1}, s{sSlab}, 2")
    A(f"s_add_u32 s{sT}, s{sT}, s{sT+1}")
    A(f"s_add_u32 s{sT}, s{sT}, {WS_F1}")
    A("v_lshlrev_b32 v2, 7, v0")
    A(f"v_add_u32 v2, s{sT}, v2")
    A("v_mov_b32 v4, 0")
    A("s_mov_b64 exec, 0xf")
    A(f"buffer_store_dword v4, v2, s[{sWS}:{sWS+3}], 0 offen sc1")
    A("s_mov_b64 exec, -1")
    A("L_nozero:")
    p2_pre(A, False); p2_pre(A, True)
    A("v_and_b32 v2, 1, v0")
    A(f"v_lshlrev_b32 v{vPoll}, 7, v2")
    A(f"v_mov_b32 v{vZ}, 1")
    p2_addr(A)
    xfrag_addr(A, vXL, vXH, 13)
    A("v_lshrrev_b32 v13, 5, v0")
    A("v_lshlrev_b32 v13, 3, v13")
    A("v_bfe_u32 v14, v0, 2, 2")
    A("v_add_u32 v13, v13, v14")
    A("v_lshlrev_b32 v13, 6, v13")
    A("v_and_b32 v14, 3, v0")
    A("v_lshl_add_u32 v13, v14, 3, v13")
    A(f"v_add_u32 v13, {WB}, v13")
    A("v_bfe_u32 v14, v0, 4, 1")
    A("v_mul_u32_u24 v15, 1056, v14")
    A(f"v_add_u32 v{vWa}, v13, v15")
    A("v_mul_u32_u24 v15, 992, v14")
    A(f"v_add3_u32 v{vWb}, v13, v15, 32")
    A("v_lshl_add_u32 v13, v14, 5, v13")
    A(f"v_add_u32 v{vWv}, 2048, v13")
    def reads(c, j, F):
        if cfg.p1x & 8 and (c, j) != (0, 0): return ["s_nop 0"] * 8
        slot = c % 3
        xr = vXH[j] if slot == 2 else vXL[j]
        xi = XS if slot == 0 else 0
        wi = slot * 12288 + j * 3072
        return [f"ds_read_b128 {v(F,4)}, v{xr} offset:{xi}",
                f"ds_read_b64_tr_b16 {v(F+8,2)}, v{vWa} offset:{wi}",
                f"ds_read_b64_tr_b16 {v(F+10,2)}, v{vWa} offset:{wi+256}",
                f"ds_read_b128 {v(F+4,4)}, v{xr} offset:{xi+4096}",
                f"ds_read_b64_tr_b16 {v(F+12,2)}, v{vWb} offset:{wi}",
                f"ds_read_b64_tr_b16 {v(F+14,2)}, v{vWb} offset:{wi+256}",
                f"ds_read_b64_tr_b16 {v(F+16,2)}, v{vWv} offset:{wi}",
                f"ds_read_b64_tr_b16 {v(F+18,2)}, v{vWv} offset:{wi+256}"]
    def mf(F, first):
        def m(D, a, b):
            if cfg.p1x & 1 and not first: return "s_nop 1"
            if cfg.t16:
                q = 4 * (F != FR[0])
                return (f"v_mfma_f32_16x16x32_bf16 {v(D+q,4)}, {v(a,4)}, {v(b,4)}, {'0' if first else v(D+q,4)}\n"
                        f"v_mfma_f32_16x16x32_bf16 {v(D+8+q,4)}, {v(a,4)}, {v(b,4)}, {'0' if first else v(D+8+q,4)}")
            return f"v_mfma_f32_32x32x16_bf16 {v(D,16)}, {v(a,4)}, {v(b,4)}, {'0' if first else v(D,16)}"
        return [m(ACC['QKa0'], F+8, F), m(ACC['QKa1'], F+8, F+4), m(ACC['QKb0'], F+12, F),
                m(ACC['QKb1'], F+12, F+4), m(ACC['VV0'], F, F+16), m(ACC['VV1'], F+4, F+16)]
    A(f"s_lshl_b32 s{sT+6}, s{sT+6}, 3")
    A(f"s_add_u32 s{sT+6}, s{sT+6}, {WS_G}")
    A("v_lshrrev_b32 v13, 5, v0")
    A("v_lshlrev_b32 v13, 2, v13")
    A("v_mov_b32 v44, 0")
    A("v_mov_b32 v45, 0")
    if cfg.l2pf == 1: l2_prefetch(A, cfg)
    A(f"s_waitcnt vmcnt({(3 if cfg.wpf else (2 if cfg.l2pf == 1 else (1 if (cfg.wpf2 % 10 == 1 or cfg.wpf3) else (11 if cfg.c2c else 0))))})")
    if cfg.zearly == 1:
        assert not (cfg.wpf or cfg.l2pf or cfg.wpf2 or cfg.wpf3 or cfg.c2c)
        A.c("wave 0: its clears are acknowledged -> count this workgroup in")
        A(f"s_cmp_lg_u32 s{sWave}, 0")
        A("s_cbranch_scc1 L_noz0")
        A(f"s_and_b32 s{sT}, s2, 1")
        A(f"s_lshl_b32 s{sT}, s{sT}, 7")
        A("s_mov_b64 exec, 1")
        A(f"buffer_atomic_add v{vZ}, off, s[{sDBG}:{sDBG+3}], s{sT}")
        A("s_mov_b64 exec, -1")
        A("L_noz0:")
    if cfg.l2pf == 2: l2_prefetch(A, cfg)
    if cfg.wpf2 % 10 == 2: w_prefetch(A, cfg)
    for i in range(4):
        A(f"v_dot2_f32_bf16 v44, v{32+i}, v{40+i}, v44")
        A(f"v_dot2_f32_bf16 v45, v{36+i}, v{40+i}, v45")
    A("s_nop 2")
    A("v_permlane32_swap_b32 v44, v45")
    A("v_add_f32 v44, v44, v45")
    A("v_mov_b32 v45, v44")
    A("s_nop 1")
    A("v_permlane16_swap_b32 v44, v45")
    A("v_add_f32 v44, v44, v45")
    for ctl in ("quad_perm:[1,0,3,2]", "quad_perm:[2,3,0,1]", "row_half_mirror", "row_mirror"):
        A("s_nop 1")
        A(f"v_add_f32_dpp v44, v44, v44 {ctl} row_mask:0xf bank_mask:0xf")
    A(f"v_mul_f32 v44, {fbits(-LOG2E)}, v44")
    A("v_exp_f32 v44, v44")
    A("s_nop 0")
    A("v_add_f32 v44, 1.0, v44")
    A("v_rcp_f32 v44, v44")
    A("s_mov_b32 exec_lo, 1")
    A("s_mov_b32 exec_hi, 1")
    A(f"buffer_store_dword v44, v13, s[{sWS}:{sWS+3}], s{sT+6} offen sc1")
    A("s_mov_b64 exec, -1")
    if cfg.wpf: A("s_waitcnt vmcnt(1)")
    A("s_barrier")
    stamp(A, cfg, 1)
    for r in reads(0, 0, FR[0]): A(r)
    def wave0_block(n):
        if n == cfg.n_add and cfg.zearly != 1 and not cfg.noz:
            A(f"s_cmp_lg_u32 s{sWave}, 0")
            A("s_cbranch_scc1 L_noz0")
            A("s_mov_b64 exec, 1")
            A(f"buffer_atomic_add v{vZ}, off, s[{sDBG}:{sDBG+3}], s{sZp}")
            A("s_mov_b64 exec, -1")
            A("L_noz0:")
        if n == cfg.n_z and not cfg.noz and not cfg.zld:
            A(f"s_cmp_lg_u32 s{sWave}, 0")
            A("s_cbranch_scc1 L_noz1")
            A(ZLOAD)
            A("L_noz1:")
    if cfg.p1pipe == 0:
        for n in range(32):
            c, j = divmod(n, 4)
            M = mf(FR[n & 1], n == 0)
            A("s_waitcnt lgkmcnt(0)" if (n != 7 or cfg.zearly) else "s_waitcnt vmcnt(0) lgkmcnt(0)")
            if n == 31:
                for m in M: A(m)
                break
            if j == 3: A("s_barrier")
            c2, j2 = divmod(n + 1, 4)
            R = reads(c2, j2, FR[(n + 1) & 1])
            A(M[0]); A(R[0]); A(R[1]); A(R[2])
            A(M[1]); A(R[3]); A(R[4]); A(R[5])
            A(M[2]); A(R[6]); A(R[7])
            A(M[3])
            wave0_block(n)
            A(M[4]); A(M[5])
    else:
        for n in range(32):
            c, j = divmod(n, 4)
            M = mf(FR[n & 1], n == 0)
            last = n == 31
            c2, j2 = divmod(n + 1, 4)
            R = [""] * 8 if last else reads(c2, j2, FR[(n + 1) & 1])
            k = 0 if last else 3
            A("s_waitcnt lgkmcnt(5)")
            A(M[0])
            A("s_waitcnt lgkmcnt(4)")
            A(M[1])
            if n == 7: A("s_waitcnt vmcnt(0)")
            if j == 3 and not last: A("s_barrier")
            for x in R[0:3]: A(x)
            A(f"s_waitcnt lgkmcnt({2 + k})")
            A(M[2])
            for x in R[3:6]: A(x)
            A(M[3])
            wave0_block(n)
            A(f"s_waitcnt lgkmcnt({2*k})")
            if j == 3 and not last: A("s_barrier")
            A(M[4])
            for x in R[6:8]: A(x)
            A(M[5])

def p1_compute_epilogue(A, cfg):
    A.c("---- phase 1 epilogue: round K/V, publish them (write-through) and keep them in LDS")
    A(f"s_lshl_b32 s{sT}, s{sPair}, 3")
    A(f"s_add_u32 s{sT}, s{sT}, s{sSlab}")
    A(f"s_lshl_b32 s{sT}, s{sT}, 15")
    A(f"s_lshl_b32 s{sT+1}, s{sRG}, 12")
    A(f"s_add_u32 s{sT}, s{sT}, s{sT+1}")
    A(f"s_add_u32 s{sT+1}, s{sT}, 16384")
    A("v_bfe_u32 v13, v0, 4, 1")
    A("v_lshrrev_b32 v14, 5, v0")
    A("v_and_b32 v15, 15, v0")
    A("v_lshlrev_b32 v15, 4, v15")
    A("v_lshl_add_u32 v15, v14, 8, v15")
    A("v_add_u32 v15, 1024, v15")
    A("v_lshl_add_u32 v3, v13, 14, v15")
    A(f"s_mul_i32 s{sT+2}, s{sRG}, {2*REC}")
    A(f"s_add_u32 s{sT+2}, s{sT+2}, {SB}")
    A(f"v_add_u32 v4, s{sT+2}, v{vKP if cfg.sm else vL16}")
    A(f"v_mul_u32_u24 v13, {HSTR}, v13")
    A(f"v_add3_u32 v5, v13, v15, s{sT+2}")
    if not cfg.zld:
        A.c("wave 0: every workgroup has cleared its hand-off words (checked before any flag is read)")
        A(f"s_cmp_lg_u32 s{sWave}, 0")
        A("s_cbranch_scc1 L_noz2")
        A(f"s_movk_i32 s{sT+3}, 128")
        if not cfg.noz: spin(A, "z", ZLOAD, vZ, f"s{sT+3}", "gt")
        A("L_noz2:")
    def cvt(dst, src):
        for i in range(4):
            A(f"v_cvt_pk_bf16_f32 v{dst+i}, v{src+2*i}, v{src+2*i+1}")
    if cfg.epi2:
        tmp = [128, 132, 136, 140, 144, 148, 152, 156]
        A(f"s_mov_b32 s{sT+4}, {fbits(QSCALE)}")
        A(f"s_mov_b32 s{sT+5}, {fbits(QSCALE)}")
        A(f"s_lshl_b32 s{sT+6}, s{sRG}, 11")
        A(f"s_add_u32 s{sT+6}, s{sT+6}, {QX}")
        A(f"v_add_u32 v6, s{sT+6}, v{vL16}")
        items = []
        for hd, names in ((0, ("QKa0", "QKa1")), (1, ("QKb0", "QKb1"))):
            for t in (0, 1):
                items.append((ACC[names[t]] + 8, f"v{vKP if cfg.sm else vL16}, s[{sWS}:{sWS+3}], s{sT+hd} offen offset:{t*2048}", "v4", hd*HSTR + t*REC))
        for t in (0, 1):
            for a in (0, 1):
                items.append((ACC[f"VV{t}"] + 8 * a, f"v3, s[{sWS}:{sWS+3}], s{sT} offen offset:{t*2048 + a*512}", "v5", t*REC + a*512))
        qs = [("QKb0", 16, 0), ("QKb1", 20, 1024), ("QKa0", vQ[0], None), ("QKa1", vQ[1], None)]
        for k, (src, gaddr, laddr, loff) in enumerate(items):
            cvt(tmp[k], src)
            A(f"buffer_store_dwordx4 {v(tmp[k],4)}, {gaddr} sc1")
            A(f"ds_write_b128 {laddr}, {v(tmp[k],4)} offset:{loff}")
            nm, dst, qoff = qs[k >> 1]
            q = ACC[nm]
            if k & 1 == 0:
                for i in range(4): A(f"v_pk_mul_f32 {v(q+2*i,2)}, {v(q+2*i,2)}, s[{sT+4}:{sT+5}]")
            else:
                cvt(dst, q)
                if qoff is not None: A(f"ds_write_b128 v6, {v(dst,4)} offset:{qoff}")
    else:
        tmp = [128, 132, 136, 140, 144, 148, 152, 156]
        if cfg.epist: stamp(A, cfg, 3)
        k = 0
        for hd, names in ((0, ("QKa0", "QKa1")), (1, ("QKb0", "QKb1"))):
            for t in (0, 1):
                cvt(tmp[k], ACC[names[t]] + 8)
                A(f"buffer_store_dwordx4 {v(tmp[k],4)}, v{vL16}, s[{sWS}:{sWS+3}], s{sT+hd} offen offset:{t*2048} sc1")
                k += 1
        if cfg.epist: stamp(A, cfg, 4)
        for t in (0, 1):
            for a in (0, 1):
                cvt(tmp[k], ACC[f"VV{t}"] + 8 * a)
                A(f"buffer_store_dwordx4 {v(tmp[k],4)}, v3, s[{sWS}:{sWS+3}], s{sT} offen offset:{t*2048 + a*512} sc1")
                k += 1
        if cfg.epist: stamp(A, cfg, 5)
        k = 0
        for hd in (0, 1):
            for t in (0, 1):
                A(f"ds_write_b128 v4, {v(tmp[k],4)} offset:{hd*HSTR + t*REC}"); k += 1
        for t in (0, 1):
            for a in (0, 1):
                A(f"ds_write_b128 v5, {v(tmp[k],4)} offset:{t*REC + a*512}"); k += 1
        if cfg.epist: stamp(A, cfg, 6)
        A(f"s_mov_b32 s{sT+4}, {fbits(QSCALE)}")
        A(f"s_mov_b32 s{sT+5}, {fbits(QSCALE)}")
        A(f"s_lshl_b32 s{sT+2}, s{sRG}, 11")
        A(f"s_add_u32 s{sT+2}, s{sT+2}, {QX}")
        A(f"v_add_u32 v4, s{sT+2}, v{vL16}")
        for hd, names in ((1, ("QKb0", "QKb1")), (0, ("QKa0", "QKa1"))):
            for t in (0, 1):
                q = ACC[names[t]]
                for i in range(4):
                    A(f"v_pk_mul_f32 {v(q+2*i,2)}, {v(q+2*i,2)}, s[{sT+4}:{sT+5}]")
                dst = vQ[t] if hd == 0 else 16 + 4 * t
                cvt(dst, q)
                if hd == 1: A(f"ds_write_b128 v4, {v(dst,4)} offset:{t*1024}")
    if cfg.epist: stamp(A, cfg, 7)
    A("s_waitcnt lgkmcnt(0)")
    if cfg.epist: stamp(A, cfg, 8)
    A("s_barrier")
    if cfg.epist:
        stamp(A, cfg, 9)
        A("s_waitcnt vmcnt(0)")
        stamp_store(A, cfg, 10)
        A("s_endpgm")
    A.c("K/V stores acknowledged -> raise this wave's flag")
    A(f"v_mov_b32 v{vZ}, 1")
    A(f"s_lshl_b32 s{sJ}, s{sSlab}, 2")
    A(f"s_add_u32 s{sJ}, s{sJ}, s{sF}")
    lstamp(A, cfg, 46)
    if cfg.c1c:
        A(F1LOAD)
        p2_setup(A, cfg)
        A(f"s_lshl_b32 s{sT}, s{sSlab}, 2")
        A(f"v_cmp_eq_u32 s[{sT+2}:{sT+3}], s{sT}, v{vPA}")
        A("s_waitcnt vmcnt(3)")
    else:
        A("s_waitcnt vmcnt(0)")
    A("s_mov_b64 exec, 1")
    A(f"buffer_store_dword v{vZ}, off, s[{sWS}:{sWS+3}], s{sJ} sc1")
    A("s_mov_b64 exec, -1")
    lstamp(A, cfg, 47)
    if cfg.c1c:
        A("s_waitcnt vmcnt(3)")
        A(f"v_cmp_ne_u32 vcc, 1, v{vPoll}")
        A(f"s_mov_b32 s{sSpin}, {SPIN_MAX}")
        A(f"s_andn2_b64 s[{sT+4}:{sT+5}], vcc, s[{sT+2}:{sT+3}]")
        A("s_cbranch_scc1 L_f1c")
        A("L_f1c_ret:")
        T = Asm()
        T("L_f1c:")
        T(F1LOAD)
        T(f"s_sub_u32 s{sSpin}, s{sSpin}, 1")
        T("s_cbranch_scc1 L_f1c_ret")
        T("s_waitcnt vmcnt(0)")
        T(f"v_cmp_ne_u32 vcc, 1, v{vPoll}")
        T("s_nop 0")
        T(f"s_andn2_b64 s[{sT+4}:{sT+5}], vcc, s[{sT+2}:{sT+3}]")
        T("s_cbranch_scc1 L_f1c")
        T("s_branch L_f1c_ret")
        tails.append(T)
        lstamp(A, cfg, 49)
        for x in kv_setup(1): A(x)
        for job in kv_jobs(1):
            for x in job: A(x)
        A(f"s_add_u32 s{sCO}, s{sCO}, 16384")
        for job in kv_jobs(1, -1):
            for x in job: A(x)

def p1_loader(A, cfg):
    A.c("---- phase 1, loader waves: LDS-DMA of x / W chunks")
    if cfg.p1prio == 2: A("s_setprio 1")
    A("v_lshrrev_b32 v13, 3, v0")
    A("v_lshlrev_b32 v13, 10, v13")
    A("v_and_b32 v14, 7, v0")
    A("v_lshrrev_b32 v15, 4, v0")
    A("v_xor_b32 v14, v14, v15")
    A("v_lshl_add_u32 v13, v14, 4, v13")
    A("v_xor_b32 v14, 64, v13")
    for i in range(8):
        A(f"v_add_u32 v{2+i}, {i*8192 - (i&3)*1024}, v{14 if i & 1 else 13}")
    A(f"s_lshl_b32 s{sXb}, s{sSlab}, 18")
    A(f"s_lshl_b32 s{sT}, s{sRG}, 16")
    A(f"s_add_u32 s{sXb}, s{sXb}, s{sT}")
    def issue_x(c):
        slot = c % 3
        A(f"s_add_u32 s{sK2}, s{sKC}, {c}")
        A(f"s_and_b32 s{sK2}, s{sK2}, 7")
        A(f"s_lshl_b32 s{sXo}, s{sK2}, 7")
        A(f"s_lshl_b32 s{sM}, s{sRG}, 13")
        A(f"s_add_u32 m0, s{sM}, {XB[slot]}")
        A(f"s_add_u32 s{sXo}, s{sXo}, s{sXb}")
        for i in range(8):
            if i == 4:
                A(f"s_add_u32 m0, s{sM}, {XB[slot] + 4096}")
                A("s_nop 0")
            A(f"buffer_load_dwordx4 v{2+i}, s[{sX}:{sX+3}], s{sXo} offen offset:{(i&3)*1024} lds")
    def issue_w(c):
        slot = c % 3
        A(f"s_mul_i32 s{sM}, s{sRG}, 3072")
        A(f"s_mul_i32 s{sWo}, s{sK2}, 196608")
        A(f"s_add_u32 m0, s{sM}, {WB + slot*12288}")
        A(f"s_add_u32 s{sWo}, s{sWo}, s{sWb_}")
        for i in range(3):
            A(f"buffer_load_dwordx4 v{11 if i == 1 else 10}, s[{sW}:{sW+3}], s{sWo} offen offset:{i*1024} lds")
    def pf_setup():
        assert cfg.lr == 2
        A(f"s_and_b32 s{sT}, s{sPair}, 7")
        A(f"s_lshl_b32 s{sT}, s{sT}, 15")
        A(f"s_lshl_b32 s{sT+1}, s{sRG}, 13")
        A(f"s_add_u32 s{sT}, s{sT}, s{sT+1}")
        A(f"s_lshl_b32 s{sT+1}, s{sSlab}, 18")
        A(f"s_add_u32 s{sT}, s{sT}, s{sT+1}")
        A(f"s_add_u32 s12, s{sX}, s{sT}")
        A(f"s_addc_u32 s13, s{sX+1}, 0")
        A(f"s_and_b32 s{sT}, s{sSlab}, 3")
        A(f"s_lshl_b32 s{sT}, s{sT}, 1")
        A(f"s_and_b32 s{sT+1}, s{sPair}, 1")
        A(f"s_add_u32 s{sT}, s{sT}, s{sT+1}")
        A(f"s_lshl_b32 s{sT}, s{sT}, 2")
        A(f"s_add_u32 s{sT}, s{sT}, s{sRG}")
        A(f"s_mul_i32 s{sT}, s{sT}, 6144")
        A(f"s_and_b32 s{sT+1}, s{sPair}, 14")
        A(f"s_lshl_b32 s{sT+1}, s{sT+1}, 6")
        A(f"s_add_u32 s{sT}, s{sT}, s{sT+1}")
        A(f"s_add_u32 s16, s{sW}, s{sT}")
        A(f"s_addc_u32 s17, s{sW+1}, 0")
    def pf(c):
        if not cfg.spf or c > 7: return
        A(f"s_add_u32 s{sT}, s{sKC}, {c}")
        A(f"s_and_b32 s{sT}, s{sT}, 7")
        A(f"s_mul_i32 s{sT+1}, s{sT}, 196608")
        A(f"s_lshl_b32 s{sT}, s{sT}, 7")
        if cfg.spfw != 2:
            for e in range(6): A(f"s_load_dword s10, s[16:17], s{sT+1} offset:{1024*e}")
        if cfg.spfw != 1:
            for e in range(8): A(f"s_load_dword s10, s[12:13], s{sT} offset:{1024*e}")
    def issue(c):
        if cfg.wfirst:
            A(f"s_add_u32 s{sK2}, s{sKC}, {c}")
            A(f"s_and_b32 s{sK2}, s{sK2}, 7")
            issue_w(c); issue_x(c)
        else:
            issue_x(c); issue_w(c)
    if cfg.rot in (16, 17, 18):
        A(f"s_and_b32 s{sT+1}, s{sPair}, 3")
        A(f"s_lshl_b32 s{sT+1}, s{sT+1}, 1")
        A(f"s_and_b32 s{sT+3}, s2, 1")
        A(f"s_add_u32 s{sT+1}, s{sT+1}, s{sT+3}")
        if cfg.rot == 16:
            A(f"s_lshr_b32 s{sT+2}, s{sPair}, 1")
            A(f"s_add_u32 s{sT+2}, s{sT+2}, s{sSlab}")
            A(f"s_lshl_b32 s{sT+2}, s{sT+2}, 1")
            A(f"s_add_u32 s{sT+2}, s{sT+2}, s{sT+3}")
        elif cfg.rot == 17:
            A(f"s_lshl_b32 s{sT+2}, s{sSlab}, 1")
            A(f"s_add_u32 s{sT+2}, s{sT+2}, s{sPair}")
        else:
            A(f"s_add_u32 s{sT+2}, s{sPair}, s{sSlab}")
            A(f"s_lshl_b32 s{sT+2}, s{sT+2}, 1")
            A(f"s_add_u32 s{sT+2}, s{sT+2}, s{sT+3}")
    if cfg.rot >= 19:
        A(f"s_lshr_b32 s{sT+1}, s{sPair}, 1")
        A(f"s_add_u32 s{sT+1}, s{sT+1}, s{sSlab}")
        if cfg.rot == 19: A(f"s_and_b32 s{sT+1}, s{sT+1}, 3")
        if cfg.rot == 20:
            A(f"s_and_b32 s{sT+1}, s{sT+1}, 1")
            A(f"s_lshl_b32 s{sT+1}, s{sT+1}, 1")
        if cfg.rot == 21:
            A(f"s_and_b32 s{sT+1}, s{sT+1}, 3")
            A(f"s_lshl_b32 s{sT+1}, s{sT+1}, 1")
            A(f"s_min_u32 s{sT+1}, s{sT+1}, 5")
        if cfg.rot == 22:
            A(f"s_and_b32 s{sT+1}, s{sT+1}, 3")
            A(f"s_mul_i32 s{sT+1}, s{sT+1}, 3")
            A(f"s_lshr_b32 s{sT+1}, s{sT+1}, 1")
        if cfg.rot == 23:
            A(f"s_and_b32 s{sT+1}, s{sT+1}, 1")
            A(f"s_mul_i32 s{sT+1}, s{sT+1}, 3")
        A(f"s_add_u32 s{sT+1}, s{sT+1}, 4")
    A("s_waitcnt lgkmcnt(0)")
    if cfg.rot >= 19:
        A(f"s_lshr_b32 s{sT+2}, s4, 7")
        A(f"s_sub_u32 s{sKC}, s{sT+1}, s{sT+2}")
        A(f"s_and_b32 s{sKC}, s{sKC}, 7")
    if cfg.rot in (16, 17, 18):
        A(f"s_cmp_lt_u32 s{sPair}, 16")
        A(f"s_cselect_b32 s{sT+4}, s6, s12")
        A(f"s_lshr_b32 s{sT+4}, s{sT+4}, 7")
        A(f"s_lshr_b32 s{sT+5}, s{sPair}, 1")
        A(f"s_add_u32 s{sT+4}, s{sT+4}, s{sT+5}")
        A(f"s_and_b32 s{sT+4}, s{sT+4}, 7")
        A(f"s_cmp_eq_u32 s{sT+4}, 3")
        A(f"s_cselect_b32 s{sKC}, s{sT+2}, s{sT+1}")
        A(f"s_and_b32 s{sKC}, s{sKC}, 7")
    srd(A, sX, 4, 5, 2048 * 512 * 2)
    lstamp(A, cfg, 1)
    issue_x(0)
    lstamp(A, cfg, 2)
    A(f"s_cmp_lt_u32 s{sPair}, 16")
    A(f"s_cselect_b32 s{sW}, s6, s12")
    A(f"s_cselect_b32 s{sW+1}, s7, s13")
    A(f"s_mov_b32 s{sW+2}, {hex(512*1536*2)}")
    A(f"s_mov_b32 s{sW+3}, 0x20000")
    A(f"s_and_b32 s{sWb_}, s{sPair}, 15")
    A(f"s_lshl_b32 s{sWb_}, s{sWb_}, 6")
    A(f"s_mul_i32 s{sT}, s{sRG}, 49152")
    A(f"s_add_u32 s{sWb_}, s{sWb_}, s{sT}")
    if cfg.wfull:
        A("v_lshrrev_b32 v13, 3, v0")
        A("v_mul_u32_u24 v13, 3072, v13")
        A("v_and_b32 v14, 7, v0")
        A(f"s_and_b32 s{sWb_}, s{sWb_}, 0xffffff80")
    else:
        A("v_lshrrev_b32 v13, 2, v0")
        A("v_mul_u32_u24 v13, 3072, v13")
        A("v_and_b32 v14, 3, v0")
    A("v_lshl_add_u32 v10, v14, 4, v13")
    A("v_xor_b32 v11, 32, v10")
    issue_w(0)
    if cfg.spf and cfg.spfe:
        pf_setup()
        for c in range(2, 2 + cfg.spf): pf(c)
    if cfg.late1 == 1: A("s_waitcnt vmcnt(3)")
    if cfg.late1 == 2: A("s_waitcnt vmcnt(8)")
    if cfg.late1 == 3: A("s_waitcnt vmcnt(10)")
    issue(1)
    if cfg.spf and not cfg.spfe:
        pf_setup()
        for c in range(2, 2 + cfg.spf): pf(c)
    lstamp(A, cfg, 3)
    late_srds(A)
    p2_addr(A)
    p2_pre(A, False)
    A(f"v_mov_b32 v{vZ}, 1")
    for c in range(8):
        lstamp(A, cfg, 4 + 3*c)
        A(f"s_waitcnt vmcnt({0 if (cfg.c2c and c == 1) else ((11 if c < 7 else 0) if not (cfg.p1x & 2) else 0)})")
        lstamp(A, cfg, 5 + 3*c)
        A("s_barrier")
        lstamp(A, cfg, 6 + 3*c)
        if c == 0: stamp(A, cfg, 1)
        if cfg.p1pipe and c >= 1: A("s_barrier")
        if c <= 5 and not (cfg.p1x & 2) and not (cfg.c2c and c == 0):
            pf(c + 2 + cfg.spf)
            issue(c + 2)
        if c <= 5 and cfg.p1x & 4:
            for _ in range(0): pass
    if cfg.zld:
        A.c("wave 4: every workgroup has cleared its hand-off words (checked before any flag is read)")
        A(f"s_cmp_lg_u32 s{sWave}, 4")
        A("s_cbranch_scc1 L_noz2")
        A(ZLOAD)
        A("L_noz2:")
    p2_pre(A, True)
    consts(A, [SB, SC])
    if cfg.zld:
        A(f"s_cmp_lg_u32 s{sWave}, 4")
        A("s_cbranch_scc1 L_noz3")
        spin(A, "z", ZLOAD, vZ, 8, "gt", 4)
        A("L_noz3:")
    A(f"v_add_u32 v104, {(SA - SB) % (1 << 32)}, v104")
    A("s_waitcnt lgkmcnt(0)")
    A(f"s_lshl_b32 s{sT+2}, s{sRG}, 11")
    A(f"s_add_u32 s{sT+2}, s{sT+2}, {QX}")
    A(f"v_add_u32 v4, s{sT+2}, v{vL16}")
    A("s_barrier")
    if cfg.epist: A("s_endpgm")
    if not cfg.uni and cfg.t_load < 0: A(F1LOAD)
    A("ds_read_b128 v[8:11], v4")
    A("ds_read_b128 v[12:15], v4 offset:1024")
    A("s_mov_b64 exec, 0xffff")
    A("ds_write_b128 v104, v[108:111] offset:2048")
    A("ds_write_b128 v104, v[112:115] offset:2064")
    A("s_mov_b64 exec, -1")

vKf, vV0f, vV1f = 16, 20, 24
S_, O_, P_ = [32, 48], [64, 80], 96
M32 = "v_mfma_f32_32x32x16_bf16"
def slot_base(i): return (SB, SC, SA)[i % 3]

def p2_setup(A, cfg, now=False):
    if cfg.zearly and not now: return
    A(f"buffer_load_dword v{vGF[0]}, v{vGA}, s[{sWS}:{sWS+3}], s{sGo} offen sc1")
    A(f"buffer_load_dword v{vGF[1]}, v{vGA}, s[{sWS}:{sWS+3}], s{sGo} offen offset:128 sc1")

def p2_pre(A, own_temps):
    if not own_temps:
        A(f"v_and_b32 v{vGA}, 31, v0")
        A(f"v_lshlrev_b32 v{vGA}, 2, v{vGA}")
        A(f"s_lshl_b32 s{sGo}, s{sSlab}, 10")
        A(f"s_lshl_b32 s{sT+1}, s{sRG}, 8")
        A(f"s_add_u32 s{sGo}, s{sGo}, s{sT+1}")
        A(f"s_add_u32 s{sGo}, s{sGo}, {WS_G}")
        for i in range(4): A(f"v_mov_b32 v{vFill+i}, -1")
        for i in range(4): A(f"v_mov_b32 v{vZero+i}, 0")
        A(f"v_mov_b32 v{vIdx}, 0xdddd")
        A(f"v_and_b32 v{vKP}, 0x33, v0")
        A(f"v_bfe_u32 v{vZA}, v0, 2, 1")
        A(f"v_lshl_or_b32 v{vKP}, v{vZA}, 3, v{vKP}")
        A(f"v_bfe_u32 v{vZA}, v0, 3, 1")
        A(f"v_lshl_or_b32 v{vKP}, v{vZA}, 2, v{vKP}")
        A(f"v_lshlrev_b32 v{vKP}, 4, v{vKP}")
        A(f"v_and_b32 v{vZA}, 1, v0")
        A(f"v_lshlrev_b32 v{vZA}, 7, v{vZA}")
        A(f"v_mov_b32 v{vZ2}, 128")
        return
    A(f"s_lshl_b32 s{sCH}, s{sPair}, 18")
    A(f"s_lshl_b32 s{sT+1}, s{sWave}, 12")
    A(f"s_add_u32 s{sCH}, s{sCH}, s{sT+1}")
    A(f"s_mul_i32 s{sMB}, s{sWave}, {2*REC}")
    A(f"s_lshl_b32 s{sWoG}, s{sWave}, 13")
    A(f"s_lshl_b32 s{sT+1}, s{sC3}, 7")
    A(f"s_add_u32 s{sWoG}, s{sWoG}, s{sT+1}")
    A(f"s_lshl_b32 s{sWoM}, s{sWave}, 10")
    A(f"s_andn2_b32 s{sT+1}, 4, s{sSlab}")
    A(f"s_lshl_b32 s{sT+1}, s{sT+1}, 15")
    A(f"s_add_u32 s{sCHx}, s{sCH}, s{sT+1}")

ORDER = [0]
sCHx = 12
def kv_setup(i):
    if ORDER[0]:
        if i <= 4: return [f"s_add_u32 s{sCO}, s{sCHx}, {(i - 1) << 15}"]
        return [f"s_add_u32 s{sCO}, s{sSlab}, {i - 4}", f"s_and_b32 s{sCO}, s{sCO}, 3", f"s_and_b32 s{sJ}, s{sSlab}, 4",
                f"s_or_b32 s{sCO}, s{sCO}, s{sJ}", f"s_lshl_b32 s{sCO}, s{sCO}, 15", f"s_add_u32 s{sCO}, s{sCO}, s{sCH}"]
    return [f"s_add_u32 s{sCO}, s{sSlab}, {i}", f"s_and_b32 s{sCO}, s{sCO}, 7",
            f"s_lshl_b32 s{sCO}, s{sCO}, 15", f"s_add_u32 s{sCO}, s{sCO}, s{sCH}"]
def kv_jobs(i, other=False):
    base = slot_base(i) - (HSTR * int(other))
    ld = lambda o: f"buffer_load_dwordx4 v{vL16}, s[{sWS}:{sWS+3}], s{sCO} offen offset:{o} sc1 lds"
    return [[f"s_add_u32 m0, s{sMB}, {base}", "s_nop 0", ld(0)], [ld(1024)],
            [f"s_add_u32 m0, s{sMB}, {base + REC - 2048}", "s_nop 0", ld(2048)], [ld(3072)]]
def wo_job(j):
    srd_ = sWOA if j < 8 else sWOB
    return [f"s_add_u32 m0, s{sWoM}, {WO + j*8192}", f"s_add_u32 s{sJ}, s{sWoG}, {(j&7)*65536}",
            f"buffer_load_dwordx4 v{vWoD}, s[{srd_}:{srd_+3}], s{sJ} offen lds"]

def rd(kind, i, t):
    if t == 8: i, t = i + 1, 0
    hi = slot_base(i) == SC
    imm = (0 if hi else slot_base(i)) + t * REC
    if kind == 'K': return f"ds_read_b128 {v(vKf,4)}, v{vKH if hi else vKL} offset:{imm}"
    if kind == 'V0': return f"ds_read_b128 {v(vV0f,4)}, v{vV0H if hi else vV0L} offset:{imm}"
    return f"ds_read_b128 {v(vV1f,4)}, v{vV1H if hi else vV1L} offset:{imm}"

def unit(A, q, first, last, slotA, slotB, slotC, first_o, order=0):
    S, Sn, O, Op = S_[q], S_[q ^ 1], O_[q], O_[q ^ 1]
    e = lambda i: A(f"v_exp_f32 v{S+i}, v{S+i}")
    c = lambda i: A(f"v_cvt_pk_bf16_f32 v{P_+i}, v{S+2*i}, v{S+2*i+1}")
    def run(sl):
        for x in sl:
            if callable(x): x(A)
            else: A(x)
    if not SMUSE[0]:
        e(0)
        if not first: A(f"v_cvt_pk_bf16_f32 v{P_+7}, v{Sn+14}, v{Sn+15}")
        e(1); e(2)
    sw = (lambda a, b: f"{b}, {a}") if PVSWAP[0] else (lambda a, b: f"{a}, {b}")
    if not SMUSE[0]:
        if not first: A(f"{M32} {v(Op,16)}, {sw(v(vV1f,4), v(P_+4,4))}, {v(Op,16)}")
        run(slotA)
    if SMUSE[0]:
        qk = lambda: None if last else A(f"{M32} {v(Sn,16)}, {v(vKf,4)}, {v(vQ[q^1],4)}, {SHIFT[0]}")
        pos = {1: (1, 4, 9), 2: (2, 4, 10), 3: (1, 3, 9)}[SMUSE[0]]
        for i in range(16):
            e(i)
            if i == pos[0]:
                if not first: A(f"{SM} {v(Op,16)}, {v(vV1f,4)}, {v(Sn+8,8)}, v{vIdx}")
                run(slotA)
            if i == pos[1]: qk(); run(slotB)
            if i == pos[2]:
                A(f"{SM} {v(O,16)}, {v(vV0f,4)}, {v(S,8)}, v{vIdx}")
                run(slotC)
        return
    qk = lambda: None if last else A(f"{M32} {v(Sn,16)}, {v(vKf,4)}, {v(vQ[q^1],4)}, 0")
    pv = lambda: A(f"{M32} {v(O,16)}, {sw(v(vV0f,4), v(P_,4))}, {'0' if first_o else v(O,16)}")
    if order == 0:
        c(0); e(3); e(4); c(1); e(5); e(6)
        qk(); run(slotB)
        c(2); e(7); e(8); c(3); e(9); e(10)
        pv(); run(slotC)
        c(4); e(11); e(12); c(5); e(13); e(14); c(6); e(15)
    elif order == 1:
        c(0); e(3); e(4); c(1); e(5); e(6); c(2); e(7)
        qk(); run(slotB)
        e(8); c(3); e(9); e(10); c(4); e(11); e(12)
        pv(); run(slotC)
        c(5); e(13); e(14); c(6); e(15)
    elif order == 2:
        c(0); e(3); e(4)
        qk(); run(slotB)
        c(1); e(5); e(6); c(2); e(7); e(8); c(3); e(9); e(10)
        pv(); run(slotC)
        c(4); e(11); e(12); c(5); e(13); e(14); c(6); e(15)

def p2_main(A, cfg):
    A.c("---- phase 2: attention.  P = exp2(S) with no shift; the row sums ride in the PV MFMA (ones rows);")
    A.c("     they are range-checked afterwards and the true-max path redoes the wave when they are out of range")
    jobs = {}; jobs0 = {}
    def add(i, t, xs): jobs.setdefault((i, t), []).extend(xs)
    for i in range(8):
        if cfg.prio == 1:
            for t, pr in ((1, 2), (3, 1), (5, 0), (7, 3)): add(i, t, [f"s_setprio {pr}"])
        if cfg.prio == 2:
            for t, pr in ((0, 2), (2, 1), (5, 0), (7, 3)): add(i, t, [f"s_setprio {pr}"])
        if cfg.prio == 3:
            for t, pr in ((2, 2), (4, 1), (6, 0), (7, 3)): add(i, t, [f"s_setprio {pr}"])
        if cfg.prio >= 100:
            pp = cfg.prio0 if i == 0 else cfg.prio
            drops = [(pp >> 8) & 15, (pp >> 4) & 15, pp & 15]
            for u, pr in zip(drops, (2, 1, 0)):
                if u & 1: add(i, u >> 1, [f"s_setprio {pr}"])
                else: jobs0.setdefault((i, u >> 1), []).append(f"s_setprio {pr}")
            add(i, 7, ["s_setprio 3"])
    def first_chunks(i, nm):
        def f(A):
            A(f"s_cmp_lt_u32 s{sWave}, 4")
            A(f"s_cbranch_scc1 L_skip_{nm}")
            if i == 1 or cfg.c1c:
                lstamp(A, cfg, 48)
                spin(A, "f1", F1LOAD, vPoll, 1)
                lstamp(A, cfg, 49)
            for x in kv_setup(i): A(x)
            for job in kv_jobs(i):
                for x in job: A(x)
            A(f"s_sub_u32 s{sCO}, s{sCO}, 16384")
            for job in kv_jobs(i, True):
                for x in job: A(x)
            A(f"L_skip_{nm}:")
        return f
    if cfg.uni:
        add(0, cfg.uni - 1, [F1LOAD])
        add(0, cfg.uni, [lambda A: lstamp(A, cfg, 48), lambda A: spin(A, "f1", F1LOAD, vPoll, 1), lambda A: lstamp(A, cfg, 49)]
            + kv_setup(1) + sum(kv_jobs(1), []))
    else:
        if cfg.t_load >= 0:
            add(0, cfg.t_load, [f"s_cmp_lt_u32 s{sWave}, 4", "s_cbranch_scc1 L_nopoll", F1LOAD, "L_nopoll:"])
        if not cfg.c1c: add(0, cfg.t_poll, [first_chunks(1, "c1")])
        add(0, cfg.t_c2, [first_chunks(2, "c2")])
    if cfg.uni:
        add(0, 6, [lambda A: lstamp(A, cfg, 50), "s_waitcnt vmcnt(0)", lambda A: lstamp(A, cfg, 51), "s_barrier", lambda A: lstamp(A, cfg, 52)])
    elif cfg.c1c:
        add(0, 6, [lambda A: lstamp(A, cfg, 50), f"s_cmp_ge_u32 s{sWave}, 4", "s_cbranch_scc1 L_nw1", "s_waitcnt vmcnt(0)", "L_nw1:",
                   lambda A: lstamp(A, cfg, 51), "s_barrier", lambda A: lstamp(A, cfg, 52)])
    else:
        add(0, 6, [lambda A: lstamp(A, cfg, 50), "s_waitcnt vmcnt(8)", lambda A: lstamp(A, cfg, 51), "s_barrier", lambda A: lstamp(A, cfg, 52)])
    for i in range(8): add(i, 7, ["s_waitcnt vmcnt(0)", "s_barrier"])
    for i in range(1, 6):
        J = kv_jobs(i + 2)
        if cfg.uni and i == 1:
            J2 = kv_jobs(2)
            add(1, 0, kv_setup(2) + J2[0] + J2[1]); add(1, 1, J2[2] + J2[3])
            add(1, 2, kv_setup(3) + J[0] + J[1]); add(1, 3, J[2] + J[3])
            add(1, 6, ["s_waitcnt vmcnt(6)", "s_barrier"])
            continue
        add(i, 0, kv_setup(i + 2) + J[0]); add(i, 1, J[1]); add(i, 2, J[2]); add(i, 3, J[3])
    wo = {1: [9, 10], 2: [11, 12], 3: [13, 14]}
    for i, js in wo.items():
        for n, j in enumerate(js): add(i, 4 + n, wo_job(j))
    Z2LOAD = f"buffer_load_dword v{vZ2}, v{vZA}, s[{sDBG}:{sDBG+3}], 0 offen offset:4 sc1"
    add(1, 6, [f"buffer_store_dwordx4 v[{vFill}:{vFill+3}], v{vL16}, s[{sWS}:{sWS+3}], s{sOst} offen sc1", f"s_add_u32 s{sJ}, s{sOst}, 65536",
               f"buffer_store_dwordx4 v[{vFill}:{vFill+3}], v{vL16}, s[{sWS}:{sWS+3}], s{sJ} offen sc1"])
    def setwait(i, n):
        k = jobs[(i, 7)].index("s_waitcnt vmcnt(0)")
        if n is None: del jobs[(i, 7)][k]
        else: jobs[(i, 7)][k] = f"s_waitcnt vmcnt({n})"
    setwait(1, 4); setwait(2, 2); setwait(3, 2); setwait(6, None)
    if cfg.tailbar:
        jobs[(7, 7)].remove("s_waitcnt vmcnt(0)"); jobs[(7, 7)].remove("s_barrier")
    jobs[(3, 0)][0:0] = [f"s_cmp_lg_u32 s{sWave}, 0", "s_cbranch_scc1 L_noz2c", f"s_and_b32 s{sJ}, s2, 1", f"s_lshl_b32 s{sJ}, s{sJ}, 7",
               "s_mov_b64 exec, 1", f"buffer_atomic_add v{vZ}, off, s[{sDBG}:{sDBG+3}], s{sJ} offset:4", "s_mov_b64 exec, -1", "L_noz2c:"]
    jobs[(5, 0)][0:0] = [f"s_cmp_eq_u32 s{sWave}, 0", "s_cselect_b32 exec_lo, 3, 0", "s_mov_b32 exec_hi, 0", Z2LOAD, "s_mov_b64 exec, -1"]
    jobs[(5, 7)][-1:-1] = [f"s_movk_i32 s{sJ}, 128", lambda A: spin(A, "z2", Z2LOAD, vZ2, f"s{sJ}", "gt", 4)]
    for n, j in enumerate([0, 1, 2, 3]): add(6, n, wo_job(j))
    if cfg.zearly: add(6, 4, [lambda A: p2_setup(A, cfg, True)])
    for n, j in enumerate([4, 5, 6, 7, 8, 15]): add(7, n, wo_job(j))
    if cfg.align: A(f".p2align {cfg.align}, 0xbf800000" if False else f".p2alignl {cfg.align}, 0xbf800000")
    for _ in range(cfg.shift): A("s_nop 0")
    if cfg.c0st == 1: stamp(A, cfg, 1, True)
    A(rd('K', 0, 0)); A(rd('V0', 0, 0))
    A("s_waitcnt lgkmcnt(1)")
    if cfg.prio: A("s_setprio 3")
    A(f"{M32} {v(S_[0],16)}, {v(vKf,4)}, {v(vQ[0],4)}, {SHIFT[0]}")
    if cfg.sm:
        for q in (0, 1): A(f"{M32} {v(O_[q],16)}, {v(vZero,4)}, {v(vZero,4)}, 0")
        A("s_nop 7"); A("s_nop 1")
    else:
        A("s_nop 7"); A("s_nop 3")
    for i in range(8):
        for t in range(8):
            first = (i == 0 and t == 0); lastt = (i == 7 and t == 7)
            sA = [rd('V1', i, t)]
            sB = ["s_waitcnt lgkmcnt(1)"] + jobs0.get((i, t), []) + ([] if lastt else [rd('K', i, t + 1)])
            sC = ["s_waitcnt lgkmcnt(0)" if lastt else "s_waitcnt lgkmcnt(1)"]
            unit(A, 0, first, False, sA, sB, sC, first, cfg.order)
            sA = ["s_waitcnt lgkmcnt(0)"]
            sB = list(jobs.get((i, t), []))
            sC = [] if lastt else [rd('V0', i, t + 1)]
            unit(A, 1, False, lastt, sA, sB, sC, first, cfg.order)
            if cfg.c0st and i == cfg.c0st - 1: stamp(A, cfg, 2 + t, True)
        if i == 0: stamp(A, cfg, 4)
        if cfg.c0st and i == cfg.c0st - 2: stamp(A, cfg, 1, True)
        if i < 7: lstamp(A, cfg, 29 + i)
    if cfg.sm:
        A("s_nop 1")
        A(f"{SM} {v(O_[1],16)}, {v(vV1f,4)}, {v(S_[1]+8,8)}, v{vIdx}")
        return
    A("s_nop 0")
    A(f"v_cvt_pk_bf16_f32 v{P_+7}, v{S_[1]+14}, v{S_[1]+15}")
    A("s_nop 1")
    A(f"{M32} {v(O_[1],16)}, {v(vV1f,4)}, {v(P_+4,4)}, {v(O_[1],16)}")

def p2_check(A, cfg):
    if not cfg.slow: return
    A(f"s_mov_b32 s{sT+2}, {fbits(2.0**-24)}")
    A(f"s_mov_b32 s{sT+3}, {fbits(2.0**64)}")
    A(f"s_mov_b32 s{sT+4}, 0x7f800000")
    A("s_mov_b64 s[68:69], 0")
    for q in (0, 1):
        O = O_[q]
        if q == 1: A("s_nop 1")
        A(f"v_add_f32 v104, |v{O}|, |v{O+1}|")
        A(f"v_add_f32 v105, |v{O+2}|, |v{O+3}|")
        A(f"v_add_f32 v106, |v{O+4}|, |v{O+5}|")
        A(f"v_add_f32 v107, |v{O+6}|, |v{O+7}|")
        A(f"v_add_f32 v104, v104, v105")
        A(f"v_add_f32 v106, v106, v107")
        A(f"v_add_f32 v104, v104, v106")
        A(f"v_cmp_nle_f32 vcc, s{sT+2}, v{O+8}")
        A(f"s_or_b64 s[68:69], s[68:69], vcc")
        A(f"v_cmp_nge_f32 vcc, s{sT+3}, v{O+8}")
        A(f"s_or_b64 s[68:69], s[68:69], vcc")
        A(f"v_cmp_ngt_f32 vcc, s{sT+4}, v104")
        A(f"s_or_b64 s[68:69], s[68:69], vcc")
    if cfg.force_slow: A("s_mov_b64 s[68:69], -1")
    A("s_cmp_lg_u64 s[68:69], 0")
    A("s_cbranch_scc1 L_slow")
    A("L_slow_ret:")
    T = Asm()
    T("L_slow:")
    T.c("true-max (online softmax) path, wave-local, K/V fragments straight from the workspace")
    m_, al = [104, 105], 106
    T(f"s_lshl_b32 s{sT}, s{sPair}, 18")
    T(f"s_lshr_b32 s{sT+1}, s{sWave}, 2")
    T(f"s_lshl_b32 s{sT+1}, s{sT+1}, 14")
    T(f"s_add_u32 s{sT}, s{sT}, s{sT+1}")
    T("v_lshrrev_b32 v108, 5, v0")
    T("v_and_b32 v109, 15, v0")
    T("v_lshlrev_b32 v109, 4, v109")
    T("v_lshl_add_u32 v109, v108, 8, v109")
    T("v_and_b32 v108, 11, v0")
    T("v_cmp_eq_u32 vcc, 0, v108")
    T("v_mov_b32 v110, 0")
    T("v_mov_b32 v111, 0x3f803f80")
    T("v_cndmask_b32 v110, v110, v111, vcc")
    for i in range(8): T(f"v_mov_b32 v{vV0f+i}, v110")
    for q in (0, 1):
        T(f"v_mov_b32 v{m_[q]}, 0xff800000")
        for i in range(16): T(f"v_mov_b32 v{O_[q]+i}, 0")
    T(f"s_mov_b32 s{sT+2}, 0")
    T("L_slow_loop:")
    T(f"s_lshr_b32 s{sT+3}, s{sT+2}, 3")
    T(f"s_lshl_b32 s{sT+3}, s{sT+3}, 15")
    T(f"s_and_b32 s{sT+4}, s{sT+2}, 7")
    T(f"s_lshl_b32 s{sT+4}, s{sT+4}, 11")
    T(f"s_add_u32 s{sT+3}, s{sT+3}, s{sT+4}")
    T(f"s_add_u32 s{sT+3}, s{sT+3}, s{sT}")
    T(f"buffer_load_dwordx4 {v(vKf,4)}, v{vL16}, s[{sWS}:{sWS+3}], s{sT+3} offen sc1")
    T("s_mov_b32 exec_lo, 0xffff")
    T("s_mov_b32 exec_hi, 0xffff")
    T(f"buffer_load_dwordx4 {v(vV0f,4)}, v109, s[{sWS}:{sWS+3}], s{sT+3} offen offset:1024 sc1")
    T(f"buffer_load_dwordx4 {v(vV1f,4)}, v109, s[{sWS}:{sWS+3}], s{sT+3} offen offset:1536 sc1")
    T("s_mov_b64 exec, -1")
    T("s_waitcnt vmcnt(0)")
    for q in (0, 1):
        S, O, m = S_[q], O_[q], m_[q]
        T(f"{M32} {v(S,16)}, {v(vKf,4)}, {v(vQ[q],4)}, 0")
        T("s_nop 15"); T("s_nop 3")
        T(f"v_max3_f32 v107, v{S}, v{S+1}, v{m}")
        for i in range(1, 8): T(f"v_max3_f32 v107, v{S+2*i}, v{S+2*i+1}, v107")
        T("v_mov_b32 v108, v107")
        T("s_nop 1")
        T("v_permlane32_swap_b32 v107, v108")
        T("v_max_f32 v107, v107, v108")
        T(f"v_sub_f32 v{al}, v{m}, v107")
        T(f"v_exp_f32 v{al}, v{al}")
        T(f"v_mov_b32 v{m}, v107")
        for i in range(16): T(f"v_sub_f32 v{S+i}, v{S+i}, v107")
        for i in range(16): T(f"v_exp_f32 v{S+i}, v{S+i}")
        for i in range(9): T(f"v_mul_f32 v{O+i}, v{O+i}, v{al}")
        if cfg.sm:
            T("s_nop 1")
            T(f"{SM} {v(O,16)}, {v(vV0f,4)}, {v(S,8)}, v{vIdx}")
            T(f"{SM} {v(O,16)}, {v(vV1f,4)}, {v(S+8,8)}, v{vIdx}")
        else:
            for i in range(8): T(f"v_cvt_pk_bf16_f32 v{P_+i}, v{S+2*i}, v{S+2*i+1}")
            T("s_nop 1")
            T(f"{M32} {v(O,16)}, {v(vV0f,4)}, {v(P_,4)}, {v(O,16)}")
            T(f"{M32} {v(O,16)}, {v(vV1f,4)}, {v(P_+4,4)}, {v(O,16)}")
        T("s_nop 15"); T("s_nop 3")
    T(f"s_add_u32 s{sT+2}, s{sT+2}, 1")
    T(f"s_cmp_lt_u32 s{sT+2}, 64")
    T("s_cbranch_scc1 L_slow_loop")
    T("s_branch L_slow_ret")
    tails.append(T)

def p2_epilogue(A, cfg):
    A.c("---- normalise (gate factor / row sum), round, publish O fragments (the data is its own ready flag:")
    A.c("     the slots were filled with 0xffffffff earlier in this launch and no published word has that value)")
    if cfg.nocheck == 2:
        A("s_sleep 64")
    A(f"s_add_u32 s{sJ}, s{sOst}, 65536")
    A(f"s_mov_b32 s{sT}, 0xfffffffe")
    if cfg.zearly: A("s_waitcnt vmcnt(6)")
    for q in (0, 1): A(f"v_sub_f32 v{vGF[q]}, s{sGc}, v{vGF[q]}")
    for q in (0, 1): A(f"v_rcp_f32 v{104+2*q}, v{O_[q]+8}")
    for q in (0, 1):
        O = O_[q]
        A(f"v_mul_f32 v{104+2*q}, v{104+2*q}, |v{vGF[q]}|")
        A(f"v_mov_b32 v{105+2*q}, v{104+2*q}")
        for i in range(4): A(f"v_pk_mul_f32 {v(O+2*i,2)}, {v(O+2*i,2)}, {v(104+2*q,2)}")
        for i in range(4): A(f"v_cvt_pk_bf16_f32 v{108+4*q+i}, v{O+2*i}, v{O+2*i+1}")
        for i in range(4): A(f"v_min_u32 v{108+4*q+i}, s{sT}, v{108+4*q+i}")
        A(f"buffer_store_dwordx4 {v(108+4*q,4)}, v{vL16}, s[{sWS}:{sWS+3}], s{sOst if q == 0 else sJ} offen sc1")
    lstamp(A, cfg, 44)

OF, AC, WFR = 128, [32, 48], [64, 72, 80, 88]
PS = 272
def p3(A, cfg):
    A.c("---- phase 3: out tile 64x64 = [gA*OA | gB*OB] @ [WoA ; WoB]")
    LA = cfg.la
    ld = lambda hh, sc=" sc1": f"buffer_load_dwordx4 {v(OF+4*hh,4)}, v4, s[{sWS}:{sWS+3}], s{8+hh//4} offen offset:{(hh%4)*1024}{sc}"
    SC1 = {0: " sc1", 1: "", 2: " nt", 3: " sc0"}[cfg.bulk]
    def rdw(hh):
        F = WFR[hh % 4]
        return [f"ds_read_b64_tr_b16 {v(F,2)}, v2 offset:{hh*2048}", f"ds_read_b64_tr_b16 {v(F+2,2)}, v2 offset:{hh*2048+1024}",
                f"ds_read_b64_tr_b16 {v(F+4,2)}, v3 offset:{hh*2048}", f"ds_read_b64_tr_b16 {v(F+6,2)}, v3 offset:{hh*2048+1024}"]
    def addr():
        A("v_lshrrev_b32 v16, 5, v0")
        A("v_lshlrev_b32 v16, 2, v16")
        A("v_bfe_u32 v17, v0, 2, 2")
        A("v_add_u32 v16, v16, v17")
        A("v_lshlrev_b32 v16, 7, v16")
        A("v_bfe_u32 v17, v0, 4, 1")
        A("v_lshlrev_b32 v17, 1, v17")
        A("v_bfe_u32 v18, v0, 1, 1")
        A("v_add_u32 v17, v17, v18")
        A("v_bfe_u32 v18, v0, 3, 1")
        A("v_lshlrev_b32 v18, 2, v18")
        A("v_xor_b32 v17, v17, v18")
        A("v_lshl_add_u32 v16, v17, 4, v16")
        A("v_and_b32 v17, 1, v0")
        A("v_lshl_add_u32 v16, v17, 3, v16")
        A(f"s_lshr_b32 s{sT+4}, s{sWave}, 1")
        A(f"s_lshl_b32 s{sT+5}, s{sT+4}, 15")
        A(f"s_add_u32 s{sT+5}, s{sT+5}, {WO}")
        A(f"v_add_u32 v2, s{sT+5}, v16")
        A("v_xor_b32 v3, 64, v2")
        A("v_and_b32 v16, 31, v0")
        A(f"s_and_b32 s{sT}, s{sWave}, 1")
        A(f"s_lshl_b32 s{sT}, s{sT}, 5")
        A(f"s_lshl_b32 s{sT+1}, s{sT+4}, 6")
        A(f"s_add_u32 s{sT}, s{sT}, s{sT+1}")
        A(f"v_add_u32 v16, s{sT}, v16")
        A(f"v_mul_u32_u24 v16, {PS}, v16")
        A("v_lshrrev_b32 v17, 5, v0")
        A("v_lshl_add_u32 v6, v17, 4, v16")
        A("v_lshrrev_b32 v16, 3, v0")
        A(f"s_lshl_b32 s{sT}, s{sWave}, 3")
        A(f"v_add_u32 v16, s{sT}, v16")
        A(f"v_mul_u32_u24 v7, {PS}, v16")
        A("v_and_b32 v17, 7, v0")
        A("v_lshl_add_u32 v7, v17, 5, v7")
        A("v_lshlrev_b32 v16, 10, v16")
        A("v_lshl_add_u32 v8, v17, 4, v16")
    for i in range(4): A(f"s_add_u32 s{8+i}, s{sOld}, {4096*i}")
    A(f"s_mov_b32 s{sSpin}, {SPIN_MAX}")
    A(f"v_mov_b32 v4, v{vL16}")
    if cfg.nocheck == 3:
        A("s_sleep 80")
        stamp(A, cfg, 7)
    for hh in range(LA): A(ld(hh, SC1))
    addr()
    lstamp(A, cfg, 55)
    A(f"s_waitcnt vmcnt({2 + LA})")
    A("s_barrier")
    lstamp(A, cfg, 56)
    for x in rdw(0) + rdw(1): A(x)
    A.c("a fragment that still holds fill words is fetched again (with the ones behind it)")
    for hh in range(16):
        F = WFR[hh % 4]; o = OF + 4 * hh
        A(f"L_ostep{hh}:")
        A(f"s_waitcnt vmcnt({min(LA - 1, 15 - hh)})")
        A(f"v_max3_u32 v10, v{o}, v{o+1}, v{o+2}")
        A(f"v_max_u32 v10, v10, v{o+3}")
        A("v_cmp_eq_u32 vcc, -1, v10")
        A(f"s_waitcnt lgkmcnt({4 if hh < 15 else 0})")
        if not cfg.nocheck: A(f"s_cbranch_vccnz L_oretry{hh}")
        A(f"L_ogo{hh}:")
        A(f"{M32} {v(AC[0],16)}, {v(F,4)}, {v(o,4)}, {'0' if hh == 0 else v(AC[0],16)}")
        if hh + LA < 16: A(ld(hh + LA, SC1))
        R = rdw(hh + 2) if hh + 2 < 16 else []
        for x in R[:2]: A(x)
        A(f"{M32} {v(AC[1],16)}, {v(F+4,4)}, {v(o,4)}, {'0' if hh == 0 else v(AC[1],16)}")
        for x in R[2:]: A(x)
        T = Asm()
        T(f"L_oretry{hh}:")
        T(f"s_sub_u32 s{sSpin}, s{sSpin}, 1")
        T(f"s_cmp_gt_i32 s{sSpin}, 0")
        T(f"s_cbranch_scc0 L_ogo{hh}")
        T("s_waitcnt vmcnt(0)")
        if cfg.rsleep: T(f"s_sleep {cfg.rsleep}")
        for h2 in range(hh, min(16, hh + LA)): T(ld(h2))
        T(f"s_branch L_ostep{hh}")
        tails.append(T)
    stamp(A, cfg, 8)
    lstamp(A, cfg, 41)
    if cfg.stamps == 4:
        A(f"s_sub_u32 s80, {SPIN_MAX + 1000}, s{sSpin}")
        A("v_writelane_b32 v31, s80, 53")
    A("s_barrier")
    A("s_nop 7")
    A("s_nop 1")
    for rq in range(4):
        A(f"ds_write_b128 v6, {v(AC[0]+4*rq,4)} offset:{rq*32}")
    for rq in range(4):
        A(f"ds_write_b128 v6, {v(AC[1]+4*rq,4)} offset:{128 + rq*32}")
    A("s_waitcnt lgkmcnt(0)")
    lstamp(A, cfg, 42)
    A("s_barrier")
    lstamp(A, cfg, 43)
    for kq in range(4):
        A(f"ds_read_b128 {v(64+8*kq,4)}, v7 offset:{kq*64*PS}")
        A(f"ds_read_b128 {v(68+8*kq,4)}, v7 offset:{kq*64*PS+16}")
    A("s_waitcnt lgkmcnt(4)")
    for i in range(4): A(f"v_pk_add_f32 {v(64+2*i,2)}, {v(64+2*i,2)}, {v(72+2*i,2)}")
    A("s_waitcnt lgkmcnt(0)")
    for i in range(4): A(f"v_pk_add_f32 {v(80+2*i,2)}, {v(80+2*i,2)}, {v(88+2*i,2)}")
    for i in range(4): A(f"v_pk_add_f32 {v(64+2*i,2)}, {v(64+2*i,2)}, {v(80+2*i,2)}")
    for i in range(4): A(f"v_cvt_pk_bf16_f32 v{96+i}, v{64+2*i}, v{65+2*i}")
    A(f"buffer_store_dwordx4 v[96:99], v8, s[{sOUT}:{sOUT+3}], s{sOut} offen" + ["", " sc1", " nt", " sc0 sc1", " sc1 nt"][cfg.outsc])

R0 = 131072
def p3_four(A, cfg):
    A.c("---- phase 3: out tile 64x64 = [gA*OA | gB*OB] @ [WoA ; WoB]")
    LA = cfg.la4; NR = 16
    ofr = lambda hh: OF + 4 * (hh % NR)
    ld = lambda hh: f"buffer_load_dwordx4 {v(ofr(hh),4)}, v4, s[{sWS}:{sWS+3}], s{8+hh//4} offen offset:{(hh%4)*1024} sc1"
    def rdw(hh):
        F = WFR[hh % 4]
        return [f"ds_read_b64_tr_b16 {v(F,2)}, v2 offset:{hh*2048}", f"ds_read_b64_tr_b16 {v(F+2,2)}, v2 offset:{hh*2048+1024}",
                f"ds_read_b64_tr_b16 {v(F+4,2)}, v3 offset:{hh*2048}", f"ds_read_b64_tr_b16 {v(F+6,2)}, v3 offset:{hh*2048+1024}"]
    A(f"s_cmp_ge_u32 s{sWave}, 4")
    A("s_cbranch_scc1 L_p3_idle")
    for i in range(8): A(f"s_add_u32 s{8+i}, s{sOld}, {4096*i}")
    A(f"s_mov_b32 s{sSpin}, {SPIN_MAX}")
    A(f"v_mov_b32 v4, v{vL16}")
    for hh in range(LA): A(ld(hh))
    A("v_lshrrev_b32 v16, 5, v0")
    A("v_lshlrev_b32 v16, 2, v16")
    A("v_bfe_u32 v17, v0, 2, 2")
    A("v_add_u32 v16, v16, v17")
    A("v_lshlrev_b32 v16, 7, v16")
    A("v_bfe_u32 v17, v0, 4, 1")
    A("v_lshlrev_b32 v17, 1, v17")
    A("v_bfe_u32 v18, v0, 1, 1")
    A("v_add_u32 v17, v17, v18")
    A("v_bfe_u32 v18, v0, 3, 1")
    A("v_lshlrev_b32 v18, 2, v18")
    A("v_xor_b32 v17, v17, v18")
    A("v_lshl_add_u32 v16, v17, 4, v16")
    A("v_and_b32 v17, 1, v0")
    A("v_lshl_add_u32 v16, v17, 3, v16")
    A(f"s_lshr_b32 s{sT+4}, s{sWave}, 1")
    A(f"s_lshl_b32 s{sT+5}, s{sT+4}, 16")
    A(f"s_add_u32 s{sT+5}, s{sT+5}, {WO}")
    A(f"v_add_u32 v2, s{sT+5}, v16")
    A("v_xor_b32 v3, 64, v2")
    A.c("partial sums: [branch][row 64][16 quads], quad index xor (row & 7)")
    A("v_and_b32 v16, 31, v0")
    A(f"s_and_b32 s{sT}, s{sWave}, 1")
    A(f"s_lshl_b32 s{sT}, s{sT}, 13")
    A(f"s_lshl_b32 s{sT+1}, s{sT+4}, 14")
    A(f"s_add_u32 s{sT}, s{sT}, s{sT+1}")
    A(f"s_add_u32 s{sT}, s{sT}, {R0}")
    A("v_lshlrev_b32 v16, 8, v16")
    A("v_lshrrev_b32 v17, 5, v0")
    A("v_and_b32 v18, 7, v0")
    A("v_xor_b32 v17, v17, v18")
    A("v_lshl_add_u32 v16, v17, 4, v16")
    A(f"v_add_u32 v12, s{sT}, v16")
    for i in (1, 2, 3): A(f"v_xor_b32 v{12+i}, {32*i}, v12")
    lstamp(A, cfg, 55)
    A(f"s_waitcnt vmcnt({2 + LA})")
    A("s_barrier")
    lstamp(A, cfg, 56)
    for x in rdw(0) + rdw(1): A(x)
    A.c("a fragment that still holds fill words is fetched again (with the ones behind it)")
    def check(hh, part):
        o = ofr(hh)
        if part == 0:
            A(f"L_ostep{hh}:")
            A(f"s_waitcnt vmcnt({min(LA - 1, 31 - hh)})")
            A(f"v_max3_u32 v10, v{o}, v{o+1}, v{o+2}")
            A(f"v_max_u32 v10, v10, v{o+3}")
            A("v_cmp_eq_u32 vcc, -1, v10")
        else:
            A(f"s_cbranch_vccnz L_oretry{hh}")
            A(f"L_ogo{hh}:")
            T = Asm()
            T(f"L_oretry{hh}:")
            T(f"s_sub_u32 s{sSpin}, s{sSpin}, 1")
            T(f"s_cmp_gt_i32 s{sSpin}, 0")
            T(f"s_cbranch_scc0 L_ogo{hh}")
            T("s_waitcnt vmcnt(0)")
            for h2 in range(hh, min(32, hh + LA)): T(ld(h2))
            T(f"s_waitcnt vmcnt({min(LA - 1, 31 - hh)})")
            T(f"v_max3_u32 v10, v{o}, v{o+1}, v{o+2}")
            T(f"v_max_u32 v10, v10, v{o+3}")
            T("v_cmp_eq_u32 vcc, -1, v10")
            T("s_nop 0")
            T(f"s_cbranch_vccnz L_oretry{hh}")
            T(f"s_branch L_ogo{hh}")
            tails.append(T)
    if cfg.p3pipe:
        check(0, 0); A("s_waitcnt lgkmcnt(4)"); check(0, 1)
        for hh in range(32):
            F = WFR[hh % 4]; o = ofr(hh)
            R = rdw(hh + 2) if hh + 2 < 32 else []
            A(f"{M32} {v(AC[0],16)}, {v(F,4)}, {v(o,4)}, {'0' if hh == 0 else v(AC[0],16)}")
            if hh + LA < 32: A(ld(hh + LA))
            if hh < 31: check(hh + 1, 0)
            A(f"{M32} {v(AC[1],16)}, {v(F+4,4)}, {v(o,4)}, {'0' if hh == 0 else v(AC[1],16)}")
            for x in R: A(x)
            if hh < 31:
                A(f"s_waitcnt lgkmcnt({4 if hh + 1 < 31 else 0})")
                check(hh + 1, 1)
    else:
        for hh in range(32):
            F = WFR[hh % 4]; o = ofr(hh)
            A(f"L_ostep{hh}:")
            A(f"s_waitcnt vmcnt({min(LA - 1, 31 - hh)})")
            A(f"v_max3_u32 v10, v{o}, v{o+1}, v{o+2}")
            A(f"v_max_u32 v10, v10, v{o+3}")
            A("v_cmp_eq_u32 vcc, -1, v10")
            A(f"s_waitcnt lgkmcnt({4 if hh < 31 else 0})")
            A(f"s_cbranch_vccnz L_oretry{hh}")
            A(f"L_ogo{hh}:")
            A(f"{M32} {v(AC[0],16)}, {v(F,4)}, {v(o,4)}, {'0' if hh == 0 else v(AC[0],16)}")
            if hh + LA < 32: A(ld(hh + LA))
            R = rdw(hh + 2) if hh + 2 < 32 else []
            for x in R[:2]: A(x)
            A(f"{M32} {v(AC[1],16)}, {v(F+4,4)}, {v(o,4)}, {'0' if hh == 0 else v(AC[1],16)}")
            for x in R[2:]: A(x)
            T = Asm()
            T(f"L_oretry{hh}:")
            T(f"s_sub_u32 s{sSpin}, s{sSpin}, 1")
            T(f"s_cmp_gt_i32 s{sSpin}, 0")
            T(f"s_cbranch_scc0 L_ogo{hh}")
            T("s_waitcnt vmcnt(0)")
            for h2 in range(hh, min(32, hh + LA)): T(ld(h2))
            T(f"s_branch L_ostep{hh}")
            tails.append(T)
    stamp(A, cfg, 8)
    lstamp(A, cfg, 41)
    A("s_nop 7")
    A("s_nop 2")
    for ct in (0, 1):
        for rq in range(4):
            A(f"ds_write_b128 v{12+rq}, {v(AC[ct]+4*rq,4)} offset:{ct*128}")
    A("s_branch L_p3_fin")
    A("L_p3_idle:")
    A("s_waitcnt vmcnt(2)")
    A("s_barrier")
    stamp(A, cfg, 8)
    A("L_p3_fin:")
    A("v_lshrrev_b32 v16, 3, v0")
    A(f"s_lshl_b32 s{sT}, s{sWave}, 3")
    A(f"v_add_u32 v16, s{sT}, v16")
    A("v_and_b32 v17, 7, v0")
    A("v_lshlrev_b32 v18, 1, v17")
    A("v_and_b32 v19, 7, v16")
    A("v_xor_b32 v18, v18, v19")
    A("v_lshlrev_b32 v18, 4, v18")
    A("v_lshl_add_u32 v7, v16, 8, v18")
    A(f"v_add_u32 v7, {R0}, v7")
    A("v_xor_b32 v6, 16, v7")
    A("v_lshlrev_b32 v16, 10, v16")
    A("v_lshl_add_u32 v8, v17, 4, v16")
    A("s_waitcnt lgkmcnt(0)")
    lstamp(A, cfg, 42)
    A("s_barrier")
    lstamp(A, cfg, 43)
    A("ds_read_b128 v[64:67], v7")
    A("ds_read_b128 v[72:75], v7 offset:16384")
    A("ds_read_b128 v[68:71], v6")
    A("ds_read_b128 v[76:79], v6 offset:16384")
    A("s_waitcnt lgkmcnt(2)")
    for i in range(2): A(f"v_pk_add_f32 {v(64+2*i,2)}, {v(64+2*i,2)}, {v(72+2*i,2)}")
    A("s_waitcnt lgkmcnt(0)")
    for i in range(2, 4): A(f"v_pk_add_f32 {v(64+2*i,2)}, {v(64+2*i,2)}, {v(72+2*i,2)}")
    for i in range(4): A(f"v_cvt_pk_bf16_f32 v{96+i}, v{64+2*i}, v{65+2*i}")
    A(f"buffer_store_dwordx4 v[96:99], v8, s[{sOUT}:{sOUT+3}], s{sOut} offen" + ["", " sc1", " nt", " sc0 sc1", " sc1 nt"][cfg.outsc])

def build(cfg):
    tails.clear()
    XSWAP[0] = cfg.xswap
    P3W[0] = cfg.p3w
    PVSWAP[0] = cfg.pvswap
    SHIFT[0] = "0.15915494" if cfg.cshift else "0"
    SMUSE[0] = cfg.sm
    ORDER[0] = cfg.korder
    ONES[0] = cfg.ones
    name = KN + "_kernel"
    A = Asm(); kernel_head(A, name)
    prologue(A, cfg)
    p1_compute(A, cfg)
    stamp(A, cfg, 2)
    lstamp(A, cfg, 27)
    p1_compute_epilogue(A, cfg)
    A("s_branch L_attn")
    A("L_loader:")
    p1_loader(A, cfg)
    stamp(A, cfg, 2)
    if cfg.c1c: p2_setup(A, cfg)
    A("L_attn:")
    if cfg.dbl: A("s_memrealtime s[82:83]")
    stamp(A, cfg, 3)
    lstamp(A, cfg, 28)
    if not cfg.c1c: p2_setup(A, cfg)
    p2_main(A, cfg)
    stamp(A, cfg, 5)
    lstamp(A, cfg, 37)
    if cfg.dbl: A("s_memrealtime s[86:87]")
    p2_check(A, cfg)
    p2_epilogue(A, cfg)
    stamp(A, cfg, 6)
    if cfg.p3w == 4: p3_four(A, cfg)
    else: p3(A, cfg)
    stamp_store(A, cfg, 10 if cfg.c0st else 9)
    if cfg.dbl:
        A("s_cmp_lg_u32 s2, 0")
        A("s_cbranch_scc1 L_end")
        A("s_waitcnt vmcnt(0)")
        A("s_memrealtime s[84:85]")
        A("s_waitcnt lgkmcnt(0)")
        a, b = {1: (80, 84), 2: (80, 82), 3: (82, 86), 4: (86, 84)}[cfg.dbl]
        A(f"s_sub_u32 s88, s{b}, s{a}")
        A("s_add_u32 s88, s88, s84")
        A("L_dbl:")
        A("s_memrealtime s[90:91]")
        A("s_waitcnt lgkmcnt(0)")
        A("s_sub_u32 s89, s90, s88")
        A("s_cmp_lt_i32 s89, 0")
        A("s_cbranch_scc1 L_dbl")
    A("L_end:")
    A("s_endpgm")
    txt = A.text() + "".join(t.text() for t in tails)
    hdr = f"""; gated_mix__softmax_full_mha__mha_block__prompt -- one persistent launch, 256 workgroups (one per CU) x 8 waves
; @launch grid=(256,1,1) block=(512,1,1) lds={LDS_TOTAL}
.amdgcn_target "amdgcn-amd-amdhsa--gfx950"
"""
    return hdr + txt + kernel_desc(name, 256)

if __name__ == "__main__":
    import sys
    cfg = Cfg()
    for a in sys.argv[2:]:
        k_, v_ = a.split("=")
        setattr(cfg, k_, int(v_, 0))
    open(sys.argv[1], "w").write(build(cfg))
```

```python
from base import *
import math, struct

KN = "gated_mix__softmax_full_mha__mha_block__prompt"
sX, sW, sG, sWS, sWOA, sWOB, sOUT, sDBG = 24, 28, 32, 36, 40, 44, 48, 52
sWave, sSlab, sPair, sKC, sRG = 56, 57, 58, 59, 60
sSpin = 61
sT = 62
sXb, sXo, sWb_, sWo, sK2, sM = 70, 71, 72, 73, 74, 75
sCH, sCO, sMB, sWoG, sWoM, sJ = 70, 71, 72, 73, 74, 75
sS3, sR3, sC3, sF = 76, 77, 78, 79
WS_KV, WS_O, WS_F1, WS_F2, WS_ST, WS_SIZE = 0, 8 << 20, 12 << 20, (12 << 20) + 16384, 22 << 20, 24 << 20
WS_G = (12 << 20) + 32768
XS, WB, GW, QX, GV = 32768, 98304, 135168, 69632, 77824
XB = {0: 32768, 1: 0, 2: 65536}
SLOT, REC, HSTR = 33280, 2080, 16640
SA, SB, SC = 0, 33280, 130560
WO = 0
LDS_TOTAL = 163840
LOG2E = math.log2(math.e)
QSCALE = 0.25 * LOG2E
SPIN_MAX = 200000
def fbits(x): return hex(struct.unpack("<I", struct.pack("<f", x))[0])
vKL, vV0L, vV1L, vKH, vV0H, vV1H, vL16, vWoD, vPA, vPoll = range(240, 250)
vGF = [250, 251]
vZ = 252
vZA, vZ2 = 254, 255
vGA, vFill, sGo = 253, 232, 3
vIdx, vZero, vKP = 231, 236, 230
SM = "v_smfmac_f32_32x32x32_bf16"
sOst, sOld, sOut, sGc = 4, 5, 6, 7
sZp = 13

class Cfg:
    lr = 2
    prio = 0x8BD
    p1prio = 1
    prio0 = 0x37B
    stamps = 0
    slow = 1
    force_slow = 0
    t_poll = 3
    dotmode = 4
    p1pipe = 0
    n_z = 21
    rot = 23
    tailbar = 1
    prog = 32
    bulk = 0
    early = 5
    la = 4
    bq0 = 1
    kv2 = 0
    vmask = 0
    cshift = 1
    p3w = 4
    la4 = 8
    p3pipe = 1
    korder = 1
    t_load = 2
    zld = 1
    sm = 1
    wfull = 0
    zearly = 2
    noz = 0
    n_add = 8
    wpf3 = 0
    prot = 0
    uni = 0
    c1c = 0
    t_c2 = 4
    c0st = 0
    pvswap = 0
    ones = 0
    xswap = 1
    nocheck = 0
    late1 = 0
    c2c = 0
    spf = 0
    spfe = 1
    spfw = 0
    p1x = 0
    dbl = 0
    order = 0
    align = 0
    shift = 0
    outsc = 3
    rsleep = 0
    ethr = 32
    spindepth = 0
    sspread = 1
    spinsleep = 0
    wpf2 = 0
    epi2 = 1
    wfirst = 0
    l2pf = 0
    pfoff = 0
    epist = 0
    t16 = 0
    wpf = 0

def stamp(A, cfg, i, force=False):
    if cfg.c0st and not force and i not in (0, 10): return
    if cfg.stamps in (1, 3): A(f"s_memrealtime s[{80+2*i}:{81+2*i}]")
    if cfg.stamps == 2: A(f"s_memtime s[{80+2*i}:{81+2*i}]")
def lstamp(A, cfg, i):
    if cfg.stamps == 4:
        A("s_memrealtime s[80:81]")
        A("s_waitcnt lgkmcnt(0)")
        A(f"v_writelane_b32 v31, s80, {i}")
def stamp_store(A, cfg, n):
    if not cfg.stamps: return
    if cfg.stamps == 4:
        A("s_waitcnt vmcnt(0)")
        lstamp(A, cfg, 40)
        A(f"s_lshl_b32 s{sT}, s2, 3")
        A(f"s_add_u32 s{sT}, s{sT}, s{sWave}")
        A(f"s_lshl_b32 s{sT}, s{sT}, 8")
        A(f"s_add_u32 s{sT}, s{sT}, {WS_ST}")
        A("v_lshlrev_b32 v1, 2, v0")
        A(f"buffer_store_dword v31, v1, s[{sWS}:{sWS+3}], s{sT} offen")
        return
    A("s_waitcnt vmcnt(0)")
    stamp(A, cfg, n)
    A("s_waitcnt lgkmcnt(0)")
    if cfg.stamps == 3:
        A("s_mov_b64 exec, 1")
        A(f"s_not_b32 s{sT}, s80")
        A(f"v_mov_b32 v2, s{sT}")
        A(f"buffer_atomic_umax v2, off, s[{sDBG}:{sDBG+3}], 0 offset:8")
        for i in range(n + 1):
            A(f"v_mov_b32 v{3+i}, s{80+2*i}")
            A(f"buffer_atomic_umax v{3+i}, off, s[{sDBG}:{sDBG+3}], 0 offset:{12+4*i}")
        return
    A(f"s_lshl_b32 s{sT}, s2, 3")
    A(f"s_add_u32 s{sT}, s{sT}, s{sWave}")
    A(f"s_lshl_b32 s{sT}, s{sT}, 6")
    A(f"s_add_u32 s{sT}, s{sT}, {WS_ST}")
    A("v_mov_b32 v1, 0")
    for i in range(n + 1):
        A(f"v_mov_b32 v2, s{80+2*i}")
        A(f"buffer_store_dword v2, v1, s[{sWS}:{sWS+3}], s{sT} offen offset:{4*i}")
        A("s_nop 1")

def prologue(A, cfg):
    if cfg.dbl: A("s_memrealtime s[80:81]")
    stamp(A, cfg, 0)
    if cfg.stamps == 4: A("v_mov_b32 v31, 0")
    lstamp(A, cfg, 0)
    A("s_cmp_ge_u32 s2, 256")
    A("s_cbranch_scc1 L_end")
    A("s_load_dwordx16 s[4:19], s[0:1], 0")
    A("s_load_dwordx4 s[20:23], s[0:1], 64")
    A("v_lshrrev_b32 v1, 6, v0")
    A("v_and_b32 v0, 63, v0")
    A(f"v_readfirstlane_b32 s{sWave}, v1")
    lr = cfg.lr
    A(f"s_and_b32 s{sT}, s2, {(8 >> lr) - 1}")
    A(f"s_lshl_b32 s{sT}, s{sT}, {lr}")
    A(f"s_lshr_b32 s{sT+1}, s2, 3")
    A(f"s_and_b32 s{sT+2}, s{sT+1}, {(1 << lr) - 1}")
    A(f"s_or_b32 s{sSlab}, s{sT}, s{sT+2}")
    A(f"s_and_b32 s{sT}, s2, 7")
    A(f"s_lshr_b32 s{sT}, s{sT}, {3 - lr}")
    A(f"s_lshl_b32 s{sT}, s{sT}, {5 - lr}")
    A(f"s_lshr_b32 s{sT+1}, s{sT+1}, {lr}")
    if cfg.prot:
        A(f"s_add_u32 s{sT+1}, s{sT+1}, {cfg.prot}")
        A(f"s_and_b32 s{sT+1}, s{sT+1}, {(32 >> lr) - 1}")
    A(f"s_add_u32 s{sPair}, s{sT}, s{sT+1}")
    if cfg.rot == 0:
        A(f"s_add_u32 s{sKC}, s{sPair}, s{sSlab}")
    elif cfg.rot == 1:
        A(f"s_lshl_b32 s{sKC}, s{sSlab}, 1")
        A(f"s_add_u32 s{sKC}, s{sKC}, s{sPair}")
    elif cfg.rot == 2:
        A(f"s_and_b32 s{sKC}, s2, 6")
        A(f"s_and_b32 s{sT}, s2, 1")
        A(f"s_lshl_b32 s{sT}, s{sT}, 2")
        A(f"s_add_u32 s{sKC}, s{sKC}, s{sT}")
    elif cfg.rot == 3:
        A(f"s_mov_b32 s{sKC}, 0")
    elif cfg.rot == 4:
        A(f"s_and_b32 s{sKC}, s2, 6")
        A(f"s_add_u32 s{sT}, s{sPair}, s{sSlab}")
        A(f"s_and_b32 s{sT}, s{sT}, 1")
        A(f"s_lshl_b32 s{sT}, s{sT}, 2")
        A(f"s_add_u32 s{sKC}, s{sKC}, s{sT}")
    elif cfg.rot == 5:
        A(f"s_add_u32 s{sT}, s{sPair}, s{sSlab}")
        A(f"s_and_b32 s{sT}, s{sT}, 3")
        A(f"s_lshl_b32 s{sT}, s{sT}, 1")
        A(f"s_and_b32 s{sKC}, s2, 1")
        A(f"s_add_u32 s{sKC}, s{sKC}, s{sT}")
    elif cfg.rot == 6:
        A(f"s_bfe_u32 s{sKC}, s2, 0x20001")
        A(f"s_add_u32 s{sT}, s{sPair}, s{sSlab}")
        A(f"s_and_b32 s{sT}, s{sT}, 1")
        A(f"s_lshl_b32 s{sT}, s{sT}, 2")
        A(f"s_add_u32 s{sKC}, s{sKC}, s{sT}")
    elif cfg.rot == 7:
        A(f"s_add_u32 s{sT}, s{sPair}, s{sSlab}")
        A(f"s_and_b32 s{sT}, s{sT}, 1")
        A(f"s_lshl_b32 s{sKC}, s{sT}, 2")
    elif cfg.rot == 8:
        A(f"s_and_b32 s{sKC}, s2, 6")
        A(f"s_add_u32 s{sT}, s{sPair}, s{sSlab}")
        A(f"s_and_b32 s{sT}, s{sT}, 1")
        A(f"s_lshl_b32 s{sT}, s{sT}, 1")
        A(f"s_add_u32 s{sKC}, s{sKC}, s{sT}")
    elif cfg.rot == 9:
        A(f"s_and_b32 s{sKC}, s2, 3")
        A(f"s_add_u32 s{sT}, s{sPair}, s{sSlab}")
        A(f"s_and_b32 s{sT}, s{sT}, 1")
        A(f"s_lshl_b32 s{sT}, s{sT}, 2")
        A(f"s_add_u32 s{sKC}, s{sKC}, s{sT}")
    elif cfg.rot in (16, 17, 18) or cfg.rot >= 19:
        pass
    elif cfg.rot in (10, 11, 13, 14, 15):
        if cfg.rot in (10, 11): A(f"s_add_u32 s{sT}, s{sPair}, s{sSlab}")
        elif cfg.rot == 13: A(f"s_mov_b32 s{sT}, s{sSlab}")
        elif cfg.rot == 14: A(f"s_mov_b32 s{sT}, s{sPair}")
        elif cfg.rot == 15:
            A(f"s_lshr_b32 s{sT}, s{sPair}, 1")
            A(f"s_add_u32 s{sT}, s{sT}, s{sSlab}")
        A(f"s_and_b32 s{sT}, s{sT}, 3")
        A(f"s_lshl_b32 s{sT}, s{sT}, 1")
        if cfg.rot == 10: A(f"s_bfe_u32 s{sKC}, s2, 0x10001")
        elif cfg.rot == 11: A(f"s_mov_b32 s{sKC}, 0")
        else: A(f"s_and_b32 s{sKC}, s2, 1")
        A(f"s_add_u32 s{sKC}, s{sKC}, s{sT}")
    if cfg.rot not in (16, 17, 18) and cfg.rot < 19: A(f"s_and_b32 s{sKC}, s{sKC}, 7")
    A(f"s_and_b32 s{sRG}, s{sWave}, 3")
    A(f"s_cmp_ge_u32 s{sWave}, 4")
    A("s_cbranch_scc1 L_loader")

XSWAP = [0]
P3W = [8]
PVSWAP = [0]
VMASK = [0]
sVM = 14
SHIFT = ["0"]
SMUSE = [0]
ONES = [0]
def late_srds(A):
    srd(A, sWS, 22, 23, WS_SIZE)
    srd(A, sWOA, 8, 9, 512 * 512 * 2)
    srd(A, sWOB, 14, 15, 512 * 512 * 2)
    srd(A, sOUT, 18, 19, 2048 * 512 * 2)
    srd(A, sDBG, 20, 21, 256)
    if XSWAP[0]:
        A.c("output slab: one this XCD group does not produce itself (speed only)")
        A(f"s_bfe_u32 s{sS3}, s2, 0x20001")
        A(f"s_andn2_b32 s{sR3}, 1, s2")
        A(f"s_lshl_b32 s{sR3}, s{sR3}, 2")
        A(f"s_add_u32 s{sS3}, s{sS3}, s{sR3}")
    else:
        A(f"s_and_b32 s{sS3}, s2, 7")
    A(f"s_bfe_u32 s{sR3}, s2, 0x20003")
    A(f"s_lshr_b32 s{sC3}, s2, 5")
    A(f"s_lshl_b32 s{sF}, s{sPair}, 2")
    A(f"s_add_u32 s{sF}, s{sF}, s{sRG}")
    A(f"s_lshl_b32 s{sF}, s{sF}, 7")
    A(f"s_add_u32 s{sF}, s{sF}, {WS_F1}")
    A.c("scalars of the tail (s4..s7: their pointers are dead by now)")
    A(f"s_lshl_b32 s{sT}, s{sSlab}, 2")
    A(f"s_add_u32 s{sT}, s{sT}, s{sRG}")
    A(f"s_lshl_b32 s{sT}, s{sT}, 17")
    A(f"s_lshl_b32 s{sT+1}, s{sPair}, 1")
    A(f"s_lshr_b32 s{sT+2}, s{sWave}, 2")
    A(f"s_add_u32 s{sT+1}, s{sT+1}, s{sT+2}")
    A(f"s_lshl_b32 s{sT+1}, s{sT+1}, 10")
    A(f"s_add_u32 s{sT}, s{sT}, s{sT+1}")
    A(f"s_add_u32 s{sOst}, s{sT}, {WS_O}")
    A(f"s_lshl_b32 s{sT}, s{sS3}, 3")
    A(f"s_lshl_b32 s{sT+1}, s{sR3}, 1")
    A(f"s_add_u32 s{sT}, s{sT}, s{sT+1}")
    A(f"s_and_b32 s{sT+1}, s{sWave}, 1")
    A(f"s_add_u32 s{sT}, s{sT}, s{sT+1}")
    A(f"s_lshl_b32 s{sT}, s{sT}, 16")
    A(f"s_lshr_b32 s{sT+1}, s{sWave}, 1")
    A(f"s_lshl_b32 s{sT+1}, s{sT+1}, {15 if P3W[0] == 4 else 14}")
    A(f"s_add_u32 s{sT}, s{sT}, s{sT+1}")
    A(f"s_add_u32 s{sOld}, s{sT}, {WS_O}")
    A(f"s_lshl_b32 s{sT}, s{sS3}, 8")
    A(f"s_lshl_b32 s{sT+1}, s{sR3}, 6")
    A(f"s_add_u32 s{sT}, s{sT}, s{sT+1}")
    A(f"s_lshl_b32 s{sT}, s{sT}, 10")
    A(f"s_lshl_b32 s{sT+1}, s{sC3}, 7")
    A(f"s_add_u32 s{sOut}, s{sT}, s{sT+1}")
    A(f"s_lshr_b32 s{sGc}, s{sPair}, 4")
    A(f"s_lshl_b32 s{sZp}, s{sGc}, 7")
    A(f"s_and_b32 s{sT}, s{sPair}, 15")
    A(f"s_lshl_b32 s{sT}, s{sT}, 2")
    A(f"s_add_u32 s{sZp}, s{sZp}, s{sT}")
    A(f"s_add_u32 s{sZp}, s{sZp}, 8")
    A(f"s_mul_i32 s{sGc}, s{sGc}, 0x3f800000")

def xfrag_addr(A, L, H, t):
    A(f"v_and_b32 v{t}, 31, v0")
    A(f"v_lshrrev_b32 v{t+1}, 5, v0")
    A(f"v_bfe_u32 v{t+2}, v0, 1, 3")
    A(f"v_xor_b32 v{t+2}, v{t+2}, v{t+1}")
    A(f"v_lshlrev_b32 v{t}, 7, v{t}")
    A(f"s_lshl_b32 s{sT}, s{sRG}, 13")
    A(f"v_add_u32 v{t}, s{sT}, v{t}")
    for j in range(4):
        A(f"v_xor_b32 v{t+1}, {2*j}, v{t+2}")
        A(f"v_lshl_add_u32 v{L[j]}, v{t+1}, 4, v{t}")
        A(f"v_add_u32 v{H[j]}, 0x10000, v{L[j]}")

def p2_addr(A):
    A(f"v_lshlrev_b32 v{vL16}, 4, v0")
    A(f"s_lshr_b32 s{sT}, s{sWave}, 2")
    A(f"s_mul_i32 s{sT}, s{sT}, {HSTR}")
    A(f"v_add_u32 v{vKL}, s{sT}, v{vL16}")
    A("v_lshrrev_b32 v104, 5, v0")
    A("v_and_b32 v105, 15, v0")
    A("v_lshlrev_b32 v105, 4, v105")
    A("v_lshl_add_u32 v105, v104, 8, v105")
    A("v_add_u32 v105, 1024, v105")
    A("v_add_u32 v106, 512, v105")
    A("v_and_b32 v104, 11, v0")
    A("v_cmp_eq_u32 vcc, 0, v104")
    A("v_mov_b32 v107, " + ("2048" if ONES[0] == 1 else "2064"))
    A("v_mov_b32 v108, " + ("2064" if ONES[0] == 2 else "2048"))
    A("v_cndmask_b32 v107, v107, v108, vcc")
    A("v_and_b32 v104, 16, v0")
    A("v_cmp_eq_u32 vcc, 0, v104")
    A("s_nop 1")
    A("v_cndmask_b32 v105, v107, v105, vcc")
    A("v_cndmask_b32 v106, v107, v106, vcc")
    A(f"v_add_u32 v{vV0L}, s{sT}, v105")
    A(f"v_add_u32 v{vV1L}, s{sT}, v106")
    A(f"v_add_u32 v{vKH}, {SC}, v{vKL}")
    A(f"v_add_u32 v{vV0H}, {SC}, v{vV0L}")
    A(f"v_add_u32 v{vV1H}, {SC}, v{vV1L}")
    A("v_lshrrev_b32 v104, 3, v0")
    A("v_lshlrev_b32 v104, 10, v104")
    A("v_and_b32 v105, 7, v0")
    A(f"v_lshlrev_b32 v{vPA}, 2, v105")
    A("v_bfe_u32 v106, v0, 4, 1")
    A("v_lshlrev_b32 v106, 2, v106")
    A("v_xor_b32 v105, v105, v106")
    A(f"v_lshl_add_u32 v{vWoD}, v105, 4, v104")

def consts(A, slots):
    A("v_lshrrev_b32 v104, 4, v0")
    A(f"v_mul_u32_u24 v104, {slots[-1] - slots[0]}, v104")
    A("v_and_b32 v105, 15, v0")
    A(f"v_mul_u32_u24 v105, {REC}, v105")
    A("v_add_u32 v104, v104, v105")
    if slots[0]: A(f"v_add_u32 v104, {slots[0]}, v104")
    for i in range(4):
        A(f"v_mov_b32 v{108+i}, 0x3f803f80")
        A(f"v_mov_b32 v{112+i}, 0")
    n = 16 * len(slots)
    A(f"s_mov_b32 exec_lo, {hex((1 << min(n,32)) - 1)}")
    A(f"s_mov_b32 exec_hi, {hex((1 << max(n-32,0)) - 1)}")
    A("ds_write_b128 v104, v[108:111] offset:2048")
    A("ds_write_b128 v104, v[112:115] offset:2064")
    A("s_mov_b64 exec, -1")

tails = []
def spin(A, name, load, reg, val, cmp="ne", sleep=0, depth=0, first=0):
    A(f"s_waitcnt vmcnt({first})")
    A(f"v_cmp_{cmp}_u32 vcc, {val}, v{reg}")
    A("s_nop 0")
    A(f"s_cbranch_vccnz L_spin_{name}")
    A(f"L_ret_{name}:")
    T = Asm()
    T(f"L_spin_{name}:")
    T(f"s_mov_b32 s{sSpin}, {SPIN_MAX}")
    for _ in range(depth):
        T(load)
        if sleep: T(f"s_sleep {sleep}")
    T(f"L_spinl_{name}:")
    if sleep: T(f"s_sleep {sleep}")
    T(load)
    T(f"s_sub_u32 s{sSpin}, s{sSpin}, 1")
    T(f"s_cbranch_scc1 L_ret_{name}")
    T(f"s_waitcnt vmcnt({depth})")
    T(f"v_cmp_{cmp}_u32 vcc, {val}, v{reg}")
    T("s_nop 0")
    T(f"s_cbranch_vccnz L_spinl_{name}")
    T(f"s_branch L_ret_{name}")
    tails.append(T)

vXL, vXH = [2, 3, 4, 5], [6, 7, 8, 9]
vWa, vWb, vWv = 10, 11, 12
ACC = dict(QKa0=32, QKa1=48, QKb0=64, QKb1=80, VV0=96, VV1=112)
FR = [128, 148]
vQ = [8, 12]
F1LOAD = f"buffer_load_dword v{vPoll}, v{vPA}, s[{sWS}:{sWS+3}], s{sF} offen sc1"
SAMPLE = f"buffer_load_dword v28, v5, s[{sWS}:{sWS+3}], s{sOld} offen sc1"
ZLOAD = f"buffer_load_dword v{vZ}, off, s[{sDBG}:{sDBG+3}], s{sZp} sc1"

def l2_prefetch(A, cfg):
    assert cfg.lr == 2
    A(f"s_cmp_lt_u32 s{sPair}, 16")
    A(f"s_cselect_b32 s{sW}, s6, s12")
    A(f"s_cselect_b32 s{sW+1}, s7, s13")
    A(f"s_mov_b32 s{sW+2}, {hex(512*1536*2)}")
    A(f"s_mov_b32 s{sW+3}, 0x20000")
    A(f"s_lshl_b32 s{sT}, s{sWave}, 1")
    A(f"s_add_u32 s{sT}, s{sT}, s{sKC}")
    A(f"s_add_u32 s{sT}, s{sT}, {cfg.pfoff}")
    A("v_lshrrev_b32 v46, 5, v0")
    A(f"v_add_u32 v46, s{sT}, v46")
    A("v_and_b32 v46, 7, v46")
    A("v_and_b32 v47, 31, v0")
    A(f"s_lshr_b32 s{sT+1}, s2, 3")
    A(f"s_and_b32 s{sT+2}, s2, 1")
    A(f"s_lshl_b32 s{sT+2}, s{sT+2}, 20")
    A(f"s_lshl_b32 s{sT+3}, s{sT+1}, 15")
    A(f"s_add_u32 s{sT+2}, s{sT+2}, s{sT+3}")
    A("v_lshlrev_b32 v48, 10, v47")
    A("v_lshl_add_u32 v48, v46, 7, v48")
    A(f"buffer_load_dword v200, v48, s[{sX}:{sX+3}], s{sT+2} offen")
    A(f"s_mul_i32 s{sT+1}, s{sT+1}, 24")
    A("v_min_u32 v47, 23, v47")
    A(f"v_add_u32 v47, s{sT+1}, v47")
    A("v_mul_u32_u24 v48, 0x5556, v47")
    A("v_lshrrev_b32 v48, 18, v48")
    A("v_mul_u32_u24 v49, 12, v48")
    A("v_sub_u32 v49, v47, v49")
    A("v_lshl_add_u32 v48, v46, 6, v48")
    A("v_mul_u32_u24 v48, 3072, v48")
    A("v_lshrrev_b32 v47, 2, v49")
    A("v_lshl_add_u32 v48, v47, 10, v48")
    A("v_and_b32 v49, 3, v49")
    A("v_lshl_add_u32 v48, v49, 7, v48")
    A(f"s_and_b32 s{sT+1}, s{sPair}, 8")
    A(f"s_lshl_b32 s{sT+1}, s{sT+1}, 6")
    A(f"buffer_load_dword v201, v48, s[{sW}:{sW+3}], s{sT+1} offen")

def w_prefetch(A, cfg):
    assert cfg.lr == 2
    A(f"s_cmp_lt_u32 s{sPair}, 16")
    A(f"s_cselect_b32 s{sW}, s6, s12")
    A(f"s_cselect_b32 s{sW+1}, s7, s13")
    A(f"s_mov_b32 s{sW+2}, {hex(512*1536*2)}")
    A(f"s_mov_b32 s{sW+3}, 0x20000")
    A(f"s_and_b32 s{sT+1}, s{sPair}, 14")
    A(f"s_lshl_b32 s{sT+1}, s{sT+1}, 6")
    if cfg.wpf2 < 10:
        A(f"s_add_u32 s{sT+3}, s{sW}, s{sT+1}")
        A(f"s_bfe_u32 s{sT+3}, s{sT+3}, 0x30007")
    A(f"s_and_b32 s{sT}, s{sSlab}, 3")
    A(f"s_lshl_b32 s{sT}, s{sT}, 1")
    A(f"s_and_b32 s{sT+2}, s{sPair}, 1")
    A(f"s_add_u32 s{sT}, s{sT}, s{sT+2}")
    A(f"s_add_u32 s{sT}, s{sT}, s{sKC}")
    A(f"s_and_b32 s{sT}, s{sT}, 7")
    A(f"s_mul_i32 s{sT}, s{sT}, 196608")
    A(f"s_add_u32 s{sT}, s{sT}, s{sT+1}")
    A(f"s_mul_i32 s{sT+2}, s{sRG}, 49152")
    A(f"s_add_u32 s{sT}, s{sT}, s{sT+2}")
    A("v_min_u32 v46, 47, v0")
    A("v_lshlrev_b32 v46, 10, v46")
    if cfg.wpf2 < 10:
        A(f"s_cmp_eq_u32 s{sT+3}, 3")
        A("s_cselect_b64 exec, -1, 0")
    A(f"buffer_load_dword v200, v46, s[{sW}:{sW+3}], s{sT} offen")
    A("s_mov_b64 exec, -1")

def hot_prefetch(A, cfg):
    A(f"s_cmp_lt_u32 s{sPair}, 16")
    A(f"s_cselect_b32 s{sW}, s6, s12")
    A(f"s_cselect_b32 s{sW+1}, s7, s13")
    A(f"s_mov_b32 s{sW+2}, {hex(512*1536*2)}")
    A(f"s_mov_b32 s{sW+3}, 0x20000")
    A(f"s_lshr_b32 s{sT}, s{sW}, 7")
    A(f"s_sub_u32 s{sT}, 3, s{sT}")
    A(f"s_and_b32 s{sT}, s{sT}, 7")
    A(f"s_lshl_b32 s{sT}, s{sT}, 7")
    A(f"s_and_b32 s{sT+1}, s{sPair}, 15")
    A(f"s_lshl_b32 s{sT+1}, s{sT+1}, 3")
    A(f"s_add_u32 s{sT+1}, s{sT+1}, s{sSlab}")
    A(f"s_lshl_b32 s{sT+1}, s{sT+1}, 2")
    A(f"s_add_u32 s{sT+1}, s{sT+1}, s{sWave}")
    A(f"s_mul_i32 s{sT+1}, s{sT+1}, 3072")
    A(f"s_add_u32 s{sT}, s{sT}, s{sT+1}")
    A("v_min_u32 v46, 2, v0")
    A("v_lshlrev_b32 v46, 10, v46")
    A(f"buffer_load_dword v200, v46, s[{sW}:{sW+3}], s{sT} offen")

def p1_compute(A, cfg):
    A.c("---- phase 1, compute waves")
    if cfg.p1prio == 1: A("s_setprio 1")
    A("s_waitcnt lgkmcnt(0)")
    A.c("gate g = sigmoid(x . gate_w) of rows 8*wg + 2*wave, +1 (every workgroup covers 8 of the 2048 rows)")
    srd(A, sX, 4, 5, 2048 * 512 * 2)
    srd(A, sG, 16, 17, 1024)
    A(f"s_lshl_b32 s{sT+6}, s2, 2")
    A(f"s_add_u32 s{sT+6}, s{sT+6}, s{sWave}")
    A(f"s_lshl_b32 s{sT+7}, s{sT+6}, 11")
    A("v_lshlrev_b32 v13, 4, v0")
    A(f"buffer_load_dwordx4 v[32:35], v13, s[{sX}:{sX+3}], s{sT+7} offen")
    A(f"buffer_load_dwordx4 v[36:39], v13, s[{sX}:{sX+3}], s{sT+7} offen offset:1024")
    A(f"buffer_load_dwordx4 v[40:43], v13, s[{sG}:{sG+3}], 0 offen")
    if cfg.wpf:
        A.c("pull this workgroup's 1/256 share of both weight matrices towards the chip")
        A(f"s_cmp_lt_u32 s2, 128")
        A(f"s_cselect_b32 s{sW}, s6, s12")
        A(f"s_cselect_b32 s{sW+1}, s7, s13")
        A(f"s_mov_b32 s{sW+2}, {hex(512*1536*2)}")
        A(f"s_mov_b32 s{sW+3}, 0x20000")
        A(f"s_and_b32 s{sT}, s{sT+6}, 511")
        A(f"s_mul_i32 s{sT}, s{sT}, 3072")
        for i in range(3):
            A(f"buffer_load_dwordx4 v[{48+4*i}:{51+4*i}], v13, s[{sW}:{sW+3}], s{sT} offen offset:{1024*i}")
    if cfg.wpf3: hot_prefetch(A, cfg)
    if cfg.wpf2 % 10 == 1: w_prefetch(A, cfg)
    if cfg.c2c:
        A.c("the otherwise idle compute waves fetch chunk 2")
        A(f"s_cmp_lt_u32 s{sPair}, 16")
        A(f"s_cselect_b32 s{sW}, s6, s12")
        A(f"s_cselect_b32 s{sW+1}, s7, s13")
        A(f"s_mov_b32 s{sW+2}, {hex(512*1536*2)}")
        A(f"s_mov_b32 s{sW+3}, 0x20000")
        A("v_lshrrev_b32 v48, 3, v0")
        A("v_lshlrev_b32 v48, 10, v48")
        A("v_and_b32 v49, 7, v0")
        A("v_lshrrev_b32 v50, 4, v0")
        A("v_xor_b32 v49, v49, v50")
        A("v_lshl_add_u32 v48, v49, 4, v48")
        A("v_xor_b32 v49, 64, v48")
        A(f"s_add_u32 s{sK2}, s{sKC}, 2")
        A(f"s_and_b32 s{sK2}, s{sK2}, 7")
        A(f"s_lshl_b32 s{sXo}, s{sK2}, 7")
        A(f"s_lshl_b32 s{sT}, s{sSlab}, 18")
        A(f"s_add_u32 s{sXo}, s{sXo}, s{sT}")
        A(f"s_lshl_b32 s{sT}, s{sRG}, 16")
        A(f"s_add_u32 s{sXo}, s{sXo}, s{sT}")
        A(f"s_lshl_b32 s{sM}, s{sRG}, 13")
        for i in range(8):
            A(f"s_add_u32 m0, s{sM}, {XB[2] + i*1024}")
            A(f"s_add_u32 s{sT}, s{sXo}, {i*8192}")
            A(f"buffer_load_dwordx4 v{49 if i & 1 else 48}, s[{sX}:{sX+3}], s{sT} offen lds")
        A("v_lshrrev_b32 v50, 2, v0")
        A("v_mul_u32_u24 v50, 3072, v50")
        A("v_and_b32 v51, 3, v0")
        A("v_lshl_add_u32 v50, v51, 4, v50")
        A("v_xor_b32 v51, 32, v50")
        A(f"s_and_b32 s{sT}, s{sPair}, 15")
        A(f"s_lshl_b32 s{sT}, s{sT}, 6")
        A(f"s_mul_i32 s{sT+1}, s{sRG}, 49152")
        A(f"s_add_u32 s{sT}, s{sT}, s{sT+1}")
        A(f"s_mul_i32 s{sT+1}, s{sK2}, 196608")
        A(f"s_mul_i32 s{sM}, s{sRG}, 3072")
        A(f"s_add_u32 m0, s{sM}, {WB + 2*12288}")
        A(f"s_add_u32 s{sT}, s{sT}, s{sT+1}")
        for i in range(3):
            A(f"buffer_load_dwordx4 v{51 if i == 1 else 50}, s[{sW}:{sW+3}], s{sT} offen offset:{i*1024} lds")
    late_srds(A)
    A.c("wave 0 clears this workgroup's hand-off words, then counts the workgroup in")
    A(f"s_cmp_lg_u32 s{sWave}, 0")
    A("s_cbranch_scc1 L_nozero")
    A(f"s_lshl_b32 s{sT}, s{sPair}, 9")
    A(f"s_lshl_b32 s{sT+1}, s{sSlab}, 2")
    A(f"s_add_u32 s{sT}, s{sT}, s{sT+1}")
    A(f"s_add_u32 s{sT}, s{sT}, {WS_F1}")
    A("v_lshlrev_b32 v2, 7, v0")
    A(f"v_add_u32 v2, s{sT}, v2")
    A("v_mov_b32 v4, 0")
    A("s_mov_b64 exec, 0xf")
    A(f"buffer_store_dword v4, v2, s[{sWS}:{sWS+3}], 0 offen sc1")
    A("s_mov_b64 exec, -1")
    A("L_nozero:")
    p2_pre(A, False); p2_pre(A, True)
    A("v_and_b32 v2, 1, v0")
    A(f"v_lshlrev_b32 v{vPoll}, 7, v2")
    A(f"v_mov_b32 v{vZ}, 1")
    p2_addr(A)
    xfrag_addr(A, vXL, vXH, 13)
    A("v_lshrrev_b32 v13, 5, v0")
    A("v_lshlrev_b32 v13, 3, v13")
    A("v_bfe_u32 v14, v0, 2, 2")
    A("v_add_u32 v13, v13, v14")
    A("v_lshlrev_b32 v13, 6, v13")
    A("v_and_b32 v14, 3, v0")
    A("v_lshl_add_u32 v13, v14, 3, v13")
    A(f"v_add_u32 v13, {WB}, v13")
    A("v_bfe_u32 v14, v0, 4, 1")
    A("v_mul_u32_u24 v15, 1056, v14")
    A(f"v_add_u32 v{vWa}, v13, v15")
    A("v_mul_u32_u24 v15, 992, v14")
    A(f"v_add3_u32 v{vWb}, v13, v15, 32")
    A("v_lshl_add_u32 v13, v14, 5, v13")
    A(f"v_add_u32 v{vWv}, 2048, v13")
    def reads(c, j, F):
        if cfg.p1x & 8 and (c, j) != (0, 0): return ["s_nop 0"] * 8
        slot = c % 3
        xr = vXH[j] if slot == 2 else vXL[j]
        xi = XS if slot == 0 else 0
        wi = slot * 12288 + j * 3072
        return [f"ds_read_b128 {v(F,4)}, v{xr} offset:{xi}",
                f"ds_read_b64_tr_b16 {v(F+8,2)}, v{vWa} offset:{wi}",
                f"ds_read_b64_tr_b16 {v(F+10,2)}, v{vWa} offset:{wi+256}",
                f"ds_read_b128 {v(F+4,4)}, v{xr} offset:{xi+4096}",
                f"ds_read_b64_tr_b16 {v(F+12,2)}, v{vWb} offset:{wi}",
                f"ds_read_b64_tr_b16 {v(F+14,2)}, v{vWb} offset:{wi+256}",
                f"ds_read_b64_tr_b16 {v(F+16,2)}, v{vWv} offset:{wi}",
                f"ds_read_b64_tr_b16 {v(F+18,2)}, v{vWv} offset:{wi+256}"]
    def mf(F, first):
        def m(D, a, b):
            if cfg.p1x & 1 and not first: return "s_nop 1"
            if cfg.t16:
                q = 4 * (F != FR[0])
                return (f"v_mfma_f32_16x16x32_bf16 {v(D+q,4)}, {v(a,4)}, {v(b,4)}, {'0' if first else v(D+q,4)}\n"
                        f"v_mfma_f32_16x16x32_bf16 {v(D+8+q,4)}, {v(a,4)}, {v(b,4)}, {'0' if first else v(D+8+q,4)}")
            return f"v_mfma_f32_32x32x16_bf16 {v(D,16)}, {v(a,4)}, {v(b,4)}, {'0' if first else v(D,16)}"
        return [m(ACC['QKa0'], F+8, F), m(ACC['QKa1'], F+8, F+4), m(ACC['QKb0'], F+12, F),
                m(ACC['QKb1'], F+12, F+4), m(ACC['VV0'], F, F+16), m(ACC['VV1'], F+4, F+16)]
    A(f"s_lshl_b32 s{sT+6}, s{sT+6}, 3")
    A(f"s_add_u32 s{sT+6}, s{sT+6}, {WS_G}")
    A("v_lshrrev_b32 v13, 5, v0")
    A("v_lshlrev_b32 v13, 2, v13")
    A("v_mov_b32 v44, 0")
    A("v_mov_b32 v45, 0")
    if cfg.l2pf == 1: l2_prefetch(A, cfg)
    A(f"s_waitcnt vmcnt({(3 if cfg.wpf else (2 if cfg.l2pf == 1 else (1 if (cfg.wpf2 % 10 == 1 or cfg.wpf3) else (11 if cfg.c2c else 0))))})")
    if cfg.zearly == 1:
        assert not (cfg.wpf or cfg.l2pf or cfg.wpf2 or cfg.wpf3 or cfg.c2c)
        A.c("wave 0: its clears are acknowledged -> count this workgroup in")
        A(f"s_cmp_lg_u32 s{sWave}, 0")
        A("s_cbranch_scc1 L_noz0")
        A(f"s_and_b32 s{sT}, s2, 1")
        A(f"s_lshl_b32 s{sT}, s{sT}, 7")
        A("s_mov_b64 exec, 1")
        A(f"buffer_atomic_add v{vZ}, off, s[{sDBG}:{sDBG+3}], s{sT}")
        A("s_mov_b64 exec, -1")
        A("L_noz0:")
    if cfg.l2pf == 2: l2_prefetch(A, cfg)
    if cfg.wpf2 % 10 == 2: w_prefetch(A, cfg)
    for i in range(4):
        A(f"v_dot2_f32_bf16 v44, v{32+i}, v{40+i}, v44")
        A(f"v_dot2_f32_bf16 v45, v{36+i}, v{40+i}, v45")
    A("s_nop 2")
    A("v_permlane32_swap_b32 v44, v45")
    A("v_add_f32 v44, v44, v45")
    A("v_mov_b32 v45, v44")
    A("s_nop 1")
    A("v_permlane16_swap_b32 v44, v45")
    A("v_add_f32 v44, v44, v45")
    for ctl in ("quad_perm:[1,0,3,2]", "quad_perm:[2,3,0,1]", "row_half_mirror", "row_mirror"):
        A("s_nop 1")
        A(f"v_add_f32_dpp v44, v44, v44 {ctl} row_mask:0xf bank_mask:0xf")
    A(f"v_mul_f32 v44, {fbits(-LOG2E)}, v44")
    A("v_exp_f32 v44, v44")
    A("s_nop 0")
    A("v_add_f32 v44, 1.0, v44")
    A("v_rcp_f32 v44, v44")
    A("s_mov_b32 exec_lo, 1")
    A("s_mov_b32 exec_hi, 1")
    A(f"buffer_store_dword v44, v13, s[{sWS}:{sWS+3}], s{sT+6} offen sc1")
    A("s_mov_b64 exec, -1")
    if cfg.wpf: A("s_waitcnt vmcnt(1)")
    A("s_barrier")
    stamp(A, cfg, 1)
    for r in reads(0, 0, FR[0]): A(r)
    def wave0_block(n):
        if n == cfg.n_add and cfg.zearly != 1 and not cfg.noz:
            A(f"s_cmp_lg_u32 s{sWave}, 0")
            A("s_cbranch_scc1 L_noz0")
            A("s_mov_b64 exec, 1")
            A(f"buffer_atomic_add v{vZ}, off, s[{sDBG}:{sDBG+3}], s{sZp}")
            A("s_mov_b64 exec, -1")
            A("L_noz0:")
        if n == cfg.n_z and not cfg.noz and not cfg.zld:
            A(f"s_cmp_lg_u32 s{sWave}, 0")
            A("s_cbranch_scc1 L_noz1")
            A(ZLOAD)
            A("L_noz1:")
    if cfg.p1pipe == 0:
        for n in range(32):
            c, j = divmod(n, 4)
            M = mf(FR[n & 1], n == 0)
            A("s_waitcnt lgkmcnt(0)" if (n != 7 or cfg.zearly) else "s_waitcnt vmcnt(0) lgkmcnt(0)")
            if n == 31:
                for m in M: A(m)
                break
            if j == 3: A("s_barrier")
            c2, j2 = divmod(n + 1, 4)
            R = reads(c2, j2, FR[(n + 1) & 1])
            A(M[0]); A(R[0]); A(R[1]); A(R[2])
            A(M[1]); A(R[3]); A(R[4]); A(R[5])
            A(M[2]); A(R[6]); A(R[7])
            A(M[3])
            wave0_block(n)
            A(M[4]); A(M[5])
    else:
        for n in range(32):
            c, j = divmod(n, 4)
            M = mf(FR[n & 1], n == 0)
            last = n == 31
            c2, j2 = divmod(n + 1, 4)
            R = [""] * 8 if last else reads(c2, j2, FR[(n + 1) & 1])
            k = 0 if last else 3
            A("s_waitcnt lgkmcnt(5)")
            A(M[0])
            A("s_waitcnt lgkmcnt(4)")
            A(M[1])
            if n == 7: A("s_waitcnt vmcnt(0)")
            if j == 3 and not last: A("s_barrier")
            for x in R[0:3]: A(x)
            A(f"s_waitcnt lgkmcnt({2 + k})")
            A(M[2])
            for x in R[3:6]: A(x)
            A(M[3])
            wave0_block(n)
            A(f"s_waitcnt lgkmcnt({2*k})")
            if j == 3 and not last: A("s_barrier")
            A(M[4])
            for x in R[6:8]: A(x)
            A(M[5])

def p1_compute_epilogue(A, cfg):
    A.c("---- phase 1 epilogue: round K/V, publish them (write-through) and keep them in LDS")
    A(f"s_lshl_b32 s{sT}, s{sPair}, 3")
    A(f"s_add_u32 s{sT}, s{sT}, s{sSlab}")
    A(f"s_lshl_b32 s{sT}, s{sT}, 15")
    A(f"s_lshl_b32 s{sT+1}, s{sRG}, 12")
    A(f"s_add_u32 s{sT}, s{sT}, s{sT+1}")
    A(f"s_add_u32 s{sT+1}, s{sT}, 16384")
    A("v_bfe_u32 v13, v0, 4, 1")
    A("v_lshrrev_b32 v14, 5, v0")
    A("v_and_b32 v15, 15, v0")
    A("v_lshlrev_b32 v15, 4, v15")
    A("v_lshl_add_u32 v15, v14, 8, v15")
    A("v_add_u32 v15, 1024, v15")
    A("v_lshl_add_u32 v3, v13, 14, v15")
    A(f"s_mul_i32 s{sT+2}, s{sRG}, {2*REC}")
    A(f"s_add_u32 s{sT+2}, s{sT+2}, {SB}")
    A(f"v_add_u32 v4, s{sT+2}, v{vKP if cfg.sm else vL16}")
    A(f"v_mul_u32_u24 v13, {HSTR}, v13")
    A(f"v_add3_u32 v5, v13, v15, s{sT+2}")
    if not cfg.zld:
        A.c("wave 0: every workgroup has cleared its hand-off words (checked before any flag is read)")
        A(f"s_cmp_lg_u32 s{sWave}, 0")
        A("s_cbranch_scc1 L_noz2")
        A(f"s_movk_i32 s{sT+3}, 128")
        if not cfg.noz: spin(A, "z", ZLOAD, vZ, f"s{sT+3}", "gt")
        A("L_noz2:")
    def cvt(dst, src):
        for i in range(4):
            A(f"v_cvt_pk_bf16_f32 v{dst+i}, v{src+2*i}, v{src+2*i+1}")
    if cfg.epi2:
        tmp = [128, 132, 136, 140, 144, 148, 152, 156]
        A(f"s_mov_b32 s{sT+4}, {fbits(QSCALE)}")
        A(f"s_mov_b32 s{sT+5}, {fbits(QSCALE)}")
        A(f"s_lshl_b32 s{sT+6}, s{sRG}, 11")
        A(f"s_add_u32 s{sT+6}, s{sT+6}, {QX}")
        A(f"v_add_u32 v6, s{sT+6}, v{vL16}")
        items = []
        for hd, names in ((0, ("QKa0", "QKa1")), (1, ("QKb0", "QKb1"))):
            for t in (0, 1):
                items.append((ACC[names[t]] + 8, f"v{vKP if cfg.sm else vL16}, s[{sWS}:{sWS+3}], s{sT+hd} offen offset:{t*2048}", "v4", hd*HSTR + t*REC))
        for t in (0, 1):
            for a in (0, 1):
                items.append((ACC[f"VV{t}"] + 8 * a, f"v3, s[{sWS}:{sWS+3}], s{sT} offen offset:{t*2048 + a*512}", "v5", t*REC + a*512))
        qs = [("QKb0", 16, 0), ("QKb1", 20, 1024), ("QKa0", vQ[0], None), ("QKa1", vQ[1], None)]
        for k, (src, gaddr, laddr, loff) in enumerate(items):
            cvt(tmp[k], src)
            A(f"buffer_store_dwordx4 {v(tmp[k],4)}, {gaddr} sc1")
            A(f"ds_write_b128 {laddr}, {v(tmp[k],4)} offset:{loff}")
            nm, dst, qoff = qs[k >> 1]
            q = ACC[nm]
            if k & 1 == 0:
                for i in range(4): A(f"v_pk_mul_f32 {v(q+2*i,2)}, {v(q+2*i,2)}, s[{sT+4}:{sT+5}]")
            else:
                cvt(dst, q)
                if qoff is not None: A(f"ds_write_b128 v6, {v(dst,4)} offset:{qoff}")
    else:
        tmp = [128, 132, 136, 140, 144, 148, 152, 156]
        if cfg.epist: stamp(A, cfg, 3)
        k = 0
        for hd, names in ((0, ("QKa0", "QKa1")), (1, ("QKb0", "QKb1"))):
            for t in (0, 1):
                cvt(tmp[k], ACC[names[t]] + 8)
                A(f"buffer_store_dwordx4 {v(tmp[k],4)}, v{vL16}, s[{sWS}:{sWS+3}], s{sT+hd} offen offset:{t*2048} sc1")
                k += 1
        if cfg.epist: stamp(A, cfg, 4)
        for t in (0, 1):
            for a in (0, 1):
                cvt(tmp[k], ACC[f"VV{t}"] + 8 * a)
                A(f"buffer_store_dwordx4 {v(tmp[k],4)}, v3, s[{sWS}:{sWS+3}], s{sT} offen offset:{t*2048 + a*512} sc1")
                k += 1
        if cfg.epist: stamp(A, cfg, 5)
        k = 0
        for hd in (0, 1):
            for t in (0, 1):
                A(f"ds_write_b128 v4, {v(tmp[k],4)} offset:{hd*HSTR + t*REC}"); k += 1
        for t in (0, 1):
            for a in (0, 1):
                A(f"ds_write_b128 v5, {v(tmp[k],4)} offset:{t*REC + a*512}"); k += 1
        if cfg.epist: stamp(A, cfg, 6)
        A(f"s_mov_b32 s{sT+4}, {fbits(QSCALE)}")
        A(f"s_mov_b32 s{sT+5}, {fbits(QSCALE)}")
        A(f"s_lshl_b32 s{sT+2}, s{sRG}, 11")
        A(f"s_add_u32 s{sT+2}, s{sT+2}, {QX}")
        A(f"v_add_u32 v4, s{sT+2}, v{vL16}")
        for hd, names in ((1, ("QKb0", "QKb1")), (0, ("QKa0", "QKa1"))):
            for t in (0, 1):
                q = ACC[names[t]]
                for i in range(4):
                    A(f"v_pk_mul_f32 {v(q+2*i,2)}, {v(q+2*i,2)}, s[{sT+4}:{sT+5}]")
                dst = vQ[t] if hd == 0 else 16 + 4 * t
                cvt(dst, q)
                if hd == 1: A(f"ds_write_b128 v4, {v(dst,4)} offset:{t*1024}")
    if cfg.epist: stamp(A, cfg, 7)
    A("s_waitcnt lgkmcnt(0)")
    if cfg.epist: stamp(A, cfg, 8)
    A("s_barrier")
    if cfg.epist:
        stamp(A, cfg, 9)
        A("s_waitcnt vmcnt(0)")
        stamp_store(A, cfg, 10)
        A("s_endpgm")
    A.c("K/V stores acknowledged -> raise this wave's flag")
    A(f"v_mov_b32 v{vZ}, 1")
    A(f"s_lshl_b32 s{sJ}, s{sSlab}, 2")
    A(f"s_add_u32 s{sJ}, s{sJ}, s{sF}")
    lstamp(A, cfg, 46)
    if cfg.c1c:
        A(F1LOAD)
        p2_setup(A, cfg)
        A(f"s_lshl_b32 s{sT}, s{sSlab}, 2")
        A(f"v_cmp_eq_u32 s[{sT+2}:{sT+3}], s{sT}, v{vPA}")
        A("s_waitcnt vmcnt(3)")
    else:
        A("s_waitcnt vmcnt(0)")
    A("s_mov_b64 exec, 1")
    A(f"buffer_store_dword v{vZ}, off, s[{sWS}:{sWS+3}], s{sJ} sc1")
    A("s_mov_b64 exec, -1")
    lstamp(A, cfg, 47)
    if cfg.c1c:
        A("s_waitcnt vmcnt(3)")
        A(f"v_cmp_ne_u32 vcc, 1, v{vPoll}")
        A(f"s_mov_b32 s{sSpin}, {SPIN_MAX}")
        A(f"s_andn2_b64 s[{sT+4}:{sT+5}], vcc, s[{sT+2}:{sT+3}]")
        A("s_cbranch_scc1 L_f1c")
        A("L_f1c_ret:")
        T = Asm()
        T("L_f1c:")
        T(F1LOAD)
        T(f"s_sub_u32 s{sSpin}, s{sSpin}, 1")
        T("s_cbranch_scc1 L_f1c_ret")
        T("s_waitcnt vmcnt(0)")
        T(f"v_cmp_ne_u32 vcc, 1, v{vPoll}")
        T("s_nop 0")
        T(f"s_andn2_b64 s[{sT+4}:{sT+5}], vcc, s[{sT+2}:{sT+3}]")
        T("s_cbranch_scc1 L_f1c")
        T("s_branch L_f1c_ret")
        tails.append(T)
        lstamp(A, cfg, 49)
        for x in kv_setup(1): A(x)
        for job in kv_jobs(1):
            for x in job: A(x)
        A(f"s_add_u32 s{sCO}, s{sCO}, 16384")
        for job in kv_jobs(1, -1):
            for x in job: A(x)

def p1_loader(A, cfg):
    A.c("---- phase 1, loader waves: LDS-DMA of x / W chunks")
    if cfg.p1prio == 2: A("s_setprio 1")
    A("v_lshrrev_b32 v13, 3, v0")
    A("v_lshlrev_b32 v13, 10, v13")
    A("v_and_b32 v14, 7, v0")
    A("v_lshrrev_b32 v15, 4, v0")
    A("v_xor_b32 v14, v14, v15")
    A("v_lshl_add_u32 v13, v14, 4, v13")
    A("v_xor_b32 v14, 64, v13")
    for i in range(8):
        A(f"v_add_u32 v{2+i}, {i*8192 - (i&3)*1024}, v{14 if i & 1 else 13}")
    A(f"s_lshl_b32 s{sXb}, s{sSlab}, 18")
    A(f"s_lshl_b32 s{sT}, s{sRG}, 16")
    A(f"s_add_u32 s{sXb}, s{sXb}, s{sT}")
    def issue_x(c):
        slot = c % 3
        A(f"s_add_u32 s{sK2}, s{sKC}, {c}")
        A(f"s_and_b32 s{sK2}, s{sK2}, 7")
        A(f"s_lshl_b32 s{sXo}, s{sK2}, 7")
        A(f"s_lshl_b32 s{sM}, s{sRG}, 13")
        A(f"s_add_u32 m0, s{sM}, {XB[slot]}")
        A(f"s_add_u32 s{sXo}, s{sXo}, s{sXb}")
        for i in range(8):
            if i == 4:
                A(f"s_add_u32 m0, s{sM}, {XB[slot] + 4096}")
                A("s_nop 0")
            A(f"buffer_load_dwordx4 v{2+i}, s[{sX}:{sX+3}], s{sXo} offen offset:{(i&3)*1024} lds")
    def issue_w(c):
        slot = c % 3
        A(f"s_mul_i32 s{sM}, s{sRG}, 3072")
        A(f"s_mul_i32 s{sWo}, s{sK2}, 196608")
        A(f"s_add_u32 m0, s{sM}, {WB + slot*12288}")
        A(f"s_add_u32 s{sWo}, s{sWo}, s{sWb_}")
        for i in range(3):
            A(f"buffer_load_dwordx4 v{11 if i == 1 else 10}, s[{sW}:{sW+3}], s{sWo} offen offset:{i*1024} lds")
    def pf_setup():
        assert cfg.lr == 2
        A(f"s_and_b32 s{sT}, s{sPair}, 7")
        A(f"s_lshl_b32 s{sT}, s{sT}, 15")
        A(f"s_lshl_b32 s{sT+1}, s{sRG}, 13")
        A(f"s_add_u32 s{sT}, s{sT}, s{sT+1}")
        A(f"s_lshl_b32 s{sT+1}, s{sSlab}, 18")
        A(f"s_add_u32 s{sT}, s{sT}, s{sT+1}")
        A(f"s_add_u32 s12, s{sX}, s{sT}")
        A(f"s_addc_u32 s13, s{sX+1}, 0")
        A(f"s_and_b32 s{sT}, s{sSlab}, 3")
        A(f"s_lshl_b32 s{sT}, s{sT}, 1")
        A(f"s_and_b32 s{sT+1}, s{sPair}, 1")
        A(f"s_add_u32 s{sT}, s{sT}, s{sT+1}")
        A(f"s_lshl_b32 s{sT}, s{sT}, 2")
        A(f"s_add_u32 s{sT}, s{sT}, s{sRG}")
        A(f"s_mul_i32 s{sT}, s{sT}, 6144")
        A(f"s_and_b32 s{sT+1}, s{sPair}, 14")
        A(f"s_lshl_b32 s{sT+1}, s{sT+1}, 6")
        A(f"s_add_u32 s{sT}, s{sT}, s{sT+1}")
        A(f"s_add_u32 s16, s{sW}, s{sT}")
        A(f"s_addc_u32 s17, s{sW+1}, 0")
    def pf(c):
        if not cfg.spf or c > 7: return
        A(f"s_add_u32 s{sT}, s{sKC}, {c}")
        A(f"s_and_b32 s{sT}, s{sT}, 7")
        A(f"s_mul_i32 s{sT+1}, s{sT}, 196608")
        A(f"s_lshl_b32 s{sT}, s{sT}, 7")
        if cfg.spfw != 2:
            for e in range(6): A(f"s_load_dword s10, s[16:17], s{sT+1} offset:{1024*e}")
        if cfg.spfw != 1:
            for e in range(8): A(f"s_load_dword s10, s[12:13], s{sT} offset:{1024*e}")
    def issue(c):
        if cfg.wfirst:
            A(f"s_add_u32 s{sK2}, s{sKC}, {c}")
            A(f"s_and_b32 s{sK2}, s{sK2}, 7")
            issue_w(c); issue_x(c)
        else:
            issue_x(c); issue_w(c)
    if cfg.rot in (16, 17, 18):
        A(f"s_and_b32 s{sT+1}, s{sPair}, 3")
        A(f"s_lshl_b32 s{sT+1}, s{sT+1}, 1")
        A(f"s_and_b32 s{sT+3}, s2, 1")
        A(f"s_add_u32 s{sT+1}, s{sT+1}, s{sT+3}")
        if cfg.rot == 16:
            A(f"s_lshr_b32 s{sT+2}, s{sPair}, 1")
            A(f"s_add_u32 s{sT+2}, s{sT+2}, s{sSlab}")
            A(f"s_lshl_b32 s{sT+2}, s{sT+2}, 1")
            A(f"s_add_u32 s{sT+2}, s{sT+2}, s{sT+3}")
        elif cfg.rot == 17:
            A(f"s_lshl_b32 s{sT+2}, s{sSlab}, 1")
            A(f"s_add_u32 s{sT+2}, s{sT+2}, s{sPair}")
        else:
            A(f"s_add_u32 s{sT+2}, s{sPair}, s{sSlab}")
            A(f"s_lshl_b32 s{sT+2}, s{sT+2}, 1")
            A(f"s_add_u32 s{sT+2}, s{sT+2}, s{sT+3}")
    if cfg.rot >= 19:
        A(f"s_lshr_b32 s{sT+1}, s{sPair}, 1")
        A(f"s_add_u32 s{sT+1}, s{sT+1}, s{sSlab}")
        if cfg.rot == 19: A(f"s_and_b32 s{sT+1}, s{sT+1}, 3")
        if cfg.rot == 20:
            A(f"s_and_b32 s{sT+1}, s{sT+1}, 1")
            A(f"s_lshl_b32 s{sT+1}, s{sT+1}, 1")
        if cfg.rot == 21:
            A(f"s_and_b32 s{sT+1}, s{sT+1}, 3")
            A(f"s_lshl_b32 s{sT+1}, s{sT+1}, 1")
            A(f"s_min_u32 s{sT+1}, s{sT+1}, 5")
        if cfg.rot == 22:
            A(f"s_and_b32 s{sT+1}, s{sT+1}, 3")
            A(f"s_mul_i32 s{sT+1}, s{sT+1}, 3")
            A(f"s_lshr_b32 s{sT+1}, s{sT+1}, 1")
        if cfg.rot == 23:
            A(f"s_and_b32 s{sT+1}, s{sT+1}, 1")
            A(f"s_mul_i32 s{sT+1}, s{sT+1}, 3")
        A(f"s_add_u32 s{sT+1}, s{sT+1}, 4")
    A("s_waitcnt lgkmcnt(0)")
    if cfg.rot >= 19:
        A(f"s_lshr_b32 s{sT+2}, s4, 7")
        A(f"s_sub_u32 s{sKC}, s{sT+1}, s{sT+2}")
        A(f"s_and_b32 s{sKC}, s{sKC}, 7")
    if cfg.rot in (16, 17, 18):
        A(f"s_cmp_lt_u32 s{sPair}, 16")
        A(f"s_cselect_b32 s{sT+4}, s6, s12")
        A(f"s_lshr_b32 s{sT+4}, s{sT+4}, 7")
        A(f"s_lshr_b32 s{sT+5}, s{sPair}, 1")
        A(f"s_add_u32 s{sT+4}, s{sT+4}, s{sT+5}")
        A(f"s_and_b32 s{sT+4}, s{sT+4}, 7")
        A(f"s_cmp_eq_u32 s{sT+4}, 3")
        A(f"s_cselect_b32 s{sKC}, s{sT+2}, s{sT+1}")
        A(f"s_and_b32 s{sKC}, s{sKC}, 7")
    srd(A, sX, 4, 5, 2048 * 512 * 2)
    lstamp(A, cfg, 1)
    issue_x(0)
    lstamp(A, cfg, 2)
    A(f"s_cmp_lt_u32 s{sPair}, 16")
    A(f"s_cselect_b32 s{sW}, s6, s12")
    A(f"s_cselect_b32 s{sW+1}, s7, s13")
    A(f"s_mov_b32 s{sW+2}, {hex(512*1536*2)}")
    A(f"s_mov_b32 s{sW+3}, 0x20000")
    A(f"s_and_b32 s{sWb_}, s{sPair}, 15")
    A(f"s_lshl_b32 s{sWb_}, s{sWb_}, 6")
    A(f"s_mul_i32 s{sT}, s{sRG}, 49152")
    A(f"s_add_u32 s{sWb_}, s{sWb_}, s{sT}")
    if cfg.wfull:
        A("v_lshrrev_b32 v13, 3, v0")
        A("v_mul_u32_u24 v13, 3072, v13")
        A("v_and_b32 v14, 7, v0")
        A(f"s_and_b32 s{sWb_}, s{sWb_}, 0xffffff80")
    else:
        A("v_lshrrev_b32 v13, 2, v0")
        A("v_mul_u32_u24 v13, 3072, v13")
        A("v_and_b32 v14, 3, v0")
    A("v_lshl_add_u32 v10, v14, 4, v13")
    A("v_xor_b32 v11, 32, v10")
    issue_w(0)
    if cfg.spf and cfg.spfe:
        pf_setup()
        for c in range(2, 2 + cfg.spf): pf(c)
    if cfg.late1 == 1: A("s_waitcnt vmcnt(3)")
    if cfg.late1 == 2: A("s_waitcnt vmcnt(8)")
    if cfg.late1 == 3: A("s_waitcnt vmcnt(10)")
    issue(1)
    if cfg.spf and not cfg.spfe:
        pf_setup()
        for c in range(2, 2 + cfg.spf): pf(c)
    lstamp(A, cfg, 3)
    late_srds(A)
    p2_addr(A)
    p2_pre(A, False)
    A(f"v_mov_b32 v{vZ}, 1")
    for c in range(8):
        lstamp(A, cfg, 4 + 3*c)
        A(f"s_waitcnt vmcnt({0 if (cfg.c2c and c == 1) else ((11 if c < 7 else 0) if not (cfg.p1x & 2) else 0)})")
        lstamp(A, cfg, 5 + 3*c)
        A("s_barrier")
        lstamp(A, cfg, 6 + 3*c)
        if c == 0: stamp(A, cfg, 1)
        if cfg.p1pipe and c >= 1: A("s_barrier")
        if c <= 5 and not (cfg.p1x & 2) and not (cfg.c2c and c == 0):
            pf(c + 2 + cfg.spf)
            issue(c + 2)
        if c <= 5 and cfg.p1x & 4:
            for _ in range(0): pass
    if cfg.zld:
        A.c("wave 4: every workgroup has cleared its hand-off words (checked before any flag is read)")
        A(f"s_cmp_lg_u32 s{sWave}, 4")
        A("s_cbranch_scc1 L_noz2")
        A(ZLOAD)
        A("L_noz2:")
    p2_pre(A, True)
    consts(A, [SB, SC])
    if cfg.zld:
        A(f"s_cmp_lg_u32 s{sWave}, 4")
        A("s_cbranch_scc1 L_noz3")
        spin(A, "z", ZLOAD, vZ, 8, "gt", 4)
        A("L_noz3:")
    A(f"v_add_u32 v104, {(SA - SB) % (1 << 32)}, v104")
    A("s_waitcnt lgkmcnt(0)")
    A(f"s_lshl_b32 s{sT+2}, s{sRG}, 11")
    A(f"s_add_u32 s{sT+2}, s{sT+2}, {QX}")
    A(f"v_add_u32 v4, s{sT+2}, v{vL16}")
    A("s_barrier")
    if cfg.epist: A("s_endpgm")
    if not cfg.uni and cfg.t_load < 0: A(F1LOAD)
    A("ds_read_b128 v[8:11], v4")
    A("ds_read_b128 v[12:15], v4 offset:1024")
    A("s_mov_b64 exec, 0xffff")
    A("ds_write_b128 v104, v[108:111] offset:2048")
    A("ds_write_b128 v104, v[112:115] offset:2064")
    A("s_mov_b64 exec, -1")

vKf, vV0f, vV1f = 16, 20, 24
S_, O_, P_ = [32, 48], [64, 80], 96
M32 = "v_mfma_f32_32x32x16_bf16"
def slot_base(i): return (SB, SC, SA)[i % 3]

def p2_setup(A, cfg, now=False):
    if cfg.zearly and not now: return
    A(f"buffer_load_dword v{vGF[0]}, v{vGA}, s[{sWS}:{sWS+3}], s{sGo} offen sc1")
    A(f"buffer_load_dword v{vGF[1]}, v{vGA}, s[{sWS}:{sWS+3}], s{sGo} offen offset:128 sc1")

def p2_pre(A, own_temps):
    if not own_temps:
        A(f"v_and_b32 v{vGA}, 31, v0")
        A(f"v_lshlrev_b32 v{vGA}, 2, v{vGA}")
        A(f"s_lshl_b32 s{sGo}, s{sSlab}, 10")
        A(f"s_lshl_b32 s{sT+1}, s{sRG}, 8")
        A(f"s_add_u32 s{sGo}, s{sGo}, s{sT+1}")
        A(f"s_add_u32 s{sGo}, s{sGo}, {WS_G}")
        for i in range(4): A(f"v_mov_b32 v{vFill+i}, -1")
        for i in range(4): A(f"v_mov_b32 v{vZero+i}, 0")
        A(f"v_mov_b32 v{vIdx}, 0xdddd")
        A(f"v_and_b32 v{vKP}, 0x33, v0")
        A(f"v_bfe_u32 v{vZA}, v0, 2, 1")
        A(f"v_lshl_or_b32 v{vKP}, v{vZA}, 3, v{vKP}")
        A(f"v_bfe_u32 v{vZA}, v0, 3, 1")
        A(f"v_lshl_or_b32 v{vKP}, v{vZA}, 2, v{vKP}")
        A(f"v_lshlrev_b32 v{vKP}, 4, v{vKP}")
        A(f"v_and_b32 v{vZA}, 1, v0")
        A(f"v_lshlrev_b32 v{vZA}, 7, v{vZA}")
        A(f"v_mov_b32 v{vZ2}, 128")
        return
    A(f"s_lshl_b32 s{sCH}, s{sPair}, 18")
    A(f"s_lshl_b32 s{sT+1}, s{sWave}, 12")
    A(f"s_add_u32 s{sCH}, s{sCH}, s{sT+1}")
    A(f"s_mul_i32 s{sMB}, s{sWave}, {2*REC}")
    A(f"s_lshl_b32 s{sWoG}, s{sWave}, 13")
    A(f"s_lshl_b32 s{sT+1}, s{sC3}, 7")
    A(f"s_add_u32 s{sWoG}, s{sWoG}, s{sT+1}")
    A(f"s_lshl_b32 s{sWoM}, s{sWave}, 10")
    A(f"s_andn2_b32 s{sT+1}, 4, s{sSlab}")
    A(f"s_lshl_b32 s{sT+1}, s{sT+1}, 15")
    A(f"s_add_u32 s{sCHx}, s{sCH}, s{sT+1}")

ORDER = [0]
sCHx = 12
def kv_setup(i):
    if ORDER[0]:
        if i <= 4: return [f"s_add_u32 s{sCO}, s{sCHx}, {(i - 1) << 15}"]
        return [f"s_add_u32 s{sCO}, s{sSlab}, {i - 4}", f"s_and_b32 s{sCO}, s{sCO}, 3", f"s_and_b32 s{sJ}, s{sSlab}, 4",
                f"s_or_b32 s{sCO}, s{sCO}, s{sJ}", f"s_lshl_b32 s{sCO}, s{sCO}, 15", f"s_add_u32 s{sCO}, s{sCO}, s{sCH}"]
    return [f"s_add_u32 s{sCO}, s{sSlab}, {i}", f"s_and_b32 s{sCO}, s{sCO}, 7",
            f"s_lshl_b32 s{sCO}, s{sCO}, 15", f"s_add_u32 s{sCO}, s{sCO}, s{sCH}"]
def kv_jobs(i, other=False):
    base = slot_base(i) - (HSTR * int(other))
    ld = lambda o: f"buffer_load_dwordx4 v{vL16}, s[{sWS}:{sWS+3}], s{sCO} offen offset:{o} sc1 lds"
    return [[f"s_add_u32 m0, s{sMB}, {base}", "s_nop 0", ld(0)], [ld(1024)],
            [f"s_add_u32 m0, s{sMB}, {base + REC - 2048}", "s_nop 0", ld(2048)], [ld(3072)]]
def wo_job(j):
    srd_ = sWOA if j < 8 else sWOB
    return [f"s_add_u32 m0, s{sWoM}, {WO + j*8192}", f"s_add_u32 s{sJ}, s{sWoG}, {(j&7)*65536}",
            f"buffer_load_dwordx4 v{vWoD}, s[{srd_}:{srd_+3}], s{sJ} offen lds"]

def rd(kind, i, t):
    if t == 8: i, t = i + 1, 0
    hi = slot_base(i) == SC
    imm = (0 if hi else slot_base(i)) + t * REC
    if kind == 'K': return f"ds_read_b128 {v(vKf,4)}, v{vKH if hi else vKL} offset:{imm}"
    r = f"ds_read_b128 {v(vV0f,4)}, v{vV0H if hi else vV0L} offset:{imm}" if kind == 'V0' else f"ds_read_b128 {v(vV1f,4)}, v{vV1H if hi else vV1L} offset:{imm}"
    if VMASK[0]: r = f"s_mov_b64 exec, s[{sVM}:{sVM+1}]\n{r}\ns_mov_b64 exec, -1"
    return r

def unit(A, q, first, last, slotA, slotB, slotC, first_o, order=0):
    S, Sn, O, Op = S_[q], S_[q ^ 1], O_[q], O_[q ^ 1]
    e = lambda i: A(f"v_exp_f32 v{S+i}, v{S+i}")
    c = lambda i: A(f"v_cvt_pk_bf16_f32 v{P_+i}, v{S+2*i}, v{S+2*i+1}")
    def run(sl):
        for x in sl:
            if callable(x): x(A)
            else: A(x)
    if not SMUSE[0]:
        e(0)
        if not first: A(f"v_cvt_pk_bf16_f32 v{P_+7}, v{Sn+14}, v{Sn+15}")
        e(1); e(2)
    sw = (lambda a, b: f"{b}, {a}") if PVSWAP[0] else (lambda a, b: f"{a}, {b}")
    if not SMUSE[0]:
        if not first: A(f"{M32} {v(Op,16)}, {sw(v(vV1f,4), v(P_+4,4))}, {v(Op,16)}")
        run(slotA)
    if SMUSE[0]:
        qk = lambda: None if last else A(f"{M32} {v(Sn,16)}, {v(vKf,4)}, {v(vQ[q^1],4)}, {SHIFT[0]}")
        pos = {1: (1, 4, 9), 2: (2, 4, 10), 3: (1, 3, 9)}[SMUSE[0]]
        for i in range(16):
            e(i)
            if i == pos[0]:
                if not first: A(f"{SM} {v(Op,16)}, {v(vV1f,4)}, {v(Sn+8,8)}, v{vIdx}")
                run(slotA)
            if i == pos[1]: qk(); run(slotB)
            if i == pos[2]:
                A(f"{SM} {v(O,16)}, {v(vV0f,4)}, {v(S,8)}, v{vIdx}")
                run(slotC)
        return
    qk = lambda: None if last else A(f"{M32} {v(Sn,16)}, {v(vKf,4)}, {v(vQ[q^1],4)}, 0")
    pv = lambda: A(f"{M32} {v(O,16)}, {sw(v(vV0f,4), v(P_,4))}, {'0' if first_o else v(O,16)}")
    if order == 0:
        c(0); e(3); e(4); c(1); e(5); e(6)
        qk(); run(slotB)
        c(2); e(7); e(8); c(3); e(9); e(10)
        pv(); run(slotC)
        c(4); e(11); e(12); c(5); e(13); e(14); c(6); e(15)
    elif order == 1:
        c(0); e(3); e(4); c(1); e(5); e(6); c(2); e(7)
        qk(); run(slotB)
        e(8); c(3); e(9); e(10); c(4); e(11); e(12)
        pv(); run(slotC)
        c(5); e(13); e(14); c(6); e(15)
    elif order == 2:
        c(0); e(3); e(4)
        qk(); run(slotB)
        c(1); e(5); e(6); c(2); e(7); e(8); c(3); e(9); e(10)
        pv(); run(slotC)
        c(4); e(11); e(12); c(5); e(13); e(14); c(6); e(15)

def p2_main(A, cfg):
    A.c("---- phase 2: attention.  P = exp2(S) with no shift; the row sums ride in the PV MFMA (ones rows);")
    A.c("     they are range-checked afterwards and the true-max path redoes the wave when they are out of range")
    jobs = {}; jobs0 = {}
    def add(i, t, xs): jobs.setdefault((i, t), []).extend(xs)
    for i in range(8):
        if cfg.prio == 1:
            for t, pr in ((1, 2), (3, 1), (5, 0), (7, 3)): add(i, t, [f"s_setprio {pr}"])
        if cfg.prio == 2:
            for t, pr in ((0, 2), (2, 1), (5, 0), (7, 3)): add(i, t, [f"s_setprio {pr}"])
        if cfg.prio == 3:
            for t, pr in ((2, 2), (4, 1), (6, 0), (7, 3)): add(i, t, [f"s_setprio {pr}"])
        if cfg.prio >= 100:
            pp = cfg.prio0 if i == 0 else cfg.prio
            drops = [(pp >> 8) & 15, (pp >> 4) & 15, pp & 15]
            for u, pr in zip(drops, (2, 1, 0)):
                if u & 1: add(i, u >> 1, [f"s_setprio {pr}"])
                else: jobs0.setdefault((i, u >> 1), []).append(f"s_setprio {pr}")
            if not cfg.bq0: add(i, 7, ["s_setprio 3"])
    def first_chunks(i, nm):
        def f(A):
            A(f"s_cmp_lt_u32 s{sWave}, 4")
            A(f"s_cbranch_scc1 L_skip_{nm}")
            if i == 1 or cfg.c1c:
                lstamp(A, cfg, 48)
                spin(A, "f1", F1LOAD, vPoll, 1)
                lstamp(A, cfg, 49)
            for x in kv_setup(i): A(x)
            for job in kv_jobs(i):
                for x in job: A(x)
            A(f"s_sub_u32 s{sCO}, s{sCO}, 16384")
            for job in kv_jobs(i, True):
                for x in job: A(x)
            A(f"L_skip_{nm}:")
        return f
    if cfg.uni:
        add(0, cfg.uni - 1, [F1LOAD])
        add(0, cfg.uni, [lambda A: lstamp(A, cfg, 48), lambda A: spin(A, "f1", F1LOAD, vPoll, 1), lambda A: lstamp(A, cfg, 49)]
            + kv_setup(1) + sum(kv_jobs(1), []))
    else:
        if cfg.t_load >= 0:
            add(0, cfg.t_load, [f"s_cmp_lt_u32 s{sWave}, 4", "s_cbranch_scc1 L_nopoll", F1LOAD, "L_nopoll:"])
        if not cfg.c1c: add(0, cfg.t_poll, [first_chunks(1, "c1")])
        add(0, cfg.t_c2, [first_chunks(2, "c2")])
    if cfg.bq0:
        pass
    elif cfg.uni:
        add(0, 6, [lambda A: lstamp(A, cfg, 50), "s_waitcnt vmcnt(0)", lambda A: lstamp(A, cfg, 51), "s_barrier", lambda A: lstamp(A, cfg, 52)])
    elif cfg.c1c:
        add(0, 6, [lambda A: lstamp(A, cfg, 50), f"s_cmp_ge_u32 s{sWave}, 4", "s_cbranch_scc1 L_nw1", "s_waitcnt vmcnt(0)", "L_nw1:",
                   lambda A: lstamp(A, cfg, 51), "s_barrier", lambda A: lstamp(A, cfg, 52)])
    else:
        add(0, 6, [lambda A: lstamp(A, cfg, 50), "s_waitcnt vmcnt(8)", lambda A: lstamp(A, cfg, 51), "s_barrier", lambda A: lstamp(A, cfg, 52)])
    for i in range(8): add(i, 7, ["s_waitcnt vmcnt(0)", "s_barrier"])
    for i in range(1, 6):
        J = kv_jobs(i + 2)
        if cfg.uni and i == 1:
            J2 = kv_jobs(2)
            add(1, 0, kv_setup(2) + J2[0] + J2[1]); add(1, 1, J2[2] + J2[3])
            add(1, 2, kv_setup(3) + J[0] + J[1]); add(1, 3, J[2] + J[3])
            add(1, 6, ["s_waitcnt vmcnt(6)", "s_barrier"])
            continue
        if cfg.kv2:
            add(i, 0, kv_setup(i + 2) + J[0] + J[1]); add(i, 1, J[2] + J[3])
        else:
            add(i, 0, kv_setup(i + 2) + J[0]); add(i, 1, J[1]); add(i, 2, J[2]); add(i, 3, J[3])
    wo = {1: [9, 10], 2: [11, 12], 3: [13, 14]}
    for i, js in wo.items():
        for n, j in enumerate(js): add(i, 4 + n, wo_job(j))
    Z2LOAD = f"buffer_load_dword v{vZ2}, v{vZA}, s[{sDBG}:{sDBG+3}], 0 offen offset:4 sc1"
    add(1, 6, [f"buffer_store_dwordx4 v[{vFill}:{vFill+3}], v{vL16}, s[{sWS}:{sWS+3}], s{sOst} offen sc1", f"s_add_u32 s{sJ}, s{sOst}, 65536",
               f"buffer_store_dwordx4 v[{vFill}:{vFill+3}], v{vL16}, s[{sWS}:{sWS+3}], s{sJ} offen sc1"])
    def setwait(i, n):
        k = jobs[(i, 7)].index("s_waitcnt vmcnt(0)")
        if n is None: del jobs[(i, 7)][k]
        else: jobs[(i, 7)][k] = f"s_waitcnt vmcnt({n})"
    setwait(1, 4); setwait(2, 2); setwait(3, 2); setwait(6, None)
    if cfg.tailbar:
        jobs[(7, 7)].remove("s_waitcnt vmcnt(0)"); jobs[(7, 7)].remove("s_barrier")
    jobs[(3, 0)][0:0] = [f"s_cmp_lg_u32 s{sWave}, 0", "s_cbranch_scc1 L_noz2c", f"s_and_b32 s{sJ}, s2, 1", f"s_lshl_b32 s{sJ}, s{sJ}, 7",
               "s_mov_b64 exec, 1", f"buffer_atomic_add v{vZ}, off, s[{sDBG}:{sDBG+3}], s{sJ} offset:4", "s_mov_b64 exec, -1", "L_noz2c:"]
    jobs[(5, 0)][0:0] = [f"s_cmp_eq_u32 s{sWave}, 0", "s_cselect_b32 exec_lo, 3, 0", "s_mov_b32 exec_hi, 0", Z2LOAD, "s_mov_b64 exec, -1"]
    jobs[(5, 7)][-1:-1] = [f"s_movk_i32 s{sJ}, 128", lambda A: spin(A, "z2", Z2LOAD, vZ2, f"s{sJ}", "gt", 4)]
    for n, j in enumerate([0, 1, 2, 3]): add(6, n, wo_job(j))
    if cfg.zearly: add(6, 4, [lambda A: p2_setup(A, cfg, True)])
    bar = {}
    if cfg.bq0:
        assert cfg.tailbar and cfg.zearly and not cfg.uni and not cfg.c1c and cfg.sm
        for i in range(7):
            jobs[(i, 7)] = [x for x in jobs[(i, 7)] if callable(x) or not x.startswith(("s_waitcnt", "s_barrier", "s_movk"))]
        jobs[(5, 7)] = []
        for i, n in enumerate((8, 8, 6, 6, 4, 4, 6)):
            bar[i] = ["s_setprio 3", f"s_waitcnt vmcnt({n})", "s_barrier"]
        bar[5] = ["s_setprio 3", f"s_movk_i32 s{sJ}, 128", lambda A: spin(A, "z2", Z2LOAD, vZ2, f"s{sJ}", "gt", 4, 0, 4), "s_barrier"]
        bar[0] = [lambda A: lstamp(A, cfg, 50)] + bar[0][:2] + [lambda A: lstamp(A, cfg, 51), "s_barrier", lambda A: lstamp(A, cfg, 52)]
        add(7, 2, ["s_barrier"])
    for n, j in enumerate([4, 5, 6, 7, 8, 15]): add(7, n, wo_job(j))
    if cfg.vmask:
        A.c("rows 16..31 of the V operand are constant (ones in rows 16 and 20): those lanes are never reloaded")
        A(f"s_mov_b32 s{sVM}, 0xffff")
        A(f"s_mov_b32 s{sVM+1}, 0xffff")
        A("v_and_b32 v104, 11, v0")
        A("v_cmp_eq_u32 vcc, 0, v104")
        A("v_mov_b32 v105, 0")
        A("v_mov_b32 v106, 0x3f803f80")
        A("v_cndmask_b32 v105, v105, v106, vcc")
        for i in range(8): A(f"v_mov_b32 v{vV0f+i}, v105")
    if cfg.align: A(f".p2align {cfg.align}, 0xbf800000" if False else f".p2alignl {cfg.align}, 0xbf800000")
    for _ in range(cfg.shift): A("s_nop 0")
    if cfg.c0st == 1: stamp(A, cfg, 1, True)
    A(rd('K', 0, 0)); A(rd('V0', 0, 0))
    A("s_waitcnt lgkmcnt(1)")
    if cfg.prio: A("s_setprio 3")
    A(f"{M32} {v(S_[0],16)}, {v(vKf,4)}, {v(vQ[0],4)}, {SHIFT[0]}")
    if cfg.sm:
        for q in (0, 1): A(f"{M32} {v(O_[q],16)}, {v(vZero,4)}, {v(vZero,4)}, 0")
        A("s_nop 7"); A("s_nop 1")
    else:
        A("s_nop 7"); A("s_nop 3")
    for i in range(8):
        for t in range(8):
            first = (i == 0 and t == 0); lastt = (i == 7 and t == 7)
            sA = [rd('V1', i, t)]
            sB = ["s_waitcnt lgkmcnt(1)"] + jobs0.get((i, t), []) + ([] if lastt else [rd('K', i, t + 1)])
            sC = ["s_waitcnt lgkmcnt(0)" if lastt else "s_waitcnt lgkmcnt(1)"]
            if cfg.bq0 and t == 7 and i < 7:
                sB = sB[:-1]
                sC = ["s_waitcnt lgkmcnt(0)"] + bar[i] + [rd('K', i, 8)]
            unit(A, 0, first, False, sA, sB, sC, first, cfg.order)
            sA = ["s_waitcnt lgkmcnt(0)"]
            sB = list(jobs.get((i, t), []))
            sC = [] if lastt else [rd('V0', i, t + 1)]
            unit(A, 1, False, lastt, sA, sB, sC, first, cfg.order)
            if cfg.c0st and i == cfg.c0st - 1: stamp(A, cfg, 2 + t, True)
        if i == 0: stamp(A, cfg, 4)
        if cfg.c0st and i == cfg.c0st - 2: stamp(A, cfg, 1, True)
        if i < 7: lstamp(A, cfg, 29 + i)
    if cfg.sm:
        A("s_nop 1")
        A(f"{SM} {v(O_[1],16)}, {v(vV1f,4)}, {v(S_[1]+8,8)}, v{vIdx}")
        return
    A("s_nop 0")
    A(f"v_cvt_pk_bf16_f32 v{P_+7}, v{S_[1]+14}, v{S_[1]+15}")
    A("s_nop 1")
    A(f"{M32} {v(O_[1],16)}, {v(vV1f,4)}, {v(P_+4,4)}, {v(O_[1],16)}")

def p2_check(A, cfg):
    if not cfg.slow: return
    A(f"s_mov_b32 s{sT+2}, {fbits(2.0**-24)}")
    A(f"s_mov_b32 s{sT+3}, {fbits(2.0**64)}")
    A(f"s_mov_b32 s{sT+4}, 0x7f800000")
    A("s_mov_b64 s[68:69], 0")
    for q in (0, 1):
        O = O_[q]
        if q == 1: A("s_nop 1")
        A(f"v_add_f32 v104, |v{O}|, |v{O+1}|")
        A(f"v_add_f32 v105, |v{O+2}|, |v{O+3}|")
        A(f"v_add_f32 v106, |v{O+4}|, |v{O+5}|")
        A(f"v_add_f32 v107, |v{O+6}|, |v{O+7}|")
        A(f"v_add_f32 v104, v104, v105")
        A(f"v_add_f32 v106, v106, v107")
        A(f"v_add_f32 v104, v104, v106")
        A(f"v_cmp_nle_f32 vcc, s{sT+2}, v{O+8}")
        A(f"s_or_b64 s[68:69], s[68:69], vcc")
        A(f"v_cmp_nge_f32 vcc, s{sT+3}, v{O+8}")
        A(f"s_or_b64 s[68:69], s[68:69], vcc")
        A(f"v_cmp_ngt_f32 vcc, s{sT+4}, v104")
        A(f"s_or_b64 s[68:69], s[68:69], vcc")
    if cfg.force_slow: A("s_mov_b64 s[68:69], -1")
    A("s_cmp_lg_u64 s[68:69], 0")
    A("s_cbranch_scc1 L_slow")
    A("L_slow_ret:")
    T = Asm()
    T("L_slow:")
    T.c("true-max (online softmax) path, wave-local, K/V fragments straight from the workspace")
    m_, al = [104, 105], 106
    T(f"s_lshl_b32 s{sT}, s{sPair}, 18")
    T(f"s_lshr_b32 s{sT+1}, s{sWave}, 2")
    T(f"s_lshl_b32 s{sT+1}, s{sT+1}, 14")
    T(f"s_add_u32 s{sT}, s{sT}, s{sT+1}")
    T("v_lshrrev_b32 v108, 5, v0")
    T("v_and_b32 v109, 15, v0")
    T("v_lshlrev_b32 v109, 4, v109")
    T("v_lshl_add_u32 v109, v108, 8, v109")
    T("v_and_b32 v108, 11, v0")
    T("v_cmp_eq_u32 vcc, 0, v108")
    T("v_mov_b32 v110, 0")
    T("v_mov_b32 v111, 0x3f803f80")
    T("v_cndmask_b32 v110, v110, v111, vcc")
    for i in range(8): T(f"v_mov_b32 v{vV0f+i}, v110")
    for q in (0, 1):
        T(f"v_mov_b32 v{m_[q]}, 0xff800000")
        for i in range(16): T(f"v_mov_b32 v{O_[q]+i}, 0")
    T(f"s_mov_b32 s{sT+2}, 0")
    T("L_slow_loop:")
    T(f"s_lshr_b32 s{sT+3}, s{sT+2}, 3")
    T(f"s_lshl_b32 s{sT+3}, s{sT+3}, 15")
    T(f"s_and_b32 s{sT+4}, s{sT+2}, 7")
    T(f"s_lshl_b32 s{sT+4}, s{sT+4}, 11")
    T(f"s_add_u32 s{sT+3}, s{sT+3}, s{sT+4}")
    T(f"s_add_u32 s{sT+3}, s{sT+3}, s{sT}")
    T(f"buffer_load_dwordx4 {v(vKf,4)}, v{vL16}, s[{sWS}:{sWS+3}], s{sT+3} offen sc1")
    T("s_mov_b32 exec_lo, 0xffff")
    T("s_mov_b32 exec_hi, 0xffff")
    T(f"buffer_load_dwordx4 {v(vV0f,4)}, v109, s[{sWS}:{sWS+3}], s{sT+3} offen offset:1024 sc1")
    T(f"buffer_load_dwordx4 {v(vV1f,4)}, v109, s[{sWS}:{sWS+3}], s{sT+3} offen offset:1536 sc1")
    T("s_mov_b64 exec, -1")
    T("s_waitcnt vmcnt(0)")
    for q in (0, 1):
        S, O, m = S_[q], O_[q], m_[q]
        T(f"{M32} {v(S,16)}, {v(vKf,4)}, {v(vQ[q],4)}, 0")
        T("s_nop 15"); T("s_nop 3")
        T(f"v_max3_f32 v107, v{S}, v{S+1}, v{m}")
        for i in range(1, 8): T(f"v_max3_f32 v107, v{S+2*i}, v{S+2*i+1}, v107")
        T("v_mov_b32 v108, v107")
        T("s_nop 1")
        T("v_permlane32_swap_b32 v107, v108")
        T("v_max_f32 v107, v107, v108")
        T(f"v_sub_f32 v{al}, v{m}, v107")
        T(f"v_exp_f32 v{al}, v{al}")
        T(f"v_mov_b32 v{m}, v107")
        for i in range(16): T(f"v_sub_f32 v{S+i}, v{S+i}, v107")
        for i in range(16): T(f"v_exp_f32 v{S+i}, v{S+i}")
        for i in range(9): T(f"v_mul_f32 v{O+i}, v{O+i}, v{al}")
        if cfg.sm:
            T("s_nop 1")
            T(f"{SM} {v(O,16)}, {v(vV0f,4)}, {v(S,8)}, v{vIdx}")
            T(f"{SM} {v(O,16)}, {v(vV1f,4)}, {v(S+8,8)}, v{vIdx}")
        else:
            for i in range(8): T(f"v_cvt_pk_bf16_f32 v{P_+i}, v{S+2*i}, v{S+2*i+1}")
            T("s_nop 1")
            T(f"{M32} {v(O,16)}, {v(vV0f,4)}, {v(P_,4)}, {v(O,16)}")
            T(f"{M32} {v(O,16)}, {v(vV1f,4)}, {v(P_+4,4)}, {v(O,16)}")
        T("s_nop 15"); T("s_nop 3")
    T(f"s_add_u32 s{sT+2}, s{sT+2}, 1")
    T(f"s_cmp_lt_u32 s{sT+2}, 64")
    T("s_cbranch_scc1 L_slow_loop")
    T("s_branch L_slow_ret")
    tails.append(T)

def p2_epilogue(A, cfg):
    A.c("---- normalise (gate factor / row sum), round, publish O fragments (the data is its own ready flag:")
    A.c("     the slots were filled with 0xffffffff earlier in this launch and no published word has that value)")
    if cfg.nocheck == 2:
        A("s_sleep 64")
    A(f"s_add_u32 s{sJ}, s{sOst}, 65536")
    A(f"s_mov_b32 s{sT}, 0xfffffffe")
    if cfg.zearly: A("s_waitcnt vmcnt(6)")
    for q in (0, 1): A(f"v_sub_f32 v{vGF[q]}, s{sGc}, v{vGF[q]}")
    for q in (0, 1): A(f"v_rcp_f32 v{104+2*q}, v{O_[q]+8}")
    for q in (0, 1):
        O = O_[q]
        A(f"v_mul_f32 v{104+2*q}, v{104+2*q}, |v{vGF[q]}|")
        A(f"v_mov_b32 v{105+2*q}, v{104+2*q}")
        for i in range(4): A(f"v_pk_mul_f32 {v(O+2*i,2)}, {v(O+2*i,2)}, {v(104+2*q,2)}")
        for i in range(4): A(f"v_cvt_pk_bf16_f32 v{108+4*q+i}, v{O+2*i}, v{O+2*i+1}")
        for i in range(4): A(f"v_min_u32 v{108+4*q+i}, s{sT}, v{108+4*q+i}")
        A(f"buffer_store_dwordx4 {v(108+4*q,4)}, v{vL16}, s[{sWS}:{sWS+3}], s{sOst if q == 0 else sJ} offen sc1")
    lstamp(A, cfg, 44)

OF, AC, WFR = 128, [32, 48], [64, 72, 80, 88]
PS = 272
def p3(A, cfg):
    A.c("---- phase 3: out tile 64x64 = [gA*OA | gB*OB] @ [WoA ; WoB]")
    LA = cfg.la
    ld = lambda hh, sc=" sc1": f"buffer_load_dwordx4 {v(OF+4*hh,4)}, v4, s[{sWS}:{sWS+3}], s{8+hh//4} offen offset:{(hh%4)*1024}{sc}"
    SC1 = {0: " sc1", 1: "", 2: " nt", 3: " sc0"}[cfg.bulk]
    def rdw(hh):
        F = WFR[hh % 4]
        return [f"ds_read_b64_tr_b16 {v(F,2)}, v2 offset:{hh*2048}", f"ds_read_b64_tr_b16 {v(F+2,2)}, v2 offset:{hh*2048+1024}",
                f"ds_read_b64_tr_b16 {v(F+4,2)}, v3 offset:{hh*2048}", f"ds_read_b64_tr_b16 {v(F+6,2)}, v3 offset:{hh*2048+1024}"]
    def addr():
        A("v_lshrrev_b32 v16, 5, v0")
        A("v_lshlrev_b32 v16, 2, v16")
        A("v_bfe_u32 v17, v0, 2, 2")
        A("v_add_u32 v16, v16, v17")
        A("v_lshlrev_b32 v16, 7, v16")
        A("v_bfe_u32 v17, v0, 4, 1")
        A("v_lshlrev_b32 v17, 1, v17")
        A("v_bfe_u32 v18, v0, 1, 1")
        A("v_add_u32 v17, v17, v18")
        A("v_bfe_u32 v18, v0, 3, 1")
        A("v_lshlrev_b32 v18, 2, v18")
        A("v_xor_b32 v17, v17, v18")
        A("v_lshl_add_u32 v16, v17, 4, v16")
        A("v_and_b32 v17, 1, v0")
        A("v_lshl_add_u32 v16, v17, 3, v16")
        A(f"s_lshr_b32 s{sT+4}, s{sWave}, 1")
        A(f"s_lshl_b32 s{sT+5}, s{sT+4}, 15")
        A(f"s_add_u32 s{sT+5}, s{sT+5}, {WO}")
        A(f"v_add_u32 v2, s{sT+5}, v16")
        A("v_xor_b32 v3, 64, v2")
        A("v_and_b32 v16, 31, v0")
        A(f"s_and_b32 s{sT}, s{sWave}, 1")
        A(f"s_lshl_b32 s{sT}, s{sT}, 5")
        A(f"s_lshl_b32 s{sT+1}, s{sT+4}, 6")
        A(f"s_add_u32 s{sT}, s{sT}, s{sT+1}")
        A(f"v_add_u32 v16, s{sT}, v16")
        A(f"v_mul_u32_u24 v16, {PS}, v16")
        A("v_lshrrev_b32 v17, 5, v0")
        A("v_lshl_add_u32 v6, v17, 4, v16")
        A("v_lshrrev_b32 v16, 3, v0")
        A(f"s_lshl_b32 s{sT}, s{sWave}, 3")
        A(f"v_add_u32 v16, s{sT}, v16")
        A(f"v_mul_u32_u24 v7, {PS}, v16")
        A("v_and_b32 v17, 7, v0")
        A("v_lshl_add_u32 v7, v17, 5, v7")
        A("v_lshlrev_b32 v16, 10, v16")
        A("v_lshl_add_u32 v8, v17, 4, v16")
    for i in range(4): A(f"s_add_u32 s{8+i}, s{sOld}, {4096*i}")
    A(f"s_mov_b32 s{sSpin}, {SPIN_MAX}")
    A(f"v_mov_b32 v4, v{vL16}")
    if cfg.nocheck == 3:
        A("s_sleep 80")
        stamp(A, cfg, 7)
    for hh in range(LA): A(ld(hh, SC1))
    addr()
    lstamp(A, cfg, 55)
    A(f"s_waitcnt vmcnt({2 + LA})")
    A("s_barrier")
    lstamp(A, cfg, 56)
    for x in rdw(0) + rdw(1): A(x)
    A.c("a fragment that still holds fill words is fetched again (with the ones behind it)")
    for hh in range(16):
        F = WFR[hh % 4]; o = OF + 4 * hh
        A(f"L_ostep{hh}:")
        A(f"s_waitcnt vmcnt({min(LA - 1, 15 - hh)})")
        A(f"v_max3_u32 v10, v{o}, v{o+1}, v{o+2}")
        A(f"v_max_u32 v10, v10, v{o+3}")
        A("v_cmp_eq_u32 vcc, -1, v10")
        A(f"s_waitcnt lgkmcnt({4 if hh < 15 else 0})")
        if not cfg.nocheck: A(f"s_cbranch_vccnz L_oretry{hh}")
        A(f"L_ogo{hh}:")
        A(f"{M32} {v(AC[0],16)}, {v(F,4)}, {v(o,4)}, {'0' if hh == 0 else v(AC[0],16)}")
        if hh + LA < 16: A(ld(hh + LA, SC1))
        R = rdw(hh + 2) if hh + 2 < 16 else []
        for x in R[:2]: A(x)
        A(f"{M32} {v(AC[1],16)}, {v(F+4,4)}, {v(o,4)}, {'0' if hh == 0 else v(AC[1],16)}")
        for x in R[2:]: A(x)
        T = Asm()
        T(f"L_oretry{hh}:")
        T(f"s_sub_u32 s{sSpin}, s{sSpin}, 1")
        T(f"s_cmp_gt_i32 s{sSpin}, 0")
        T(f"s_cbranch_scc0 L_ogo{hh}")
        T("s_waitcnt vmcnt(0)")
        if cfg.rsleep: T(f"s_sleep {cfg.rsleep}")
        for h2 in range(hh, min(16, hh + LA)): T(ld(h2))
        T(f"s_branch L_ostep{hh}")
        tails.append(T)
    stamp(A, cfg, 8)
    lstamp(A, cfg, 41)
    if cfg.stamps == 4:
        A(f"s_sub_u32 s80, {SPIN_MAX + 1000}, s{sSpin}")
        A("v_writelane_b32 v31, s80, 53")
    A("s_barrier")
    A("s_nop 7")
    A("s_nop 1")
    for rq in range(4):
        A(f"ds_write_b128 v6, {v(AC[0]+4*rq,4)} offset:{rq*32}")
    for rq in range(4):
        A(f"ds_write_b128 v6, {v(AC[1]+4*rq,4)} offset:{128 + rq*32}")
    A("s_waitcnt lgkmcnt(0)")
    lstamp(A, cfg, 42)
    A("s_barrier")
    lstamp(A, cfg, 43)
    for kq in range(4):
        A(f"ds_read_b128 {v(64+8*kq,4)}, v7 offset:{kq*64*PS}")
        A(f"ds_read_b128 {v(68+8*kq,4)}, v7 offset:{kq*64*PS+16}")
    A("s_waitcnt lgkmcnt(4)")
    for i in range(4): A(f"v_pk_add_f32 {v(64+2*i,2)}, {v(64+2*i,2)}, {v(72+2*i,2)}")
    A("s_waitcnt lgkmcnt(0)")
    for i in range(4): A(f"v_pk_add_f32 {v(80+2*i,2)}, {v(80+2*i,2)}, {v(88+2*i,2)}")
    for i in range(4): A(f"v_pk_add_f32 {v(64+2*i,2)}, {v(64+2*i,2)}, {v(80+2*i,2)}")
    for i in range(4): A(f"v_cvt_pk_bf16_f32 v{96+i}, v{64+2*i}, v{65+2*i}")
    A(f"buffer_store_dwordx4 v[96:99], v8, s[{sOUT}:{sOUT+3}], s{sOut} offen" + ["", " sc1", " nt", " sc0 sc1", " sc1 nt"][cfg.outsc])

R0 = 131072
def p3_four(A, cfg):
    A.c("---- phase 3: out tile 64x64 = [gA*OA | gB*OB] @ [WoA ; WoB]")
    LA = cfg.la4; NR = 16
    ofr = lambda hh: OF + 4 * (hh % NR)
    ld = lambda hh: f"buffer_load_dwordx4 {v(ofr(hh),4)}, v4, s[{sWS}:{sWS+3}], s{8+hh//4} offen offset:{(hh%4)*1024} sc1"
    def rdw(hh):
        F = WFR[hh % 4]
        return [f"ds_read_b64_tr_b16 {v(F,2)}, v2 offset:{hh*2048}", f"ds_read_b64_tr_b16 {v(F+2,2)}, v2 offset:{hh*2048+1024}",
                f"ds_read_b64_tr_b16 {v(F+4,2)}, v3 offset:{hh*2048}", f"ds_read_b64_tr_b16 {v(F+6,2)}, v3 offset:{hh*2048+1024}"]
    A(f"s_cmp_ge_u32 s{sWave}, 4")
    A("s_cbranch_scc1 L_p3_idle")
    for i in range(8): A(f"s_add_u32 s{8+i}, s{sOld}, {4096*i}")
    A(f"s_mov_b32 s{sSpin}, {SPIN_MAX}")
    A(f"v_mov_b32 v4, v{vL16}")
    for hh in range(LA): A(ld(hh))
    A("v_lshrrev_b32 v16, 5, v0")
    A("v_lshlrev_b32 v16, 2, v16")
    A("v_bfe_u32 v17, v0, 2, 2")
    A("v_add_u32 v16, v16, v17")
    A("v_lshlrev_b32 v16, 7, v16")
    A("v_bfe_u32 v17, v0, 4, 1")
    A("v_lshlrev_b32 v17, 1, v17")
    A("v_bfe_u32 v18, v0, 1, 1")
    A("v_add_u32 v17, v17, v18")
    A("v_bfe_u32 v18, v0, 3, 1")
    A("v_lshlrev_b32 v18, 2, v18")
    A("v_xor_b32 v17, v17, v18")
    A("v_lshl_add_u32 v16, v17, 4, v16")
    A("v_and_b32 v17, 1, v0")
    A("v_lshl_add_u32 v16, v17, 3, v16")
    A(f"s_lshr_b32 s{sT+4}, s{sWave}, 1")
    A(f"s_lshl_b32 s{sT+5}, s{sT+4}, 16")
    A(f"s_add_u32 s{sT+5}, s{sT+5}, {WO}")
    A(f"v_add_u32 v2, s{sT+5}, v16")
    A("v_xor_b32 v3, 64, v2")
    A.c("partial sums: [branch][row 64][16 quads], quad index xor (row & 7)")
    A("v_and_b32 v16, 31, v0")
    A(f"s_and_b32 s{sT}, s{sWave}, 1")
    A(f"s_lshl_b32 s{sT}, s{sT}, 13")
    A(f"s_lshl_b32 s{sT+1}, s{sT+4}, 14")
    A(f"s_add_u32 s{sT}, s{sT}, s{sT+1}")
    A(f"s_add_u32 s{sT}, s{sT}, {R0}")
    A("v_lshlrev_b32 v16, 8, v16")
    A("v_lshrrev_b32 v17, 5, v0")
    A("v_and_b32 v18, 7, v0")
    A("v_xor_b32 v17, v17, v18")
    A("v_lshl_add_u32 v16, v17, 4, v16")
    A(f"v_add_u32 v12, s{sT}, v16")
    for i in (1, 2, 3): A(f"v_xor_b32 v{12+i}, {32*i}, v12")
    lstamp(A, cfg, 55)
    A(f"s_waitcnt vmcnt({2 + LA})")
    A("s_barrier")
    lstamp(A, cfg, 56)
    for x in rdw(0) + rdw(1): A(x)
    A.c("a fragment that still holds fill words is fetched again (with the ones behind it)")
    def check(hh, part):
        o = ofr(hh)
        if part == 0:
            A(f"L_ostep{hh}:")
            A(f"s_waitcnt vmcnt({min(LA - 1, 31 - hh)})")
            A(f"v_max3_u32 v10, v{o}, v{o+1}, v{o+2}")
            A(f"v_max_u32 v10, v10, v{o+3}")
            A("v_cmp_eq_u32 vcc, -1, v10")
        else:
            A(f"s_cbranch_vccnz L_oretry{hh}")
            A(f"L_ogo{hh}:")
            T = Asm()
            T(f"L_oretry{hh}:")
            T(f"s_sub_u32 s{sSpin}, s{sSpin}, 1")
            T(f"s_cmp_gt_i32 s{sSpin}, 0")
            T(f"s_cbranch_scc0 L_ogo{hh}")
            T("s_waitcnt vmcnt(0)")
            for h2 in range(hh, min(32, hh + LA)): T(ld(h2))
            T(f"s_waitcnt vmcnt({min(LA - 1, 31 - hh)})")
            T(f"v_max3_u32 v10, v{o}, v{o+1}, v{o+2}")
            T(f"v_max_u32 v10, v10, v{o+3}")
            T("v_cmp_eq_u32 vcc, -1, v10")
            T("s_nop 0")
            T(f"s_cbranch_vccnz L_oretry{hh}")
            T(f"s_branch L_ogo{hh}")
            tails.append(T)
    if cfg.p3pipe:
        check(0, 0); A("s_waitcnt lgkmcnt(4)"); check(0, 1)
        for hh in range(32):
            F = WFR[hh % 4]; o = ofr(hh)
            R = rdw(hh + 2) if hh + 2 < 32 else []
            A(f"{M32} {v(AC[0],16)}, {v(F,4)}, {v(o,4)}, {'0' if hh == 0 else v(AC[0],16)}")
            if hh + LA < 32: A(ld(hh + LA))
            if hh < 31: check(hh + 1, 0)
            A(f"{M32} {v(AC[1],16)}, {v(F+4,4)}, {v(o,4)}, {'0' if hh == 0 else v(AC[1],16)}")
            for x in R: A(x)
            if hh < 31:
                A(f"s_waitcnt lgkmcnt({4 if hh + 1 < 31 else 0})")
                check(hh + 1, 1)
    else:
        for hh in range(32):
            F = WFR[hh % 4]; o = ofr(hh)
            A(f"L_ostep{hh}:")
            A(f"s_waitcnt vmcnt({min(LA - 1, 31 - hh)})")
            A(f"v_max3_u32 v10, v{o}, v{o+1}, v{o+2}")
            A(f"v_max_u32 v10, v10, v{o+3}")
            A("v_cmp_eq_u32 vcc, -1, v10")
            A(f"s_waitcnt lgkmcnt({4 if hh < 31 else 0})")
            A(f"s_cbranch_vccnz L_oretry{hh}")
            A(f"L_ogo{hh}:")
            A(f"{M32} {v(AC[0],16)}, {v(F,4)}, {v(o,4)}, {'0' if hh == 0 else v(AC[0],16)}")
            if hh + LA < 32: A(ld(hh + LA))
            R = rdw(hh + 2) if hh + 2 < 32 else []
            for x in R[:2]: A(x)
            A(f"{M32} {v(AC[1],16)}, {v(F+4,4)}, {v(o,4)}, {'0' if hh == 0 else v(AC[1],16)}")
            for x in R[2:]: A(x)
            T = Asm()
            T(f"L_oretry{hh}:")
            T(f"s_sub_u32 s{sSpin}, s{sSpin}, 1")
            T(f"s_cmp_gt_i32 s{sSpin}, 0")
            T(f"s_cbranch_scc0 L_ogo{hh}")
            T("s_waitcnt vmcnt(0)")
            for h2 in range(hh, min(32, hh + LA)): T(ld(h2))
            T(f"s_branch L_ostep{hh}")
            tails.append(T)
    stamp(A, cfg, 8)
    lstamp(A, cfg, 41)
    A("s_nop 7")
    A("s_nop 2")
    for ct in (0, 1):
        for rq in range(4):
            A(f"ds_write_b128 v{12+rq}, {v(AC[ct]+4*rq,4)} offset:{ct*128}")
    A("s_branch L_p3_fin")
    A("L_p3_idle:")
    A("s_waitcnt vmcnt(2)")
    A("s_barrier")
    stamp(A, cfg, 8)
    A("L_p3_fin:")
    A("v_lshrrev_b32 v16, 3, v0")
    A(f"s_lshl_b32 s{sT}, s{sWave}, 3")
    A(f"v_add_u32 v16, s{sT}, v16")
    A("v_and_b32 v17, 7, v0")
    A("v_lshlrev_b32 v18, 1, v17")
    A("v_and_b32 v19, 7, v16")
    A("v_xor_b32 v18, v18, v19")
    A("v_lshlrev_b32 v18, 4, v18")
    A("v_lshl_add_u32 v7, v16, 8, v18")
    A(f"v_add_u32 v7, {R0}, v7")
    A("v_xor_b32 v6, 16, v7")
    A("v_lshlrev_b32 v16, 10, v16")
    A("v_lshl_add_u32 v8, v17, 4, v16")
    A("s_waitcnt lgkmcnt(0)")
    lstamp(A, cfg, 42)
    A("s_barrier")
    lstamp(A, cfg, 43)
    A("ds_read_b128 v[64:67], v7")
    A("ds_read_b128 v[72:75], v7 offset:16384")
    A("ds_read_b128 v[68:71], v6")
    A("ds_read_b128 v[76:79], v6 offset:16384")
    A("s_waitcnt lgkmcnt(2)")
    for i in range(2): A(f"v_pk_add_f32 {v(64+2*i,2)}, {v(64+2*i,2)}, {v(72+2*i,2)}")
    A("s_waitcnt lgkmcnt(0)")
    for i in range(2, 4): A(f"v_pk_add_f32 {v(64+2*i,2)}, {v(64+2*i,2)}, {v(72+2*i,2)}")
    for i in range(4): A(f"v_cvt_pk_bf16_f32 v{96+i}, v{64+2*i}, v{65+2*i}")
    A(f"buffer_store_dwordx4 v[96:99], v8, s[{sOUT}:{sOUT+3}], s{sOut} offen" + ["", " sc1", " nt", " sc0 sc1", " sc1 nt"][cfg.outsc])

def build(cfg):
    tails.clear()
    XSWAP[0] = cfg.xswap
    P3W[0] = cfg.p3w
    PVSWAP[0] = cfg.pvswap
    VMASK[0] = cfg.vmask
    SHIFT[0] = "0.15915494" if cfg.cshift else "0"
    SMUSE[0] = cfg.sm
    ORDER[0] = cfg.korder
    ONES[0] = cfg.ones
    name = KN + "_kernel"
    A = Asm(); kernel_head(A, name)
    prologue(A, cfg)
    p1_compute(A, cfg)
    stamp(A, cfg, 2)
    lstamp(A, cfg, 27)
    p1_compute_epilogue(A, cfg)
    A("s_branch L_attn")
    A("L_loader:")
    p1_loader(A, cfg)
    stamp(A, cfg, 2)
    if cfg.c1c: p2_setup(A, cfg)
    A("L_attn:")
    if cfg.dbl: A("s_memrealtime s[82:83]")
    stamp(A, cfg, 3)
    lstamp(A, cfg, 28)
    if not cfg.c1c: p2_setup(A, cfg)
    p2_main(A, cfg)
    stamp(A, cfg, 5)
    lstamp(A, cfg, 37)
    if cfg.dbl: A("s_memrealtime s[86:87]")
    p2_check(A, cfg)
    p2_epilogue(A, cfg)
    stamp(A, cfg, 6)
    if cfg.p3w == 4: p3_four(A, cfg)
    else: p3(A, cfg)
    stamp_store(A, cfg, 10 if cfg.c0st else 9)
    if cfg.dbl:
        A("s_cmp_lg_u32 s2, 0")
        A("s_cbranch_scc1 L_end")
        A("s_waitcnt vmcnt(0)")
        A("s_memrealtime s[84:85]")
        A("s_waitcnt lgkmcnt(0)")
        a, b = {1: (80, 84), 2: (80, 82), 3: (82, 86), 4: (86, 84)}[cfg.dbl]
        A(f"s_sub_u32 s88, s{b}, s{a}")
        A("s_add_u32 s88, s88, s84")
        A("L_dbl:")
        A("s_memrealtime s[90:91]")
        A("s_waitcnt lgkmcnt(0)")
        A("s_sub_u32 s89, s90, s88")
        A("s_cmp_lt_i32 s89, 0")
        A("s_cbranch_scc1 L_dbl")
    A("L_end:")
    A("s_endpgm")
    txt = A.text() + "".join(t.text() for t in tails)
    hdr = f"""; gated_mix__softmax_full_mha__mha_block__prompt -- one persistent launch, 256 workgroups (one per CU) x 8 waves
; @launch grid=(256,1,1) block=(512,1,1) lds={LDS_TOTAL}
.amdgcn_target "amdgcn-amd-amdhsa--gfx950"
"""
    return hdr + txt + kernel_desc(name, 256)

if __name__ == "__main__":
    import sys
    cfg = Cfg()
    for a in sys.argv[2:]:
        k_, v_ = a.split("=")
        setattr(cfg, k_, int(v_, 0))
    open(sys.argv[1], "w").write(build(cfg))
```

```python
from base import *
import math, struct

KN = "gated_mix__softmax_full_mha__mha_block__prompt"
sX, sW, sG, sWS, sWOA, sWOB, sOUT, sDBG = 24, 28, 32, 36, 40, 44, 48, 52
sWave, sSlab, sPair, sKC, sRG = 56, 57, 58, 59, 60
sSpin = 61
sT = 62
sXb, sXo, sWb_, sWo, sK2, sM = 70, 71, 72, 73, 74, 75
sCH, sCO, sMB, sWoG, sWoM, sJ = 70, 71, 72, 73, 74, 75
sS3, sR3, sC3, sF = 76, 77, 78, 79
WS_KV, WS_O, WS_F1, WS_F2, WS_ST, WS_SIZE = 0, 8 << 20, 12 << 20, (12 << 20) + 16384, 22 << 20, 24 << 20
WS_G = (12 << 20) + 32768
XS, WB, GW, QX, GV = 32768, 98304, 135168, 69632, 77824
XB = {0: 32768, 1: 0, 2: 65536}
SLOT, REC, HSTR = 33280, 2080, 16640
SA, SB, SC = 0, 33280, 130560
WO = 0
LDS_TOTAL = 163840
LOG2E = math.log2(math.e)
QSCALE = 0.25 * LOG2E
SPIN_MAX = 200000
def fbits(x): return hex(struct.unpack("<I", struct.pack("<f", x))[0])
vKL, vV0L, vV1L, vKH, vV0H, vV1H, vL16, vWoD, vPA, vPoll = range(240, 250)
vGF = [250, 251]
vZ = 252
vZA, vZ2 = 254, 255
vGA, vFill, sGo = 253, 232, 3
vIdx, vZero, vKP = 231, 236, 230
SM = "v_smfmac_f32_32x32x32_bf16"
sOst, sOld, sOut, sGc = 4, 5, 6, 7
sZp = 13

class Cfg:
    lr = 2
    prio = 0x8BD
    p1prio = 1
    prio0 = 0x37B
    stamps = 0
    slow = 1
    force_slow = 0
    t_poll = 3
    dotmode = 4
    p1pipe = 0
    n_z = 21
    rot = 23
    tailbar = 1
    prog = 32
    bulk = 0
    early = 5
    la = 4
    ldlate = 1
    rlite = 0
    b7 = 0
    hswap = 0
    bq0 = 1
    kv2 = 0
    vmask = 0
    cshift = 1
    p3w = 4
    la4 = 8
    p3pipe = 1
    korder = 1
    t_load = 2
    zld = 1
    sm = 1
    wfull = 0
    zearly = 2
    noz = 0
    n_add = 8
    wpf3 = 0
    prot = 0
    uni = 0
    c1c = 0
    t_c2 = 4
    c0st = 0
    pvswap = 0
    ones = 0
    xswap = 1
    nocheck = 0
    late1 = 0
    c2c = 0
    spf = 0
    spfe = 1
    spfw = 0
    p1x = 0
    dbl = 0
    order = 0
    align = 0
    shift = 0
    outsc = 3
    rsleep = 0
    ethr = 32
    spindepth = 0
    sspread = 1
    spinsleep = 0
    wpf2 = 0
    epi2 = 1
    wfirst = 0
    l2pf = 0
    pfoff = 0
    epist = 0
    t16 = 0
    wpf = 0

def stamp(A, cfg, i, force=False):
    if cfg.c0st and not force and i not in (0, 10): return
    if cfg.stamps in (1, 3): A(f"s_memrealtime s[{80+2*i}:{81+2*i}]")
    if cfg.stamps == 2: A(f"s_memtime s[{80+2*i}:{81+2*i}]")
def lstamp(A, cfg, i):
    if cfg.stamps == 4:
        A("s_memrealtime s[80:81]")
        A("s_waitcnt lgkmcnt(0)")
        A(f"v_writelane_b32 v31, s80, {i}")
def stamp_store(A, cfg, n):
    if not cfg.stamps: return
    if cfg.stamps == 4:
        A("s_waitcnt vmcnt(0)")
        lstamp(A, cfg, 40)
        A(f"s_lshl_b32 s{sT}, s2, 3")
        A(f"s_add_u32 s{sT}, s{sT}, s{sWave}")
        A(f"s_lshl_b32 s{sT}, s{sT}, 8")
        A(f"s_add_u32 s{sT}, s{sT}, {WS_ST}")
        A("v_lshlrev_b32 v1, 2, v0")
        A(f"buffer_store_dword v31, v1, s[{sWS}:{sWS+3}], s{sT} offen")
        return
    A("s_waitcnt vmcnt(0)")
    stamp(A, cfg, n)
    A("s_waitcnt lgkmcnt(0)")
    if cfg.stamps == 3:
        A("s_mov_b64 exec, 1")
        A(f"s_not_b32 s{sT}, s80")
        A(f"v_mov_b32 v2, s{sT}")
        A(f"buffer_atomic_umax v2, off, s[{sDBG}:{sDBG+3}], 0 offset:8")
        for i in range(n + 1):
            A(f"v_mov_b32 v{3+i}, s{80+2*i}")
            A(f"buffer_atomic_umax v{3+i}, off, s[{sDBG}:{sDBG+3}], 0 offset:{12+4*i}")
        return
    A(f"s_lshl_b32 s{sT}, s2, 3")
    A(f"s_add_u32 s{sT}, s{sT}, s{sWave}")
    A(f"s_lshl_b32 s{sT}, s{sT}, 6")
    A(f"s_add_u32 s{sT}, s{sT}, {WS_ST}")
    A("v_mov_b32 v1, 0")
    for i in range(n + 1):
        A(f"v_mov_b32 v2, s{80+2*i}")
        A(f"buffer_store_dword v2, v1, s[{sWS}:{sWS+3}], s{sT} offen offset:{4*i}")
        A("s_nop 1")

def prologue(A, cfg):
    if cfg.dbl: A("s_memrealtime s[80:81]")
    stamp(A, cfg, 0)
    if cfg.stamps == 4: A("v_mov_b32 v31, 0")
    lstamp(A, cfg, 0)
    A("s_cmp_ge_u32 s2, 256")
    A("s_cbranch_scc1 L_end")
    A("s_load_dwordx16 s[4:19], s[0:1], 0")
    A("s_load_dwordx4 s[20:23], s[0:1], 64")
    A("v_lshrrev_b32 v1, 6, v0")
    A("v_and_b32 v0, 63, v0")
    A(f"v_readfirstlane_b32 s{sWave}, v1")
    lr = cfg.lr
    A(f"s_and_b32 s{sT}, s2, {(8 >> lr) - 1}")
    A(f"s_lshl_b32 s{sT}, s{sT}, {lr}")
    A(f"s_lshr_b32 s{sT+1}, s2, 3")
    A(f"s_and_b32 s{sT+2}, s{sT+1}, {(1 << lr) - 1}")
    A(f"s_or_b32 s{sSlab}, s{sT}, s{sT+2}")
    A(f"s_and_b32 s{sT}, s2, 7")
    A(f"s_lshr_b32 s{sT}, s{sT}, {3 - lr}")
    A(f"s_lshl_b32 s{sT}, s{sT}, {5 - lr}")
    A(f"s_lshr_b32 s{sT+1}, s{sT+1}, {lr}")
    if cfg.prot:
        A(f"s_add_u32 s{sT+1}, s{sT+1}, {cfg.prot}")
        A(f"s_and_b32 s{sT+1}, s{sT+1}, {(32 >> lr) - 1}")
    A(f"s_add_u32 s{sPair}, s{sT}, s{sT+1}")
    if cfg.rot == 0:
        A(f"s_add_u32 s{sKC}, s{sPair}, s{sSlab}")
    elif cfg.rot == 1:
        A(f"s_lshl_b32 s{sKC}, s{sSlab}, 1")
        A(f"s_add_u32 s{sKC}, s{sKC}, s{sPair}")
    elif cfg.rot == 2:
        A(f"s_and_b32 s{sKC}, s2, 6")
        A(f"s_and_b32 s{sT}, s2, 1")
        A(f"s_lshl_b32 s{sT}, s{sT}, 2")
        A(f"s_add_u32 s{sKC}, s{sKC}, s{sT}")
    elif cfg.rot == 3:
        A(f"s_mov_b32 s{sKC}, 0")
    elif cfg.rot == 4:
        A(f"s_and_b32 s{sKC}, s2, 6")
        A(f"s_add_u32 s{sT}, s{sPair}, s{sSlab}")
        A(f"s_and_b32 s{sT}, s{sT}, 1")
        A(f"s_lshl_b32 s{sT}, s{sT}, 2")
        A(f"s_add_u32 s{sKC}, s{sKC}, s{sT}")
    elif cfg.rot == 5:
        A(f"s_add_u32 s{sT}, s{sPair}, s{sSlab}")
        A(f"s_and_b32 s{sT}, s{sT}, 3")
        A(f"s_lshl_b32 s{sT}, s{sT}, 1")
        A(f"s_and_b32 s{sKC}, s2, 1")
        A(f"s_add_u32 s{sKC}, s{sKC}, s{sT}")
    elif cfg.rot == 6:
        A(f"s_bfe_u32 s{sKC}, s2, 0x20001")
        A(f"s_add_u32 s{sT}, s{sPair}, s{sSlab}")
        A(f"s_and_b32 s{sT}, s{sT}, 1")
        A(f"s_lshl_b32 s{sT}, s{sT}, 2")
        A(f"s_add_u32 s{sKC}, s{sKC}, s{sT}")
    elif cfg.rot == 7:
        A(f"s_add_u32 s{sT}, s{sPair}, s{sSlab}")
        A(f"s_and_b32 s{sT}, s{sT}, 1")
        A(f"s_lshl_b32 s{sKC}, s{sT}, 2")
    elif cfg.rot == 8:
        A(f"s_and_b32 s{sKC}, s2, 6")
        A(f"s_add_u32 s{sT}, s{sPair}, s{sSlab}")
        A(f"s_and_b32 s{sT}, s{sT}, 1")
        A(f"s_lshl_b32 s{sT}, s{sT}, 1")
        A(f"s_add_u32 s{sKC}, s{sKC}, s{sT}")
    elif cfg.rot == 9:
        A(f"s_and_b32 s{sKC}, s2, 3")
        A(f"s_add_u32 s{sT}, s{sPair}, s{sSlab}")
        A(f"s_and_b32 s{sT}, s{sT}, 1")
        A(f"s_lshl_b32 s{sT}, s{sT}, 2")
        A(f"s_add_u32 s{sKC}, s{sKC}, s{sT}")
    elif cfg.rot in (16, 17, 18) or cfg.rot >= 19:
        pass
    elif cfg.rot in (10, 11, 13, 14, 15):
        if cfg.rot in (10, 11): A(f"s_add_u32 s{sT}, s{sPair}, s{sSlab}")
        elif cfg.rot == 13: A(f"s_mov_b32 s{sT}, s{sSlab}")
        elif cfg.rot == 14: A(f"s_mov_b32 s{sT}, s{sPair}")
        elif cfg.rot == 15:
            A(f"s_lshr_b32 s{sT}, s{sPair}, 1")
            A(f"s_add_u32 s{sT}, s{sT}, s{sSlab}")
        A(f"s_and_b32 s{sT}, s{sT}, 3")
        A(f"s_lshl_b32 s{sT}, s{sT}, 1")
        if cfg.rot == 10: A(f"s_bfe_u32 s{sKC}, s2, 0x10001")
        elif cfg.rot == 11: A(f"s_mov_b32 s{sKC}, 0")
        else: A(f"s_and_b32 s{sKC}, s2, 1")
        A(f"s_add_u32 s{sKC}, s{sKC}, s{sT}")
    if cfg.rot not in (16, 17, 18) and cfg.rot < 19: A(f"s_and_b32 s{sKC}, s{sKC}, 7")
    A(f"s_and_b32 s{sRG}, s{sWave}, 3")
    A(f"s_cmp_ge_u32 s{sWave}, 4")
    A("s_cbranch_scc1 L_loader")

XSWAP = [0]
P3W = [8]
PVSWAP = [0]
VMASK = [0]
sVM = 14
SHIFT = ["0"]
SMUSE = [0]
ONES = [0]
def late_srds(A):
    srd(A, sWS, 22, 23, WS_SIZE)
    srd(A, sWOA, 8, 9, 512 * 512 * 2)
    srd(A, sWOB, 14, 15, 512 * 512 * 2)
    srd(A, sOUT, 18, 19, 2048 * 512 * 2)
    srd(A, sDBG, 20, 21, 256)
    if XSWAP[0]:
        A.c("output slab: one this XCD group does not produce itself (speed only)")
        A(f"s_bfe_u32 s{sS3}, s2, 0x20001")
        A(f"s_andn2_b32 s{sR3}, 1, s2")
        A(f"s_lshl_b32 s{sR3}, s{sR3}, 2")
        A(f"s_add_u32 s{sS3}, s{sS3}, s{sR3}")
    else:
        A(f"s_and_b32 s{sS3}, s2, 7")
    A(f"s_bfe_u32 s{sR3}, s2, 0x20003")
    A(f"s_lshr_b32 s{sC3}, s2, 5")
    A(f"s_lshl_b32 s{sF}, s{sPair}, 2")
    A(f"s_add_u32 s{sF}, s{sF}, s{sRG}")
    A(f"s_lshl_b32 s{sF}, s{sF}, 7")
    A(f"s_add_u32 s{sF}, s{sF}, {WS_F1}")
    A.c("scalars of the tail (s4..s7: their pointers are dead by now)")
    A(f"s_lshl_b32 s{sT}, s{sSlab}, 2")
    A(f"s_add_u32 s{sT}, s{sT}, s{sRG}")
    A(f"s_lshl_b32 s{sT}, s{sT}, 17")
    A(f"s_lshl_b32 s{sT+1}, s{sPair}, 1")
    A(f"s_lshr_b32 s{sT+2}, s{sWave}, 2")
    A(f"s_add_u32 s{sT+1}, s{sT+1}, s{sT+2}")
    A(f"s_lshl_b32 s{sT+1}, s{sT+1}, 10")
    A(f"s_add_u32 s{sT}, s{sT}, s{sT+1}")
    A(f"s_add_u32 s{sOst}, s{sT}, {WS_O}")
    A(f"s_lshl_b32 s{sT}, s{sS3}, 3")
    A(f"s_lshl_b32 s{sT+1}, s{sR3}, 1")
    A(f"s_add_u32 s{sT}, s{sT}, s{sT+1}")
    A(f"s_and_b32 s{sT+1}, s{sWave}, 1")
    A(f"s_add_u32 s{sT}, s{sT}, s{sT+1}")
    A(f"s_lshl_b32 s{sT}, s{sT}, 16")
    A(f"s_lshr_b32 s{sT+1}, s{sWave}, 1")
    A(f"s_lshl_b32 s{sT+1}, s{sT+1}, {15 if P3W[0] == 4 else 14}")
    A(f"s_add_u32 s{sT}, s{sT}, s{sT+1}")
    A(f"s_add_u32 s{sOld}, s{sT}, {WS_O}")
    A(f"s_lshl_b32 s{sT}, s{sS3}, 8")
    A(f"s_lshl_b32 s{sT+1}, s{sR3}, 6")
    A(f"s_add_u32 s{sT}, s{sT}, s{sT+1}")
    A(f"s_lshl_b32 s{sT}, s{sT}, 10")
    A(f"s_lshl_b32 s{sT+1}, s{sC3}, 7")
    A(f"s_add_u32 s{sOut}, s{sT}, s{sT+1}")
    A(f"s_lshr_b32 s{sGc}, s{sPair}, 4")
    A(f"s_lshl_b32 s{sZp}, s{sGc}, 7")
    A(f"s_and_b32 s{sT}, s{sPair}, 15")
    A(f"s_lshl_b32 s{sT}, s{sT}, 2")
    A(f"s_add_u32 s{sZp}, s{sZp}, s{sT}")
    A(f"s_add_u32 s{sZp}, s{sZp}, 8")
    A(f"s_mul_i32 s{sGc}, s{sGc}, 0x3f800000")

def xfrag_addr(A, L, H, t):
    A(f"v_and_b32 v{t}, 31, v0")
    A(f"v_lshrrev_b32 v{t+1}, 5, v0")
    A(f"v_bfe_u32 v{t+2}, v0, 1, 3")
    A(f"v_xor_b32 v{t+2}, v{t+2}, v{t+1}")
    A(f"v_lshlrev_b32 v{t}, 7, v{t}")
    A(f"s_lshl_b32 s{sT}, s{sRG}, 13")
    A(f"v_add_u32 v{t}, s{sT}, v{t}")
    for j in range(4):
        A(f"v_xor_b32 v{t+1}, {2*j}, v{t+2}")
        A(f"v_lshl_add_u32 v{L[j]}, v{t+1}, 4, v{t}")
        A(f"v_add_u32 v{H[j]}, 0x10000, v{L[j]}")

def p2_addr(A):
    A(f"v_lshlrev_b32 v{vL16}, 4, v0")
    A(f"s_lshr_b32 s{sT}, s{sWave}, 2")
    A(f"s_mul_i32 s{sT}, s{sT}, {HSTR}")
    A(f"v_add_u32 v{vKL}, s{sT}, v{vL16}")
    A("v_lshrrev_b32 v104, 5, v0")
    A("v_and_b32 v105, 15, v0")
    A("v_lshlrev_b32 v105, 4, v105")
    A("v_lshl_add_u32 v105, v104, 8, v105")
    A("v_add_u32 v105, 1024, v105")
    A("v_add_u32 v106, 512, v105")
    A("v_and_b32 v104, 11, v0")
    A("v_cmp_eq_u32 vcc, 0, v104")
    A("v_mov_b32 v107, " + ("2048" if ONES[0] == 1 else "2064"))
    A("v_mov_b32 v108, " + ("2064" if ONES[0] == 2 else "2048"))
    A("v_cndmask_b32 v107, v107, v108, vcc")
    A("v_and_b32 v104, 16, v0")
    A("v_cmp_eq_u32 vcc, 0, v104")
    A("s_nop 1")
    A("v_cndmask_b32 v105, v107, v105, vcc")
    A("v_cndmask_b32 v106, v107, v106, vcc")
    A(f"v_add_u32 v{vV0L}, s{sT}, v105")
    A(f"v_add_u32 v{vV1L}, s{sT}, v106")
    A(f"v_add_u32 v{vKH}, {SC}, v{vKL}")
    A(f"v_add_u32 v{vV0H}, {SC}, v{vV0L}")
    A(f"v_add_u32 v{vV1H}, {SC}, v{vV1L}")
    A("v_lshrrev_b32 v104, 3, v0")
    A("v_lshlrev_b32 v104, 10, v104")
    A("v_and_b32 v105, 7, v0")
    A(f"v_lshlrev_b32 v{vPA}, 2, v105")
    A("v_bfe_u32 v106, v0, 4, 1")
    A("v_lshlrev_b32 v106, 2, v106")
    A("v_xor_b32 v105, v105, v106")
    A(f"v_lshl_add_u32 v{vWoD}, v105, 4, v104")

def consts(A, slots):
    A("v_lshrrev_b32 v104, 4, v0")
    A(f"v_mul_u32_u24 v104, {slots[-1] - slots[0]}, v104")
    A("v_and_b32 v105, 15, v0")
    A(f"v_mul_u32_u24 v105, {REC}, v105")
    A("v_add_u32 v104, v104, v105")
    if slots[0]: A(f"v_add_u32 v104, {slots[0]}, v104")
    for i in range(4):
        A(f"v_mov_b32 v{108+i}, 0x3f803f80")
        A(f"v_mov_b32 v{112+i}, 0")
    n = 16 * len(slots)
    A(f"s_mov_b32 exec_lo, {hex((1 << min(n,32)) - 1)}")
    A(f"s_mov_b32 exec_hi, {hex((1 << max(n-32,0)) - 1)}")
    A("ds_write_b128 v104, v[108:111] offset:2048")
    A("ds_write_b128 v104, v[112:115] offset:2064")
    A("s_mov_b64 exec, -1")

tails = []
def spin(A, name, load, reg, val, cmp="ne", sleep=0, depth=0, first=0):
    A(f"s_waitcnt vmcnt({first})")
    A(f"v_cmp_{cmp}_u32 vcc, {val}, v{reg}")
    A("s_nop 0")
    A(f"s_cbranch_vccnz L_spin_{name}")
    A(f"L_ret_{name}:")
    T = Asm()
    T(f"L_spin_{name}:")
    T(f"s_mov_b32 s{sSpin}, {SPIN_MAX}")
    for _ in range(depth):
        T(load)
        if sleep: T(f"s_sleep {sleep}")
    T(f"L_spinl_{name}:")
    if sleep: T(f"s_sleep {sleep}")
    T(load)
    T(f"s_sub_u32 s{sSpin}, s{sSpin}, 1")
    T(f"s_cbranch_scc1 L_ret_{name}")
    T(f"s_waitcnt vmcnt({depth})")
    T(f"v_cmp_{cmp}_u32 vcc, {val}, v{reg}")
    T("s_nop 0")
    T(f"s_cbranch_vccnz L_spinl_{name}")
    T(f"s_branch L_ret_{name}")
    tails.append(T)

vXL, vXH = [2, 3, 4, 5], [6, 7, 8, 9]
vWa, vWb, vWv = 10, 11, 12
ACC = dict(QKa0=32, QKa1=48, QKb0=64, QKb1=80, VV0=96, VV1=112)
FR = [128, 148]
vQ = [8, 12]
F1LOAD = f"buffer_load_dword v{vPoll}, v{vPA}, s[{sWS}:{sWS+3}], s{sF} offen sc1"
SAMPLE = f"buffer_load_dword v28, v5, s[{sWS}:{sWS+3}], s{sOld} offen sc1"
ZLOAD = f"buffer_load_dword v{vZ}, off, s[{sDBG}:{sDBG+3}], s{sZp} sc1"

def l2_prefetch(A, cfg):
    assert cfg.lr == 2
    A(f"s_cmp_lt_u32 s{sPair}, 16")
    A(f"s_cselect_b32 s{sW}, s6, s12")
    A(f"s_cselect_b32 s{sW+1}, s7, s13")
    A(f"s_mov_b32 s{sW+2}, {hex(512*1536*2)}")
    A(f"s_mov_b32 s{sW+3}, 0x20000")
    A(f"s_lshl_b32 s{sT}, s{sWave}, 1")
    A(f"s_add_u32 s{sT}, s{sT}, s{sKC}")
    A(f"s_add_u32 s{sT}, s{sT}, {cfg.pfoff}")
    A("v_lshrrev_b32 v46, 5, v0")
    A(f"v_add_u32 v46, s{sT}, v46")
    A("v_and_b32 v46, 7, v46")
    A("v_and_b32 v47, 31, v0")
    A(f"s_lshr_b32 s{sT+1}, s2, 3")
    A(f"s_and_b32 s{sT+2}, s2, 1")
    A(f"s_lshl_b32 s{sT+2}, s{sT+2}, 20")
    A(f"s_lshl_b32 s{sT+3}, s{sT+1}, 15")
    A(f"s_add_u32 s{sT+2}, s{sT+2}, s{sT+3}")
    A("v_lshlrev_b32 v48, 10, v47")
    A("v_lshl_add_u32 v48, v46, 7, v48")
    A(f"buffer_load_dword v200, v48, s[{sX}:{sX+3}], s{sT+2} offen")
    A(f"s_mul_i32 s{sT+1}, s{sT+1}, 24")
    A("v_min_u32 v47, 23, v47")
    A(f"v_add_u32 v47, s{sT+1}, v47")
    A("v_mul_u32_u24 v48, 0x5556, v47")
    A("v_lshrrev_b32 v48, 18, v48")
    A("v_mul_u32_u24 v49, 12, v48")
    A("v_sub_u32 v49, v47, v49")
    A("v_lshl_add_u32 v48, v46, 6, v48")
    A("v_mul_u32_u24 v48, 3072, v48")
    A("v_lshrrev_b32 v47, 2, v49")
    A("v_lshl_add_u32 v48, v47, 10, v48")
    A("v_and_b32 v49, 3, v49")
    A("v_lshl_add_u32 v48, v49, 7, v48")
    A(f"s_and_b32 s{sT+1}, s{sPair}, 8")
    A(f"s_lshl_b32 s{sT+1}, s{sT+1}, 6")
    A(f"buffer_load_dword v201, v48, s[{sW}:{sW+3}], s{sT+1} offen")

def w_prefetch(A, cfg):
    assert cfg.lr == 2
    A(f"s_cmp_lt_u32 s{sPair}, 16")
    A(f"s_cselect_b32 s{sW}, s6, s12")
    A(f"s_cselect_b32 s{sW+1}, s7, s13")
    A(f"s_mov_b32 s{sW+2}, {hex(512*1536*2)}")
    A(f"s_mov_b32 s{sW+3}, 0x20000")
    A(f"s_and_b32 s{sT+1}, s{sPair}, 14")
    A(f"s_lshl_b32 s{sT+1}, s{sT+1}, 6")
    if cfg.wpf2 < 10:
        A(f"s_add_u32 s{sT+3}, s{sW}, s{sT+1}")
        A(f"s_bfe_u32 s{sT+3}, s{sT+3}, 0x30007")
    A(f"s_and_b32 s{sT}, s{sSlab}, 3")
    A(f"s_lshl_b32 s{sT}, s{sT}, 1")
    A(f"s_and_b32 s{sT+2}, s{sPair}, 1")
    A(f"s_add_u32 s{sT}, s{sT}, s{sT+2}")
    A(f"s_add_u32 s{sT}, s{sT}, s{sKC}")
    A(f"s_and_b32 s{sT}, s{sT}, 7")
    A(f"s_mul_i32 s{sT}, s{sT}, 196608")
    A(f"s_add_u32 s{sT}, s{sT}, s{sT+1}")
    A(f"s_mul_i32 s{sT+2}, s{sRG}, 49152")
    A(f"s_add_u32 s{sT}, s{sT}, s{sT+2}")
    A("v_min_u32 v46, 47, v0")
    A("v_lshlrev_b32 v46, 10, v46")
    if cfg.wpf2 < 10:
        A(f"s_cmp_eq_u32 s{sT+3}, 3")
        A("s_cselect_b64 exec, -1, 0")
    A(f"buffer_load_dword v200, v46, s[{sW}:{sW+3}], s{sT} offen")
    A("s_mov_b64 exec, -1")

def hot_prefetch(A, cfg):
    A(f"s_cmp_lt_u32 s{sPair}, 16")
    A(f"s_cselect_b32 s{sW}, s6, s12")
    A(f"s_cselect_b32 s{sW+1}, s7, s13")
    A(f"s_mov_b32 s{sW+2}, {hex(512*1536*2)}")
    A(f"s_mov_b32 s{sW+3}, 0x20000")
    A(f"s_lshr_b32 s{sT}, s{sW}, 7")
    A(f"s_sub_u32 s{sT}, 3, s{sT}")
    A(f"s_and_b32 s{sT}, s{sT}, 7")
    A(f"s_lshl_b32 s{sT}, s{sT}, 7")
    A(f"s_and_b32 s{sT+1}, s{sPair}, 15")
    A(f"s_lshl_b32 s{sT+1}, s{sT+1}, 3")
    A(f"s_add_u32 s{sT+1}, s{sT+1}, s{sSlab}")
    A(f"s_lshl_b32 s{sT+1}, s{sT+1}, 2")
    A(f"s_add_u32 s{sT+1}, s{sT+1}, s{sWave}")
    A(f"s_mul_i32 s{sT+1}, s{sT+1}, 3072")
    A(f"s_add_u32 s{sT}, s{sT}, s{sT+1}")
    A("v_min_u32 v46, 2, v0")
    A("v_lshlrev_b32 v46, 10, v46")
    A(f"buffer_load_dword v200, v46, s[{sW}:{sW+3}], s{sT} offen")

def p1_compute(A, cfg):
    A.c("---- phase 1, compute waves")
    if cfg.p1prio == 1: A("s_setprio 1")
    A("s_waitcnt lgkmcnt(0)")
    A.c("gate g = sigmoid(x . gate_w) of rows 8*wg + 2*wave, +1 (every workgroup covers 8 of the 2048 rows)")
    srd(A, sX, 4, 5, 2048 * 512 * 2)
    srd(A, sG, 16, 17, 1024)
    A(f"s_lshl_b32 s{sT+6}, s2, 2")
    A(f"s_add_u32 s{sT+6}, s{sT+6}, s{sWave}")
    A(f"s_lshl_b32 s{sT+7}, s{sT+6}, 11")
    A("v_lshlrev_b32 v13, 4, v0")
    A(f"buffer_load_dwordx4 v[32:35], v13, s[{sX}:{sX+3}], s{sT+7} offen")
    A(f"buffer_load_dwordx4 v[36:39], v13, s[{sX}:{sX+3}], s{sT+7} offen offset:1024")
    A(f"buffer_load_dwordx4 v[40:43], v13, s[{sG}:{sG+3}], 0 offen")
    if cfg.wpf:
        A.c("pull this workgroup's 1/256 share of both weight matrices towards the chip")
        A(f"s_cmp_lt_u32 s2, 128")
        A(f"s_cselect_b32 s{sW}, s6, s12")
        A(f"s_cselect_b32 s{sW+1}, s7, s13")
        A(f"s_mov_b32 s{sW+2}, {hex(512*1536*2)}")
        A(f"s_mov_b32 s{sW+3}, 0x20000")
        A(f"s_and_b32 s{sT}, s{sT+6}, 511")
        A(f"s_mul_i32 s{sT}, s{sT}, 3072")
        for i in range(3):
            A(f"buffer_load_dwordx4 v[{48+4*i}:{51+4*i}], v13, s[{sW}:{sW+3}], s{sT} offen offset:{1024*i}")
    if cfg.wpf3: hot_prefetch(A, cfg)
    if cfg.wpf2 % 10 == 1: w_prefetch(A, cfg)
    if cfg.c2c:
        A.c("the otherwise idle compute waves fetch chunk 2")
        A(f"s_cmp_lt_u32 s{sPair}, 16")
        A(f"s_cselect_b32 s{sW}, s6, s12")
        A(f"s_cselect_b32 s{sW+1}, s7, s13")
        A(f"s_mov_b32 s{sW+2}, {hex(512*1536*2)}")
        A(f"s_mov_b32 s{sW+3}, 0x20000")
        A("v_lshrrev_b32 v48, 3, v0")
        A("v_lshlrev_b32 v48, 10, v48")
        A("v_and_b32 v49, 7, v0")
        A("v_lshrrev_b32 v50, 4, v0")
        A("v_xor_b32 v49, v49, v50")
        A("v_lshl_add_u32 v48, v49, 4, v48")
        A("v_xor_b32 v49, 64, v48")
        A(f"s_add_u32 s{sK2}, s{sKC}, 2")
        A(f"s_and_b32 s{sK2}, s{sK2}, 7")
        A(f"s_lshl_b32 s{sXo}, s{sK2}, 7")
        A(f"s_lshl_b32 s{sT}, s{sSlab}, 18")
        A(f"s_add_u32 s{sXo}, s{sXo}, s{sT}")
        A(f"s_lshl_b32 s{sT}, s{sRG}, 16")
        A(f"s_add_u32 s{sXo}, s{sXo}, s{sT}")
        A(f"s_lshl_b32 s{sM}, s{sRG}, 13")
        for i in range(8):
            A(f"s_add_u32 m0, s{sM}, {XB[2] + i*1024}")
            A(f"s_add_u32 s{sT}, s{sXo}, {i*8192}")
            A(f"buffer_load_dwordx4 v{49 if i & 1 else 48}, s[{sX}:{sX+3}], s{sT} offen lds")
        A("v_lshrrev_b32 v50, 2, v0")
        A("v_mul_u32_u24 v50, 3072, v50")
        A("v_and_b32 v51, 3, v0")
        A("v_lshl_add_u32 v50, v51, 4, v50")
        A("v_xor_b32 v51, 32, v50")
        A(f"s_and_b32 s{sT}, s{sPair}, 15")
        A(f"s_lshl_b32 s{sT}, s{sT}, 6")
        A(f"s_mul_i32 s{sT+1}, s{sRG}, 49152")
        A(f"s_add_u32 s{sT}, s{sT}, s{sT+1}")
        A(f"s_mul_i32 s{sT+1}, s{sK2}, 196608")
        A(f"s_mul_i32 s{sM}, s{sRG}, 3072")
        A(f"s_add_u32 m0, s{sM}, {WB + 2*12288}")
        A(f"s_add_u32 s{sT}, s{sT}, s{sT+1}")
        for i in range(3):
            A(f"buffer_load_dwordx4 v{51 if i == 1 else 50}, s[{sW}:{sW+3}], s{sT} offen offset:{i*1024} lds")
    late_srds(A)
    A.c("wave 0 clears this workgroup's hand-off words, then counts the workgroup in")
    A(f"s_cmp_lg_u32 s{sWave}, 0")
    A("s_cbranch_scc1 L_nozero")
    A(f"s_lshl_b32 s{sT}, s{sPair}, 9")
    A(f"s_lshl_b32 s{sT+1}, s{sSlab}, 2")
    A(f"s_add_u32 s{sT}, s{sT}, s{sT+1}")
    A(f"s_add_u32 s{sT}, s{sT}, {WS_F1}")
    A("v_lshlrev_b32 v2, 7, v0")
    A(f"v_add_u32 v2, s{sT}, v2")
    A("v_mov_b32 v4, 0")
    A("s_mov_b64 exec, 0xf")
    A(f"buffer_store_dword v4, v2, s[{sWS}:{sWS+3}], 0 offen sc1")
    A("s_mov_b64 exec, -1")
    A("L_nozero:")
    p2_pre(A, False); p2_pre(A, True)
    A("v_and_b32 v2, 1, v0")
    A(f"v_lshlrev_b32 v{vPoll}, 7, v2")
    A(f"v_mov_b32 v{vZ}, 1")
    p2_addr(A)
    xfrag_addr(A, vXL, vXH, 13)
    A("v_lshrrev_b32 v13, 5, v0")
    A("v_lshlrev_b32 v13, 3, v13")
    A("v_bfe_u32 v14, v0, 2, 2")
    A("v_add_u32 v13, v13, v14")
    A("v_lshlrev_b32 v13, 6, v13")
    A("v_and_b32 v14, 3, v0")
    A("v_lshl_add_u32 v13, v14, 3, v13")
    A(f"v_add_u32 v13, {WB}, v13")
    A("v_bfe_u32 v14, v0, 4, 1")
    A("v_mul_u32_u24 v15, 1056, v14")
    A(f"v_add_u32 v{vWa}, v13, v15")
    A("v_mul_u32_u24 v15, 992, v14")
    A(f"v_add3_u32 v{vWb}, v13, v15, 32")
    A("v_lshl_add_u32 v13, v14, 5, v13")
    A(f"v_add_u32 v{vWv}, 2048, v13")
    def reads(c, j, F):
        if cfg.p1x & 8 and (c, j) != (0, 0): return ["s_nop 0"] * 8
        slot = c % 3
        xr = vXH[j] if slot == 2 else vXL[j]
        xi = XS if slot == 0 else 0
        wi = slot * 12288 + j * 3072
        return [f"ds_read_b128 {v(F,4)}, v{xr} offset:{xi}",
                f"ds_read_b64_tr_b16 {v(F+8,2)}, v{vWa} offset:{wi}",
                f"ds_read_b64_tr_b16 {v(F+10,2)}, v{vWa} offset:{wi+256}",
                f"ds_read_b128 {v(F+4,4)}, v{xr} offset:{xi+4096}",
                f"ds_read_b64_tr_b16 {v(F+12,2)}, v{vWb} offset:{wi}",
                f"ds_read_b64_tr_b16 {v(F+14,2)}, v{vWb} offset:{wi+256}",
                f"ds_read_b64_tr_b16 {v(F+16,2)}, v{vWv} offset:{wi}",
                f"ds_read_b64_tr_b16 {v(F+18,2)}, v{vWv} offset:{wi+256}"]
    def mf(F, first):
        def m(D, a, b):
            if cfg.p1x & 1 and not first: return "s_nop 1"
            if cfg.t16:
                q = 4 * (F != FR[0])
                return (f"v_mfma_f32_16x16x32_bf16 {v(D+q,4)}, {v(a,4)}, {v(b,4)}, {'0' if first else v(D+q,4)}\n"
                        f"v_mfma_f32_16x16x32_bf16 {v(D+8+q,4)}, {v(a,4)}, {v(b,4)}, {'0' if first else v(D+8+q,4)}")
            return f"v_mfma_f32_32x32x16_bf16 {v(D,16)}, {v(a,4)}, {v(b,4)}, {'0' if first else v(D,16)}"
        return [m(ACC['QKa0'], F+8, F), m(ACC['QKa1'], F+8, F+4), m(ACC['QKb0'], F+12, F),
                m(ACC['QKb1'], F+12, F+4), m(ACC['VV0'], F, F+16), m(ACC['VV1'], F+4, F+16)]
    A(f"s_lshl_b32 s{sT+6}, s{sT+6}, 3")
    A(f"s_add_u32 s{sT+6}, s{sT+6}, {WS_G}")
    A("v_lshrrev_b32 v13, 5, v0")
    A("v_lshlrev_b32 v13, 2, v13")
    A("v_mov_b32 v44, 0")
    A("v_mov_b32 v45, 0")
    if cfg.l2pf == 1: l2_prefetch(A, cfg)
    A(f"s_waitcnt vmcnt({(3 if cfg.wpf else (2 if cfg.l2pf == 1 else (1 if (cfg.wpf2 % 10 == 1 or cfg.wpf3) else (11 if cfg.c2c else 0))))})")
    if cfg.zearly == 1:
        assert not (cfg.wpf or cfg.l2pf or cfg.wpf2 or cfg.wpf3 or cfg.c2c)
        A.c("wave 0: its clears are acknowledged -> count this workgroup in")
        A(f"s_cmp_lg_u32 s{sWave}, 0")
        A("s_cbranch_scc1 L_noz0")
        A(f"s_and_b32 s{sT}, s2, 1")
        A(f"s_lshl_b32 s{sT}, s{sT}, 7")
        A("s_mov_b64 exec, 1")
        A(f"buffer_atomic_add v{vZ}, off, s[{sDBG}:{sDBG+3}], s{sT}")
        A("s_mov_b64 exec, -1")
        A("L_noz0:")
    if cfg.l2pf == 2: l2_prefetch(A, cfg)
    if cfg.wpf2 % 10 == 2: w_prefetch(A, cfg)
    for i in range(4):
        A(f"v_dot2_f32_bf16 v44, v{32+i}, v{40+i}, v44")
        A(f"v_dot2_f32_bf16 v45, v{36+i}, v{40+i}, v45")
    A("s_nop 2")
    A("v_permlane32_swap_b32 v44, v45")
    A("v_add_f32 v44, v44, v45")
    A("v_mov_b32 v45, v44")
    A("s_nop 1")
    A("v_permlane16_swap_b32 v44, v45")
    A("v_add_f32 v44, v44, v45")
    for ctl in ("quad_perm:[1,0,3,2]", "quad_perm:[2,3,0,1]", "row_half_mirror", "row_mirror"):
        A("s_nop 1")
        A(f"v_add_f32_dpp v44, v44, v44 {ctl} row_mask:0xf bank_mask:0xf")
    A(f"v_mul_f32 v44, {fbits(-LOG2E)}, v44")
    A("v_exp_f32 v44, v44")
    A("s_nop 0")
    A("v_add_f32 v44, 1.0, v44")
    A("v_rcp_f32 v44, v44")
    A("s_mov_b32 exec_lo, 1")
    A("s_mov_b32 exec_hi, 1")
    A(f"buffer_store_dword v44, v13, s[{sWS}:{sWS+3}], s{sT+6} offen sc1")
    A("s_mov_b64 exec, -1")
    if cfg.wpf: A("s_waitcnt vmcnt(1)")
    A("s_barrier")
    stamp(A, cfg, 1)
    for r in reads(0, 0, FR[0]): A(r)
    def wave0_block(n):
        if n == cfg.n_add and cfg.zearly != 1 and not cfg.noz:
            A(f"s_cmp_lg_u32 s{sWave}, 0")
            A("s_cbranch_scc1 L_noz0")
            A("s_mov_b64 exec, 1")
            A(f"buffer_atomic_add v{vZ}, off, s[{sDBG}:{sDBG+3}], s{sZp}")
            A("s_mov_b64 exec, -1")
            A("L_noz0:")
        if n == cfg.n_z and not cfg.noz and not cfg.zld:
            A(f"s_cmp_lg_u32 s{sWave}, 0")
            A("s_cbranch_scc1 L_noz1")
            A(ZLOAD)
            A("L_noz1:")
    if cfg.p1pipe == 0:
        for n in range(32):
            c, j = divmod(n, 4)
            M = mf(FR[n & 1], n == 0)
            A("s_waitcnt lgkmcnt(0)" if (n != 7 or cfg.zearly) else "s_waitcnt vmcnt(0) lgkmcnt(0)")
            if n == 31:
                for m in M: A(m)
                break
            if j == 3: A("s_barrier")
            c2, j2 = divmod(n + 1, 4)
            R = reads(c2, j2, FR[(n + 1) & 1])
            A(M[0]); A(R[0]); A(R[1]); A(R[2])
            A(M[1]); A(R[3]); A(R[4]); A(R[5])
            A(M[2]); A(R[6]); A(R[7])
            A(M[3])
            wave0_block(n)
            A(M[4]); A(M[5])
    else:
        for n in range(32):
            c, j = divmod(n, 4)
            M = mf(FR[n & 1], n == 0)
            last = n == 31
            c2, j2 = divmod(n + 1, 4)
            R = [""] * 8 if last else reads(c2, j2, FR[(n + 1) & 1])
            k = 0 if last else 3
            A("s_waitcnt lgkmcnt(5)")
            A(M[0])
            A("s_waitcnt lgkmcnt(4)")
            A(M[1])
            if n == 7: A("s_waitcnt vmcnt(0)")
            if j == 3 and not last: A("s_barrier")
            for x in R[0:3]: A(x)
            A(f"s_waitcnt lgkmcnt({2 + k})")
            A(M[2])
            for x in R[3:6]: A(x)
            A(M[3])
            wave0_block(n)
            A(f"s_waitcnt lgkmcnt({2*k})")
            if j == 3 and not last: A("s_barrier")
            A(M[4])
            for x in R[6:8]: A(x)
            A(M[5])

def p1_compute_epilogue(A, cfg):
    A.c("---- phase 1 epilogue: round K/V, publish them (write-through) and keep them in LDS")
    A(f"s_lshl_b32 s{sT}, s{sPair}, 3")
    A(f"s_add_u32 s{sT}, s{sT}, s{sSlab}")
    A(f"s_lshl_b32 s{sT}, s{sT}, 15")
    A(f"s_lshl_b32 s{sT+1}, s{sRG}, 12")
    A(f"s_add_u32 s{sT}, s{sT}, s{sT+1}")
    A(f"s_add_u32 s{sT+1}, s{sT}, 16384")
    A("v_bfe_u32 v13, v0, 4, 1")
    A("v_lshrrev_b32 v14, 5, v0")
    A("v_and_b32 v15, 15, v0")
    A("v_lshlrev_b32 v15, 4, v15")
    A("v_lshl_add_u32 v15, v14, 8, v15")
    A("v_add_u32 v15, 1024, v15")
    A("v_lshl_add_u32 v3, v13, 14, v15")
    A(f"s_mul_i32 s{sT+2}, s{sRG}, {2*REC}")
    A(f"s_add_u32 s{sT+2}, s{sT+2}, {SB}")
    A(f"v_add_u32 v4, s{sT+2}, v{vKP if cfg.sm else vL16}")
    A(f"v_mul_u32_u24 v13, {HSTR}, v13")
    A(f"v_add3_u32 v5, v13, v15, s{sT+2}")
    if not cfg.zld:
        A.c("wave 0: every workgroup has cleared its hand-off words (checked before any flag is read)")
        A(f"s_cmp_lg_u32 s{sWave}, 0")
        A("s_cbranch_scc1 L_noz2")
        A(f"s_movk_i32 s{sT+3}, 128")
        if not cfg.noz: spin(A, "z", ZLOAD, vZ, f"s{sT+3}", "gt")
        A("L_noz2:")
    def cvt(dst, src):
        for i in range(4):
            A(f"v_cvt_pk_bf16_f32 v{dst+i}, v{src+2*i}, v{src+2*i+1}")
    if cfg.epi2:
        tmp = [128, 132, 136, 140, 144, 148, 152, 156]
        A(f"s_mov_b32 s{sT+4}, {fbits(QSCALE)}")
        A(f"s_mov_b32 s{sT+5}, {fbits(QSCALE)}")
        A(f"s_lshl_b32 s{sT+6}, s{sRG}, 11")
        A(f"s_add_u32 s{sT+6}, s{sT+6}, {QX}")
        A(f"v_add_u32 v6, s{sT+6}, v{vL16}")
        items = []
        for hd, names in ((0, ("QKa0", "QKa1")), (1, ("QKb0", "QKb1"))):
            for t in (0, 1):
                items.append((ACC[names[t]] + 8, f"v{vKP if cfg.sm else vL16}, s[{sWS}:{sWS+3}], s{sT+hd} offen offset:{t*2048}", "v4", hd*HSTR + t*REC))
        for t in (0, 1):
            for a in (0, 1):
                items.append((ACC[f"VV{t}"] + 8 * a, f"v3, s[{sWS}:{sWS+3}], s{sT} offen offset:{t*2048 + a*512}", "v5", t*REC + a*512))
        qs = [("QKb0", 16, 0), ("QKb1", 20, 1024), ("QKa0", vQ[0], None), ("QKa1", vQ[1], None)]
        for k, (src, gaddr, laddr, loff) in enumerate(items):
            cvt(tmp[k], src)
            A(f"buffer_store_dwordx4 {v(tmp[k],4)}, {gaddr} sc1")
            A(f"ds_write_b128 {laddr}, {v(tmp[k],4)} offset:{loff}")
            nm, dst, qoff = qs[k >> 1]
            q = ACC[nm]
            if k & 1 == 0:
                for i in range(4): A(f"v_pk_mul_f32 {v(q+2*i,2)}, {v(q+2*i,2)}, s[{sT+4}:{sT+5}]")
            else:
                cvt(dst, q)
                if qoff is not None: A(f"ds_write_b128 v6, {v(dst,4)} offset:{qoff}")
    else:
        tmp = [128, 132, 136, 140, 144, 148, 152, 156]
        if cfg.epist: stamp(A, cfg, 3)
        k = 0
        for hd, names in ((0, ("QKa0", "QKa1")), (1, ("QKb0", "QKb1"))):
            for t in (0, 1):
                cvt(tmp[k], ACC[names[t]] + 8)
                A(f"buffer_store_dwordx4 {v(tmp[k],4)}, v{vL16}, s[{sWS}:{sWS+3}], s{sT+hd} offen offset:{t*2048} sc1")
                k += 1
        if cfg.epist: stamp(A, cfg, 4)
        for t in (0, 1):
            for a in (0, 1):
                cvt(tmp[k], ACC[f"VV{t}"] + 8 * a)
                A(f"buffer_store_dwordx4 {v(tmp[k],4)}, v3, s[{sWS}:{sWS+3}], s{sT} offen offset:{t*2048 + a*512} sc1")
                k += 1
        if cfg.epist: stamp(A, cfg, 5)
        k = 0
        for hd in (0, 1):
            for t in (0, 1):
                A(f"ds_write_b128 v4, {v(tmp[k],4)} offset:{hd*HSTR + t*REC}"); k += 1
        for t in (0, 1):
            for a in (0, 1):
                A(f"ds_write_b128 v5, {v(tmp[k],4)} offset:{t*REC + a*512}"); k += 1
        if cfg.epist: stamp(A, cfg, 6)
        A(f"s_mov_b32 s{sT+4}, {fbits(QSCALE)}")
        A(f"s_mov_b32 s{sT+5}, {fbits(QSCALE)}")
        A(f"s_lshl_b32 s{sT+2}, s{sRG}, 11")
        A(f"s_add_u32 s{sT+2}, s{sT+2}, {QX}")
        A(f"v_add_u32 v4, s{sT+2}, v{vL16}")
        for hd, names in ((1, ("QKb0", "QKb1")), (0, ("QKa0", "QKa1"))):
            for t in (0, 1):
                q = ACC[names[t]]
                for i in range(4):
                    A(f"v_pk_mul_f32 {v(q+2*i,2)}, {v(q+2*i,2)}, s[{sT+4}:{sT+5}]")
                dst = vQ[t] if hd == 0 else 16 + 4 * t
                cvt(dst, q)
                if hd == 1: A(f"ds_write_b128 v4, {v(dst,4)} offset:{t*1024}")
    if cfg.epist: stamp(A, cfg, 7)
    A("s_waitcnt lgkmcnt(0)")
    if cfg.epist: stamp(A, cfg, 8)
    A("s_barrier")
    if cfg.epist:
        stamp(A, cfg, 9)
        A("s_waitcnt vmcnt(0)")
        stamp_store(A, cfg, 10)
        A("s_endpgm")
    A.c("K/V stores acknowledged -> raise this wave's flag")
    A(f"v_mov_b32 v{vZ}, 1")
    A(f"s_lshl_b32 s{sJ}, s{sSlab}, 2")
    A(f"s_add_u32 s{sJ}, s{sJ}, s{sF}")
    lstamp(A, cfg, 46)
    if cfg.c1c:
        A(F1LOAD)
        p2_setup(A, cfg)
        A(f"s_lshl_b32 s{sT}, s{sSlab}, 2")
        A(f"v_cmp_eq_u32 s[{sT+2}:{sT+3}], s{sT}, v{vPA}")
        A("s_waitcnt vmcnt(3)")
    else:
        A("s_waitcnt vmcnt(0)")
    A("s_mov_b64 exec, 1")
    A(f"buffer_store_dword v{vZ}, off, s[{sWS}:{sWS+3}], s{sJ} sc1")
    A("s_mov_b64 exec, -1")
    lstamp(A, cfg, 47)
    if cfg.c1c:
        A("s_waitcnt vmcnt(3)")
        A(f"v_cmp_ne_u32 vcc, 1, v{vPoll}")
        A(f"s_mov_b32 s{sSpin}, {SPIN_MAX}")
        A(f"s_andn2_b64 s[{sT+4}:{sT+5}], vcc, s[{sT+2}:{sT+3}]")
        A("s_cbranch_scc1 L_f1c")
        A("L_f1c_ret:")
        T = Asm()
        T("L_f1c:")
        T(F1LOAD)
        T(f"s_sub_u32 s{sSpin}, s{sSpin}, 1")
        T("s_cbranch_scc1 L_f1c_ret")
        T("s_waitcnt vmcnt(0)")
        T(f"v_cmp_ne_u32 vcc, 1, v{vPoll}")
        T("s_nop 0")
        T(f"s_andn2_b64 s[{sT+4}:{sT+5}], vcc, s[{sT+2}:{sT+3}]")
        T("s_cbranch_scc1 L_f1c")
        T("s_branch L_f1c_ret")
        tails.append(T)
        lstamp(A, cfg, 49)
        for x in kv_setup(1): A(x)
        for job in kv_jobs(1):
            for x in job: A(x)
        A(f"s_add_u32 s{sCO}, s{sCO}, 16384")
        for job in kv_jobs(1, -1):
            for x in job: A(x)

def p1_loader(A, cfg):
    A.c("---- phase 1, loader waves: LDS-DMA of x / W chunks")
    if cfg.p1prio == 2: A("s_setprio 1")
    A("v_lshrrev_b32 v13, 3, v0")
    A("v_lshlrev_b32 v13, 10, v13")
    A("v_and_b32 v14, 7, v0")
    A("v_lshrrev_b32 v15, 4, v0")
    A("v_xor_b32 v14, v14, v15")
    A("v_lshl_add_u32 v13, v14, 4, v13")
    A("v_xor_b32 v14, 64, v13")
    for i in range(8):
        A(f"v_add_u32 v{2+i}, {i*8192 - (i&3)*1024}, v{14 if i & 1 else 13}")
    A(f"s_lshl_b32 s{sXb}, s{sSlab}, 18")
    A(f"s_lshl_b32 s{sT}, s{sRG}, 16")
    A(f"s_add_u32 s{sXb}, s{sXb}, s{sT}")
    def issue_x(c):
        slot = c % 3
        A(f"s_add_u32 s{sK2}, s{sKC}, {c}")
        A(f"s_and_b32 s{sK2}, s{sK2}, 7")
        A(f"s_lshl_b32 s{sXo}, s{sK2}, 7")
        A(f"s_lshl_b32 s{sM}, s{sRG}, 13")
        A(f"s_add_u32 m0, s{sM}, {XB[slot]}")
        A(f"s_add_u32 s{sXo}, s{sXo}, s{sXb}")
        for i in range(8):
            if i == 4:
                A(f"s_add_u32 m0, s{sM}, {XB[slot] + 4096}")
                A("s_nop 0")
            A(f"buffer_load_dwordx4 v{2+i}, s[{sX}:{sX+3}], s{sXo} offen offset:{(i&3)*1024} lds")
    def issue_w(c):
        slot = c % 3
        A(f"s_mul_i32 s{sM}, s{sRG}, 3072")
        A(f"s_mul_i32 s{sWo}, s{sK2}, 196608")
        A(f"s_add_u32 m0, s{sM}, {WB + slot*12288}")
        A(f"s_add_u32 s{sWo}, s{sWo}, s{sWb_}")
        for i in range(3):
            A(f"buffer_load_dwordx4 v{11 if i == 1 else 10}, s[{sW}:{sW+3}], s{sWo} offen offset:{i*1024} lds")
    def pf_setup():
        assert cfg.lr == 2
        A(f"s_and_b32 s{sT}, s{sPair}, 7")
        A(f"s_lshl_b32 s{sT}, s{sT}, 15")
        A(f"s_lshl_b32 s{sT+1}, s{sRG}, 13")
        A(f"s_add_u32 s{sT}, s{sT}, s{sT+1}")
        A(f"s_lshl_b32 s{sT+1}, s{sSlab}, 18")
        A(f"s_add_u32 s{sT}, s{sT}, s{sT+1}")
        A(f"s_add_u32 s12, s{sX}, s{sT}")
        A(f"s_addc_u32 s13, s{sX+1}, 0")
        A(f"s_and_b32 s{sT}, s{sSlab}, 3")
        A(f"s_lshl_b32 s{sT}, s{sT}, 1")
        A(f"s_and_b32 s{sT+1}, s{sPair}, 1")
        A(f"s_add_u32 s{sT}, s{sT}, s{sT+1}")
        A(f"s_lshl_b32 s{sT}, s{sT}, 2")
        A(f"s_add_u32 s{sT}, s{sT}, s{sRG}")
        A(f"s_mul_i32 s{sT}, s{sT}, 6144")
        A(f"s_and_b32 s{sT+1}, s{sPair}, 14")
        A(f"s_lshl_b32 s{sT+1}, s{sT+1}, 6")
        A(f"s_add_u32 s{sT}, s{sT}, s{sT+1}")
        A(f"s_add_u32 s16, s{sW}, s{sT}")
        A(f"s_addc_u32 s17, s{sW+1}, 0")
    def pf(c):
        if not cfg.spf or c > 7: return
        A(f"s_add_u32 s{sT}, s{sKC}, {c}")
        A(f"s_and_b32 s{sT}, s{sT}, 7")
        A(f"s_mul_i32 s{sT+1}, s{sT}, 196608")
        A(f"s_lshl_b32 s{sT}, s{sT}, 7")
        if cfg.spfw != 2:
            for e in range(6): A(f"s_load_dword s10, s[16:17], s{sT+1} offset:{1024*e}")
        if cfg.spfw != 1:
            for e in range(8): A(f"s_load_dword s10, s[12:13], s{sT} offset:{1024*e}")
    def issue(c):
        if cfg.wfirst:
            A(f"s_add_u32 s{sK2}, s{sKC}, {c}")
            A(f"s_and_b32 s{sK2}, s{sK2}, 7")
            issue_w(c); issue_x(c)
        else:
            issue_x(c); issue_w(c)
    if cfg.rot in (16, 17, 18):
        A(f"s_and_b32 s{sT+1}, s{sPair}, 3")
        A(f"s_lshl_b32 s{sT+1}, s{sT+1}, 1")
        A(f"s_and_b32 s{sT+3}, s2, 1")
        A(f"s_add_u32 s{sT+1}, s{sT+1}, s{sT+3}")
        if cfg.rot == 16:
            A(f"s_lshr_b32 s{sT+2}, s{sPair}, 1")
            A(f"s_add_u32 s{sT+2}, s{sT+2}, s{sSlab}")
            A(f"s_lshl_b32 s{sT+2}, s{sT+2}, 1")
            A(f"s_add_u32 s{sT+2}, s{sT+2}, s{sT+3}")
        elif cfg.rot == 17:
            A(f"s_lshl_b32 s{sT+2}, s{sSlab}, 1")
            A(f"s_add_u32 s{sT+2}, s{sT+2}, s{sPair}")
        else:
            A(f"s_add_u32 s{sT+2}, s{sPair}, s{sSlab}")
            A(f"s_lshl_b32 s{sT+2}, s{sT+2}, 1")
            A(f"s_add_u32 s{sT+2}, s{sT+2}, s{sT+3}")
    if cfg.rot >= 19:
        A(f"s_lshr_b32 s{sT+1}, s{sPair}, 1")
        A(f"s_add_u32 s{sT+1}, s{sT+1}, s{sSlab}")
        if cfg.rot == 19: A(f"s_and_b32 s{sT+1}, s{sT+1}, 3")
        if cfg.rot == 20:
            A(f"s_and_b32 s{sT+1}, s{sT+1}, 1")
            A(f"s_lshl_b32 s{sT+1}, s{sT+1}, 1")
        if cfg.rot == 21:
            A(f"s_and_b32 s{sT+1}, s{sT+1}, 3")
            A(f"s_lshl_b32 s{sT+1}, s{sT+1}, 1")
            A(f"s_min_u32 s{sT+1}, s{sT+1}, 5")
        if cfg.rot == 22:
            A(f"s_and_b32 s{sT+1}, s{sT+1}, 3")
            A(f"s_mul_i32 s{sT+1}, s{sT+1}, 3")
            A(f"s_lshr_b32 s{sT+1}, s{sT+1}, 1")
        if cfg.rot == 23:
            A(f"s_and_b32 s{sT+1}, s{sT+1}, 1")
            A(f"s_mul_i32 s{sT+1}, s{sT+1}, 3")
        A(f"s_add_u32 s{sT+1}, s{sT+1}, 4")
    A("s_waitcnt lgkmcnt(0)")
    if cfg.rot >= 19:
        A(f"s_lshr_b32 s{sT+2}, s4, 7")
        A(f"s_sub_u32 s{sKC}, s{sT+1}, s{sT+2}")
        A(f"s_and_b32 s{sKC}, s{sKC}, 7")
    if cfg.rot in (16, 17, 18):
        A(f"s_cmp_lt_u32 s{sPair}, 16")
        A(f"s_cselect_b32 s{sT+4}, s6, s12")
        A(f"s_lshr_b32 s{sT+4}, s{sT+4}, 7")
        A(f"s_lshr_b32 s{sT+5}, s{sPair}, 1")
        A(f"s_add_u32 s{sT+4}, s{sT+4}, s{sT+5}")
        A(f"s_and_b32 s{sT+4}, s{sT+4}, 7")
        A(f"s_cmp_eq_u32 s{sT+4}, 3")
        A(f"s_cselect_b32 s{sKC}, s{sT+2}, s{sT+1}")
        A(f"s_and_b32 s{sKC}, s{sKC}, 7")
    srd(A, sX, 4, 5, 2048 * 512 * 2)
    lstamp(A, cfg, 1)
    issue_x(0)
    lstamp(A, cfg, 2)
    A(f"s_cmp_lt_u32 s{sPair}, 16")
    A(f"s_cselect_b32 s{sW}, s6, s12")
    A(f"s_cselect_b32 s{sW+1}, s7, s13")
    A(f"s_mov_b32 s{sW+2}, {hex(512*1536*2)}")
    A(f"s_mov_b32 s{sW+3}, 0x20000")
    A(f"s_and_b32 s{sWb_}, s{sPair}, 15")
    A(f"s_lshl_b32 s{sWb_}, s{sWb_}, 6")
    A(f"s_mul_i32 s{sT}, s{sRG}, 49152")
    A(f"s_add_u32 s{sWb_}, s{sWb_}, s{sT}")
    if cfg.wfull:
        A("v_lshrrev_b32 v13, 3, v0")
        A("v_mul_u32_u24 v13, 3072, v13")
        A("v_and_b32 v14, 7, v0")
        A(f"s_and_b32 s{sWb_}, s{sWb_}, 0xffffff80")
    else:
        A("v_lshrrev_b32 v13, 2, v0")
        A("v_mul_u32_u24 v13, 3072, v13")
        A("v_and_b32 v14, 3, v0")
    A("v_lshl_add_u32 v10, v14, 4, v13")
    A("v_xor_b32 v11, 32, v10")
    issue_w(0)
    if cfg.spf and cfg.spfe:
        pf_setup()
        for c in range(2, 2 + cfg.spf): pf(c)
    if cfg.late1 == 1: A("s_waitcnt vmcnt(3)")
    if cfg.late1 == 2: A("s_waitcnt vmcnt(8)")
    if cfg.late1 == 3: A("s_waitcnt vmcnt(10)")
    issue(1)
    if cfg.spf and not cfg.spfe:
        pf_setup()
        for c in range(2, 2 + cfg.spf): pf(c)
    lstamp(A, cfg, 3)
    late_srds(A)
    p2_addr(A)
    p2_pre(A, False)
    A(f"v_mov_b32 v{vZ}, 1")
    for c in range(8):
        lstamp(A, cfg, 4 + 3*c)
        A(f"s_waitcnt vmcnt({0 if (cfg.c2c and c == 1) else ((11 if c < 7 else 0) if not (cfg.p1x & 2) else 0)})")
        lstamp(A, cfg, 5 + 3*c)
        A("s_barrier")
        lstamp(A, cfg, 6 + 3*c)
        if c == 0: stamp(A, cfg, 1)
        if cfg.p1pipe and c >= 1: A("s_barrier")
        if c <= 5 and not (cfg.p1x & 2) and not (cfg.c2c and c == 0):
            pf(c + 2 + cfg.spf)
            issue(c + 2)
        if c <= 5 and cfg.p1x & 4:
            for _ in range(0): pass
    if cfg.zld:
        A.c("wave 4: every workgroup has cleared its hand-off words (checked before any flag is read)")
        A(f"s_cmp_lg_u32 s{sWave}, 4")
        A("s_cbranch_scc1 L_noz2")
        A(ZLOAD)
        A("L_noz2:")
    p2_pre(A, True)
    consts(A, [SB, SC])
    if cfg.zld:
        A(f"s_cmp_lg_u32 s{sWave}, 4")
        A("s_cbranch_scc1 L_noz3")
        spin(A, "z", ZLOAD, vZ, 8, "gt", 4)
        A("L_noz3:")
    A(f"v_add_u32 v104, {(SA - SB) % (1 << 32)}, v104")
    A("s_waitcnt lgkmcnt(0)")
    A(f"s_lshl_b32 s{sT+2}, s{sRG}, 11")
    A(f"s_add_u32 s{sT+2}, s{sT+2}, {QX}")
    A(f"v_add_u32 v4, s{sT+2}, v{vL16}")
    A("s_barrier")
    if cfg.epist: A("s_endpgm")
    if not cfg.uni and cfg.t_load < 0: A(F1LOAD)
    A("ds_read_b128 v[8:11], v4")
    A("ds_read_b128 v[12:15], v4 offset:1024")
    A("s_mov_b64 exec, 0xffff")
    A("ds_write_b128 v104, v[108:111] offset:2048")
    A("ds_write_b128 v104, v[112:115] offset:2064")
    A("s_mov_b64 exec, -1")

vKf, vV0f, vV1f = 16, 20, 24
S_, O_, P_ = [32, 48], [64, 80], 96
M32 = "v_mfma_f32_32x32x16_bf16"
def slot_base(i): return (SB, SC, SA)[i % 3]

def p2_setup(A, cfg, now=False):
    if cfg.zearly and not now: return
    A(f"buffer_load_dword v{vGF[0]}, v{vGA}, s[{sWS}:{sWS+3}], s{sGo} offen sc1")
    A(f"buffer_load_dword v{vGF[1]}, v{vGA}, s[{sWS}:{sWS+3}], s{sGo} offen offset:128 sc1")

def p2_pre(A, own_temps):
    if not own_temps:
        A(f"v_and_b32 v{vGA}, 31, v0")
        A(f"v_lshlrev_b32 v{vGA}, 2, v{vGA}")
        A(f"s_lshl_b32 s{sGo}, s{sSlab}, 10")
        A(f"s_lshl_b32 s{sT+1}, s{sRG}, 8")
        A(f"s_add_u32 s{sGo}, s{sGo}, s{sT+1}")
        A(f"s_add_u32 s{sGo}, s{sGo}, {WS_G}")
        for i in range(4): A(f"v_mov_b32 v{vFill+i}, -1")
        for i in range(4): A(f"v_mov_b32 v{vZero+i}, 0")
        A(f"v_mov_b32 v{vIdx}, 0xdddd")
        A(f"v_and_b32 v{vKP}, 0x33, v0")
        A(f"v_bfe_u32 v{vZA}, v0, 2, 1")
        A(f"v_lshl_or_b32 v{vKP}, v{vZA}, 3, v{vKP}")
        A(f"v_bfe_u32 v{vZA}, v0, 3, 1")
        A(f"v_lshl_or_b32 v{vKP}, v{vZA}, 2, v{vKP}")
        A(f"v_lshlrev_b32 v{vKP}, 4, v{vKP}")
        A(f"v_and_b32 v{vZA}, 1, v0")
        A(f"v_lshlrev_b32 v{vZA}, 7, v{vZA}")
        A(f"v_mov_b32 v{vZ2}, 128")
        return
    A(f"s_lshl_b32 s{sCH}, s{sPair}, 18")
    A(f"s_lshl_b32 s{sT+1}, s{sWave}, 12")
    A(f"s_add_u32 s{sCH}, s{sCH}, s{sT+1}")
    A(f"s_mul_i32 s{sMB}, s{sWave}, {2*REC}")
    A(f"s_lshl_b32 s{sWoG}, s{sWave}, 13")
    A(f"s_lshl_b32 s{sT+1}, s{sC3}, 7")
    A(f"s_add_u32 s{sWoG}, s{sWoG}, s{sT+1}")
    A(f"s_lshl_b32 s{sWoM}, s{sWave}, 10")
    A(f"s_andn2_b32 s{sT+1}, 4, s{sSlab}")
    A(f"s_lshl_b32 s{sT+1}, s{sT+1}, 15")
    A(f"s_add_u32 s{sCHx}, s{sCH}, s{sT+1}")

ORDER = [0]
sCHx = 12
def kv_setup(i):
    if ORDER[0]:
        if i <= 4: return [f"s_add_u32 s{sCO}, s{sCHx}, {(i - 1) << 15}"]
        return [f"s_add_u32 s{sCO}, s{sSlab}, {i - 4}", f"s_and_b32 s{sCO}, s{sCO}, 3", f"s_and_b32 s{sJ}, s{sSlab}, 4",
                f"s_or_b32 s{sCO}, s{sCO}, s{sJ}", f"s_lshl_b32 s{sCO}, s{sCO}, 15", f"s_add_u32 s{sCO}, s{sCO}, s{sCH}"]
    return [f"s_add_u32 s{sCO}, s{sSlab}, {i}", f"s_and_b32 s{sCO}, s{sCO}, 7",
            f"s_lshl_b32 s{sCO}, s{sCO}, 15", f"s_add_u32 s{sCO}, s{sCO}, s{sCH}"]
def kv_jobs(i, other=False):
    base = slot_base(i) - (HSTR * int(other))
    ld = lambda o: f"buffer_load_dwordx4 v{vL16}, s[{sWS}:{sWS+3}], s{sCO} offen offset:{o} sc1 lds"
    return [[f"s_add_u32 m0, s{sMB}, {base}", "s_nop 0", ld(0)], [ld(1024)],
            [f"s_add_u32 m0, s{sMB}, {base + REC - 2048}", "s_nop 0", ld(2048)], [ld(3072)]]
def wo_job(j):
    srd_ = sWOA if j < 8 else sWOB
    return [f"s_add_u32 m0, s{sWoM}, {WO + j*8192}", f"s_add_u32 s{sJ}, s{sWoG}, {(j&7)*65536}",
            f"buffer_load_dwordx4 v{vWoD}, s[{srd_}:{srd_+3}], s{sJ} offen lds"]

def rd(kind, i, t):
    if t == 8: i, t = i + 1, 0
    hi = slot_base(i) == SC
    imm = (0 if hi else slot_base(i)) + t * REC
    if kind == 'K': return f"ds_read_b128 {v(vKf,4)}, v{vKH if hi else vKL} offset:{imm}"
    r = f"ds_read_b128 {v(vV0f,4)}, v{vV0H if hi else vV0L} offset:{imm}" if kind == 'V0' else f"ds_read_b128 {v(vV1f,4)}, v{vV1H if hi else vV1L} offset:{imm}"
    if VMASK[0]: r = f"s_mov_b64 exec, s[{sVM}:{sVM+1}]\n{r}\ns_mov_b64 exec, -1"
    return r

def unit(A, q, first, last, slotA, slotB, slotC, first_o, order=0):
    S, Sn, O, Op = S_[q], S_[q ^ 1], O_[q], O_[q ^ 1]
    e = lambda i: A(f"v_exp_f32 v{S+i}, v{S+i}")
    c = lambda i: A(f"v_cvt_pk_bf16_f32 v{P_+i}, v{S+2*i}, v{S+2*i+1}")
    def run(sl):
        for x in sl:
            if callable(x): x(A)
            else: A(x)
    if not SMUSE[0]:
        e(0)
        if not first: A(f"v_cvt_pk_bf16_f32 v{P_+7}, v{Sn+14}, v{Sn+15}")
        e(1); e(2)
    sw = (lambda a, b: f"{b}, {a}") if PVSWAP[0] else (lambda a, b: f"{a}, {b}")
    if not SMUSE[0]:
        if not first: A(f"{M32} {v(Op,16)}, {sw(v(vV1f,4), v(P_+4,4))}, {v(Op,16)}")
        run(slotA)
    if SMUSE[0]:
        qk = lambda: None if last else A(f"{M32} {v(Sn,16)}, {v(vKf,4)}, {v(vQ[q^1],4)}, {SHIFT[0]}")
        pos = {1: (1, 4, 9), 2: (2, 4, 10), 3: (1, 3, 9)}[SMUSE[0]]
        for i in range(16):
            e(i)
            if i == pos[0]:
                if not first: A(f"{SM} {v(Op,16)}, {v(vV1f,4)}, {v(Sn+8,8)}, v{vIdx}")
                run(slotA)
            if i == pos[1]: qk(); run(slotB)
            if i == pos[2]:
                A(f"{SM} {v(O,16)}, {v(vV0f,4)}, {v(S,8)}, v{vIdx}")
                run(slotC)
        return
    qk = lambda: None if last else A(f"{M32} {v(Sn,16)}, {v(vKf,4)}, {v(vQ[q^1],4)}, 0")
    pv = lambda: A(f"{M32} {v(O,16)}, {sw(v(vV0f,4), v(P_,4))}, {'0' if first_o else v(O,16)}")
    if order == 0:
        c(0); e(3); e(4); c(1); e(5); e(6)
        qk(); run(slotB)
        c(2); e(7); e(8); c(3); e(9); e(10)
        pv(); run(slotC)
        c(4); e(11); e(12); c(5); e(13); e(14); c(6); e(15)
    elif order == 1:
        c(0); e(3); e(4); c(1); e(5); e(6); c(2); e(7)
        qk(); run(slotB)
        e(8); c(3); e(9); e(10); c(4); e(11); e(12)
        pv(); run(slotC)
        c(5); e(13); e(14); c(6); e(15)
    elif order == 2:
        c(0); e(3); e(4)
        qk(); run(slotB)
        c(1); e(5); e(6); c(2); e(7); e(8); c(3); e(9); e(10)
        pv(); run(slotC)
        c(4); e(11); e(12); c(5); e(13); e(14); c(6); e(15)

def p2_main(A, cfg):
    A.c("---- phase 2: attention.  P = exp2(S) with no shift; the row sums ride in the PV MFMA (ones rows);")
    A.c("     they are range-checked afterwards and the true-max path redoes the wave when they are out of range")
    jobs = {}; jobs0 = {}
    def add(i, t, xs): jobs.setdefault((i, t), []).extend(xs)
    for i in range(8):
        if cfg.prio == 1:
            for t, pr in ((1, 2), (3, 1), (5, 0), (7, 3)): add(i, t, [f"s_setprio {pr}"])
        if cfg.prio == 2:
            for t, pr in ((0, 2), (2, 1), (5, 0), (7, 3)): add(i, t, [f"s_setprio {pr}"])
        if cfg.prio == 3:
            for t, pr in ((2, 2), (4, 1), (6, 0), (7, 3)): add(i, t, [f"s_setprio {pr}"])
        if cfg.prio >= 100:
            pp = cfg.prio0 if i == 0 else cfg.prio
            drops = [(pp >> 8) & 15, (pp >> 4) & 15, pp & 15]
            for u, pr in zip(drops, (2, 1, 0)):
                if u & 1: add(i, u >> 1, [f"s_setprio {pr}"])
                else: jobs0.setdefault((i, u >> 1), []).append(f"s_setprio {pr}")
            if not cfg.bq0: add(i, 7, ["s_setprio 3"])
    def first_chunks(i, nm):
        def f(A):
            A(f"s_cmp_lt_u32 s{sWave}, 4")
            A(f"s_cbranch_scc1 L_skip_{nm}")
            if i == 1 or cfg.c1c:
                lstamp(A, cfg, 48)
                spin(A, "f1", F1LOAD, vPoll, 1)
                lstamp(A, cfg, 49)
            for x in kv_setup(i): A(x)
            for job in kv_jobs(i):
                for x in job: A(x)
            A(f"s_sub_u32 s{sCO}, s{sCO}, 16384")
            for job in kv_jobs(i, True):
                for x in job: A(x)
            A(f"L_skip_{nm}:")
        return f
    if cfg.uni:
        add(0, cfg.uni - 1, [F1LOAD])
        add(0, cfg.uni, [lambda A: lstamp(A, cfg, 48), lambda A: spin(A, "f1", F1LOAD, vPoll, 1), lambda A: lstamp(A, cfg, 49)]
            + kv_setup(1) + sum(kv_jobs(1), []))
    else:
        if cfg.t_load >= 0:
            add(0, cfg.t_load, [f"s_cmp_lt_u32 s{sWave}, 4", "s_cbranch_scc1 L_nopoll", F1LOAD, "L_nopoll:"])
        if not cfg.c1c: add(0, cfg.t_poll, [first_chunks(1, "c1")])
        add(0, cfg.t_c2, [first_chunks(2, "c2")])
    if cfg.bq0:
        pass
    elif cfg.uni:
        add(0, 6, [lambda A: lstamp(A, cfg, 50), "s_waitcnt vmcnt(0)", lambda A: lstamp(A, cfg, 51), "s_barrier", lambda A: lstamp(A, cfg, 52)])
    elif cfg.c1c:
        add(0, 6, [lambda A: lstamp(A, cfg, 50), f"s_cmp_ge_u32 s{sWave}, 4", "s_cbranch_scc1 L_nw1", "s_waitcnt vmcnt(0)", "L_nw1:",
                   lambda A: lstamp(A, cfg, 51), "s_barrier", lambda A: lstamp(A, cfg, 52)])
    else:
        add(0, 6, [lambda A: lstamp(A, cfg, 50), "s_waitcnt vmcnt(8)", lambda A: lstamp(A, cfg, 51), "s_barrier", lambda A: lstamp(A, cfg, 52)])
    for i in range(8): add(i, 7, ["s_waitcnt vmcnt(0)", "s_barrier"])
    for i in range(1, 6):
        J = kv_jobs(i + 2)
        if cfg.uni and i == 1:
            J2 = kv_jobs(2)
            add(1, 0, kv_setup(2) + J2[0] + J2[1]); add(1, 1, J2[2] + J2[3])
            add(1, 2, kv_setup(3) + J[0] + J[1]); add(1, 3, J[2] + J[3])
            add(1, 6, ["s_waitcnt vmcnt(6)", "s_barrier"])
            continue
        if cfg.kv2:
            add(i, 0, kv_setup(i + 2) + J[0] + J[1]); add(i, 1, J[2] + J[3])
        else:
            add(i, 0, kv_setup(i + 2) + J[0]); add(i, 1, J[1]); add(i, 2, J[2]); add(i, 3, J[3])
    wo = {1: [9, 10], 2: [11, 12], 3: [13, 14]}
    for i, js in wo.items():
        for n, j in enumerate(js): add(i, 4 + n, wo_job(j))
    Z2LOAD = f"buffer_load_dword v{vZ2}, v{vZA}, s[{sDBG}:{sDBG+3}], 0 offen offset:4 sc1"
    add(1, 6, [f"buffer_store_dwordx4 v[{vFill}:{vFill+3}], v{vL16}, s[{sWS}:{sWS+3}], s{sOst} offen sc1", f"s_add_u32 s{sJ}, s{sOst}, 65536",
               f"buffer_store_dwordx4 v[{vFill}:{vFill+3}], v{vL16}, s[{sWS}:{sWS+3}], s{sJ} offen sc1"])
    def setwait(i, n):
        k = jobs[(i, 7)].index("s_waitcnt vmcnt(0)")
        if n is None: del jobs[(i, 7)][k]
        else: jobs[(i, 7)][k] = f"s_waitcnt vmcnt({n})"
    setwait(1, 4); setwait(2, 2); setwait(3, 2); setwait(6, None)
    if cfg.tailbar:
        jobs[(7, 7)].remove("s_waitcnt vmcnt(0)"); jobs[(7, 7)].remove("s_barrier")
    jobs[(3, 0)][0:0] = [f"s_cmp_lg_u32 s{sWave}, 0", "s_cbranch_scc1 L_noz2c", f"s_and_b32 s{sJ}, s2, 1", f"s_lshl_b32 s{sJ}, s{sJ}, 7",
               "s_mov_b64 exec, 1", f"buffer_atomic_add v{vZ}, off, s[{sDBG}:{sDBG+3}], s{sJ} offset:4", "s_mov_b64 exec, -1", "L_noz2c:"]
    jobs[(5, 0)][0:0] = [f"s_cmp_eq_u32 s{sWave}, 0", "s_cselect_b32 exec_lo, 3, 0", "s_mov_b32 exec_hi, 0", Z2LOAD, "s_mov_b64 exec, -1"]
    jobs[(5, 7)][-1:-1] = [f"s_movk_i32 s{sJ}, 128", lambda A: spin(A, "z2", Z2LOAD, vZ2, f"s{sJ}", "gt", 4)]
    for n, j in enumerate([0, 1, 2, 3]): add(6, n, wo_job(j))
    if cfg.zearly: add(6, 4, [lambda A: p2_setup(A, cfg, True)])
    bar = {}
    if cfg.bq0:
        assert cfg.tailbar and cfg.zearly and not cfg.uni and not cfg.c1c and cfg.sm
        for i in range(7):
            jobs[(i, 7)] = [x for x in jobs[(i, 7)] if callable(x) or not x.startswith(("s_waitcnt", "s_barrier", "s_movk"))]
        jobs[(5, 7)] = []
        for i, n in enumerate((8, 8, 6, 6, 4, 4, 6)):
            bar[i] = ["s_setprio 3", f"s_waitcnt vmcnt({n})", "s_barrier"]
        bar[5] = ["s_setprio 3", f"s_movk_i32 s{sJ}, 128", lambda A: spin(A, "z2", Z2LOAD, vZ2, f"s{sJ}", "gt", 4, 0, 4), "s_barrier"]
        bar[0] = [lambda A: lstamp(A, cfg, 50)] + bar[0][:2] + [lambda A: lstamp(A, cfg, 51), "s_barrier", lambda A: lstamp(A, cfg, 52)]
        add(7, 1 if cfg.b7 else 2, ["s_barrier"])
        if cfg.b7: bar[7] = ["s_setprio 3", "s_waitcnt vmcnt(0)", "s_barrier"]
    if cfg.b7:
        for n, j in enumerate([4, 5, 6, 7, 8, 15]): add(7, n // 2, wo_job(j))
    else:
        for n, j in enumerate([4, 5, 6, 7, 8, 15]): add(7, n, wo_job(j))
    if cfg.vmask:
        A.c("rows 16..31 of the V operand are constant (ones in rows 16 and 20): those lanes are never reloaded")
        A(f"s_mov_b32 s{sVM}, 0xffff")
        A(f"s_mov_b32 s{sVM+1}, 0xffff")
        A("v_and_b32 v104, 11, v0")
        A("v_cmp_eq_u32 vcc, 0, v104")
        A("v_mov_b32 v105, 0")
        A("v_mov_b32 v106, 0x3f803f80")
        A("v_cndmask_b32 v105, v105, v106, vcc")
        for i in range(8): A(f"v_mov_b32 v{vV0f+i}, v105")
    if cfg.align: A(f".p2align {cfg.align}, 0xbf800000" if False else f".p2alignl {cfg.align}, 0xbf800000")
    for _ in range(cfg.shift): A("s_nop 0")
    if cfg.c0st == 1: stamp(A, cfg, 1, True)
    A(rd('K', 0, 0)); A(rd('V0', 0, 0))
    A("s_waitcnt lgkmcnt(1)")
    if cfg.prio: A("s_setprio 3")
    A(f"{M32} {v(S_[0],16)}, {v(vKf,4)}, {v(vQ[0],4)}, {SHIFT[0]}")
    if cfg.sm:
        for q in (0, 1): A(f"{M32} {v(O_[q],16)}, {v(vZero,4)}, {v(vZero,4)}, 0")
        A("s_nop 7"); A("s_nop 1")
    else:
        A("s_nop 7"); A("s_nop 3")
    for i in range(8):
        for t in range(8):
            first = (i == 0 and t == 0); lastt = (i == 7 and t == 7)
            sA = [rd('V1', i, t)]
            sB = ["s_waitcnt lgkmcnt(1)"] + jobs0.get((i, t), []) + ([] if lastt else [rd('K', i, t + 1)])
            sC = ["s_waitcnt lgkmcnt(0)" if lastt else "s_waitcnt lgkmcnt(1)"]
            if cfg.b7 and lastt: sC = sC + bar[7]
            if cfg.bq0 and t == 7 and i < 7:
                sB = sB[:-1]
                sC = ["s_waitcnt lgkmcnt(0)"] + bar[i] + [rd('K', i, 8)]
            unit(A, 0, first, False, sA, sB, sC, first, cfg.order)
            sA = ["s_waitcnt lgkmcnt(0)"]
            sB = list(jobs.get((i, t), []))
            sC = [] if lastt else [rd('V0', i, t + 1)]
            unit(A, 1, False, lastt, sA, sB, sC, first, cfg.order)
            if cfg.c0st and i == cfg.c0st - 1: stamp(A, cfg, 2 + t, True)
        if i == 0: stamp(A, cfg, 4)
        if cfg.c0st and i == cfg.c0st - 2: stamp(A, cfg, 1, True)
        if i < 7: lstamp(A, cfg, 29 + i)
    if cfg.sm:
        A("s_nop 1")
        A(f"{SM} {v(O_[1],16)}, {v(vV1f,4)}, {v(S_[1]+8,8)}, v{vIdx}")
        return
    A("s_nop 0")
    A(f"v_cvt_pk_bf16_f32 v{P_+7}, v{S_[1]+14}, v{S_[1]+15}")
    A("s_nop 1")
    A(f"{M32} {v(O_[1],16)}, {v(vV1f,4)}, {v(P_+4,4)}, {v(O_[1],16)}")

def p2_check(A, cfg):
    if not cfg.slow: return
    A(f"s_mov_b32 s{sT+2}, {fbits(2.0**-24)}")
    A(f"s_mov_b32 s{sT+3}, {fbits(2.0**64)}")
    A(f"s_mov_b32 s{sT+4}, 0x7f800000")
    A("s_mov_b64 s[68:69], 0")
    for q in (0, 1):
        O = O_[q]
        if q == 1: A("s_nop 1")
        A(f"v_add_f32 v104, |v{O}|, |v{O+1}|")
        A(f"v_add_f32 v105, |v{O+2}|, |v{O+3}|")
        A(f"v_add_f32 v106, |v{O+4}|, |v{O+5}|")
        A(f"v_add_f32 v107, |v{O+6}|, |v{O+7}|")
        A(f"v_add_f32 v104, v104, v105")
        A(f"v_add_f32 v106, v106, v107")
        A(f"v_add_f32 v104, v104, v106")
        A(f"v_cmp_nle_f32 vcc, s{sT+2}, v{O+8}")
        A(f"s_or_b64 s[68:69], s[68:69], vcc")
        A(f"v_cmp_nge_f32 vcc, s{sT+3}, v{O+8}")
        A(f"s_or_b64 s[68:69], s[68:69], vcc")
        A(f"v_cmp_ngt_f32 vcc, s{sT+4}, v104")
        A(f"s_or_b64 s[68:69], s[68:69], vcc")
    if cfg.force_slow: A("s_mov_b64 s[68:69], -1")
    A("s_cmp_lg_u64 s[68:69], 0")
    A("s_cbranch_scc1 L_slow")
    A("L_slow_ret:")
    T = Asm()
    T("L_slow:")
    T.c("true-max (online softmax) path, wave-local, K/V fragments straight from the workspace")
    m_, al = [104, 105], 106
    T(f"s_lshl_b32 s{sT}, s{sPair}, 18")
    T(f"s_lshr_b32 s{sT+1}, s{sWave}, 2")
    T(f"s_lshl_b32 s{sT+1}, s{sT+1}, 14")
    T(f"s_add_u32 s{sT}, s{sT}, s{sT+1}")
    T("v_lshrrev_b32 v108, 5, v0")
    T("v_and_b32 v109, 15, v0")
    T("v_lshlrev_b32 v109, 4, v109")
    T("v_lshl_add_u32 v109, v108, 8, v109")
    T("v_and_b32 v108, 11, v0")
    T("v_cmp_eq_u32 vcc, 0, v108")
    T("v_mov_b32 v110, 0")
    T("v_mov_b32 v111, 0x3f803f80")
    T("v_cndmask_b32 v110, v110, v111, vcc")
    for i in range(8): T(f"v_mov_b32 v{vV0f+i}, v110")
    for q in (0, 1):
        T(f"v_mov_b32 v{m_[q]}, 0xff800000")
        for i in range(16): T(f"v_mov_b32 v{O_[q]+i}, 0")
    T(f"s_mov_b32 s{sT+2}, 0")
    T("L_slow_loop:")
    T(f"s_lshr_b32 s{sT+3}, s{sT+2}, 3")
    T(f"s_lshl_b32 s{sT+3}, s{sT+3}, 15")
    T(f"s_and_b32 s{sT+4}, s{sT+2}, 7")
    T(f"s_lshl_b32 s{sT+4}, s{sT+4}, 11")
    T(f"s_add_u32 s{sT+3}, s{sT+3}, s{sT+4}")
    T(f"s_add_u32 s{sT+3}, s{sT+3}, s{sT}")
    T(f"buffer_load_dwordx4 {v(vKf,4)}, v{vL16}, s[{sWS}:{sWS+3}], s{sT+3} offen sc1")
    T("s_mov_b32 exec_lo, 0xffff")
    T("s_mov_b32 exec_hi, 0xffff")
    T(f"buffer_load_dwordx4 {v(vV0f,4)}, v109, s[{sWS}:{sWS+3}], s{sT+3} offen offset:1024 sc1")
    T(f"buffer_load_dwordx4 {v(vV1f,4)}, v109, s[{sWS}:{sWS+3}], s{sT+3} offen offset:1536 sc1")
    T("s_mov_b64 exec, -1")
    T("s_waitcnt vmcnt(0)")
    for q in (0, 1):
        S, O, m = S_[q], O_[q], m_[q]
        T(f"{M32} {v(S,16)}, {v(vKf,4)}, {v(vQ[q],4)}, 0")
        T("s_nop 15"); T("s_nop 3")
        T(f"v_max3_f32 v107, v{S}, v{S+1}, v{m}")
        for i in range(1, 8): T(f"v_max3_f32 v107, v{S+2*i}, v{S+2*i+1}, v107")
        T("v_mov_b32 v108, v107")
        T("s_nop 1")
        T("v_permlane32_swap_b32 v107, v108")
        T("v_max_f32 v107, v107, v108")
        T(f"v_sub_f32 v{al}, v{m}, v107")
        T(f"v_exp_f32 v{al}, v{al}")
        T(f"v_mov_b32 v{m}, v107")
        for i in range(16): T(f"v_sub_f32 v{S+i}, v{S+i}, v107")
        for i in range(16): T(f"v_exp_f32 v{S+i}, v{S+i}")
        for i in range(9): T(f"v_mul_f32 v{O+i}, v{O+i}, v{al}")
        if cfg.sm:
            T("s_nop 1")
            T(f"{SM} {v(O,16)}, {v(vV0f,4)}, {v(S,8)}, v{vIdx}")
            T(f"{SM} {v(O,16)}, {v(vV1f,4)}, {v(S+8,8)}, v{vIdx}")
        else:
            for i in range(8): T(f"v_cvt_pk_bf16_f32 v{P_+i}, v{S+2*i}, v{S+2*i+1}")
            T("s_nop 1")
            T(f"{M32} {v(O,16)}, {v(vV0f,4)}, {v(P_,4)}, {v(O,16)}")
            T(f"{M32} {v(O,16)}, {v(vV1f,4)}, {v(P_+4,4)}, {v(O,16)}")
        T("s_nop 15"); T("s_nop 3")
    T(f"s_add_u32 s{sT+2}, s{sT+2}, 1")
    T(f"s_cmp_lt_u32 s{sT+2}, 64")
    T("s_cbranch_scc1 L_slow_loop")
    T("s_branch L_slow_ret")
    tails.append(T)

def p2_epilogue(A, cfg):
    A.c("---- normalise (gate factor / row sum), round, publish O fragments (the data is its own ready flag:")
    A.c("     the slots were filled with 0xffffffff earlier in this launch and no published word has that value)")
    if cfg.nocheck == 2:
        A("s_sleep 64")
    A(f"s_add_u32 s{sJ}, s{sOst}, 65536")
    A(f"s_mov_b32 s{sT}, 0xfffffffe")
    if cfg.zearly: A("s_waitcnt vmcnt(6)")
    for q in (0, 1): A(f"v_sub_f32 v{vGF[q]}, s{sGc}, v{vGF[q]}")
    for q in (0, 1): A(f"v_rcp_f32 v{104+2*q}, v{O_[q]+8}")
    for q in (0, 1):
        O = O_[q]
        A(f"v_mul_f32 v{104+2*q}, v{104+2*q}, |v{vGF[q]}|")
        A(f"v_mov_b32 v{105+2*q}, v{104+2*q}")
        for i in range(4): A(f"v_pk_mul_f32 {v(O+2*i,2)}, {v(O+2*i,2)}, {v(104+2*q,2)}")
        for i in range(4): A(f"v_cvt_pk_bf16_f32 v{108+4*q+i}, v{O+2*i}, v{O+2*i+1}")
        for i in range(4): A(f"v_min_u32 v{108+4*q+i}, s{sT}, v{108+4*q+i}")
        A(f"buffer_store_dwordx4 {v(108+4*q,4)}, v{vL16}, s[{sWS}:{sWS+3}], s{sOst if q == 0 else sJ} offen sc1")
    lstamp(A, cfg, 44)

OF, AC, WFR = 128, [32, 48], [64, 72, 80, 88]
AC2 = [192, 208]
PS = 272
def p3(A, cfg):
    A.c("---- phase 3: out tile 64x64 = [gA*OA | gB*OB] @ [WoA ; WoB]")
    LA = cfg.la
    ld = lambda hh, sc=" sc1": f"buffer_load_dwordx4 {v(OF+4*hh,4)}, v4, s[{sWS}:{sWS+3}], s{8+hh//4} offen offset:{(hh%4)*1024}{sc}"
    SC1 = {0: " sc1", 1: "", 2: " nt", 3: " sc0"}[cfg.bulk]
    def rdw(hh):
        F = WFR[hh % 4]
        return [f"ds_read_b64_tr_b16 {v(F,2)}, v2 offset:{hh*2048}", f"ds_read_b64_tr_b16 {v(F+2,2)}, v2 offset:{hh*2048+1024}",
                f"ds_read_b64_tr_b16 {v(F+4,2)}, v3 offset:{hh*2048}", f"ds_read_b64_tr_b16 {v(F+6,2)}, v3 offset:{hh*2048+1024}"]
    def addr():
        A("v_lshrrev_b32 v16, 5, v0")
        A("v_lshlrev_b32 v16, 2, v16")
        A("v_bfe_u32 v17, v0, 2, 2")
        A("v_add_u32 v16, v16, v17")
        A("v_lshlrev_b32 v16, 7, v16")
        A("v_bfe_u32 v17, v0, 4, 1")
        A("v_lshlrev_b32 v17, 1, v17")
        A("v_bfe_u32 v18, v0, 1, 1")
        A("v_add_u32 v17, v17, v18")
        A("v_bfe_u32 v18, v0, 3, 1")
        A("v_lshlrev_b32 v18, 2, v18")
        A("v_xor_b32 v17, v17, v18")
        A("v_lshl_add_u32 v16, v17, 4, v16")
        A("v_and_b32 v17, 1, v0")
        A("v_lshl_add_u32 v16, v17, 3, v16")
        A(f"s_lshr_b32 s{sT+4}, s{sWave}, 1")
        A(f"s_lshl_b32 s{sT+5}, s{sT+4}, 15")
        A(f"s_add_u32 s{sT+5}, s{sT+5}, {WO}")
        A(f"v_add_u32 v2, s{sT+5}, v16")
        A("v_xor_b32 v3, 64, v2")
        A("v_and_b32 v16, 31, v0")
        A(f"s_and_b32 s{sT}, s{sWave}, 1")
        A(f"s_lshl_b32 s{sT}, s{sT}, 5")
        A(f"s_lshl_b32 s{sT+1}, s{sT+4}, 6")
        A(f"s_add_u32 s{sT}, s{sT}, s{sT+1}")
        A(f"v_add_u32 v16, s{sT}, v16")
        A(f"v_mul_u32_u24 v16, {PS}, v16")
        A("v_lshrrev_b32 v17, 5, v0")
        A("v_lshl_add_u32 v6, v17, 4, v16")
        A("v_lshrrev_b32 v16, 3, v0")
        A(f"s_lshl_b32 s{sT}, s{sWave}, 3")
        A(f"v_add_u32 v16, s{sT}, v16")
        A(f"v_mul_u32_u24 v7, {PS}, v16")
        A("v_and_b32 v17, 7, v0")
        A("v_lshl_add_u32 v7, v17, 5, v7")
        A("v_lshlrev_b32 v16, 10, v16")
        A("v_lshl_add_u32 v8, v17, 4, v16")
    for i in range(4): A(f"s_add_u32 s{8+i}, s{sOld}, {4096*i}")
    A(f"s_mov_b32 s{sSpin}, {SPIN_MAX}")
    A(f"v_mov_b32 v4, v{vL16}")
    if cfg.nocheck == 3:
        A("s_sleep 80")
        stamp(A, cfg, 7)
    for hh in range(LA): A(ld(hh, SC1))
    addr()
    lstamp(A, cfg, 55)
    A(f"s_waitcnt vmcnt({2 + LA})")
    A("s_barrier")
    lstamp(A, cfg, 56)
    for x in rdw(0) + rdw(1): A(x)
    A.c("a fragment that still holds fill words is fetched again (with the ones behind it)")
    for hh in range(16):
        F = WFR[hh % 4]; o = OF + 4 * hh
        A(f"L_ostep{hh}:")
        A(f"s_waitcnt vmcnt({min(LA - 1, 15 - hh)})")
        A(f"v_max3_u32 v10, v{o}, v{o+1}, v{o+2}")
        A(f"v_max_u32 v10, v10, v{o+3}")
        A("v_cmp_eq_u32 vcc, -1, v10")
        A(f"s_waitcnt lgkmcnt({4 if hh < 15 else 0})")
        if not cfg.nocheck: A(f"s_cbranch_vccnz L_oretry{hh}")
        A(f"L_ogo{hh}:")
        A(f"{M32} {v(AC[0],16)}, {v(F,4)}, {v(o,4)}, {'0' if hh == 0 else v(AC[0],16)}")
        if hh + LA < 16: A(ld(hh + LA, SC1))
        R = rdw(hh + 2) if hh + 2 < 16 else []
        for x in R[:2]: A(x)
        A(f"{M32} {v(AC[1],16)}, {v(F+4,4)}, {v(o,4)}, {'0' if hh == 0 else v(AC[1],16)}")
        for x in R[2:]: A(x)
        T = Asm()
        T(f"L_oretry{hh}:")
        T(f"s_sub_u32 s{sSpin}, s{sSpin}, 1")
        T(f"s_cmp_gt_i32 s{sSpin}, 0")
        T(f"s_cbranch_scc0 L_ogo{hh}")
        T("s_waitcnt vmcnt(0)")
        if cfg.rsleep: T(f"s_sleep {cfg.rsleep}")
        for h2 in range(hh, min(16, hh + LA)): T(ld(h2))
        T(f"s_branch L_ostep{hh}")
        tails.append(T)
    stamp(A, cfg, 8)
    lstamp(A, cfg, 41)
    if cfg.stamps == 4:
        A(f"s_sub_u32 s80, {SPIN_MAX + 1000}, s{sSpin}")
        A("v_writelane_b32 v31, s80, 53")
    A("s_barrier")
    A("s_nop 7")
    A("s_nop 1")
    for rq in range(4):
        A(f"ds_write_b128 v6, {v(AC[0]+4*rq,4)} offset:{rq*32}")
    for rq in range(4):
        A(f"ds_write_b128 v6, {v(AC[1]+4*rq,4)} offset:{128 + rq*32}")
    A("s_waitcnt lgkmcnt(0)")
    lstamp(A, cfg, 42)
    A("s_barrier")
    lstamp(A, cfg, 43)
    for kq in range(4):
        A(f"ds_read_b128 {v(64+8*kq,4)}, v7 offset:{kq*64*PS}")
        A(f"ds_read_b128 {v(68+8*kq,4)}, v7 offset:{kq*64*PS+16}")
    A("s_waitcnt lgkmcnt(4)")
    for i in range(4): A(f"v_pk_add_f32 {v(64+2*i,2)}, {v(64+2*i,2)}, {v(72+2*i,2)}")
    A("s_waitcnt lgkmcnt(0)")
    for i in range(4): A(f"v_pk_add_f32 {v(80+2*i,2)}, {v(80+2*i,2)}, {v(88+2*i,2)}")
    for i in range(4): A(f"v_pk_add_f32 {v(64+2*i,2)}, {v(64+2*i,2)}, {v(80+2*i,2)}")
    for i in range(4): A(f"v_cvt_pk_bf16_f32 v{96+i}, v{64+2*i}, v{65+2*i}")
    A(f"buffer_store_dwordx4 v[96:99], v8, s[{sOUT}:{sOUT+3}], s{sOut} offen" + ["", " sc1", " nt", " sc0 sc1", " sc1 nt"][cfg.outsc])

R0 = 131072
def p3_four(A, cfg):
    A.c("---- phase 3: out tile 64x64 = [gA*OA | gB*OB] @ [WoA ; WoB]")
    LA = cfg.la4; NR = 16
    ofr = lambda hh: OF + 4 * (hh % NR)
    ld = lambda hh: f"buffer_load_dwordx4 {v(ofr(hh),4)}, v4, s[{sWS}:{sWS+3}], s{8+hh//4} offen offset:{(hh%4)*1024} sc1"
    def rdw(hh):
        F = WFR[hh % 4]
        a0, a1, o = (2, 3, hh * 2048) if hh < 16 else (20, 21, (hh - 16) * 2048)
        return [f"ds_read_b64_tr_b16 {v(F,2)}, v{a0} offset:{o}", f"ds_read_b64_tr_b16 {v(F+2,2)}, v{a0} offset:{o+1024}",
                f"ds_read_b64_tr_b16 {v(F+4,2)}, v{a1} offset:{o}", f"ds_read_b64_tr_b16 {v(F+6,2)}, v{a1} offset:{o+1024}"]
    A(f"s_cmp_ge_u32 s{sWave}, 4")
    A("s_cbranch_scc1 L_p3_idle")
    for i in range(8): A(f"s_add_u32 s{8+i}, s{sOld}, {4096*((i + 4) % 8 if cfg.hswap >= 2 else i)}")
    A(f"s_mov_b32 s{sSpin}, {SPIN_MAX}")
    A(f"v_mov_b32 v4, v{vL16}")
    PROBE = f"buffer_load_dword v28, off, s[{sWS}:{sWS+3}], s15 offset:4092 sc1"
    acc = lambda hh, ct: (AC2 if (cfg.hswap == 3 and hh >= 16) else AC)[ct]
    cin = lambda hh, ct: '0' if (hh == 0 or (cfg.hswap == 3 and hh == 16)) else v(acc(hh, ct), 16)
    if cfg.hswap == 3:
        A(f"s_mov_b32 s{sT+7}, 0")
        A(PROBE)
    if not cfg.ldlate:
        for hh in range(LA): A(ld(hh))
    A("v_lshrrev_b32 v16, 5, v0")
    A("v_lshlrev_b32 v16, 2, v16")
    A("v_bfe_u32 v17, v0, 2, 2")
    A("v_add_u32 v16, v16, v17")
    A("v_lshlrev_b32 v16, 7, v16")
    A("v_bfe_u32 v17, v0, 4, 1")
    A("v_lshlrev_b32 v17, 1, v17")
    A("v_bfe_u32 v18, v0, 1, 1")
    A("v_add_u32 v17, v17, v18")
    A("v_bfe_u32 v18, v0, 3, 1")
    A("v_lshlrev_b32 v18, 2, v18")
    A("v_xor_b32 v17, v17, v18")
    A("v_lshl_add_u32 v16, v17, 4, v16")
    A("v_and_b32 v17, 1, v0")
    A("v_lshl_add_u32 v16, v17, 3, v16")
    A(f"s_lshr_b32 s{sT+4}, s{sWave}, 1")
    A(f"s_lshl_b32 s{sT+5}, s{sT+4}, 16")
    A(f"s_add_u32 s{sT+5}, s{sT+5}, {WO}")
    A(f"v_add_u32 v2, s{sT+5}, v16")
    A("v_xor_b32 v3, 64, v2")
    if cfg.hswap >= 2:
        A("v_xor_b32 v2, 0x8000, v2")
        A("v_xor_b32 v3, 0x8000, v3")
    A("v_xor_b32 v20, 0x8000, v2")
    A("v_xor_b32 v21, 0x8000, v3")
    A.c("partial sums: [branch][row 64][16 quads], quad index xor (row & 7)")
    A("v_and_b32 v16, 31, v0")
    A(f"s_and_b32 s{sT}, s{sWave}, 1")
    A(f"s_lshl_b32 s{sT}, s{sT}, 13")
    A(f"s_lshl_b32 s{sT+1}, s{sT+4}, 14")
    A(f"s_add_u32 s{sT}, s{sT}, s{sT+1}")
    A(f"s_add_u32 s{sT}, s{sT}, {R0}")
    A("v_lshlrev_b32 v16, 8, v16")
    A("v_lshrrev_b32 v17, 5, v0")
    A("v_and_b32 v18, 7, v0")
    A("v_xor_b32 v17, v17, v18")
    A("v_lshl_add_u32 v16, v17, 4, v16")
    A(f"v_add_u32 v12, s{sT}, v16")
    for i in (1, 2, 3): A(f"v_xor_b32 v{12+i}, {32*i}, v12")
    lstamp(A, cfg, 55)
    if not cfg.b7: A(f"s_waitcnt vmcnt({2 + (0 if cfg.ldlate else LA) + (cfg.hswap == 3)})")
    if not cfg.b7: A("s_barrier")
    lstamp(A, cfg, 56)
    if cfg.ldlate == 2: A("s_waitcnt vmcnt(0)")
    if cfg.ldlate:
        for hh in range(LA): A(ld(hh))
    for x in rdw(0) + rdw(1): A(x)
    A.c("a fragment that still holds fill words is fetched again (with the ones behind it)")
    def check(hh, part):
        o = ofr(hh)
        if part == 0:
            A(f"L_ostep{hh}:")
            A(f"s_waitcnt vmcnt({min(LA - 1, 31 - hh)})")
            A(f"v_max3_u32 v10, v{o}, v{o+1}, v{o+2}")
            A(f"v_max_u32 v10, v10, v{o+3}")
            A("v_cmp_eq_u32 vcc, -1, v10")
        else:
            A(f"s_cbranch_vccnz L_oretry{hh}")
            A(f"L_ogo{hh}:")
            T = Asm()
            T(f"L_oretry{hh}:")
            T(f"s_sub_u32 s{sSpin}, s{sSpin}, 1")
            T(f"s_cmp_gt_i32 s{sSpin}, 0")
            T(f"s_cbranch_scc0 L_ogo{hh}")
            T("s_waitcnt vmcnt(0)")
            if hh == 0 and cfg.hswap == 1:
                T.c("nothing consumed yet: try the other 16 heads (they come from another group of workgroups) first")
                for i in range(4):
                    T(f"s_mov_b32 s{sT}, s{8+i}")
                    T(f"s_mov_b32 s{8+i}, s{12+i}")
                    T(f"s_mov_b32 s{12+i}, s{sT}")
                for r in (2, 3, 20, 21): T(f"v_xor_b32 v{r}, 0x8000, v{r}")
                T("s_waitcnt lgkmcnt(0)")
                for x in rdw(0) + rdw(1): T(x)
            if hh == 0 and cfg.hswap == 3:
                T.c("nothing consumed yet: if the other 16 heads are complete, take them first (once); the two halves")
                T.c("have accumulators of their own, so the sum does not depend on the order")
                T("v_cmp_ne_u32 vcc, -1, v28")
                T(f"s_cmp_lg_u32 s{sT+7}, 0")
                T("s_cbranch_scc1 L_noswap")
                T("s_cbranch_vccz L_noswap")
                T(f"s_mov_b32 s{sT+7}, 1")
                for i in range(4):
                    T(f"s_mov_b32 s{sT}, s{8+i}")
                    T(f"s_mov_b32 s{8+i}, s{12+i}")
                    T(f"s_mov_b32 s{12+i}, s{sT}")
                for r in (2, 3, 20, 21): T(f"v_xor_b32 v{r}, 0x8000, v{r}")
                T("s_waitcnt lgkmcnt(0)")
                for x in rdw(0) + rdw(1): T(x)
                T("L_noswap:")
                T(PROBE)
            if cfg.rlite:
                nl = min(cfg.rlite, 32 - hh)
                for h2 in range(hh, hh + nl): T(ld(h2))
                T(f"s_waitcnt vmcnt({nl - 1})")
                T(f"v_max3_u32 v10, v{o}, v{o+1}, v{o+2}")
                T(f"v_max_u32 v10, v10, v{o+3}")
                T("v_cmp_eq_u32 vcc, -1, v10")
                T("s_nop 0")
                T(f"s_cbranch_vccnz L_oretry{hh}")
                for h2 in range(hh + nl, min(32, hh + LA)): T(ld(h2))
                T(f"s_branch L_ogo{hh}")
                tails.append(T)
                return
            for h2 in range(hh, min(32, hh + LA)): T(ld(h2))
            if hh == 0 and cfg.hswap in (1, 3): T("s_waitcnt lgkmcnt(4)")
            T(f"s_waitcnt vmcnt({min(LA - 1, 31 - hh)})")
            T(f"v_max3_u32 v10, v{o}, v{o+1}, v{o+2}")
            T(f"v_max_u32 v10, v10, v{o+3}")
            T("v_cmp_eq_u32 vcc, -1, v10")
            T("s_nop 0")
            T(f"s_cbranch_vccnz L_oretry{hh}")
            T(f"s_branch L_ogo{hh}")
            tails.append(T)
    if cfg.p3pipe:
        check(0, 0); A("s_waitcnt lgkmcnt(4)"); check(0, 1)
        for hh in range(32):
            F = WFR[hh % 4]; o = ofr(hh)
            R = rdw(hh + 2) if hh + 2 < 32 else []
            A(f"{M32} {v(acc(hh,0),16)}, {v(F,4)}, {v(o,4)}, {cin(hh,0)}")
            if hh + LA < 32: A(ld(hh + LA))
            if hh < 31: check(hh + 1, 0)
            A(f"{M32} {v(acc(hh,1),16)}, {v(F+4,4)}, {v(o,4)}, {cin(hh,1)}")
            for x in R: A(x)
            if hh < 31:
                A(f"s_waitcnt lgkmcnt({4 if hh + 1 < 31 else 0})")
                check(hh + 1, 1)
            if cfg.stamps == 4 and hh in (0, 7, 15, 23):
                A("s_memrealtime s[82:83]"); A("s_waitcnt lgkmcnt(0)"); A(f"v_writelane_b32 v31, s82, {57 + (hh + 1) // 8}")
    else:
        for hh in range(32):
            F = WFR[hh % 4]; o = ofr(hh)
            A(f"L_ostep{hh}:")
            A(f"s_waitcnt vmcnt({min(LA - 1, 31 - hh)})")
            A(f"v_max3_u32 v10, v{o}, v{o+1}, v{o+2}")
            A(f"v_max_u32 v10, v10, v{o+3}")
            A("v_cmp_eq_u32 vcc, -1, v10")
            A(f"s_waitcnt lgkmcnt({4 if hh < 31 else 0})")
            A(f"s_cbranch_vccnz L_oretry{hh}")
            A(f"L_ogo{hh}:")
            A(f"{M32} {v(AC[0],16)}, {v(F,4)}, {v(o,4)}, {'0' if hh == 0 else v(AC[0],16)}")
            if hh + LA < 32: A(ld(hh + LA))
            R = rdw(hh + 2) if hh + 2 < 32 else []
            for x in R[:2]: A(x)
            A(f"{M32} {v(AC[1],16)}, {v(F+4,4)}, {v(o,4)}, {'0' if hh == 0 else v(AC[1],16)}")
            for x in R[2:]: A(x)
            T = Asm()
            T(f"L_oretry{hh}:")
            T(f"s_sub_u32 s{sSpin}, s{sSpin}, 1")
            T(f"s_cmp_gt_i32 s{sSpin}, 0")
            T(f"s_cbranch_scc0 L_ogo{hh}")
            T("s_waitcnt vmcnt(0)")
            for h2 in range(hh, min(32, hh + LA)): T(ld(h2))
            T(f"s_branch L_ostep{hh}")
            tails.append(T)
    stamp(A, cfg, 8)
    lstamp(A, cfg, 41)
    if cfg.stamps == 4:
        A(f"s_sub_u32 s80, {SPIN_MAX + 1000}, s{sSpin}")
        A("v_writelane_b32 v31, s80, 53")
    A("s_nop 7")
    A("s_nop 2")
    for ct in (0, 1):
        if cfg.hswap == 3:
            for i in range(8): A(f"v_pk_add_f32 {v(AC[ct]+2*i,2)}, {v(AC[ct]+2*i,2)}, {v(AC2[ct]+2*i,2)}")
        for rq in range(4):
            A(f"ds_write_b128 v{12+rq}, {v(AC[ct]+4*rq,4)} offset:{ct*128}")
    A("s_branch L_p3_fin")
    A("L_p3_idle:")
    if not cfg.b7:
        A("s_waitcnt vmcnt(2)")
        A("s_barrier")
    stamp(A, cfg, 8)
    A("L_p3_fin:")
    A("v_lshrrev_b32 v16, 3, v0")
    A(f"s_lshl_b32 s{sT}, s{sWave}, 3")
    A(f"v_add_u32 v16, s{sT}, v16")
    A("v_and_b32 v17, 7, v0")
    A("v_lshlrev_b32 v18, 1, v17")
    A("v_and_b32 v19, 7, v16")
    A("v_xor_b32 v18, v18, v19")
    A("v_lshlrev_b32 v18, 4, v18")
    A("v_lshl_add_u32 v7, v16, 8, v18")
    A(f"v_add_u32 v7, {R0}, v7")
    A("v_xor_b32 v6, 16, v7")
    A("v_lshlrev_b32 v16, 10, v16")
    A("v_lshl_add_u32 v8, v17, 4, v16")
    A("s_waitcnt lgkmcnt(0)")
    lstamp(A, cfg, 42)
    A("s_barrier")
    lstamp(A, cfg, 43)
    A("ds_read_b128 v[64:67], v7")
    A("ds_read_b128 v[72:75], v7 offset:16384")
    A("ds_read_b128 v[68:71], v6")
    A("ds_read_b128 v[76:79], v6 offset:16384")
    A("s_waitcnt lgkmcnt(2)")
    for i in range(2): A(f"v_pk_add_f32 {v(64+2*i,2)}, {v(64+2*i,2)}, {v(72+2*i,2)}")
    A("s_waitcnt lgkmcnt(0)")
    for i in range(2, 4): A(f"v_pk_add_f32 {v(64+2*i,2)}, {v(64+2*i,2)}, {v(72+2*i,2)}")
    for i in range(4): A(f"v_cvt_pk_bf16_f32 v{96+i}, v{64+2*i}, v{65+2*i}")
    A(f"buffer_store_dwordx4 v[96:99], v8, s[{sOUT}:{sOUT+3}], s{sOut} offen" + ["", " sc1", " nt", " sc0 sc1", " sc1 nt"][cfg.outsc])

def build(cfg):
    tails.clear()
    XSWAP[0] = cfg.xswap
    P3W[0] = cfg.p3w
    PVSWAP[0] = cfg.pvswap
    VMASK[0] = cfg.vmask
    SHIFT[0] = "0.15915494" if cfg.cshift else "0"
    SMUSE[0] = cfg.sm
    ORDER[0] = cfg.korder
    ONES[0] = cfg.ones
    name = KN + "_kernel"
    A = Asm(); kernel_head(A, name)
    prologue(A, cfg)
    p1_compute(A, cfg)
    stamp(A, cfg, 2)
    lstamp(A, cfg, 27)
    p1_compute_epilogue(A, cfg)
    A("s_branch L_attn")
    A("L_loader:")
    p1_loader(A, cfg)
    stamp(A, cfg, 2)
    if cfg.c1c: p2_setup(A, cfg)
    A("L_attn:")
    if cfg.dbl: A("s_memrealtime s[82:83]")
    stamp(A, cfg, 3)
    lstamp(A, cfg, 28)
    if not cfg.c1c: p2_setup(A, cfg)
    p2_main(A, cfg)
    stamp(A, cfg, 5)
    lstamp(A, cfg, 37)
    if cfg.dbl: A("s_memrealtime s[86:87]")
    p2_check(A, cfg)
    p2_epilogue(A, cfg)
    stamp(A, cfg, 6)
    if cfg.p3w == 4: p3_four(A, cfg)
    else: p3(A, cfg)
    stamp_store(A, cfg, 10 if cfg.c0st else 9)
    if cfg.dbl:
        A("s_cmp_lg_u32 s2, 0")
        A("s_cbranch_scc1 L_end")
        A("s_waitcnt vmcnt(0)")
        A("s_memrealtime s[84:85]")
        A("s_waitcnt lgkmcnt(0)")
        a, b = {1: (80, 84), 2: (80, 82), 3: (82, 86), 4: (86, 84)}[cfg.dbl]
        A(f"s_sub_u32 s88, s{b}, s{a}")
        A("s_add_u32 s88, s88, s84")
        A("L_dbl:")
        A("s_memrealtime s[90:91]")
        A("s_waitcnt lgkmcnt(0)")
        A("s_sub_u32 s89, s90, s88")
        A("s_cmp_lt_i32 s89, 0")
        A("s_cbranch_scc1 L_dbl")
    A("L_end:")
    A("s_endpgm")
    txt = A.text() + "".join(t.text() for t in tails)
    hdr = f"""; gated_mix__softmax_full_mha__mha_block__prompt -- one persistent launch, 256 workgroups (one per CU) x 8 waves
; @launch grid=(256,1,1) block=(512,1,1) lds={LDS_TOTAL}
.amdgcn_target "amdgcn-amd-amdhsa--gfx950"
"""
    return hdr + txt + kernel_desc(name, 256)

if __name__ == "__main__":
    import sys
    cfg = Cfg()
    for a in sys.argv[2:]:
        k_, v_ = a.split("=")
        setattr(cfg, k_, int(v_, 0))
    open(sys.argv[1], "w").write(build(cfg))
```
